```python
import torch

def _softmax(x, axis=-1):
    return torch.softmax(x, dim=axis)
def _gelu(x):
    return torch.nn.functional.gelu(x, approximate="tanh")
def _silu(x):
    return torch.nn.functional.silu(x)
def _sigmoid(x):
    return torch.sigmoid(x)
def _layernorm(x, axis=-1, eps=1e-5):
    m = x.mean(dim=axis, keepdim=True)
    v = x.var(dim=axis, keepdim=True, unbiased=False)
    return (x - m) / torch.sqrt(v + eps)
def _scatter_add(tgt, idx, src, axis=0):
    return tgt.clone().index_add_(axis, idx, src)
def _segment_sum(src, seg, n):
    out = torch.zeros((n,) + src.shape[1:], dtype=src.dtype)
    return out.index_add_(0, seg, src)
def _pad(x, pw):
    flat = tuple(v for pair in reversed(pw) for v in pair)
    return torch.nn.functional.pad(x, flat)

kernel_name = 'interleave_layers__linear_kernel_hedgehog__geglu_ffn__prompt'

def setup_inputs():

    _w = (lambda a: (lambda t: t.to(torch.bfloat16) if t.is_floating_point() else t)(torch.as_tensor(a)))
    def _A_setup():
        B, S, D, H = 1, 2048, 448, 16
        Dh = D // H
        return {
            "x": _w((lambda *s: torch.randn(*s, dtype=torch.bfloat16) * 0.05)(B, S, D)),
            "wqkv": _w((lambda *s: torch.randn(*s, dtype=torch.bfloat16) * 0.2)(D, 3 * D)),
            "w_phi": _w((lambda *s: torch.randn(*s, dtype=torch.bfloat16) * 0.2)(H, Dh, Dh) * (Dh ** -0.5)),
            "wo": _w((lambda *s: torch.randn(*s, dtype=torch.bfloat16) * 0.05)(D, D)),
        }
    _A_in = _A_setup()

    def _B_setup():
        B, S, D, F = 1, 2048, 448, 1792
        return {
            "x": _w((lambda *s: torch.randn(*s, dtype=torch.bfloat16) * 0.05)(B, S, D)),
            "w_gate": _w((lambda *s: torch.randn(*s, dtype=torch.bfloat16) * 0.05)(D, F)),
            "w_up": _w((lambda *s: torch.randn(*s, dtype=torch.bfloat16) * 0.05)(D, F)),
            "w_down": _w((lambda *s: torch.randn(*s, dtype=torch.bfloat16) * 0.05)(F, D)),
        }
    _B_in = _B_setup()

    return {
        "A_x": _A_in["x"],
        "A_wqkv": _A_in["wqkv"],
        "A_w_phi": _A_in["w_phi"],
        "A_wo": _A_in["wo"],
        "B_x": _B_in["x"],
        "B_w_gate": _B_in["w_gate"],
        "B_w_up": _B_in["w_up"],
        "B_w_down": _B_in["w_down"],
    }

def reference(A_x, A_wqkv, A_w_phi, A_wo, B_x, B_w_gate, B_w_up, B_w_down):
    def _A_ref(x, wqkv, w_phi, wo):
        B, S, D = x.shape
        H = 16; Dh = D // H
        qkv = (lambda x, *d: x.permute(*d))((x @ wqkv).reshape(B, S, 3, H, Dh), 2, 0, 3, 1, 4)
        q, k, v = qkv[0], qkv[1], qkv[2]
        pq = torch.einsum("bhsd,hdf->bhsf", q, w_phi)
        pk = torch.einsum("bhsd,hdf->bhsf", k, w_phi)
        phi_q = torch.concatenate([_softmax(pq, axis=-1), _softmax(-pq, axis=-1)], axis=-1)
        phi_k = torch.concatenate([_softmax(pk, axis=-1), _softmax(-pk, axis=-1)], axis=-1)
        kv = torch.einsum("bhsf,bhsd->bhfd", phi_k, v)
        z  = torch.einsum("bhsf->bhf", phi_k)
        num = torch.einsum("bhqf,bhfd->bhqd", phi_q, kv)
        den = torch.einsum("bhqf,bhf->bhq", phi_q, z)[..., None] + 1e-6
        o = num / den
        return (lambda x, *d: x.permute(*d))(o, 0, 2, 1, 3).reshape(B, S, D) @ wo

    def _B_ref(x, w_gate, w_up, w_down):
        return (_gelu(x @ w_gate) * (x @ w_up)) @ w_down

    x = A_x
    x = x + _A_ref(_layernorm(x, axis=-1), A_wqkv, A_w_phi, A_wo)
    x = x + _B_ref(_layernorm(x, axis=-1), B_w_gate, B_w_up, B_w_down)
    x = x + _A_ref(_layernorm(x, axis=-1), A_wqkv, A_w_phi, A_wo)
    x = x + _B_ref(_layernorm(x, axis=-1), B_w_gate, B_w_up, B_w_down)
    return x
```

```python
import re

TRANS = ("v_exp_f32", "v_log_f32", "v_rcp_f32", "v_rsq_f32", "v_sqrt_f32", "v_sin_f32", "v_cos_f32")

def split_ops(s):
    out, depth, cur = [], 0, ""
    for ch in s:
        if ch == "[": depth += 1
        if ch == "]": depth -= 1
        if ch == "," and depth == 0:
            out.append(cur.strip()); cur = ""
        else:
            cur += ch
    if cur.strip(): out.append(cur.strip())
    return out

_reg1 = re.compile(r"^-?(?:abs\()?\|?([vas])(\d+)\|?\)?$")
_regn = re.compile(r"^-?([vas])\[(\d+):(\d+)\]$")

def regs_of(tok):
    tok = tok.strip()
    first = tok.split()[0] if tok else ""
    m = _reg1.match(first)
    if m: return [(m.group(1), int(m.group(2)))]
    m = _regn.match(first)
    if m: return [(m.group(1), i) for i in range(int(m.group(2)), int(m.group(3)) + 1)]
    if first == "vcc": return [("s", "vcc")]
    if first in ("vcc_lo", "vcc_hi"): return [("s", "vcc")]
    if first == "m0": return [("s", "m0")]
    if first in ("exec", "exec_lo", "exec_hi"): return [("s", "exec")]
    return []

class Ins:
    __slots__ = ("text", "op", "defs", "uses", "kind", "srcC", "srcAB", "cost", "tag")
    def __init__(self, text):
        self.text = text
        self.tag = None
        t = text.split(";")[0].strip()
        self.defs, self.uses, self.srcC, self.srcAB = [], [], [], []
        if not t or t.endswith(":") or t.startswith("."):
            self.op = "label" if t.endswith(":") else "none"
            self.kind = self.op
            return
        parts = t.split(None, 1)
        op = self.op = parts[0]
        ops = split_ops(parts[1]) if len(parts) > 1 else []
        R = [regs_of(o) for o in ops]
        flat = lambda L: [r for x in L for r in x]
        if op.startswith("v_mfma"):
            self.kind = "mfma"
            self.defs = R[0]; self.srcAB = R[1] + R[2]; self.srcC = R[3]
            self.uses = self.srcAB + self.srcC
        elif op.startswith("buffer_") or op.startswith("global_"):
            self.kind = "vmem"
            is_lds = " lds" in (" " + t)
            if "_load" in op and not is_lds:
                self.defs = R[0]; self.uses = flat(R[1:])
            else:
                self.uses = flat(R)
                if is_lds: self.uses += [("s", "m0")]
            if "_store" in op or "_atomic" in op: self.kind = "vmem_st"
        elif op.startswith("ds_"):
            self.kind = "ds"
            if op.startswith("ds_read") or op.startswith("ds_bpermute") or op.startswith("ds_swizzle"):
                self.defs = R[0]; self.uses = flat(R[1:])
            else:
                self.uses = flat(R)
        elif op.startswith("v_"):
            self.kind = "valu"
            if op in TRANS or op.replace("_e32", "") in TRANS: self.kind = "trans"
            if op.startswith("v_dot2"): self.kind = "dot"
            if op.startswith("v_permlane"):
                self.kind = "perm"
                self.defs = R[0] + R[1]; self.uses = R[0] + R[1]
            elif op.startswith("v_readfirstlane") or op.startswith("v_readlane"):
                self.kind = "rdlane"
                self.defs = R[0]; self.uses = flat(R[1:])
            elif op.startswith("v_cmp"):
                self.defs = R[0]; self.uses = flat(R[1:])
            elif op.startswith("v_fmac") or op.startswith("v_dot2c") or op.startswith("v_pk_fmac"):
                self.defs = R[0]; self.uses = flat(R)
            elif op.startswith("v_cndmask") and len(ops) == 3:
                self.defs = R[0]; self.uses = flat(R[1:]) + [("s", "vcc")]
            elif op.startswith("v_add_co") or op.startswith("v_addc_co"):
                self.defs = R[0] + R[1]; self.uses = flat(R[2:])
            else:
                self.defs = R[0]; self.uses = flat(R[1:])
        elif op.startswith("s_"):
            self.kind = "salu"
            if op in ("s_waitcnt", "s_barrier", "s_nop", "s_endpgm", "s_sleep", "s_setprio") or op.startswith("s_cbranch") or op == "s_branch":
                self.kind = op if op in ("s_nop",) else ("branch" if ("branch" in op) else "sctl")
            elif op.startswith("s_cmp"):
                self.uses = flat(R)
            elif op.startswith("s_load") or op.startswith("s_mem"):
                self.kind = "smem"; self.defs = R[0]; self.uses = flat(R[1:])
            else:
                self.defs = R[0]; self.uses = flat(R[1:])
        else:
            raise ValueError("unknown instruction: " + text)

    def states(self):
        if self.kind in ("label", "none"): return 0
        if self.op == "s_nop":
            return int(self.text.split()[1], 0) + 1
        return 1

class Asm:
    def __init__(self):
        self.ins = []
        self.vmq = []
        self.lgq = []
        self.uid = 0

    def e(self, text, tag=None):
        for line in text.split("\n"):
            line = line.strip()
            if not line: continue
            i = Ins(line)
            i.tag = tag
            self.ins.append(i)
            if i.kind in ("vmem", "vmem_st"): self.vmq.append(tag)
            elif i.kind == "ds": self.lgq.append(tag)
            elif i.op == "s_waitcnt":
                m = re.search(r"vmcnt\((\d+)\)", line)
                if m:
                    n = int(m.group(1))
                    self.vmq = self.vmq[len(self.vmq) - n:] if n < len(self.vmq) and n > 0 else ([] if n == 0 else self.vmq)
                m = re.search(r"lgkmcnt\((\d+)\)", line)
                if m:
                    n = int(m.group(1))
                    self.lgq = self.lgq[len(self.lgq) - n:] if n < len(self.lgq) and n > 0 else ([] if n == 0 else self.lgq)
    def label(self, name): self.e(name + ":")
    def newlabel(self, base):
        self.uid += 1
        return "%s_%d" % (base, self.uid)
    def e_uncounted(self, text):
        vq, lq = list(self.vmq), list(self.lgq)
        self.e(text)
        self.vmq, self.lgq = vq, lq

    def _need(self, q, tags):
        if isinstance(tags, str): tags = (tags,)
        last = -1
        for i, t in enumerate(q):
            if t in tags: last = i
        if last < 0: return None
        return len(q) - 1 - last
    def wait_vm(self, tags):
        n = self._need(self.vmq, tags)
        if n is not None: self.e("s_waitcnt vmcnt(%d)" % min(n, 63))
    def wait_lg(self, tags):
        n = self._need(self.lgq, tags)
        if n is not None: self.e("s_waitcnt lgkmcnt(%d)" % min(n, 15))
    def wait_both(self, vtags, ltags):
        n = self._need(self.vmq, vtags) if vtags else None
        m = self._need(self.lgq, ltags) if ltags else None
        s = []
        if n is not None: s.append("vmcnt(%d)" % min(n, 63))
        if m is not None: s.append("lgkmcnt(%d)" % min(m, 15))
        if s: self.e("s_waitcnt " + " ".join(s))

    def finalize(self):
        out = []
        pos = 0
        wr = {}
        rdC = {}
        st = {}
        added = 0
        def need_for(i):
            need = 0
            def req(p, n):
                nonlocal need
                need = max(need, n - (pos - p - 1))
            k = i.kind
            for r in i.uses:
                if r in wr:
                    p, wk = wr[r]
                    if wk == "mfma":
                        if k == "mfma":
                            if r in i.srcC and i.srcC == i.defs and wr.get(("mf", r)) == tuple(i.srcC): pass
                            elif r in i.srcC: req(p, 10)
                            if r in i.srcAB: req(p, 12)
                        elif k in ("valu", "trans", "dot", "perm", "rdlane", "vmem", "vmem_st", "ds"): req(p, 12)
                    elif wk in ("valu", "trans", "dot", "perm", "rdlane", "cmp"):
                        isv = r[0] in "va"
                        if isv:
                            if k == "mfma": req(p, 2)
                            if k == "perm": req(p, 2)
                            if k == "rdlane": req(p, 1)
                            if wk == "trans" and k != "trans": req(p, 1)
                            if wk == "dot" and not (k == "dot"): req(p, 3)
                            if wk == "dot" and k == "dot": req(p, 3 if r not in i.defs else 0)
                            if "dpp" in i.text: req(p, 2)
                        else:
                            if k in ("valu", "trans", "dot", "perm"): req(p, 2)
                            if k in ("vmem", "vmem_st"): req(p, 5)
                            if k == "rdlane": req(p, 4)
                            if k in ("salu", "branch", "smem"): req(p, 1)
                    elif wk == "salu":
                        if r == ("s", "m0") and k in ("vmem", "vmem_st", "ds"): req(p, 1)
            for r in i.defs:
                if r in wr and wr[r][1] == "mfma" and k != "mfma": req(wr[r][0], 12)
                if r in wr and wr[r][1] == "mfma" and k == "mfma" and not (r in i.srcC and i.srcC == i.defs):
                    req(wr[r][0], 10)
                if r in rdC and k in ("valu", "trans", "dot", "perm", "rdlane"): req(rdC[r], 7)
                if r in st and k != "salu": req(st[r], 2)
            return need
        for i in self.ins:
            if i.kind == "none":
                out.append(i); continue
            if i.kind == "label" or i.kind == "branch":
                worst = 0
                for r, (p, wk) in [(r, v) for r, v in wr.items() if r[0] != "mf"]:
                    n = {"mfma": 12, "valu": 2, "trans": 2, "dot": 3, "perm": 2, "rdlane": 5, "salu": 1, "cmp": 5}.get(wk, 0)
                    if r[0] == "s" and wk in ("valu", "rdlane", "trans"): n = 5
                    worst = max(worst, n - (pos - p - 1))
                for r, p in rdC.items(): worst = max(worst, 7 - (pos - p - 1))
                for r, p in st.items(): worst = max(worst, 2 - (pos - p - 1))
                while worst > 0:
                    n = min(worst, 16)
                    out.append(Ins("s_nop %d" % (n - 1))); pos += n; worst -= n; added += 1
                out.append(i)
                if i.kind == "branch": pos += 1
                continue
            need = need_for(i)
            while need > 0:
                n = min(need, 16)
                out.append(Ins("s_nop %d" % (n - 1))); pos += n; need -= n; added += 1
            out.append(i)
            for r in i.defs:
                wr[r] = (pos, i.kind)
                wr.pop(("mf", r), None)
            if i.kind == "mfma":
                for r in i.defs: wr[("mf", r)] = tuple(i.defs)
                for r in i.srcC: rdC[r] = pos
            if i.kind == "vmem_st" and ("x4" in i.op or "x3" in i.op):
                for r in i.uses:
                    if r[0] in "va": st[r] = pos
            pos += i.states()
            if len(wr) > 4000:
                wr = {r: v for r, v in wr.items() if r[0] == "mf" or pos - v[0] < 40}
        self.ins = out
        self.nops_added = added
        return self

    def text(self):
        L = []
        for i in self.ins:
            L.append(i.text if i.kind == "label" else "    " + i.text)
        return "\n".join(L) + "\n"

def interleave(main, fill, budget=24):
    raise NotImplementedError
```

```python
def kd(name, vgpr, accum, sgpr=96):
    return f""".p2align 6
.amdhsa_kernel {name}
  .amdhsa_next_free_vgpr {vgpr}
  .amdhsa_next_free_sgpr {sgpr}
  .amdhsa_accum_offset {accum}
  .amdhsa_group_segment_fixed_size 0
  .amdhsa_kernarg_size 88
  .amdhsa_user_sgpr_count 2
  .amdhsa_user_sgpr_kernarg_segment_ptr 1
  .amdhsa_system_sgpr_workgroup_id_x 1
  .amdhsa_float_denorm_mode_32 3
.end_amdhsa_kernel
"""
def head(name):
    return f".globl {name}\n.p2align 8\n.type {name},@function\n"
```

```python
S, D, H, DH, F = 2048, 448, 16, 28, 1792
KB = 1024
NT = S // 32
KS = D // 16
def al(x, a=4096): return (x + a - 1) // a * a
off = 0
def region(n):
    global off
    o = off; off = al(off + n); return o
KW = 29
WQKV = region(16 * 3 * KW * KB)
PHI  = region(16 * 2 * KB)
WO   = region(14 * 32 * KB)
WGU  = region(56 * 2 * KW * KB)
WD   = region(14 * 112 * KB)
XSZ  = NT * 28 * KB
X    = region(4 * XSZ)
STSZ = NT * 14 * 256
ST   = region(4 * STSZ)
SLABSZ = 16 * 4 * 16 * KB
SLAB = region(2 * SLABSZ)
OSZ  = NT * 32 * KB
O    = region(2 * OSZ)
HSZ  = NT * 112 * KB
HB   = region(2 * HSZ)
NSYNC = 10
FLAGZ = 11 * 4096
FLAGS = region(FLAGZ)
PFLAG = FLAGS + 2 * NSYNC * 16 * 128
DBG  = region(1 << 20)
WS_USED = off
def phi(hh, j): return 8 * (j // 4) + 4 * hh + (j % 4)
if __name__ == "__main__":
    for k in ("WQKV PHI WO WGU WD X ST SLAB O HB FLAGS DBG WS_USED").split(): print(k, hex(globals()[k]), globals()[k])
```

```python
from asmlib import Asm
from layout import *
import struct
def hexf(x): return "0x%08x" % struct.unpack("<I", struct.pack("<f", x))[0]

L_W1   = 0
L_SCR  = 86016
L_KVR  = 90112
L_KVA  = 122880
L_RED  = 114688
L_SCR3 = 114688
LDS_BYTES = 163840

S_RB, S_J, S_W, S_L, S_TH, S_CB, S_TT, S_NT = 12, 13, 14, 15, 16, 17, 18, 19
S_T0, S_T1, S_T2, S_T3 = 20, 21, 22, 23
S_SEL_LO, S_SEL_HI = 24, 25
S_UP = 26
S_CNT = 28
S_EX = 30
S_A, S_B, S_C, S_D2 = 32, 33, 34, 35

V_L16, V_L16H, V_STL, V_I8, V_ONE = 1, 2, 3, 4, 5
V_C = 6
V_T0, V_T1, V_T2, V_T3, V_T4, V_T5, V_T6, V_T7 = 8, 9, 10, 11, 12, 13, 14, 15
A_PHI, A_ID, A_RES = 232, 240, 248

def vr(b, n=4): return f"v[{b}:{b+n-1}]"
def ar(b, n=4): return f"a[{b}:{b+n-1}]"
MF = "v_mfma_f32_32x32x16_bf16"

class Gen:
    def __init__(self, name, stop=None, opts=None):
        self.a = Asm(); self.name = name; self.stop = stop; self.o = opts or {}

    def flag_addr(self, sidx, g_sreg, dst, prev_layer=False):
        a = self.a
        a.e(f"s_mul_i32 s{dst}, s{S_L}, {5*16*128}")
        a.e(f"s_lshl_b32 s{S_T3}, s{g_sreg}, 7")
        a.e(f"s_add_u32 s{dst}, s{dst}, s{S_T3}")
        c = FLAGS + sidx * 16 * 128 - (5 * 16 * 128 if prev_layer else 0)
        a.e(f"s_add_u32 s{dst}, s{dst}, {c}")

    def arrive(self, sidx, g_sreg, tags):
        a = self.a
        a.wait_vm(tags)
        a.e("s_barrier")
        lab = a.newlabel("arr")
        self.flag_addr(sidx, g_sreg, S_T2)
        a.e(f"s_cmp_lg_u32 s{S_W}, 0\ns_cbranch_scc1 {lab}")
        a.e_uncounted(f"s_mov_b64 exec, 1\nv_mov_b32 v{V_T7}, 1\nbuffer_atomic_add v{V_T7}, off, s[4:7], s{S_T2} sc1\ns_mov_b64 exec, -1")
        a.label(lab)

    def poll(self, sidx, g_sreg, target, prev_layer=False):
        a = self.a
        lab, lp, lx = a.newlabel("pol"), a.newlabel("plp"), a.newlabel("plx")
        self.flag_addr(sidx, g_sreg, S_T2, prev_layer)
        a.e(f"s_cmp_lg_u32 s{S_W}, 0\ns_cbranch_scc1 {lab}")
        vq, lq = list(a.vmq), list(a.lgq)
        a.e(f"s_mov_b64 exec, 1\ns_mov_b32 s{S_CNT}, 0")
        a.label(lp)
        a.e(f"buffer_load_dword v{V_T7}, off, s[4:7], s{S_T2} sc1")
        a.e(f"s_add_u32 s{S_CNT}, s{S_CNT}, 1\ns_cmp_gt_u32 s{S_CNT}, 400000\ns_cbranch_scc1 {lx}")
        a.e(f"s_waitcnt vmcnt(0)\nv_readfirstlane_b32 s{S_T3}, v{V_T7}")
        a.e(f"s_cmp_lt_u32 s{S_T3}, {target}\ns_cbranch_scc1 {lp}")
        a.label(lx)
        a.e("s_waitcnt vmcnt(0)\ns_mov_b64 exec, -1")
        a.vmq, a.lgq = vq, lq
        a.label(lab)
        a.e("s_barrier")

    def bload(self, dst, vaddr, soff, imm, tag, sc1=True, n=4):
        op = {4: "buffer_load_dwordx4", 2: "buffer_load_dwordx2", 1: "buffer_load_dword"}[n]
        self.a.e(f"{op} {dst}, v{vaddr}, s[4:7], s{soff} offen" + (f" offset:{imm}" if imm else "") + (" sc1" if sc1 else ""), tag=tag)

    def seq_loads(self, n, dstf, vaddr, soff, tagf, sc1=True, stride=1024):
        a = self.a
        for i in range(n):
            self.bload(dstf(i), vaddr, soff, (i % 4) * 1024, tagf(i), sc1)
            if i % 4 == 3 and i != n - 1: a.e(f"s_add_u32 s{soff}, s{soff}, 4096")

    def dma(self, n, lds_sreg, soff, tag, sc1):
        a = self.a
        for i in range(n):
            if i % 4 == 0:
                a.e(f"s_mov_b32 m0, s{lds_sreg}")
            a.e(f"buffer_load_dwordx4 v{V_L16}, s[4:7], s{soff} offen" + (f" offset:{(i%4)*1024}" if i % 4 else "") + (" sc1" if sc1 else "") + " lds", tag=tag)
            if i % 4 == 3 and i != n - 1:
                a.e(f"s_add_u32 s{soff}, s{soff}, 4096\ns_add_u32 s{lds_sreg}, s{lds_sreg}, 4096")

    def ldsaddr(self, off):
        if off < 65536: return V_L16, off
        assert off < 131072
        return V_L16H, off - 65536

    def end_if_stop(self, tag):
        if self.stop == tag:
            self.a.e("s_waitcnt vmcnt(0) lgkmcnt(0)")
            self.a.e(f"s_branch {self.name}_done")
            return True
        return False

    def p1_weight_dma(self):
        a = self.a
        a.e(f"s_mul_i32 s{S_T0}, s{S_J}, {84*KB}\ns_mul_i32 s{S_T1}, s{S_W}, {21*KB}")
        a.e(f"s_add_u32 s{S_T0}, s{S_T0}, s{S_T1}\ns_add_u32 s{S_T0}, s{S_T0}, {WQKV}")
        self.dma(21, S_T1, S_T0, "w1", False)

    def prologue(self):
        a, n = self.a, self.name
        a.label(n)
        a.e(f"s_cmp_lt_u32 s2, 256\ns_cbranch_scc1 {n}_go\ns_endpgm")
        a.label(f"{n}_go")
        a.e("s_load_dwordx2 s[4:5], s[0:1], 80\ns_load_dwordx2 s[8:9], s[0:1], 64")
        a.e(f"s_mov_b32 s6, {WS_USED}\ns_mov_b32 s7, 0x20000\ns_mov_b32 s10, {S*D*2}\ns_mov_b32 s11, 0x20000")
        a.e(f"s_and_b32 s{S_RB}, s2, 15\ns_lshr_b32 s{S_J}, s2, 4")
        a.e(f"v_lshrrev_b32 v{V_T0}, 6, v0\nv_and_b32 v{V_T1}, 63, v0\nv_lshlrev_b32 v{V_L16}, 4, v{V_T1}")
        a.e(f"v_readfirstlane_b32 s{S_W}, v{V_T0}")
        a.e(f"v_add_u32 v{V_L16H}, 0x10000, v{V_L16}")
        a.e(f"v_and_b32 v{V_T2}, 31, v0\nv_bfe_u32 v{V_T3}, v0, 5, 1")
        a.e(f"v_lshlrev_b32 v{V_I8}, 3, v{V_T2}")
        a.e(f"v_mul_u32_u24 v{V_STL}, 1792, v{V_T3}\nv_add_u32 v{V_STL}, v{V_STL}, v{V_I8}")
        a.e(f"s_min_u32 s{S_T0}, s{S_J}, 13")
        a.e(f"s_cmp_ge_u32 s{S_T0}, 7\ns_cselect_b32 s{S_TH}, 1, 0")
        a.e(f"s_mul_i32 s{S_T1}, s{S_TH}, 7\ns_sub_u32 s{S_CB}, s{S_T0}, s{S_T1}")
        a.e(f"s_lshr_b32 s{S_TT}, s{S_W}, 1\ns_and_b32 s{S_NT}, s{S_W}, 1")
        a.e(f"s_mov_b32 s{S_SEL_LO}, 0x3f80\ns_mov_b32 s{S_SEL_HI}, 0x3f800000")
        a.e(f"s_mov_b32 s{S_UP}, 0\ns_mov_b32 s{S_UP+1}, -1")
        a.e(f"s_mov_b32 s{S_L}, 0")
        a.e("s_waitcnt lgkmcnt(0)")
        self.p1_weight_dma()
        a.e(f"s_lshl_b32 s{S_T0}, s{S_J}, 11\ns_add_u32 s{S_T0}, s{S_T0}, {PHI}")
        self.seq_loads(2, lambda i: ar(A_PHI + 4 * i), V_L16, S_T0, lambda i: "phi", sc1=False)
        self.tile_index(S_T0)
        a.e(f"s_mul_i32 s{S_T0}, s{S_T0}, 28")
        a.e(f"s_lshl_b32 s{S_T1}, s{S_CB}, 1\ns_add_u32 s{S_T1}, s{S_T1}, s{S_NT}\ns_lshl_b32 s{S_T1}, s{S_T1}, 1")
        a.e(f"s_add_u32 s{S_T0}, s{S_T0}, s{S_T1}\ns_lshl_b32 s{S_T0}, s{S_T0}, 10\ns_add_u32 s{S_T0}, s{S_T0}, {X}")
        self.seq_loads(2, lambda i: ar(A_RES + 4 * i), V_L16, S_T0, lambda i: "res", sc1=False)
        a.e(f"v_cmp_eq_u32 vcc, 28, v{V_T2}\nv_mov_b32 v{V_T4}, 1.0\nv_mov_b32 v{V_ONE}, 0\nv_cndmask_b32 v{V_ONE}, v{V_ONE}, v{V_T4}, vcc")
        a.e(f"v_lshlrev_b32 v{V_T3}, 2, v{V_T3}\nv_sub_u32 v{V_T2}, v{V_T2}, v{V_T3}")
        a.e(f"v_mov_b32 v{V_T4}, 0x3f80\nv_mov_b32 v{V_T5}, 0x3f800000")
        for s in range(2):
            for d in range(4):
                j = 2 * d
                c = 16 * s + 8 * (j // 4) + (j % 4)
                a.e(f"v_mov_b32 v{V_T6}, 0")
                a.e(f"v_cmp_eq_u32 vcc, {c}, v{V_T2}\nv_cndmask_b32 v{V_T6}, v{V_T6}, v{V_T4}, vcc")
                a.e(f"v_cmp_eq_u32 vcc, {c+1}, v{V_T2}\nv_cndmask_b32 v{V_T6}, v{V_T6}, v{V_T5}, vcc")
                a.e(f"v_accvgpr_write_b32 a{A_ID+4*s+d}, v{V_T6}")

    def tile_index(self, dst):
        a = self.a
        a.e(f"s_lshl_b32 s{dst}, s{S_RB}, 1\ns_add_u32 s{dst}, s{dst}, s{S_TH}\ns_lshl_b32 s{dst}, s{dst}, 1\ns_add_u32 s{dst}, s{dst}, s{S_TT}")

    def stats_reduce(self, base, vV, vM, t0, t1):
        L = []
        b = base
        for k in (0, 1):
            L += [f"v_add_f32 v{b+k}, v{b+k}, v{b+2+k}", f"v_add_f32 v{b+4+k}, v{b+4+k}, v{b+6+k}", f"v_add_f32 v{b+8+k}, v{b+8+k}, v{b+10+k}"]
        for k in (0, 1):
            L += [f"v_add_f32 v{b+k}, v{b+k}, v{b+4+k}", f"v_add_f32 v{b+8+k}, v{b+8+k}, v{b+12+k}"]
        for k in (0, 1):
            L += [f"v_add_f32 v{b+k}, v{b+k}, v{b+8+k}"]
        L += [f"v_mov_b32 v{t0}, v{b}", f"v_mov_b32 v{t1}, v{b+1}",
              f"v_permlane32_swap_b32 v{t0}, v{b}", f"v_permlane32_swap_b32 v{t1}, v{b+1}",
              f"v_add_f32 v{b}, v{b}, v{t0}", f"v_add_f32 v{b+1}, v{b+1}, v{t1}",
              f"v_mul_f32 v{vM}, {hexf(1.0/D)}, v{b}",
              f"v_mul_f32 v{t0}, v{vM}, v{vM}",
              f"v_mul_f32 v{t1}, {hexf(1.0/D)}, v{b+1}",
              f"v_sub_f32 v{vV}, v{t1}, v{t0}",
              f"v_max_f32 v{vV}, 0, v{vV}",
              f"v_add_f32 v{vV}, {hexf(1e-5)}, v{vV}"]
        return L

    def softmax(self, R, P, t):
        mx, mn, u, w, bp, bn, bpm, bnm = [t + k for k in range(8)]
        L = []
        L.append(f"v_max3_f32 v{mx}, v{R}, v{R+1}, v{R+2}")
        L.append(f"v_min3_f32 v{mn}, v{R}, v{R+1}, v{R+2}")
        for k in range(3, 15, 2):
            L.append(f"v_max3_f32 v{mx}, v{mx}, v{R+k}, v{R+k+1}")
            L.append(f"v_min3_f32 v{mn}, v{mn}, v{R+k}, v{R+k+1}")
        L.append(f"v_max_f32 v{mx}, v{mx}, v{R+15}")
        L.append(f"v_min_f32 v{mn}, v{mn}, v{R+15}")
        L += [f"v_mov_b32 v{u}, v{mx}", f"v_mov_b32 v{w}, v{mn}",
              f"v_permlane32_swap_b32 v{u}, v{mx}", f"v_permlane32_swap_b32 v{w}, v{mn}",
              f"v_max_f32 v{mx}, v{mx}, v{u}", f"v_min_f32 v{mn}, v{mn}, v{w}",
              f"v_mul_f32 v{bp}, v{V_C}, v{mx}", f"v_mul_f32 v{bn}, v{V_C}, v{mn}",
              f"v_mov_b32 v{u}, {hexf(1e30)}", f"v_mov_b32 v{w}, {hexf(-1e30)}",
              f"v_cndmask_b32 v{bpm}, v{bp}, v{u}, s[{S_UP}:{S_UP+1}]",
              f"v_cndmask_b32 v{bnm}, v{bn}, v{w}, s[{S_UP}:{S_UP+1}]"]
        for g in range(4):
            for k in range(4):
                r = 4 * g + k
                L.append(f"v_fma_f32 v{P+r}, v{R+r}, v{V_C}, -v{bpm if g == 3 else bp}")
            for k in range(4):
                r = 4 * g + k
                L.append(f"v_fma_f32 v{R+r}, -v{R+r}, v{V_C}, v{bnm if g == 3 else bn}")
            for k in range(4): L.append(f"v_exp_f32 v{P+4*g+k}, v{P+4*g+k}")
            for k in range(4): L.append(f"v_exp_f32 v{R+4*g+k}, v{R+4*g+k}")
        sp, sn = mx, mn
        L += [f"v_add_f32 v{sp}, v{P}, v{P+1}", f"v_add_f32 v{sn}, v{R}, v{R+1}",
              f"v_add_f32 v{u}, v{P+2}, v{P+3}", f"v_add_f32 v{w}, v{R+2}, v{R+3}"]
        for k in range(4, 16, 2):
            L += [f"v_add_f32 v{sp}, v{sp}, v{P+k}", f"v_add_f32 v{sn}, v{sn}, v{R+k}",
                  f"v_add_f32 v{u}, v{u}, v{P+k+1}", f"v_add_f32 v{w}, v{w}, v{R+k+1}"]
        L += [f"v_add_f32 v{sp}, v{sp}, v{u}", f"v_add_f32 v{sn}, v{sn}, v{w}",
              f"v_mov_b32 v{u}, v{sp}", f"v_mov_b32 v{w}, v{sn}",
              f"v_permlane32_swap_b32 v{u}, v{sp}", f"v_permlane32_swap_b32 v{w}, v{sn}",
              f"v_add_f32 v{sp}, v{sp}, v{u}", f"v_add_f32 v{sn}, v{sn}, v{w}",
              f"v_rcp_f32 v{sp}, v{sp}", f"v_rcp_f32 v{sn}, v{sn}"]
        for k in range(16): L.append(f"v_mul_f32 v{P+k}, v{P+k}, v{sp}")
        for d in range(8): L.append(f"v_cvt_pk_bf16_f32 v{P+d}, v{P+2*d}, v{P+2*d+1}")
        for k in range(16): L.append(f"v_mul_f32 v{R+k}, v{R+k}, v{sn}")
        for d in range(8): L.append(f"v_cvt_pk_bf16_f32 v{R+d}, v{R+2*d}, v{R+2*d+1}")
        return L

    def phi_apply(self, R, tb):
        L = [f"v_cvt_pk_bf16_f32 v{tb+d}, v{R+2*d}, v{R+2*d+1}" for d in range(8)]
        L.append(f"{MF} {vr(R,16)}, {ar(A_PHI)}, {vr(tb)}, 0")
        L.append(f"{MF} {vr(R,16)}, {ar(A_PHI+4)}, {vr(tb+4)}, {vr(R,16)}")
        return L

    def weave(self, mains, fills, budget=24):
        a = self.a
        fi = 0
        for m in mains:
            m()
            c = 0
            while fi < len(fills):
                t = fills[fi]
                cost = 8 if t.startswith(("v_exp", "v_rcp", "v_rsq")) else (32 if t.startswith("v_mfma") else 4)
                if callable(getattr(t, "__call__", None)): pass
                if c and c + cost > budget: break
                self.emit(t); fi += 1; c += cost
        while fi < len(fills):
            self.emit(fills[fi]); fi += 1

    def emit(self, t):
        a = self.a
        if t.startswith("@waitlg "): a.wait_lg(t.split()[1])
        elif t.startswith("@waitvm "): a.wait_vm(t.split()[1])
        elif "|" in t:
            txt, tag = t.split("|"); a.e(txt, tag=tag)
        else: a.e(t)
    def emits(self, L):
        for t in L: self.emit(t)

    def p1(self):
        a = self.a
        XF, RK, RV, RQ, RING, RS, RA, RB, TB = 16, 128, 144, 160, 176, 192, 208, 224, 240
        a.e(f"s_lshl_b32 s{S_T0}, s{S_RB}, 2\ns_add_u32 s{S_T0}, s{S_T0}, s{S_W}")
        a.e(f"s_mul_i32 s{S_A}, s{S_T0}, {28*KB}\ns_mul_i32 s{S_T1}, s{S_L}, {2*XSZ}\ns_add_u32 s{S_A}, s{S_A}, s{S_T1}\ns_add_u32 s{S_A}, s{S_A}, {X}")
        a.e(f"s_mul_i32 s{S_B}, s{S_T0}, 3584\ns_mul_i32 s{S_T1}, s{S_L}, {2*STSZ}\ns_add_u32 s{S_B}, s{S_B}, s{S_T1}\ns_add_u32 s{S_B}, s{S_B}, {ST}")
        for k in range(7):
            self.bload(vr(RA + 2 * k, 2), V_STL, S_B, k * 256, "st", n=2)
        self.seq_loads(28, lambda s: vr(XF + 4 * s), V_L16, S_A, lambda s: f"x{s}")
        a.wait_vm(("w1", "phi", "res"))
        a.e("s_barrier")
        def rdA(s):
            sl = RING + 8 * (s % 4)
            r, o = self.ldsaddr(L_W1 + (28 + s) * KB); a.e(f"ds_read_b128 {vr(sl)}, v{r} offset:{o}", tag=f"a{s}")
            r, o = self.ldsaddr(L_W1 + (56 + s) * KB); a.e(f"ds_read_b128 {vr(sl+4)}, v{r} offset:{o}", tag=f"a{s}")
        for s in range(3): rdA(s)
        def mk(s):
            def f():
                if s + 3 < 28: rdA(s + 3)
                a.wait_both(f"x{s}", f"a{s}")
                sl = RING + 8 * (s % 4)
                a.e(f"{MF} {vr(RK,16)}, {vr(sl)}, {vr(XF+4*s)}, {vr(RK,16) if s else 0}")
            return f
        def mv(s):
            def f():
                sl = RING + 8 * (s % 4)
                a.e(f"{MF} {vr(RV,16)}, {vr(XF+4*s)}, {vr(sl+4)}, {vr(RV,16) if s else 0}")
            return f
        mains = []
        for s in range(28): mains += [mk(s), mv(s)]
        fills = ["@waitvm st"] + self.stats_reduce(RA, V_T0, V_T1, V_T2, V_T3)
        fills += [f"v_rsq_f32 v{V_T0}, v{V_T0}",
                  f"v_lshrrev_b32 v{V_T1}, 1, v{V_I8}",
                  f"s_lshl_b32 s{S_T0}, s{S_W}, 7", f"s_add_u32 s{S_T0}, s{S_T0}, {L_SCR}",
                  f"v_add_u32 v{V_T1}, s{S_T0}, v{V_T1}",
                  f"ds_write_b32 v{V_T1}, v{V_T0}|scw",
                  f"v_mul_f32 v{V_C}, {hexf(1.4426950408889634)}, v{V_T0}"]
        self.weave(mains, fills)
        a.e(f"v_lshrrev_b32 v{V_T1}, 5, v{V_L16}\nv_and_b32 v{V_T1}, 16, v{V_T1}")
        a.e(f"s_lshl_b32 s{S_T0}, s{S_W}, 7\ns_add_u32 s{S_T0}, s{S_T0}, {L_SCR}\nv_add_u32 v{V_T1}, s{S_T0}, v{V_T1}")
        a.wait_lg("scw")
        def rdB(s):
            sl = RING + 4 * (s % 4)
            r, o = self.ldsaddr(L_W1 + s * KB); a.e(f"ds_read_b128 {vr(sl)}, v{r} offset:{o}", tag=f"b{s}")
        for s in range(3): rdB(s)
        for g in range(4):
            a.e(f"ds_read_b128 {vr(RS+4*g)}, v{V_T1} offset:{g*32}", tag="rs")
        def mq(s):
            def f():
                if s + 3 < 28: rdB(s + 3)
                a.wait_lg(f"b{s}")
                sl = RING + 4 * (s % 4)
                a.e(f"{MF} {vr(RQ,16)}, {vr(sl)}, {vr(XF+4*s)}, {vr(RQ,16) if s else 0}")
            return f
        chain = self.phi_apply(RK, TB) + self.softmax(RK, RA, V_T0)
        vch = ["@waitlg rs"] + [f"v_fma_f32 v{RV+r}, v{RV+r}, v{RS+r}, v{V_ONE}" for r in range(16)]
        vch += [f"v_cvt_pk_bf16_f32 v{RV+d}, v{RV+2*d}, v{RV+2*d+1}" for d in range(8)]
        mains = [mq(s) for s in range(28)]
        mains[0](); mains[1]()
        self.weave(mains[2:], vch[:0] + chain)
        self.emits(vch)
        a.e(f"{MF} {vr(RB,16)}, {vr(RA)}, {ar(A_ID)}, 0")
        a.e(f"{MF} {vr(RB,16)}, {vr(RA+4)}, {ar(A_ID+4)}, {vr(RB,16)}")
        a.e(f"{MF} {vr(RA,16)}, {vr(RK)}, {ar(A_ID)}, 0")
        a.e(f"{MF} {vr(RA,16)}, {vr(RK+4)}, {ar(A_ID+4)}, {vr(RA,16)}")
        for d in range(8): a.e(f"v_cvt_pk_bf16_f32 v{RB+d}, v{RB+2*d}, v{RB+2*d+1}")
        a.e(f"{MF} {vr(RK,16)}, {vr(RB)}, {vr(RV)}, 0")
        for d in range(8): a.e(f"v_cvt_pk_bf16_f32 v{RA+d}, v{RA+2*d}, v{RA+2*d+1}")
        a.e(f"{MF} {vr(RK,16)}, {vr(RB+4)}, {vr(RV+4)}, {vr(RK,16)}")
        a.e(f"{MF} {vr(RB,16)}, {vr(RA)}, {vr(RV)}, 0")
        a.e(f"{MF} {vr(RB,16)}, {vr(RA+4)}, {vr(RV+4)}, {vr(RB,16)}")
        a.e(f"s_lshl_b32 s{S_T0}, s{S_W}, 11\ns_add_u32 s{S_T0}, s{S_T0}, {L_KVR}\nv_add_u32 v{V_T0}, s{S_T0}, v{V_L16}")
        a.e(f"s_lshl_b32 s{S_T0}, s{S_W}, 13\ns_add_u32 s{S_T0}, s{S_T0}, {L_KVR}\nv_add_u32 v{V_T1}, s{S_T0}, v{V_L16}")
        for t, R in ((0, RK), (1, RB)):
            for s in range(2):
                for g in range(2):
                    a.e(f"ds_write_b128 v{V_T0}, {vr(R+8*s+4*g)} offset:{(2*t+s)*8192+g*1024}", tag="kw")
        a.e("s_waitcnt lgkmcnt(0)\ns_barrier")
        KR = 80
        for ws in range(4):
            for g in range(2):
                a.e(f"ds_read_b128 {vr(KR+8*ws+4*g)}, v{V_T1} offset:{(ws*2+g)*1024}", tag=f"kr{ws}")
        a.wait_lg("kr1")
        for r in range(8): a.e(f"v_add_f32 v{KR+r}, v{KR+r}, v{KR+8+r}")
        a.wait_lg("kr3")
        for r in range(8): a.e(f"v_add_f32 v{KR+16+r}, v{KR+16+r}, v{KR+24+r}")
        for r in range(8): a.e(f"v_add_f32 v{KR+r}, v{KR+r}, v{KR+16+r}")
        for d in range(4): a.e(f"v_cvt_pk_bf16_f32 v{KR+d}, v{KR+2*d}, v{KR+2*d+1}")
        a.e(f"s_lshl_b32 s{S_T0}, s{S_J}, 2\ns_add_u32 s{S_T0}, s{S_T0}, s{S_W}\ns_lshl_b32 s{S_T0}, s{S_T0}, 14")
        a.e(f"s_mul_i32 s{S_T1}, s{S_L}, {SLABSZ}\ns_add_u32 s{S_T0}, s{S_T0}, s{S_T1}\ns_add_u32 s{S_C}, s{S_T0}, {SLAB}")
        a.e(f"s_lshl_b32 s{S_T1}, s{S_RB}, 10\ns_add_u32 s{S_T0}, s{S_C}, s{S_T1}")
        a.e(f"buffer_store_dwordx4 {vr(KR)}, v{V_L16}, s[4:7], s{S_T0} offen sc1", tag="slab")
        for sl in range(2):
            a.e(f"s_xor_b32 s{S_T0}, s{S_NT}, {sl}\ns_lshl_b32 s{S_T1}, s{S_CB}, 1\ns_add_u32 s{S_T0}, s{S_T0}, s{S_T1}")
            a.e(f"s_lshl_b32 s{S_T0}, s{S_T0}, 5\ns_lshl_b32 s{S_T1}, s{S_W}, 3\ns_add_u32 s{S_T0}, s{S_T0}, s{S_T1}")
            a.e(f"s_lshl_b32 s{S_T0}, s{S_T0}, 10\ns_add_u32 s{S_T0}, s{S_T0}, {WO}")
            self.seq_loads(8, lambda i: vr(16 + 32 * sl + 4 * i), V_L16, S_T0, lambda i: "wo", sc1=False)
        self.emits(self.phi_apply(RQ, TB) + self.softmax(RQ, RA, V_T0))
        self.arrive(0, S_J, "slab")
        self.RA, self.RQ = RA, RQ

    def p2a(self):
        a = self.a
        RA, RQ = self.RA, self.RQ
        SL, AC, KA, RB, TB = 80, 176, 188, 224, 240
        self.poll(0, S_J, 16)
        self.seq_loads(16, lambda i: vr(SL + 4 * i), V_L16, S_C, lambda i: f"sl{i}")
        for i in range(16):
            a.wait_vm(f"sl{i}")
            for d in range(4):
                a.e(f"v_dot2_f32_bf16 v{AC+2*d}, v{SL+4*i+d}, s{S_SEL_LO}, {'v%d' % (AC+2*d) if i else 0}")
                a.e(f"v_dot2_f32_bf16 v{AC+2*d+1}, v{SL+4*i+d}, s{S_SEL_HI}, {'v%d' % (AC+2*d+1) if i else 0}")
        for d in range(4): a.e(f"v_cvt_pk_bf16_f32 v{AC+8+d}, v{AC+2*d}, v{AC+2*d+1}")
        a.e(f"s_lshl_b32 s{S_T0}, s{S_W}, 10\ns_add_u32 s{S_T0}, s{S_T0}, {L_KVA}\nv_add_u32 v{V_T0}, s{S_T0}, v{V_L16}")
        a.e(f"ds_write_b128 v{V_T0}, {vr(AC+8)}")
        a.e("s_waitcnt lgkmcnt(0)\ns_barrier")
        for p in range(4):
            r, o = self.ldsaddr(L_KVA + p * KB)
            a.e(f"ds_read_b128 {vr(KA+4*p)}, v{r} offset:{o}", tag=f"ka{p}")
        Bs = [RA, RA + 4, RQ, RQ + 4]
        for p in range(4):
            a.wait_lg(f"ka{p}")
            a.e(f"{MF} {vr(RB,16)}, {vr(KA+4*p)}, {vr(Bs[p])}, {vr(RB,16) if p else 0}")
        a.e(f"v_mov_b32 v{V_T0}, v{RB+12}\nv_mov_b32 v{V_T1}, v{RB+12}")
        a.e(f"v_permlane32_swap_b32 v{V_T0}, v{V_T1}")
        a.e(f"v_add_f32 v{V_T1}, {hexf(1e-6)}, v{V_T1}\nv_rcp_f32 v{V_T1}, v{V_T1}")
        for r in range(16): a.e(f"v_mul_f32 v{RB+r}, v{RB+r}, v{V_T1}")
        for d in range(8): a.e(f"v_cvt_pk_bf16_f32 v{TB+d}, v{RB+2*d}, v{RB+2*d+1}")
        a.e(f"s_lshl_b32 s{S_T0}, s{S_RB}, 2\ns_add_u32 s{S_T0}, s{S_T0}, s{S_W}\ns_lshl_b32 s{S_T0}, s{S_T0}, 4\ns_add_u32 s{S_T0}, s{S_T0}, s{S_J}\ns_lshl_b32 s{S_T0}, s{S_T0}, 11")
        a.e(f"s_mul_i32 s{S_T1}, s{S_L}, {OSZ}\ns_add_u32 s{S_T0}, s{S_T0}, s{S_T1}\ns_add_u32 s{S_T0}, s{S_T0}, {O}")
        a.e(f"buffer_store_dwordx4 {vr(TB)}, v{V_L16}, s[4:7], s{S_T0} offen sc1", tag="ost")
        a.e(f"buffer_store_dwordx4 {vr(TB+4)}, v{V_L16}, s[4:7], s{S_T0} offen offset:1024 sc1", tag="ost")
        self.arrive(1, S_RB, "ost")

    def reduce_epilogue(self, ACC, xidx_expr, final_possible):
        a = self.a
        n = self.name
        for u in range(1, 4):
            a.e(f"s_xor_b32 s{S_T0}, s{S_W}, {u}\ns_mul_i32 s{S_T0}, s{S_T0}, 12288\ns_add_u32 s{S_T0}, s{S_T0}, {L_RED+(u-1)*4096}")
            a.e(f"v_add_u32 v{V_T0+u}, s{S_T0}, v{V_L16}")
        for u in range(1, 4):
            for g in range(4):
                a.e(f"ds_write_b128 v{V_T0+u}, {vr(ACC+16*u+4*g)} offset:{g*1024}", tag="rw")
        a.e(f"s_mul_i32 s{S_T0}, s{S_W}, 12288\ns_add_u32 s{S_T0}, s{S_T0}, {L_RED}\nv_add_u32 v{V_T0}, s{S_T0}, v{V_L16}")
        a.e("s_waitcnt lgkmcnt(0)\ns_barrier")
        RD = ACC + 16
        for u in range(3):
            for g in range(4):
                a.e(f"ds_read_b128 {vr(RD+16*u+4*g)}, v{V_T0} offset:{u*4096+g*1024}", tag=f"rr{u}")
        TR = ACC + 64
        for d in range(8): a.e(f"v_accvgpr_read_b32 v{TR+16+d}, a{A_RES+d}")
        for d in range(8):
            a.e(f"v_lshlrev_b32 v{TR+2*d}, 16, v{TR+16+d}\nv_and_b32 v{TR+2*d+1}, 0xffff0000, v{TR+16+d}")
        for r in range(16): a.e(f"v_add_f32 v{ACC+r}, v{ACC+r}, v{TR+r}")
        for u in range(3):
            a.wait_lg(f"rr{u}")
            for r in range(16): a.e(f"v_add_f32 v{ACC+r}, v{ACC+r}, v{RD+16*u+r}")
        PK = TR
        for d in range(8): a.e(f"v_cvt_pk_bf16_f32 v{PK+d}, v{ACC+2*d}, v{ACC+2*d+1}")
        self.PK, self.ACC = PK, ACC

    def store_x_and_stats(self, xsel):
        a = self.a
        PK, ACC = self.PK, self.ACC
        self.tile_index(S_A)
        a.e(f"s_lshl_b32 s{S_B}, s{S_CB}, 1\ns_add_u32 s{S_B}, s{S_B}, s{S_NT}")
        a.e(f"s_mul_i32 s{S_T0}, s{S_A}, 28\ns_lshl_b32 s{S_T1}, s{S_B}, 1\ns_add_u32 s{S_T0}, s{S_T0}, s{S_T1}\ns_lshl_b32 s{S_T0}, s{S_T0}, 10")
        a.e(f"s_mul_i32 s{S_T1}, s{S_L}, {2*XSZ}\ns_add_u32 s{S_T0}, s{S_T0}, s{S_T1}\ns_add_u32 s{S_T0}, s{S_T0}, {X+xsel*XSZ}")
        a.e(f"buffer_store_dwordx4 {vr(PK)}, v{V_L16}, s[4:7], s{S_T0} offen sc1", tag="xst")
        a.e(f"buffer_store_dwordx4 {vr(PK+4)}, v{V_L16}, s[4:7], s{S_T0} offen offset:1024 sc1", tag="xst")
        for d in range(8): a.e(f"v_accvgpr_write_b32 a{A_RES+d}, v{PK+d}")
        t = PK + 8
        a.e(f"v_add_f32 v{t}, v{ACC}, v{ACC+1}\nv_mul_f32 v{t+1}, v{ACC}, v{ACC}")
        a.e(f"v_add_f32 v{t+2}, v{ACC+2}, v{ACC+3}\nv_mul_f32 v{t+3}, v{ACC+1}, v{ACC+1}")
        a.e(f"v_fmac_f32 v{t+1}, v{ACC+2}, v{ACC+2}\nv_fmac_f32 v{t+3}, v{ACC+3}, v{ACC+3}")
        for r in range(4, 16, 2):
            a.e(f"v_add_f32 v{t}, v{t}, v{ACC+r}\nv_add_f32 v{t+2}, v{t+2}, v{ACC+r+1}")
            a.e(f"v_fmac_f32 v{t+1}, v{ACC+r}, v{ACC+r}\nv_fmac_f32 v{t+3}, v{ACC+r+1}, v{ACC+r+1}")
        a.e(f"v_add_f32 v{t}, v{t}, v{t+2}\nv_add_f32 v{t+1}, v{t+1}, v{t+3}")
        a.e(f"v_mov_b32 v{t+2}, v{t}\nv_mov_b32 v{t+3}, v{t+1}")
        a.e(f"v_permlane32_swap_b32 v{t+2}, v{t}\nv_permlane32_swap_b32 v{t+3}, v{t+1}")
        a.e(f"v_add_f32 v{t}, v{t}, v{t+2}\nv_add_f32 v{t+1}, v{t+1}, v{t+3}")
        a.e(f"s_mul_i32 s{S_T0}, s{S_A}, 3584\ns_lshl_b32 s{S_T1}, s{S_B}, 8\ns_add_u32 s{S_T0}, s{S_T0}, s{S_T1}")
        a.e(f"s_mul_i32 s{S_T1}, s{S_L}, {2*STSZ}\ns_add_u32 s{S_T0}, s{S_T0}, s{S_T1}\ns_add_u32 s{S_T0}, s{S_T0}, {ST+xsel*STSZ}")
        a.e("s_mov_b32 exec_hi, 0")
        a.e(f"buffer_store_dwordx2 v[{t}:{t+1}], v{V_I8}, s[4:7], s{S_T0} offen sc1", tag="xst")
        a.e("s_mov_b32 exec_hi, -1")

    def p3_weight_prefetch(self):
        a = self.a
        a.e(f"s_lshl_b32 s{S_T0}, s{S_J}, 2\ns_add_u32 s{S_T0}, s{S_T0}, s{S_W}\ns_mul_i32 s{S_T0}, s{S_T0}, {56*KB}\ns_add_u32 s{S_T0}, s{S_T0}, {WGU}")
        a.e(f"s_add_u32 s{S_T1}, s{S_T0}, {28*KB}")
        for s in range(28):
            self.bload(ar(8 * s), V_L16, S_T0, (s % 4) * 1024, f"w3_{s}", sc1=False)
            self.bload(ar(8 * s + 4), V_L16, S_T1, (s % 4) * 1024, f"w3_{s}", sc1=False)
            if s % 4 == 3 and s != 27: a.e(f"s_add_u32 s{S_T0}, s{S_T0}, 4096\ns_add_u32 s{S_T1}, s{S_T1}, 4096")

    def p2b(self):
        a = self.a
        OB, ACC = 80, 144
        self.poll(1, S_RB, 16)
        for b in range(2):
            a.e(f"s_xor_b32 s{S_T0}, s{S_TT}, {b}\ns_lshl_b32 s{S_T1}, s{S_RB}, 1\ns_add_u32 s{S_T1}, s{S_T1}, s{S_TH}\ns_lshl_b32 s{S_T1}, s{S_T1}, 1\ns_add_u32 s{S_T0}, s{S_T0}, s{S_T1}")
            a.e(f"s_lshl_b32 s{S_T0}, s{S_T0}, 5\ns_lshl_b32 s{S_T1}, s{S_W}, 3\ns_add_u32 s{S_T0}, s{S_T0}, s{S_T1}\ns_lshl_b32 s{S_T0}, s{S_T0}, 10")
            a.e(f"s_mul_i32 s{S_T1}, s{S_L}, {OSZ}\ns_add_u32 s{S_T0}, s{S_T0}, s{S_T1}\ns_add_u32 s{S_T0}, s{S_T0}, {O}")
            self.seq_loads(8, lambda i: vr(OB + 32 * b + 4 * i), V_L16, S_T0, lambda i: f"o{b}_{i}")
        self.p3_weight_prefetch()
        a.wait_vm("wo")
        for b in range(2):
            for i in range(8):
                a.wait_vm(f"o{b}_{i}")
                for sl in range(2):
                    u = 2 * b + sl
                    a.e(f"{MF} {vr(ACC+16*u,16)}, {vr(16+32*sl+4*i)}, {vr(OB+32*b+4*i)}, {vr(ACC+16*u,16) if i else 0}")
        self.reduce_epilogue(ACC, None, False)
        self.store_x_and_stats(1)
        self.arrive(2, S_RB, "xst")

    def p3(self):
        a = self.a
        ACC0, ACC1, RING, CC, TT, HP, STB = 16, 48, 80, 96, 100, 116, 128
        self.poll(2, S_RB, 14)
        a.e(f"s_lshl_b32 s{S_T0}, s{S_RB}, 2\ns_add_u32 s{S_T0}, s{S_T0}, s{S_W}\ns_mul_i32 s{S_T0}, s{S_T0}, 3584")
        a.e(f"s_mul_i32 s{S_T1}, s{S_L}, {2*STSZ}\ns_add_u32 s{S_T0}, s{S_T0}, s{S_T1}\ns_add_u32 s{S_T0}, s{S_T0}, {ST+STSZ}")
        for k in range(7): self.bload(vr(STB + 2 * k, 2), V_STL, S_T0, k * 256, "st", n=2)
        a.e(f"s_mul_i32 s{S_A}, s{S_RB}, {4*28*KB}\ns_mul_i32 s{S_T1}, s{S_L}, {2*XSZ}\ns_add_u32 s{S_A}, s{S_A}, s{S_T1}\ns_add_u32 s{S_A}, s{S_A}, {X+XSZ}")
        a.e(f"s_mul_i32 s{S_B}, s{S_W}, {7*KB}\ns_add_u32 s{S_A}, s{S_A}, s{S_B}")
        for T in range(4):
            a.e(f"s_add_u32 s{S_T0}, s{S_A}, {T*28*KB}\ns_add_u32 s{S_T1}, s{S_B}, {T*28*KB}")
            self.dma(7, S_T1, S_T0, f"xt{T}", True)
        a.wait_vm("st")
        self.emits(self.stats_reduce(STB, V_T0, V_T1, V_T2, V_T3))
        c1 = -2.0 * 0.7978845608028654 * 1.4426950408889634
        c2 = c1 * 0.044715
        a.e(f"v_rsq_f32 v{V_T1}, v{V_T0}")
        a.e(f"v_lshrrev_b32 v{V_T4}, 1, v{V_I8}\ns_mul_i32 s{S_T0}, s{S_W}, 384\ns_add_u32 s{S_T0}, s{S_T0}, {L_SCR3}\nv_add_u32 v{V_T4}, s{S_T0}, v{V_T4}")
        a.e(f"v_mul_f32 v{V_T2}, v{V_T1}, v{V_T1}\nv_mul_f32 v{V_T3}, {hexf(c1)}, v{V_T1}\nv_mul_f32 v{V_T2}, v{V_T2}, v{V_T1}\nv_mul_f32 v{V_T2}, {hexf(c2)}, v{V_T2}")
        a.e(f"ds_write_b32 v{V_T4}, v{V_T3}\nds_write_b32 v{V_T4}, v{V_T2} offset:128\nds_write_b32 v{V_T4}, v{V_T0} offset:256")
        a.e(f"v_lshrrev_b32 v{V_T4}, 1, v{V_I8}\nv_add_u32 v{V_T4}, {L_SCR3}, v{V_T4}")
        a.e(f"s_lshl_b32 s{S_C}, s{S_RB}, 2\ns_mul_i32 s{S_C}, s{S_C}, 112\ns_lshl_b32 s{S_T0}, s{S_J}, 2\ns_add_u32 s{S_T0}, s{S_T0}, s{S_W}\ns_lshl_b32 s{S_T0}, s{S_T0}, 1")
        a.e(f"s_add_u32 s{S_C}, s{S_C}, s{S_T0}\ns_lshl_b32 s{S_C}, s{S_C}, 10\ns_mul_i32 s{S_T1}, s{S_L}, {HSZ}\ns_add_u32 s{S_C}, s{S_C}, s{S_T1}\ns_add_u32 s{S_C}, s{S_C}, {HB}")
        for sl in range(2):
            d = (S_A, S_B)[sl]
            a.e(f"s_xor_b32 s{d}, s{S_NT}, {sl}\ns_lshl_b32 s{S_T1}, s{S_CB}, 1\ns_add_u32 s{d}, s{d}, s{S_T1}\ns_mul_i32 s{d}, s{d}, 112")
            a.e(f"s_mul_i32 s{S_T1}, s{S_W}, 28\ns_add_u32 s{d}, s{d}, s{S_T1}\ns_lshl_b32 s{d}, s{d}, 10\ns_add_u32 s{d}, s{d}, {WD}")

        def epi(T):
            A = ACC0 if T % 2 == 0 else ACC1
            G, U = A, A + 16
            L = []
            for q in range(3): L.append(f"ds_read_b32 v{CC+q}, v{V_T4} offset:{T*384+q*128}|cc")
            L.append("@waitlg cc")
            for g in range(4):
                rr = [4 * g + k for k in range(4)]
                for k, r in enumerate(rr): L.append(f"v_mul_f32 v{TT+k}, v{G+r}, v{G+r}")
                for k, r in enumerate(rr): L.append(f"v_fma_f32 v{TT+k}, v{TT+k}, v{CC+1}, v{CC}")
                for k, r in enumerate(rr): L.append(f"v_mul_f32 v{TT+k}, v{TT+k}, v{G+r}")
                for k, r in enumerate(rr): L.append(f"v_exp_f32 v{TT+k}, v{TT+k}")
                for k, r in enumerate(rr): L.append(f"v_mul_f32 v{TT+4+k}, v{G+r}, v{U+r}")
                for k, r in enumerate(rr): L.append(f"v_fma_f32 v{TT+k}, v{TT+k}, v{CC+2}, v{CC+2}")
                for k, r in enumerate(rr): L.append(f"v_rcp_f32 v{TT+k}, v{TT+k}")
                L.append(f"v_mul_f32 v{TT+4}, v{TT+4}, v{TT}")
                L.append(f"v_mul_f32 v{TT+5}, v{TT+5}, v{TT+1}")
                L.append(f"v_mul_f32 v{TT+6}, v{TT+6}, v{TT+2}")
                L.append(f"v_mul_f32 v{TT+7}, v{TT+7}, v{TT+3}")
                L.append(f"v_cvt_pk_bf16_f32 v{HP+2*g}, v{TT+4}, v{TT+5}")
                L.append(f"v_cvt_pk_bf16_f32 v{HP+2*g+1}, v{TT+6}, v{TT+7}")
                if g % 2 == 1:
                    s = g // 2
                    L.append(f"buffer_store_dwordx4 {vr(HP+4*s)}, v{V_L16}, s[4:7], s{S_C} offen" + (" offset:1024" if s else "") + " sc1|hst")
            L.append(f"s_add_u32 s{S_C}, s{S_C}, {112*KB}")
            return L

        for T in range(4):
            A = ACC0 if T % 2 == 0 else ACC1
            a.wait_both(f"xt{T}", None)
            a.e("s_waitcnt lgkmcnt(0)\ns_barrier")
            def rd(s):
                r, o = self.ldsaddr(L_W1 + (T * 28 + s) * KB)
                a.e(f"ds_read_b128 {vr(RING+4*(s%4))}, v{r} offset:{o}", tag=f"b{s}")
            for s in range(3): rd(s)
            def mg(s):
                def f():
                    if s + 3 < 28: rd(s + 3)
                    a.wait_both(f"w3_{s}" if T == 0 else None, f"b{s}")
                    a.e(f"{MF} {vr(A,16)}, {ar(8*s)}, {vr(RING+4*(s%4))}, {vr(A,16) if s else 0}")
                return f
            def mu(s):
                def f():
                    a.e(f"{MF} {vr(A+16,16)}, {ar(8*s+4)}, {vr(RING+4*(s%4))}, {vr(A+16,16) if s else 0}")
                    if T == 3:
                        self.bload(ar(8 * s), V_L16, S_A, (s % 4) * 1024, f"w4_{s}", sc1=False)
                        self.bload(ar(8 * s + 4), V_L16, S_B, (s % 4) * 1024, f"w4_{s}", sc1=False)
                        if s % 4 == 3 and s != 27: a.e(f"s_add_u32 s{S_A}, s{S_A}, 4096\ns_add_u32 s{S_B}, s{S_B}, 4096")
                return f
            mains = []
            for s in range(28): mains += [mg(s), mu(s)]
            if T == 0:
                for m in mains: m()
            else:
                mains[0](); mains[1]()
                self.weave(mains[2:], epi(T - 1), budget=20)
        self.emits(epi(3))
        self.arrive(3, S_RB, "hst")

    def p4(self):
        a = self.a
        n = self.name
        ACC, RING, NR = 16, 80, 20
        lab = a.newlabel("now1")
        a.e(f"s_cmp_lg_u32 s{S_L}, 0\ns_cbranch_scc1 {lab}")
        vq = list(a.vmq)
        self.p1_weight_dma()
        a.vmq = vq
        a.label(lab)
        self.poll(3, S_RB, 14)
        for b in range(2):
            d = (S_A, S_B)[b]
            a.e(f"s_xor_b32 s{d}, s{S_TT}, {b}\ns_lshl_b32 s{S_T1}, s{S_RB}, 1\ns_add_u32 s{S_T1}, s{S_T1}, s{S_TH}\ns_lshl_b32 s{S_T1}, s{S_T1}, 1\ns_add_u32 s{d}, s{d}, s{S_T1}")
            a.e(f"s_mul_i32 s{d}, s{d}, 112\ns_mul_i32 s{S_T1}, s{S_W}, 28\ns_add_u32 s{d}, s{d}, s{S_T1}\ns_lshl_b32 s{d}, s{d}, 10")
            a.e(f"s_mul_i32 s{S_T1}, s{S_L}, {HSZ}\ns_add_u32 s{d}, s{d}, s{S_T1}\ns_add_u32 s{d}, s{d}, {HB}")
        def ld(i):
            for b in range(2):
                self.bload(vr(RING + 8 * (i % NR) + 4 * b), V_L16, (S_A, S_B)[b], (i % 4) * 1024, f"h{i}")
            if i % 4 == 3 and i != 27: a.e(f"s_add_u32 s{S_A}, s{S_A}, 4096\ns_add_u32 s{S_B}, s{S_B}, 4096")
        for i in range(NR): ld(i)
        for i in range(28):
            a.wait_vm((f"h{i}", f"w4_{i}"))
            for b in range(2):
                for sl in range(2):
                    u = 2 * b + sl
                    a.e(f"{MF} {vr(ACC+16*u,16)}, {ar(8*i+4*sl)}, {vr(RING+8*(i%NR)+4*b)}, {vr(ACC+16*u,16) if i else 0}")
            if i + NR < 28: ld(i + NR)
        self.reduce_epilogue(ACC, None, True)
        fin = a.newlabel("fin")
        a.e(f"s_cmp_lg_u32 s{S_L}, 0\ns_cbranch_scc1 {fin}")
        self.store_x_and_stats(2)
        self.arrive(4, S_RB, "xst")
        a.e(f"s_branch {n}_next")
        a.label(fin)
        PK = self.PK
        self.tile_index(S_A)
        a.e(f"s_mul_i32 s{S_T0}, s{S_A}, {32*896}\ns_lshl_b32 s{S_B}, s{S_CB}, 1\ns_add_u32 s{S_B}, s{S_B}, s{S_NT}\ns_lshl_b32 s{S_B}, s{S_B}, 6\ns_add_u32 s{S_T0}, s{S_T0}, s{S_B}")
        a.e(f"v_mul_u32_u24 v{V_T0}, 112, v{V_I8}\nv_lshrrev_b32 v{V_T1}, 5, v{V_L16}\nv_and_b32 v{V_T1}, 16, v{V_T1}\nv_add_u32 v{V_T0}, v{V_T0}, v{V_T1}")
        a.e(f"v_permlane32_swap_b32 v{PK}, v{PK+2}\nv_permlane32_swap_b32 v{PK+1}, v{PK+3}")
        a.e(f"v_permlane32_swap_b32 v{PK+4}, v{PK+6}\nv_permlane32_swap_b32 v{PK+5}, v{PK+7}")
        a.e(f"buffer_store_dwordx4 {vr(PK)}, v{V_T0}, s[8:11], s{S_T0} offen")
        a.e(f"buffer_store_dwordx4 {vr(PK+4)}, v{V_T0}, s[8:11], s{S_T0} offen offset:32")
        a.e(f"s_branch {n}_done")

    def build(self):
        a, n = self.a, self.name
        self.prologue()
        head_q = list(a.vmq)
        a.label(f"{n}_layer")
        a.vmq = list(head_q); a.lgq = []
        lab = a.newlabel("nos5")
        a.e(f"s_cmp_eq_u32 s{S_L}, 0\ns_cbranch_scc1 {lab}")
        self.poll(4, S_RB, 14, prev_layer=True)
        a.label(lab)
        self.p1()
        if self.end_if_stop("p1"): return self.fin()
        self.p2a()
        if self.end_if_stop("p2a"): return self.fin()
        a.e(f"s_cmp_lt_u32 s{S_J}, 14\ns_cbranch_scc1 {n}_act")
        a.e(f"s_cmp_lg_u32 s{S_L}, 0\ns_cbranch_scc1 {n}_done")
        vq = list(a.vmq)
        self.p1_weight_dma()
        a.e("s_waitcnt vmcnt(0)")
        a.e(f"s_branch {n}_next")
        a.vmq = vq
        a.label(f"{n}_act")
        self.p2b()
        if self.end_if_stop("p2b"): return self.fin()
        self.p3()
        if self.end_if_stop("p3"): return self.fin()
        self.p4()
        a.label(f"{n}_next")
        self.has_next = True
        if self.stop == "l0":
            a.e("s_waitcnt vmcnt(0) lgkmcnt(0)")
            return self.fin()
        a.e("s_waitcnt vmcnt(0)")
        a.e(f"s_add_u32 s{S_L}, s{S_L}, 1")
        a.e(f"s_branch {n}_layer")
        return self.fin()

    def fin(self):
        a = self.a
        if not getattr(self, "has_next", False): a.label(f"{self.name}_next")
        a.label(f"{self.name}_done")
        a.e("s_endpgm")
        return a.finalize()
```

```python
from asmlib import Asm
from layout import *

OOB = 0x7ff00000
NPREP = 264

def srd(a, s, lo, hi, size):
    a.e(f"s_mov_b32 s{s}, s{lo}\ns_mov_b32 s{s+1}, s{hi}\ns_mov_b32 s{s+2}, {size}\ns_mov_b32 s{s+3}, 0x20000")

def load_src(a, karg_off, size):
    a.e(f"s_load_dwordx2 s[8:9], s[0:1], {karg_off}")
    a.e(f"s_mov_b32 s10, {size}\ns_mov_b32 s11, 0x20000")
    a.e("s_waitcnt lgkmcnt(0)")

def gen_prep(name):
    a = Asm()
    a.label(name)
    a.e(f"s_cmp_ge_u32 s2, {NPREP}")
    a.e(f"s_cbranch_scc1 {name}_done")
    a.e("s_load_dwordx2 s[4:5], s[0:1], 80")
    a.e(f"s_mov_b32 s6, {WS_USED}\ns_mov_b32 s7, 0x20000")
    a.e("v_and_b32 v1, 63, v0\nv_lshlrev_b32 v1, 4, v1")
    a.e("v_and_b32 v2, 31, v0")
    a.e("v_bfe_u32 v3, v0, 5, 1")
    a.e("v_lshrrev_b32 v4, 6, v0")
    a.e("v_readfirstlane_b32 s12, v4")
    a.e("s_waitcnt lgkmcnt(0)")
    for lim, lab in ((48, "A"), (160, "B"), (174, "C"), (230, "Dn"), (262, "E"), (263, "F")):
        a.e(f"s_cmp_lt_u32 s2, {lim}\ns_cbranch_scc1 {name}_{lab}")
    a.e("v_mov_b32 v16, 0\nv_mov_b32 v17, 0\nv_mov_b32 v18, 0\nv_mov_b32 v19, 0")
    a.e("v_lshlrev_b32 v5, 4, v0")
    a.e(f"s_mov_b32 s20, {FLAGS}")
    for i in range(5):
        a.e("buffer_store_dwordx4 v[16:19], v5, s[4:7], s20 offen")
        a.e("s_add_u32 s20, s20, 4096")
    a.e(f"s_branch {name}_done")

    a.label(f"{name}_A")
    load_src(a, 8, D * 3 * D * 2)
    a.e("s_mul_i32 s13, s2, 43691\ns_lshr_b32 s13, s13, 17")
    a.e("s_mul_i32 s14, s13, 3\ns_sub_u32 s14, s2, s14")
    a.e("s_mul_i32 s14, s14, 896\ns_mul_i32 s13, s13, 56\ns_add_u32 s15, s13, s14")
    a.e("s_mov_b32 s16, 2688")
    a.e("s_mov_b32 s17, 28")
    a.e(f"s_mul_i32 s18, s2, {28*KB}\ns_add_u32 s18, s18, {WQKV}")
    a.e(f"s_branch {name}_AB")
    a.label(f"{name}_B")
    a.e("s_sub_u32 s13, s2, 48\ns_and_b32 s14, s13, 1\ns_cmp_eq_u32 s14, 0")
    a.e(f"s_cbranch_scc1 {name}_Bg")
    load_src(a, 48, D * F * 2)
    a.e(f"s_branch {name}_B2")
    a.label(f"{name}_Bg")
    load_src(a, 40, D * F * 2)
    a.label(f"{name}_B2")
    a.e("s_lshr_b32 s15, s13, 1\ns_lshl_b32 s15, s15, 6")
    a.e("s_mov_b32 s16, 3584\ns_mov_b32 s17, 32")
    a.e(f"s_mul_i32 s18, s13, {28*KB}\ns_add_u32 s18, s18, {WGU}")
    a.label(f"{name}_AB")
    a.e("s_lshl_b32 s19, s16, 2\nv_mul_lo_u32 v4, s19, v3")
    a.e("v_lshlrev_b32 v5, 1, v2\nv_add3_u32 v4, v4, v5, s15")
    a.e(f"v_mov_b32 v6, {OOB}")
    a.e("v_cmp_gt_u32 vcc, s17, v2\nv_cndmask_b32 v4, v6, v4, vcc")
    a.e("s_mul_i32 s20, s12, 112\ns_mul_i32 s20, s20, s16")
    a.e("s_mul_i32 s21, s16, 5")
    for sp in range(7):
        for j in range(8):
            a.e(f"buffer_load_ushort v{16+8*sp+j}, v4, s[8:11], s20 offen", tag=f"ld{sp}")
            a.e(f"s_add_u32 s20, s20, {'s21' if j % 4 == 3 else 's16'}")
    for sp in range(7):
        a.wait_vm(f"ld{sp}")
        for j in range(8):
            a.e(f"v_lshlrev_b32 v{16+8*sp+j}, 16, v{16+8*sp+j}")
        if sp == 0:
            for q in range(4): a.e(f"v_add_f32 v{8+q}, v{16+2*q}, v{17+2*q}")
        else:
            for j in range(8): a.e(f"v_add_f32 v{8+j%4}, v{8+j%4}, v{16+8*sp+j}")
    a.e("v_add_f32 v8, v8, v9\nv_add_f32 v10, v10, v11\nv_add_f32 v8, v8, v10")
    a.e("v_lshlrev_b32 v9, 2, v0")
    a.e("ds_write_b32 v9, v8")
    a.e("s_waitcnt lgkmcnt(0)\ns_barrier")
    a.e("v_lshlrev_b32 v9, 2, v2")
    for q in range(8):
        a.e(f"ds_read_b32 v{80+q}, v9 offset:{q*128}")
    a.e("s_waitcnt lgkmcnt(0)")
    a.e("v_add_f32 v80, v80, v81\nv_add_f32 v82, v82, v83\nv_add_f32 v84, v84, v85\nv_add_f32 v86, v86, v87")
    a.e("v_add_f32 v80, v80, v82\nv_add_f32 v84, v84, v86\nv_add_f32 v80, v80, v84")
    a.e(f"v_mul_f32 v80, {hexf(1.0/448)}, v80")
    a.e(f"s_mul_i32 s20, s12, {7*KB}\ns_add_u32 s20, s20, s18")
    for sp in range(7):
        for j in range(8): a.e(f"v_sub_f32 v{16+8*sp+j}, v{16+8*sp+j}, v80")
        for d in range(4): a.e(f"v_cvt_pk_bf16_f32 v{88+4*sp+d}, v{16+8*sp+2*d}, v{17+8*sp+2*d}")
        a.e(f"buffer_store_dwordx4 v[{88+4*sp}:{91+4*sp}], v1, s[4:7], s20 offen")
        a.e("s_add_u32 s20, s20, 1024")
    a.e(f"s_branch {name}_done")

    def gather_pack(nfr, rowoff, useB, dest_sreg):
        for fr in range(nfr):
            for j in range(8):
                a.e(f"s_add_u32 s20, s22, {rowoff(fr, j)}")
                v = "v5" if useB(fr, j) else "v4"
                a.e(f"buffer_load_ushort v{16+8*fr+j}, {v}, s[8:11], s20 offen", tag=f"g{fr}")
        for fr in range(nfr):
            a.wait_vm(f"g{fr}")
            for d in range(4):
                a.e(f"v_lshl_or_b32 v{88+4*fr+d}, v{17+8*fr+2*d}, 16, v{16+8*fr+2*d}")
            a.e(f"buffer_store_dwordx4 v[{88+4*fr}:{91+4*fr}], v1, s[4:7], s{dest_sreg} offen", tag="st")
            a.e(f"s_add_u32 s{dest_sreg}, s{dest_sreg}, 1024")

    a.vmq = []
    a.label(f"{name}_C")
    load_src(a, 24, D * D * 2)
    a.e("s_sub_u32 s13, s2, 160\ns_lshl_b32 s13, s13, 2\ns_add_u32 s13, s13, s12")
    a.e("s_lshr_b32 s14, s13, 2\ns_and_b32 s13, s13, 3")
    a.e("v_mul_u32_u24 v4, 3584, v3\nv_lshlrev_b32 v5, 1, v2\ns_lshl_b32 s15, s14, 6\nv_add3_u32 v4, v4, v5, s15")
    a.e(f"v_mov_b32 v6, {OOB}\nv_cmp_eq_u32 vcc, 0, v3\nv_cndmask_b32 v5, v6, v4, vcc")
    a.e(f"s_mul_i32 s22, s13, {112*896}")
    a.e(f"s_lshl_b32 s18, s14, 5\ns_lshl_b32 s15, s13, 3\ns_add_u32 s18, s18, s15\ns_lshl_b32 s18, s18, 10\ns_add_u32 s18, s18, {WO}")
    gather_pack(8, lambda fr, j: (28 * (fr // 2) + 16 * (fr % 2) + 8 * (j // 4) + j % 4) * 896,
                lambda fr, j: fr % 2 == 1 and j >= 4, 18)
    a.e(f"s_branch {name}_done")

    a.vmq = []
    a.label(f"{name}_Dn")
    load_src(a, 56, F * D * 2)
    a.e("s_sub_u32 s13, s2, 174\ns_lshl_b32 s13, s13, 2\ns_add_u32 s13, s13, s12")
    a.e("s_lshr_b32 s14, s13, 4\ns_and_b32 s13, s13, 15")
    a.e("v_mul_u32_u24 v4, 3584, v3\nv_lshlrev_b32 v5, 1, v2\ns_lshl_b32 s15, s14, 6\nv_add3_u32 v4, v4, v5, s15")
    a.e(f"s_mul_i32 s22, s13, {112*896}")
    a.e(f"s_mul_i32 s18, s14, 112\ns_mul_i32 s15, s13, 7\ns_add_u32 s18, s18, s15\ns_lshl_b32 s18, s18, 10\ns_add_u32 s18, s18, {WD}")
    gather_pack(7, lambda fr, j: (16 * fr + 8 * (j // 4) + j % 4) * 896, lambda fr, j: False, 18)
    a.e(f"s_branch {name}_done")

    a.vmq = []
    a.label(f"{name}_F")
    load_src(a, 16, H * DH * DH * 2)
    a.e("v_subrev_u32 v5, 4, v2\nv_cmp_gt_u32 vcc, 28, v2\nv_cndmask_b32 v5, v5, v2, vcc")
    a.e("v_lshlrev_b32 v5, 1, v5\nv_mul_u32_u24 v4, 224, v3\nv_add_u32 v4, v4, v5")
    a.e(f"v_mov_b32 v6, {OOB}\nv_cmp_eq_u32 vcc, 0, v3\nv_cndmask_b32 v5, v6, v4, vcc")
    a.e(f"s_mul_i32 s22, s12, {4*1568}")
    a.e(f"s_lshl_b32 s18, s12, 13\ns_add_u32 s18, s18, {PHI}")
    gather_pack(8, lambda fr, j: (fr // 2) * 1568 + (16 * (fr % 2) + 8 * (j // 4) + j % 4) * 56,
                lambda fr, j: fr % 2 == 1 and j >= 4, 18)
    a.e(f"s_branch {name}_done")

    a.vmq = []
    a.label(f"{name}_E")
    load_src(a, 0, S * D * 2)
    a.e("s_sub_u32 s13, s2, 230\ns_lshl_b32 s13, s13, 2\ns_add_u32 s13, s13, s12")
    a.e("s_lshr_b32 s14, s13, 1\ns_and_b32 s13, s13, 1")
    a.e("v_mul_u32_u24 v4, 896, v2\nv_lshlrev_b32 v5, 3, v3\nv_add_u32 v4, v4, v5")
    a.e("s_mul_i32 s20, s14, 28672\ns_mul_i32 s15, s13, 448\ns_add_u32 s20, s20, s15")
    for n in range(7):
        for g in range(4):
            a.e(f"buffer_load_dwordx2 v[{16+8*n+2*g}:{17+8*n+2*g}], v4, s[8:11], s20 offen offset:{n*64+g*16}", tag=f"x{n}")
    a.e(f"s_mul_i32 s21, s14, 28\ns_mul_i32 s15, s13, 14\ns_add_u32 s21, s21, s15\ns_lshl_b32 s21, s21, 10\ns_add_u32 s21, s21, {X}")
    a.e(f"s_mul_i32 s22, s14, 3584\ns_mul_i32 s15, s13, 1792\ns_add_u32 s22, s22, s15\ns_add_u32 s22, s22, {ST}")
    a.e("s_mov_b32 s23, 0x3f803f80")
    a.e("v_lshlrev_b32 v6, 3, v2")
    for n in range(7):
        a.wait_vm(f"x{n}")
        for s in range(2):
            a.e(f"buffer_store_dwordx4 v[{16+8*n+4*s}:{19+8*n+4*s}], v1, s[4:7], s21 offen", tag="st")
            a.e("s_add_u32 s21, s21, 1024")
        a.e("v_mov_b32 v8, 0\nv_mov_b32 v9, 0")
        for q in range(8):
            a.e(f"v_dot2_f32_bf16 v8, v{16+8*n+q}, s23, v8")
            a.e(f"v_dot2_f32_bf16 v9, v{16+8*n+q}, v{16+8*n+q}, v9")
        a.e("v_mov_b32 v10, v8\nv_mov_b32 v11, v9")
        a.e("v_permlane32_swap_b32 v10, v8\nv_permlane32_swap_b32 v11, v9")
        a.e("v_add_f32 v12, v8, v10\nv_add_f32 v13, v9, v11")
        a.e("s_mov_b32 exec_hi, 0")
        a.e(f"buffer_store_dwordx2 v[12:13], v6, s[4:7], s22 offen offset:{n*256}", tag="st")
        a.e("s_mov_b32 exec_hi, -1")
    a.label(f"{name}_done")
    a.e("s_endpgm")
    return a.finalize()

import struct
def hexf(x): return "0x%08x" % struct.unpack("<I", struct.pack("<f", x))[0]
```

```python
import sys, prep, kd, mainvk
from layout import *
def build(stop=None, opts=None, with_header=True):
    p = prep.gen_prep("prep_kernel")
    g = mainvk.Gen("main_kernel", stop=stop, opts=opts)
    m = g.build()
    hdr = ""
    if with_header:
        ref = open("interleave_layers__linear_kernel_hedgehog__geglu_ffn__prompt.s.ref").read().split("\n")
        keep = [l for l in ref if l.startswith(";") and "@launch" not in l and "Override launch" not in l and "grid=ceil" not in l]
        hdr = "\n".join(keep) + "\n"
        hdr += f"; @launch kernel=prep_kernel grid=({prep.NPREP},1,1) block=(256,1,1) lds=1024\n"
        hdr += f"; @launch kernel=main_kernel grid=(256,1,1) block=(256,1,1) lds={mainvk.LDS_BYTES}\n"
    src = hdr + '.amdgcn_target "amdgcn-amd-amdhsa--gfx950"\n.text\n'
    src += kd.head("prep_kernel") + p.text() + kd.head("main_kernel") + m.text()
    src += '.section .rodata,"a"\n' + kd.kd("prep_kernel", 128, 128) + kd.kd("main_kernel", 512, 256)
    return src, (len(p.ins), p.nops_added, len(m.ins), m.nops_added)
if __name__ == "__main__":
    stop = sys.argv[2] if len(sys.argv) > 2 and sys.argv[2] != "none" else None
    src, info = build(stop)
    open(sys.argv[1], "w").write(src)
    print("prep instrs/nops, main instrs/nops:", info, "bytes", len(src))
```

```python
from asmlib import Asm
from layout import *
import struct
def hexf(x): return "0x%08x" % struct.unpack("<I", struct.pack("<f", x))[0]

L_W1   = 0
L_SCR  = 86016
L_KVR  = 90112
L_KVA  = 122880
L_RED  = 114688
L_SCR3 = 114688
LDS_BYTES = 163840

S_RB, S_J, S_W, S_L, S_TH, S_CB, S_TT, S_NT = 12, 13, 14, 15, 16, 17, 18, 19
S_T0, S_T1, S_T2, S_T3 = 20, 21, 22, 23
S_SEL_LO, S_SEL_HI = 24, 25
S_UP = 26
S_CNT = 28
S_EX = 30
S_A, S_B, S_C, S_D2 = 32, 33, 34, 35
S_JS, S_Q = 29, 38
S_G0, S_G1, S_G2, S_G3 = 96, 97, 98, 99

V_L16, V_L16H, V_STL, V_I8, V_ONE = 1, 2, 3, 4, 5
V_C = 6
V_T0, V_T1, V_T2, V_T3, V_T4, V_T5, V_T6, V_T7 = 8, 9, 10, 11, 12, 13, 14, 15
A_PHI, A_ID, A_RES = 232, 240, 248

def vr(b, n=4): return f"v[{b}:{b+n-1}]"
def ar(b, n=4): return f"a[{b}:{b+n-1}]"
MF = "v_mfma_f32_32x32x16_bf16"

class Gen:
    def __init__(self, name, stop=None, opts=None):
        self.a = Asm(); self.name = name; self.stop = stop; self.o = opts or {}

    def flag_addr(self, sidx, g_sreg, dst, prev_layer=False):
        a = self.a
        a.e(f"s_mul_i32 s{dst}, s{S_L}, {5*16*128}")
        a.e(f"s_lshl_b32 s{S_T3}, s{g_sreg}, 7")
        a.e(f"s_add_u32 s{dst}, s{dst}, s{S_T3}")
        c = FLAGS + sidx * 16 * 128 - (5 * 16 * 128 if prev_layer else 0)
        a.e(f"s_add_u32 s{dst}, s{dst}, {c}")

    def arrive(self, sidx, g_sreg, tags):
        a = self.a
        a.wait_vm(tags)
        a.e("s_barrier")
        lab = a.newlabel("arr")
        self.flag_addr(sidx, g_sreg, S_T2)
        a.e(f"s_cmp_lg_u32 s{S_W}, 0\ns_cbranch_scc1 {lab}")
        a.e_uncounted(f"s_mov_b64 exec, 1\nv_mov_b32 v{V_T7}, 1\nbuffer_atomic_add v{V_T7}, off, s[4:7], s{S_T2} sc1\ns_mov_b64 exec, -1")
        a.label(lab)

    def poll(self, sidx, g_sreg, target, prev_layer=False):
        a = self.a
        lab, lp, lx = a.newlabel("pol"), a.newlabel("plp"), a.newlabel("plx")
        self.flag_addr(sidx, g_sreg, S_T2, prev_layer)
        a.e(f"s_cmp_lg_u32 s{S_W}, 0\ns_cbranch_scc1 {lab}")
        vq, lq = list(a.vmq), list(a.lgq)
        a.e(f"s_mov_b64 exec, 1\ns_mov_b32 s{S_CNT}, 0")
        a.label(lp)
        a.e(f"buffer_load_dword v{V_T7}, off, s[4:7], s{S_T2} sc1")
        a.e(f"s_add_u32 s{S_CNT}, s{S_CNT}, 1\ns_cmp_gt_u32 s{S_CNT}, 400000\ns_cbranch_scc1 {lx}")
        a.e(f"s_waitcnt vmcnt(0)\nv_readfirstlane_b32 s{S_T3}, v{V_T7}")
        a.e(f"s_cmp_lt_u32 s{S_T3}, {target}\ns_cbranch_scc1 {lp}")
        a.label(lx)
        a.e("s_waitcnt vmcnt(0)\ns_mov_b64 exec, -1")
        a.vmq, a.lgq = vq, lq
        a.label(lab)
        a.e("s_barrier")

    def bload(self, dst, vaddr, soff, imm, tag, sc1=True, n=4):
        op = {4: "buffer_load_dwordx4", 2: "buffer_load_dwordx2", 1: "buffer_load_dword"}[n]
        self.a.e(f"{op} {dst}, v{vaddr}, s[4:7], s{soff} offen" + (f" offset:{imm}" if imm else "") + (" sc1" if sc1 else ""), tag=tag)

    def seq_loads(self, n, dstf, vaddr, soff, tagf, sc1=True, stride=1024):
        a = self.a
        for i in range(n):
            self.bload(dstf(i), vaddr, soff, (i % 4) * 1024, tagf(i), sc1)
            if i % 4 == 3 and i != n - 1: a.e(f"s_add_u32 s{soff}, s{soff}, 4096")

    def dma(self, n, lds_sreg, soff, tag, sc1):
        a = self.a
        for i in range(n):
            if i % 4 == 0:
                a.e(f"s_mov_b32 m0, s{lds_sreg}")
            a.e(f"buffer_load_dwordx4 v{V_L16}, s[4:7], s{soff} offen" + (f" offset:{(i%4)*1024}" if i % 4 else "") + (" sc1" if sc1 else "") + " lds", tag=tag)
            if i % 4 == 3 and i != n - 1:
                a.e(f"s_add_u32 s{soff}, s{soff}, 4096\ns_add_u32 s{lds_sreg}, s{lds_sreg}, 4096")

    def ldsaddr(self, off):
        if off < 65536: return V_L16, off
        assert off < 131072
        return V_L16H, off - 65536

    def mark(self, name):
        if not self.o.get("prof"): return
        a = self.a
        if not hasattr(self, "marks"): self.marks = []
        k = len(self.marks); self.marks.append(name)
        a.e(f"s_memrealtime s[36:37]\ns_waitcnt lgkmcnt(0)")
        a.lgq = []
        lab = a.newlabel("mk")
        a.e(f"s_cmp_eq_u32 s{S_L}, 0\ns_cbranch_scc1 {lab}_a\ns_mov_b32 s{68+k}, s36\ns_branch {lab}_b")
        a.label(f"{lab}_a")
        a.e(f"s_mov_b32 s{40+k}, s36")
        a.label(f"{lab}_b")

    def dump_marks(self):
        if not self.o.get("prof"): return
        a = self.a
        lab = a.newlabel("dm")
        a.e(f"s_cmp_lg_u32 s{S_W}, 0\ns_cbranch_scc1 {lab}")
        a.e(f"s_lshl_b32 s{S_T0}, s2, 8\ns_add_u32 s{S_T0}, s{S_T0}, {DBG}\ns_mov_b64 exec, 1")
        for k in range(56):
            a.e(f"v_mov_b32 v{V_T0}, s{40+k}\nbuffer_store_dword v{V_T0}, off, s[4:7], s{S_T0} offset:{4*k}")
        a.e("s_waitcnt vmcnt(0)")
        a.label(lab)

    def end_if_stop(self, tag):
        if self.stop == tag:
            self.a.e("s_waitcnt vmcnt(0) lgkmcnt(0)")
            self.a.e(f"s_branch {self.name}_done")
            return True
        return False

    def p1_weight_dma(self):
        a = self.a
        a.e(f"s_mul_i32 s{S_T0}, s{S_J}, {84*KB}\ns_mul_i32 s{S_T1}, s{S_W}, {21*KB}")
        a.e(f"s_add_u32 s{S_T0}, s{S_T0}, s{S_T1}\ns_add_u32 s{S_T0}, s{S_T0}, {WQKV}")
        self.dma(21, S_T1, S_T0, "w1", False)

    def prologue(self):
        a, n = self.a, self.name
        a.label(n)
        a.e(f"s_cmp_lt_u32 s2, 256\ns_cbranch_scc1 {n}_go\ns_endpgm")
        a.label(f"{n}_go")
        a.e("s_load_dwordx2 s[4:5], s[0:1], 80\ns_load_dwordx2 s[8:9], s[0:1], 64")
        a.e(f"s_mov_b32 s6, {WS_USED}\ns_mov_b32 s7, 0x20000\ns_mov_b32 s10, {S*D*2}\ns_mov_b32 s11, 0x20000")
        a.e(f"s_and_b32 s{S_T0}, s2, 7\ns_lshr_b32 s{S_T1}, s2, 3")
        a.e(f"s_and_b32 s{S_TH}, s{S_T0}, 1\ns_lshr_b32 s{S_T0}, s{S_T0}, 1\ns_lshl_b32 s{S_T0}, s{S_T0}, 2")
        a.e(f"s_and_b32 s{S_RB}, s{S_T1}, 3\ns_add_u32 s{S_RB}, s{S_RB}, s{S_T0}")
        a.e(f"s_lshr_b32 s{S_Q}, s{S_T1}, 2\ns_lshl_b32 s{S_J}, s{S_TH}, 3\ns_add_u32 s{S_J}, s{S_J}, s{S_Q}")
        a.e(f"s_min_u32 s{S_CB}, s{S_Q}, 6\ns_mul_i32 s{S_JS}, s{S_TH}, 7\ns_add_u32 s{S_JS}, s{S_JS}, s{S_CB}")
        a.e(f"v_lshrrev_b32 v{V_T0}, 6, v0\nv_and_b32 v{V_T1}, 63, v0\nv_lshlrev_b32 v{V_L16}, 4, v{V_T1}")
        a.e(f"v_readfirstlane_b32 s{S_W}, v{V_T0}")
        a.e(f"v_add_u32 v{V_L16H}, 0x10000, v{V_L16}")
        a.e(f"v_and_b32 v{V_T2}, 31, v0\nv_bfe_u32 v{V_T3}, v0, 5, 1")
        a.e(f"v_lshlrev_b32 v{V_I8}, 3, v{V_T2}")
        a.e(f"v_mul_u32_u24 v{V_STL}, 1792, v{V_T3}\nv_add_u32 v{V_STL}, v{V_STL}, v{V_I8}")
        a.e(f"s_lshr_b32 s{S_TT}, s{S_W}, 1\ns_and_b32 s{S_NT}, s{S_W}, 1")
        a.e(f"s_mov_b32 s{S_SEL_LO}, 0x3f80\ns_mov_b32 s{S_SEL_HI}, 0x3f800000")
        a.e(f"s_mov_b32 s{S_UP}, 0\ns_mov_b32 s{S_UP+1}, -1")
        a.e(f"s_mov_b32 s{S_L}, 0")
        if self.o.get("prof"):
            for k in range(40, 96): a.e(f"s_mov_b32 s{k}, 0")
        a.e("s_waitcnt lgkmcnt(0)")
        for it in self.p1w_items(1) + self.p1w_items(2): self.emits(it)
        a.e(f"s_lshl_b32 s{S_T0}, s{S_J}, 11\ns_add_u32 s{S_T0}, s{S_T0}, {PHI}")
        self.seq_loads(2, lambda i: ar(A_PHI + 4 * i), V_L16, S_T0, lambda i: "phi", sc1=False)
        self.tile_index(S_T0)
        a.e(f"s_mul_i32 s{S_T0}, s{S_T0}, 28")
        a.e(f"s_lshl_b32 s{S_T1}, s{S_CB}, 1\ns_add_u32 s{S_T1}, s{S_T1}, s{S_NT}\ns_lshl_b32 s{S_T1}, s{S_T1}, 1")
        a.e(f"s_add_u32 s{S_T0}, s{S_T0}, s{S_T1}\ns_lshl_b32 s{S_T0}, s{S_T0}, 10\ns_add_u32 s{S_T0}, s{S_T0}, {X}")
        self.seq_loads(2, lambda i: ar(A_RES + 4 * i), V_L16, S_T0, lambda i: "res", sc1=False)
        for it in self.p1w_items(0): self.emits(it)
        a.e(f"v_cmp_eq_u32 vcc, 28, v{V_T2}\nv_mov_b32 v{V_T4}, 1.0\nv_mov_b32 v{V_ONE}, 0\nv_cndmask_b32 v{V_ONE}, v{V_ONE}, v{V_T4}, vcc")
        a.e(f"v_lshlrev_b32 v{V_T3}, 2, v{V_T3}\nv_sub_u32 v{V_T2}, v{V_T2}, v{V_T3}")
        a.e(f"v_mov_b32 v{V_T4}, 0x3f80\nv_mov_b32 v{V_T5}, 0x3f800000")
        for s in range(2):
            for d in range(4):
                j = 2 * d
                c = 16 * s + 8 * (j // 4) + (j % 4)
                a.e(f"v_mov_b32 v{V_T6}, 0")
                a.e(f"v_cmp_eq_u32 vcc, {c}, v{V_T2}\nv_cndmask_b32 v{V_T6}, v{V_T6}, v{V_T4}, vcc")
                a.e(f"v_cmp_eq_u32 vcc, {c+1}, v{V_T2}\nv_cndmask_b32 v{V_T6}, v{V_T6}, v{V_T5}, vcc")
                a.e(f"v_accvgpr_write_b32 a{A_ID+4*s+d}, v{V_T6}")

    def tile_index(self, dst):
        a = self.a
        a.e(f"s_lshl_b32 s{dst}, s{S_RB}, 1\ns_add_u32 s{dst}, s{dst}, s{S_TH}\ns_lshl_b32 s{dst}, s{dst}, 1\ns_add_u32 s{dst}, s{dst}, s{S_TT}")

    def stats_reduce(self, base, vV, vM, t0, t1):
        L = []
        b = base
        for k in (0, 1):
            L += [f"v_add_f32 v{b+k}, v{b+k}, v{b+2+k}", f"v_add_f32 v{b+4+k}, v{b+4+k}, v{b+6+k}", f"v_add_f32 v{b+8+k}, v{b+8+k}, v{b+10+k}"]
        for k in (0, 1):
            L += [f"v_add_f32 v{b+k}, v{b+k}, v{b+4+k}", f"v_add_f32 v{b+8+k}, v{b+8+k}, v{b+12+k}"]
        for k in (0, 1):
            L += [f"v_add_f32 v{b+k}, v{b+k}, v{b+8+k}"]
        L += [f"v_mov_b32 v{t0}, v{b}", f"v_mov_b32 v{t1}, v{b+1}",
              f"v_permlane32_swap_b32 v{t0}, v{b}", f"v_permlane32_swap_b32 v{t1}, v{b+1}",
              f"v_add_f32 v{b}, v{b}, v{t0}", f"v_add_f32 v{b+1}, v{b+1}, v{t1}",
              f"v_mul_f32 v{vM}, {hexf(1.0/D)}, v{b}",
              f"v_mul_f32 v{t0}, v{vM}, v{vM}",
              f"v_mul_f32 v{t1}, {hexf(1.0/D)}, v{b+1}",
              f"v_sub_f32 v{vV}, v{t1}, v{t0}",
              f"v_max_f32 v{vV}, 0, v{vV}",
              f"v_add_f32 v{vV}, {hexf(1e-5)}, v{vV}"]
        return L

    @staticmethod
    def bc(r):
        return f"v[{r & ~1}:{(r & ~1) + 1}]", r & 1
    def pk_fma_bc(self, dst, src, rb, rc, neg_a=0, neg_c=0):
        (tb, sb), (tc, sc) = self.bc(rb), self.bc(rc)
        return (f"v_pk_fma_f32 v[{dst}:{dst+1}], v[{src}:{src+1}], {tb}, {tc} op_sel:[0,{sb},{sc}] op_sel_hi:[1,{sb},{sc}]"
                f" neg_lo:[{neg_a},0,{neg_c}] neg_hi:[{neg_a},0,{neg_c}]")
    def pk_mul_bc(self, dst, src, rb):
        tb, sb = self.bc(rb)
        return f"v_pk_mul_f32 v[{dst}:{dst+1}], v[{src}:{src+1}], {tb} op_sel:[0,{sb}] op_sel_hi:[1,{sb}]"
    @staticmethod
    def pk_add(dst, a_, b_): return f"v_pk_add_f32 v[{dst}:{dst+1}], v[{a_}:{a_+1}], v[{b_}:{b_+1}]"

    def softmax(self, R, P, t):
        mx, mn, u, w, bp, bn, bpm, bnm = [t + k for k in range(8)]
        L = []
        L.append(f"v_max3_f32 v{mx}, v{R}, v{R+1}, v{R+2}")
        L.append(f"v_min3_f32 v{mn}, v{R}, v{R+1}, v{R+2}")
        for k in range(3, 15, 2):
            L.append(f"v_max3_f32 v{mx}, v{mx}, v{R+k}, v{R+k+1}")
            L.append(f"v_min3_f32 v{mn}, v{mn}, v{R+k}, v{R+k+1}")
        L.append(f"v_max_f32 v{mx}, v{mx}, v{R+15}")
        L.append(f"v_min_f32 v{mn}, v{mn}, v{R+15}")
        L += [f"v_mov_b32 v{u}, v{mx}", f"v_mov_b32 v{w}, v{mn}",
              f"v_mov_b32 v{bpm}, {hexf(1e30)}", f"v_mov_b32 v{bnm}, {hexf(-1e30)}",
              f"v_permlane32_swap_b32 v{u}, v{mx}", f"v_permlane32_swap_b32 v{w}, v{mn}",
              f"v_max_f32 v{mx}, v{mx}, v{u}", f"v_min_f32 v{mn}, v{mn}, v{w}",
              f"v_mul_f32 v{bp}, v{V_C}, v{mx}", f"v_mul_f32 v{bn}, v{V_C}, v{mn}",
              f"v_cndmask_b32 v{bpm}, v{bp}, v{bpm}, s[{S_UP}:{S_UP+1}]",
              f"v_cndmask_b32 v{bnm}, v{bn}, v{bnm}, s[{S_UP}:{S_UP+1}]"]
        for g in range(4):
            for k in (0, 2):
                r = 4 * g + k
                L.append(self.pk_fma_bc(P + r, R + r, V_C, bpm if g == 3 else bp, 0, 1))
            for k in (0, 2):
                r = 4 * g + k
                L.append(self.pk_fma_bc(R + r, R + r, V_C, bnm if g == 3 else bn, 1, 0))
        for g in range(4):
            for k in range(4): L.append(f"v_exp_f32 v{P+4*g+k}, v{P+4*g+k}")
            for k in range(4): L.append(f"v_exp_f32 v{R+4*g+k}, v{R+4*g+k}")
            if g == 0: pass
            elif g == 1:
                L += [self.pk_add(mx, P, P + 2), self.pk_add(u, R, R + 2)]
            else:
                for k in (0, 2):
                    L += [self.pk_add(mx, mx, P + 4 * (g - 1) + k), self.pk_add(u, u, R + 4 * (g - 1) + k)]
        for k in (0, 2):
            L += [self.pk_add(mx, mx, P + 12 + k), self.pk_add(u, u, R + 12 + k)]
        L += [f"v_add_f32 v{mx}, v{mx}, v{mn}", f"v_add_f32 v{u}, v{u}, v{w}",
              f"v_mov_b32 v{mn}, v{mx}", f"v_mov_b32 v{w}, v{u}",
              f"v_permlane32_swap_b32 v{mn}, v{mx}", f"v_permlane32_swap_b32 v{w}, v{u}",
              f"v_add_f32 v{mx}, v{mx}, v{mn}", f"v_add_f32 v{u}, v{u}, v{w}",
              f"v_rcp_f32 v{mx}, v{mx}", f"v_rcp_f32 v{u}, v{u}"]
        for k in range(0, 16, 2): L.append(self.pk_mul_bc(P + k, P + k, mx))
        for k in range(0, 16, 2): L.append(self.pk_mul_bc(R + k, R + k, u))
        for d in range(8): L.append(f"v_cvt_pk_bf16_f32 v{P+d}, v{P+2*d}, v{P+2*d+1}")
        for d in range(8): L.append(f"v_cvt_pk_bf16_f32 v{R+d}, v{R+2*d}, v{R+2*d+1}")
        return L

    def phi_apply(self, R, tb):
        L = [f"v_cvt_pk_bf16_f32 v{tb+d}, v{R+2*d}, v{R+2*d+1}" for d in range(8)]
        L.append(f"{MF} {vr(R,16)}, {ar(A_PHI)}, {vr(tb)}, 0")
        L.append(f"{MF} {vr(R,16)}, {ar(A_PHI+4)}, {vr(tb+4)}, {vr(R,16)}")
        return L

    def weave(self, mains, fills, budget=24, bg=None, bg_every=2, bg_start=0):
        fi = 0
        for n, m in enumerate(mains):
            m()
            c = 0
            if bg and n >= bg_start and (n - bg_start) % bg_every == 0:
                it = bg.pop(0); self.emits(it); c += 4 * len(it)
            while fi < len(fills):
                t = fills[fi]
                cost = 8 if t.startswith(("v_exp", "v_rcp", "v_rsq")) else (32 if t.startswith("v_mfma") else 4)
                if c and c + cost > budget: break
                self.emit(t); fi += 1; c += cost
        while fi < len(fills):
            self.emit(fills[fi]); fi += 1

    def emits_bg(self, L, bg, n, first=0, every=10):
        k = 0
        for i, t in enumerate(L):
            if k < n and bg and i >= first and (i - first) % every == 0:
                self.emits(bg.pop(0)); k += 1
            self.emit(t)

    def take(self, bg, n):
        for _ in range(n):
            if bg: self.emits(bg.pop(0))

    def stream2(self, c0, c1, nsteps, dst0, dst1, tagf):
        items = []
        for i in range(nsteps):
            for (c, d) in ((c0, dst0), (c1, dst1)):
                it = [f"buffer_load_dwordx4 {d(i)}, v{V_L16}, s[4:7], s{c} offen" + (f" offset:{(i%4)*1024}" if i % 4 else "") + f"|{tagf(i)}"]
                if i % 4 == 3 and i != nsteps - 1: it.append(f"s_add_u32 s{c}, s{c}, 4096")
                items.append(it)
        return items

    def w3_stream(self):
        a = self.a
        a.e(f"s_lshl_b32 s{S_G0}, s{S_JS}, 2\ns_add_u32 s{S_G0}, s{S_G0}, s{S_W}\ns_mul_i32 s{S_G0}, s{S_G0}, {56*KB}\ns_add_u32 s{S_G0}, s{S_G0}, {WGU}")
        a.e(f"s_add_u32 s{S_G1}, s{S_G0}, {28*KB}")
        return self.stream2(S_G0, S_G1, 28, lambda s: ar(8 * s), lambda s: ar(8 * s + 4), lambda s: f"w3_{s}")

    def wo_stream(self):
        a = self.a
        for sl, c in ((0, S_G2), (1, S_G3)):
            a.e(f"s_xor_b32 s{c}, s{S_NT}, {sl}\ns_lshl_b32 s{S_T1}, s{S_CB}, 1\ns_add_u32 s{c}, s{c}, s{S_T1}")
            a.e(f"s_lshl_b32 s{c}, s{c}, 5\ns_lshl_b32 s{S_T1}, s{S_W}, 3\ns_add_u32 s{c}, s{c}, s{S_T1}")
            a.e(f"s_lshl_b32 s{c}, s{c}, 10\ns_add_u32 s{c}, s{c}, {WO}")
        return self.stream2(S_G2, S_G3, 8, lambda i: vr(16 + 4 * i), lambda i: vr(48 + 4 * i), lambda i: "wo")

    W4A = 128
    def w4_reg(self, i, sl):
        return vr(self.W4A + 8 * i + 4 * sl) if i < 16 else ar(8 * (i - 16) + 4 * sl)
    def w4_stream(self):
        a = self.a
        for sl, d in ((0, S_G0), (1, S_G1)):
            a.e(f"s_xor_b32 s{d}, s{S_NT}, {sl}\ns_lshl_b32 s{S_T1}, s{S_CB}, 1\ns_add_u32 s{d}, s{d}, s{S_T1}\ns_mul_i32 s{d}, s{d}, 112")
            a.e(f"s_mul_i32 s{S_T1}, s{S_W}, 28\ns_add_u32 s{d}, s{d}, s{S_T1}\ns_lshl_b32 s{d}, s{d}, 10\ns_add_u32 s{d}, s{d}, {WD}")
        return self.stream2(S_G0, S_G1, 28, lambda i: self.w4_reg(i, 0), lambda i: self.w4_reg(i, 1), lambda i: f"w4_{i}")

    def dma_items(self, n, lds_sreg, soff, tag, sc1):
        items = []
        for i in range(n):
            it = []
            if i % 4 == 0: it += [f"s_mov_b32 m0, s{lds_sreg}", "s_nop 0"]
            it.append(f"buffer_load_dwordx4 v{V_L16}, s[4:7], s{soff} offen" + (f" offset:{(i%4)*1024}" if i % 4 else "") + (" sc1" if sc1 else "") + f" lds|{tag}")
            if i % 4 == 3 and i != n - 1:
                it += [f"s_add_u32 s{soff}, s{soff}, 4096", f"s_add_u32 s{lds_sreg}, s{lds_sreg}, 4096"]
            items.append(it)
        return items

    def p1w_items(self, part):
        its = self.dma_items(7, S_G3, S_G2, "w1" + "qkv"[part], False)
        pre = [f"s_mul_i32 s{S_G3}, s{S_W}, {7*KB}", f"s_mul_i32 s{S_G2}, s{S_J}, {84*KB}",
               f"s_add_u32 s{S_G3}, s{S_G3}, {part*28*KB}", f"s_add_u32 s{S_G2}, s{S_G2}, s{S_G3}",
               f"s_add_u32 s{S_G2}, s{S_G2}, {WQKV}"]
        its[0] = pre + its[0]
        return its

    def emit(self, t):
        a = self.a
        if t.startswith("@waitlg "): a.wait_lg(t.split()[1])
        elif t.startswith("@waitvm "): a.wait_vm(t.split()[1])
        elif "|" in t:
            txt, tag = t.split("|"); a.e(txt, tag=tag)
        else: a.e(t)
    def emits(self, L):
        for t in L: self.emit(t)

    def p1(self):
        a, o = self.a, self.o
        XF, RK, RV, RQ, RING, RA, RB, TB = 16, 128, 144, 160, 176, 208, 224, 240
        RS, KR, QRING = 160, 176, 192
        LA = int(o.get("la1", 6))
        self.mark("p1_start")
        a.e(f"s_lshl_b32 s{S_T0}, s{S_RB}, 2\ns_add_u32 s{S_T0}, s{S_T0}, s{S_W}")
        a.e(f"s_mul_i32 s{S_A}, s{S_T0}, {28*KB}\ns_mul_i32 s{S_T1}, s{S_L}, {2*XSZ}\ns_add_u32 s{S_A}, s{S_A}, s{S_T1}\ns_add_u32 s{S_A}, s{S_A}, {X}")
        a.e(f"s_mul_i32 s{S_B}, s{S_T0}, 3584\ns_mul_i32 s{S_T1}, s{S_L}, {2*STSZ}\ns_add_u32 s{S_B}, s{S_B}, s{S_T1}\ns_add_u32 s{S_B}, s{S_B}, {ST}")
        def ldx(s):
            self.bload(vr(XF + 4 * s), V_L16, S_A, (s % 4) * 1024, f"x{s}")
            if s % 4 == 3 and s != 27: a.e(f"s_add_u32 s{S_A}, s{S_A}, 4096")
        ldx(0); ldx(1)
        for k in range(7):
            self.bload(vr(RA + 2 * k, 2), V_STL, S_B, k * 256, "st", n=2)
        for s_ in range(2, LA): ldx(s_)
        w3 = self.w3_stream()
        a.wait_vm(("w1k", "w1v", "phi", "res"))
        a.e("s_barrier")
        self.mark("p1_wready")
        def rdA(s):
            sl = RING + 8 * (s % 4)
            r, of = self.ldsaddr(L_W1 + (28 + s) * KB); a.e(f"ds_read_b128 {vr(sl)}, v{r} offset:{of}", tag=f"a{s}")
            r, of = self.ldsaddr(L_W1 + (56 + s) * KB); a.e(f"ds_read_b128 {vr(sl+4)}, v{r} offset:{of}", tag=f"a{s}")
        for s_ in range(3): rdA(s_)
        def mk(s):
            def f():
                if s + 3 < 28: rdA(s + 3)
                if s + LA < 28: ldx(s + LA)
                a.wait_both(f"x{s}", f"a{s}")
                sl = RING + 8 * (s % 4)
                a.e(f"{MF} {vr(RK,16)}, {vr(sl)}, {vr(XF+4*s)}, {vr(RK,16) if s else 0}")
            return f
        def mv(s):
            def f():
                sl = RING + 8 * (s % 4)
                a.e(f"{MF} {vr(RV,16)}, {vr(XF+4*s)}, {vr(sl+4)}, {vr(RV,16) if s else 0}")
            return f
        mains = []
        for s_ in range(28): mains += [mk(s_), mv(s_)]
        fills = ["@waitvm st"] + self.stats_reduce(RA, V_T0, V_T1, V_T2, V_T3)
        fills += [f"v_rsq_f32 v{V_T0}, v{V_T0}",
                  f"v_lshrrev_b32 v{V_T1}, 1, v{V_I8}",
                  f"s_lshl_b32 s{S_T0}, s{S_W}, 7", f"s_add_u32 s{S_T0}, s{S_T0}, {L_SCR}",
                  f"v_add_u32 v{V_T1}, s{S_T0}, v{V_T1}",
                  f"ds_write_b32 v{V_T1}, v{V_T0}|scw",
                  f"v_mul_f32 v{V_C}, {hexf(1.4426950408889634)}, v{V_T0}",
                  f"v_lshrrev_b32 v{V_T1}, 5, v{V_L16}", f"v_and_b32 v{V_T1}, 16, v{V_T1}",
                  f"v_add_u32 v{V_T1}, s{S_T0}, v{V_T1}", "@waitlg scw"]
        fills += [f"ds_read_b128 {vr(RS+4*g)}, v{V_T1} offset:{g*32}|rs" for g in range(4)]
        self.weave(mains, fills)
        self.mark("p1_loopA")
        vch = ["@waitlg rs"] + [f"v_pk_fma_f32 v[{RV+r}:{RV+r+1}], v[{RV+r}:{RV+r+1}], v[{RS+r}:{RS+r+1}], v[{V_ONE & ~1}:{(V_ONE & ~1)+1}] op_sel:[0,0,{V_ONE&1}] op_sel_hi:[1,1,{V_ONE&1}]" for r in range(0, 16, 2)]
        vch += [f"v_cvt_pk_bf16_f32 v{RV+d}, v{RV+2*d}, v{RV+2*d+1}" for d in range(8)]
        pa = self.phi_apply(RK, TB)
        self.take(w3, int(o.get("bg_k", 8)) // 2)
        self.emits(pa)
        self.emits(vch)
        self.emits_bg(self.softmax(RK, RA, V_T0), w3, int(o.get("bg_k", 8)) // 2, first=0, every=6)
        self.mark("p1_kepi")
        a.e(f"{MF} {vr(RB,16)}, {vr(RA)}, {ar(A_ID)}, 0")
        a.e(f"{MF} {vr(RB,16)}, {vr(RA+4)}, {ar(A_ID+4)}, {vr(RB,16)}")
        a.e(f"{MF} {vr(RA,16)}, {vr(RK)}, {ar(A_ID)}, 0")
        a.e(f"{MF} {vr(RA,16)}, {vr(RK+4)}, {ar(A_ID+4)}, {vr(RA,16)}")
        a.e(f"s_lshl_b32 s{S_T0}, s{S_W}, 11\ns_add_u32 s{S_T0}, s{S_T0}, {L_KVR}\nv_add_u32 v{V_T0}, s{S_T0}, v{V_L16}")
        a.e(f"s_lshl_b32 s{S_T0}, s{S_W}, 13\ns_add_u32 s{S_T0}, s{S_T0}, {L_KVR}\nv_add_u32 v{V_T1}, s{S_T0}, v{V_L16}")
        for d in range(8): a.e(f"v_cvt_pk_bf16_f32 v{RB+d}, v{RB+2*d}, v{RB+2*d+1}")
        a.e(f"{MF} {vr(RK,16)}, {vr(RB)}, {vr(RV)}, 0")
        a.e(f"{MF} {vr(RK,16)}, {vr(RB+4)}, {vr(RV+4)}, {vr(RK,16)}")
        for d in range(8): a.e(f"v_cvt_pk_bf16_f32 v{RA+d}, v{RA+2*d}, v{RA+2*d+1}")
        a.e(f"{MF} {vr(RB,16)}, {vr(RA)}, {vr(RV)}, 0")
        a.e(f"{MF} {vr(RB,16)}, {vr(RA+4)}, {vr(RV+4)}, {vr(RB,16)}")
        a.e(f"s_lshl_b32 s{S_T0}, s{S_J}, 2\ns_add_u32 s{S_T0}, s{S_T0}, s{S_W}\ns_lshl_b32 s{S_T0}, s{S_T0}, 14")
        a.e(f"s_mul_i32 s{S_T1}, s{S_L}, {SLABSZ}\ns_add_u32 s{S_T0}, s{S_T0}, s{S_T1}\ns_add_u32 s{S_C}, s{S_T0}, {SLAB}")
        a.e(f"s_lshl_b32 s{S_T1}, s{S_RB}, 10\ns_add_u32 s{S_D2}, s{S_C}, s{S_T1}")
        for t, R in ((0, RK), (1, RB)):
            for s_ in range(2):
                for g in range(2):
                    a.e(f"ds_write_b128 v{V_T0}, {vr(R+8*s_+4*g)} offset:{(2*t+s_)*8192+g*1024}", tag="kw")
        a.wait_vm("w1q")
        a.e("s_waitcnt lgkmcnt(0)\ns_barrier")
        for ws in range(4):
            for g in range(2):
                a.e(f"ds_read_b128 {vr(KR+8*ws+4*g)}, v{V_T1} offset:{(ws*2+g)*1024}", tag=f"kr{ws}")
        a.wait_lg("kr1")
        for r in range(0, 8, 2): a.e(self.pk_add(KR + r, KR + r, KR + 8 + r))
        a.wait_lg("kr3")
        for r in range(0, 8, 2): a.e(self.pk_add(KR + 16 + r, KR + 16 + r, KR + 24 + r))
        for r in range(0, 8, 2): a.e(self.pk_add(KR + r, KR + r, KR + 16 + r))
        for d in range(4): a.e(f"v_cvt_pk_bf16_f32 v{KR+d}, v{KR+2*d}, v{KR+2*d+1}")
        a.e(f"buffer_store_dwordx4 {vr(KR)}, v{V_L16}, s[4:7], s{S_D2} offen sc1", tag="slab")
        self.mark("p1_slab")
        def rdB(s):
            sl = QRING + 4 * (s % 4)
            r, of = self.ldsaddr(L_W1 + s * KB); a.e(f"ds_read_b128 {vr(sl)}, v{r} offset:{of}", tag=f"b{s}")
        for s_ in range(3): rdB(s_)
        ARR = int(o.get("arr1", 20))
        def mq(s):
            def f():
                if s == ARR: self.arrive(0, S_J, "slab")
                if s + 3 < 28: rdB(s + 3)
                a.wait_lg(f"b{s}")
                sl = QRING + 4 * (s % 4)
                a.e(f"{MF} {vr(RQ,16)}, {vr(sl)}, {vr(XF+4*s)}, {vr(RQ,16) if s else 0}")
            return f
        self.weave([mq(s_) for s_ in range(28)], [], bg=w3, bg_every=int(o.get("bg_q_every", 2)))
        self.mark("p1_qpass")
        wo = self.wo_stream()
        self.emits_bg(self.phi_apply(RQ, TB) + self.softmax(RQ, RA, V_T0), wo, int(o.get("bg_qe", 11)), first=0, every=11)
        self.mark("p1_qepi")
        self.RA, self.RQ = RA, RQ
        self.w3, self.wo = w3, wo

    def p2a(self):
        a, o = self.a, self.o
        RA, RQ = self.RA, self.RQ
        SL, AC, KA, RB, TB = 80, 176, 188, 224, 240
        self.poll(0, S_J, 16)
        self.mark("S1_poll")
        def lds_(i):
            self.bload(vr(SL + 4 * i), V_L16, S_C, (i % 4) * 1024, f"sl{i}")
            if i % 4 == 3 and i != 15: a.e(f"s_add_u32 s{S_C}, s{S_C}, 4096")
        for i in range(16): lds_(i)
        self.take(self.wo, 16)
        self.take(self.w3, int(o.get("bg_2a", 0)))
        for i in range(16):
            a.wait_vm(f"sl{i}")
            for d in range(4):
                a.e(f"v_dot2_f32_bf16 v{AC+2*d}, v{SL+4*i+d}, s{S_SEL_LO}, {'v%d' % (AC+2*d) if i else 0}")
                a.e(f"v_dot2_f32_bf16 v{AC+2*d+1}, v{SL+4*i+d}, s{S_SEL_HI}, {'v%d' % (AC+2*d+1) if i else 0}")
        a.e(f"s_lshl_b32 s{S_T0}, s{S_W}, 10\ns_add_u32 s{S_T0}, s{S_T0}, {L_KVA}\nv_add_u32 v{V_T0}, s{S_T0}, v{V_L16}")
        for d in range(4): a.e(f"v_cvt_pk_bf16_f32 v{AC+8+d}, v{AC+2*d}, v{AC+2*d+1}")
        a.e(f"ds_write_b128 v{V_T0}, {vr(AC+8)}")
        a.e(f"s_lshl_b32 s{S_T0}, s{S_RB}, 2\ns_add_u32 s{S_T0}, s{S_T0}, s{S_W}\ns_lshl_b32 s{S_T0}, s{S_T0}, 4\ns_add_u32 s{S_T0}, s{S_T0}, s{S_J}\ns_lshl_b32 s{S_T0}, s{S_T0}, 11")
        a.e(f"s_mul_i32 s{S_T1}, s{S_L}, {OSZ}\ns_add_u32 s{S_T0}, s{S_T0}, s{S_T1}\ns_add_u32 s{S_A}, s{S_T0}, {O}")
        a.e("s_waitcnt lgkmcnt(0)\ns_barrier")
        for p in range(4):
            r, of = self.ldsaddr(L_KVA + p * KB)
            a.e(f"ds_read_b128 {vr(KA+4*p)}, v{r} offset:{of}", tag=f"ka{p}")
        Bs = [RA, RA + 4, RQ, RQ + 4]
        for p in range(4):
            a.wait_lg(f"ka{p}")
            a.e(f"{MF} {vr(RB,16)}, {vr(KA+4*p)}, {vr(Bs[p])}, {vr(RB,16) if p else 0}")
        a.e(f"v_mov_b32 v{V_T0}, v{RB+12}\nv_mov_b32 v{V_T1}, v{RB+12}")
        a.e(f"v_permlane32_swap_b32 v{V_T0}, v{V_T1}")
        a.e(f"v_add_f32 v{V_T1}, {hexf(1e-6)}, v{V_T1}\nv_rcp_f32 v{V_T1}, v{V_T1}")
        for r in range(0, 16, 2): a.e(self.pk_mul_bc(RB + r, RB + r, V_T1))
        for d in range(8): a.e(f"v_cvt_pk_bf16_f32 v{TB+d}, v{RB+2*d}, v{RB+2*d+1}")
        a.e(f"buffer_store_dwordx4 {vr(TB)}, v{V_L16}, s[4:7], s{S_A} offen sc1", tag="ost")
        a.e(f"buffer_store_dwordx4 {vr(TB+4)}, v{V_L16}, s[4:7], s{S_A} offen offset:1024 sc1", tag="ost")
        self.mark("p2a_ost")
        self.arrive(1, S_RB, "ost")
        self.mark("S2_arr")

    def reduce_epilogue(self, ACC):
        a = self.a
        for u in range(1, 4):
            a.e(f"s_xor_b32 s{S_T0}, s{S_W}, {u}\ns_mul_i32 s{S_T0}, s{S_T0}, 12288\ns_add_u32 s{S_T0}, s{S_T0}, {L_RED+(u-1)*4096}")
            a.e(f"v_add_u32 v{V_T0+u}, s{S_T0}, v{V_L16}")
        a.e(f"s_mul_i32 s{S_T0}, s{S_W}, 12288\ns_add_u32 s{S_T0}, s{S_T0}, {L_RED}\nv_add_u32 v{V_T0}, s{S_T0}, v{V_L16}")
        TR = ACC + 64
        for d in range(8): a.e(f"v_accvgpr_read_b32 v{TR+16+d}, a{A_RES+d}")
        for u in range(1, 4):
            for g in range(4):
                a.e(f"ds_write_b128 v{V_T0+u}, {vr(ACC+16*u+4*g)} offset:{g*1024}", tag="rw")
        for d in range(8):
            a.e(f"v_lshlrev_b32 v{TR+2*d}, 16, v{TR+16+d}\nv_and_b32 v{TR+2*d+1}, 0xffff0000, v{TR+16+d}")
        for r in range(0, 16, 2): a.e(self.pk_add(ACC + r, ACC + r, TR + r))
        a.e("s_waitcnt lgkmcnt(0)\ns_barrier")
        RD = ACC + 16
        for u in range(3):
            for g in range(4):
                a.e(f"ds_read_b128 {vr(RD+16*u+4*g)}, v{V_T0} offset:{u*4096+g*1024}", tag=f"rr{u}")
        self.tile_index(S_A)
        a.e(f"s_lshl_b32 s{S_B}, s{S_CB}, 1\ns_add_u32 s{S_B}, s{S_B}, s{S_NT}")
        for u in range(3):
            a.wait_lg(f"rr{u}")
            for r in range(0, 16, 2): a.e(self.pk_add(ACC + r, ACC + r, RD + 16 * u + r))
        PK = TR
        for d in range(8): a.e(f"v_cvt_pk_bf16_f32 v{PK+d}, v{ACC+2*d}, v{ACC+2*d+1}")
        self.PK, self.ACC = PK, ACC

    def store_x_and_stats(self, xsel):
        a = self.a
        PK, ACC = self.PK, self.ACC
        a.e(f"s_mul_i32 s{S_T0}, s{S_A}, 28\ns_lshl_b32 s{S_T1}, s{S_B}, 1\ns_add_u32 s{S_T0}, s{S_T0}, s{S_T1}\ns_lshl_b32 s{S_T0}, s{S_T0}, 10")
        a.e(f"s_mul_i32 s{S_T1}, s{S_L}, {2*XSZ}\ns_add_u32 s{S_T0}, s{S_T0}, s{S_T1}\ns_add_u32 s{S_T0}, s{S_T0}, {X+xsel*XSZ}")
        a.e(f"buffer_store_dwordx4 {vr(PK)}, v{V_L16}, s[4:7], s{S_T0} offen sc1", tag="xst")
        a.e(f"buffer_store_dwordx4 {vr(PK+4)}, v{V_L16}, s[4:7], s{S_T0} offen offset:1024 sc1", tag="xst")
        t = PK + 8
        a.e(self.pk_add(t, ACC, ACC + 2))
        a.e(f"v_pk_mul_f32 v[{t+2}:{t+3}], v[{ACC}:{ACC+1}], v[{ACC}:{ACC+1}]")
        for r in range(2, 16, 2):
            if r > 2: a.e(self.pk_add(t, t, ACC + r))
            a.e(f"v_pk_fma_f32 v[{t+2}:{t+3}], v[{ACC+r}:{ACC+r+1}], v[{ACC+r}:{ACC+r+1}], v[{t+2}:{t+3}]")
        a.e(f"s_mul_i32 s{S_T0}, s{S_A}, 3584\ns_lshl_b32 s{S_T1}, s{S_B}, 8\ns_add_u32 s{S_T0}, s{S_T0}, s{S_T1}")
        a.e(f"v_add_f32 v{t}, v{t}, v{t+1}\nv_add_f32 v{t+1}, v{t+2}, v{t+3}")
        a.e(f"s_mul_i32 s{S_T1}, s{S_L}, {2*STSZ}\ns_add_u32 s{S_T0}, s{S_T0}, s{S_T1}\ns_add_u32 s{S_T0}, s{S_T0}, {ST+xsel*STSZ}")
        a.e(f"v_mov_b32 v{t+2}, v{t}\nv_mov_b32 v{t+3}, v{t+1}")
        a.e(f"v_permlane32_swap_b32 v{t+2}, v{t}\nv_permlane32_swap_b32 v{t+3}, v{t+1}")
        a.e(self.pk_add(t, t, t + 2))
        a.e("s_mov_b32 exec_hi, 0")
        a.e(f"buffer_store_dwordx2 v[{t}:{t+1}], v{V_I8}, s[4:7], s{S_T0} offen sc1", tag="xst")
        a.e("s_mov_b32 exec_hi, -1")
        for d in range(8): a.e(f"v_accvgpr_write_b32 a{A_RES+d}, v{PK+d}")

    def p2b(self):
        a, o = self.a, self.o
        OB, ACC = 80, 144
        self.poll(1, S_RB, 16)
        self.mark("S2_poll")
        for b, c in ((0, S_A), (1, S_B)):
            a.e(f"s_xor_b32 s{c}, s{S_TT}, {b}\ns_lshl_b32 s{S_T1}, s{S_RB}, 1\ns_add_u32 s{S_T1}, s{S_T1}, s{S_TH}\ns_lshl_b32 s{S_T1}, s{S_T1}, 1\ns_add_u32 s{c}, s{c}, s{S_T1}")
            a.e(f"s_lshl_b32 s{c}, s{c}, 5\ns_lshl_b32 s{S_T1}, s{S_W}, 3\ns_add_u32 s{c}, s{c}, s{S_T1}\ns_lshl_b32 s{c}, s{c}, 10")
            a.e(f"s_mul_i32 s{S_T1}, s{S_L}, {OSZ}\ns_add_u32 s{c}, s{c}, s{S_T1}\ns_add_u32 s{c}, s{c}, {O}")
        def ld(i):
            for b, c in ((0, S_A), (1, S_B)):
                self.bload(vr(OB + 32 * b + 4 * i), V_L16, c, (i % 4) * 1024, f"o{i}")
            if i == 3: a.e(f"s_add_u32 s{S_A}, s{S_A}, 4096\ns_add_u32 s{S_B}, s{S_B}, 4096")
        for i in range(8): ld(i)
        nb = int(o.get("bg_2b", 20))
        self.take(self.w3, nb // 2)
        for i in range(8):
            a.wait_vm((f"o{i}", "wo"))
            for b in range(2):
                for sl in range(2):
                    u = 2 * b + sl
                    a.e(f"{MF} {vr(ACC+16*u,16)}, {vr(16+32*sl+4*i)}, {vr(OB+32*b+4*i)}, {vr(ACC+16*u,16) if i else 0}")
                    if u % 2 == 1 and nb - nb // 2 > 2 * i + b: self.take(self.w3, 1)
        self.mark("p2b_mfma")
        self.reduce_epilogue(ACC)
        self.store_x_and_stats(1)
        self.mark("p2b_st")
        self.arrive(2, S_RB, "xst")
        self.mark("S3_arr")

    def p3(self):
        a, o = self.a, self.o
        ACC0, ACC1, RING, CC, TT, HP, STB = 16, 48, 80, 96, 100, 116, 100
        self.take(self.w3, int(o.get("bg_s3", 0)))
        self.poll(2, S_RB, 14)
        self.mark("S3_poll")
        a.e(f"s_mul_i32 s{S_A}, s{S_RB}, {4*28*KB}\ns_mul_i32 s{S_T1}, s{S_L}, {2*XSZ}\ns_add_u32 s{S_A}, s{S_A}, s{S_T1}\ns_add_u32 s{S_A}, s{S_A}, {X+XSZ}")
        a.e(f"s_mul_i32 s{S_B}, s{S_W}, {7*KB}\ns_add_u32 s{S_A}, s{S_A}, s{S_B}")
        xd = []
        for T in range(4):
            its = self.dma_items(7, S_G3, S_G2, f"xt{T}", True)
            its[0] = [f"s_add_u32 s{S_G2}, s{S_A}, {T*28*KB}", f"s_add_u32 s{S_G3}, s{S_B}, {T*28*KB}"] + its[0]
            xd += its
        self.take(xd, 7)
        a.e(f"s_lshl_b32 s{S_T0}, s{S_RB}, 2\ns_add_u32 s{S_T0}, s{S_T0}, s{S_W}\ns_mul_i32 s{S_T0}, s{S_T0}, 3584")
        a.e(f"s_mul_i32 s{S_T1}, s{S_L}, {2*STSZ}\ns_add_u32 s{S_T0}, s{S_T0}, s{S_T1}\ns_add_u32 s{S_T0}, s{S_T0}, {ST+STSZ}")
        for k in range(7): self.bload(vr(STB + 2 * k, 2), V_STL, S_T0, k * 256, "st", n=2)
        w3rest = self.w3
        self.take(w3rest, len(w3rest))
        a.e(f"s_lshl_b32 s{S_C}, s{S_RB}, 2\ns_mul_i32 s{S_C}, s{S_C}, 112\ns_lshl_b32 s{S_T0}, s{S_JS}, 2\ns_add_u32 s{S_T0}, s{S_T0}, s{S_W}\ns_lshl_b32 s{S_T0}, s{S_T0}, 1")
        a.e(f"s_add_u32 s{S_C}, s{S_C}, s{S_T0}\ns_lshl_b32 s{S_C}, s{S_C}, 10\ns_mul_i32 s{S_T1}, s{S_L}, {HSZ}\ns_add_u32 s{S_C}, s{S_C}, s{S_T1}\ns_add_u32 s{S_C}, s{S_C}, {HB}")
        c1 = -2.0 * 0.7978845608028654 * 1.4426950408889634
        c2 = c1 * 0.044715
        stf = ["@waitvm st"] + self.stats_reduce(STB, V_T0, V_T1, V_T2, V_T3)
        stf += [f"v_rsq_f32 v{V_T1}, v{V_T0}",
                f"v_lshrrev_b32 v{V_T4}, 1, v{V_I8}", f"s_mul_i32 s{S_T0}, s{S_W}, 384", f"s_add_u32 s{S_T0}, s{S_T0}, {L_SCR3}", f"v_add_u32 v{V_T4}, s{S_T0}, v{V_T4}",
                f"v_mul_f32 v{V_T2}, v{V_T1}, v{V_T1}", f"v_mul_f32 v{V_T3}, {hexf(c1)}, v{V_T1}", f"v_mul_f32 v{V_T2}, v{V_T2}, v{V_T1}", f"v_mul_f32 v{V_T2}, {hexf(c2)}, v{V_T2}",
                f"ds_write_b32 v{V_T4}, v{V_T3}|cw", f"ds_write_b32 v{V_T4}, v{V_T2} offset:128|cw", f"ds_write_b32 v{V_T4}, v{V_T0} offset:256|cw",
                f"v_lshrrev_b32 v{V_T4}, 1, v{V_I8}", f"v_add_u32 v{V_T4}, {L_SCR3}, v{V_T4}"]

        def epi(T):
            A = ACC0 if T % 2 == 0 else ACC1
            G, U = A, A + 16
            L = []
            for q in range(3): L.append(f"ds_read_b32 v{CC+q}, v{V_T4} offset:{T*384+q*128}|cc")
            L.append("@waitlg cc")
            for g in range(4):
                rr = [4 * g + k for k in range(4)]
                for k, r in enumerate(rr): L.append(f"v_mul_f32 v{TT+k}, v{G+r}, v{G+r}")
                for k, r in enumerate(rr): L.append(f"v_fma_f32 v{TT+k}, v{TT+k}, v{CC+1}, v{CC}")
                for k, r in enumerate(rr): L.append(f"v_mul_f32 v{TT+k}, v{TT+k}, v{G+r}")
                for k, r in enumerate(rr): L.append(f"v_exp_f32 v{TT+k}, v{TT+k}")
                for k, r in enumerate(rr): L.append(f"v_mul_f32 v{TT+4+k}, v{G+r}, v{U+r}")
                for k, r in enumerate(rr): L.append(f"v_fma_f32 v{TT+k}, v{TT+k}, v{CC+2}, v{CC+2}")
                for k, r in enumerate(rr): L.append(f"v_rcp_f32 v{TT+k}, v{TT+k}")
                if g: L += pend
                pend = [f"v_mul_f32 v{TT+4+k}, v{TT+4+k}, v{TT+k}" for k in range(4)]
                L += pend
                pend = []
                L.append(f"v_cvt_pk_bf16_f32 v{HP+2*g}, v{TT+4}, v{TT+5}")
                L.append(f"v_cvt_pk_bf16_f32 v{HP+2*g+1}, v{TT+6}, v{TT+7}")
                if g % 2 == 1:
                    s_ = g // 2
                    L.append(f"buffer_store_dwordx4 {vr(HP+4*s_)}, v{V_L16}, s[4:7], s{S_C} offen" + (" offset:1024" if s_ else "") + " sc1|hst")
            L.append(f"s_add_u32 s{S_C}, s{S_C}, {112*KB}")
            return L

        w4 = None
        for T in range(4):
            A = ACC0 if T % 2 == 0 else ACC1
            a.wait_vm(f"xt{T}")
            a.e("s_waitcnt lgkmcnt(0)\ns_barrier")
            if T in (0, 1, 3): self.mark(f"p3_T{T}")
            def rd(s):
                r, of = self.ldsaddr(L_W1 + (T * 28 + s) * KB)
                a.e(f"ds_read_b128 {vr(RING+4*(s%4))}, v{r} offset:{of}", tag=f"b{s}")
            for s_ in range(3): rd(s_)
            def mg(s):
                def f():
                    if s + 3 < 28: rd(s + 3)
                    a.wait_both(f"w3_{s}" if T == 0 else None, f"b{s}")
                    a.e(f"{MF} {vr(A,16)}, {ar(8*s)}, {vr(RING+4*(s%4))}, {vr(A,16) if s else 0}")
                return f
            def mu(s):
                def f():
                    a.e(f"{MF} {vr(A+16,16)}, {ar(8*s+4)}, {vr(RING+4*(s%4))}, {vr(A+16,16) if s else 0}")
                return f
            mains = []
            for s_ in range(28): mains += [mg(s_), mu(s_)]
            bud = int(o.get("bud3", 20))
            if T == 0:
                self.weave(mains, stf, budget=bud, bg=xd, bg_every=2, bg_start=1)
                w4 = self.w4_stream()
            elif T == 1:
                bg = self.p1w_items(0) + [w4.pop(0) for _ in range(20)]
                mains[0](); mains[1]()
                self.weave(mains[2:], epi(0), budget=bud, bg=bg, bg_every=2)
                self.take(bg, len(bg))
            elif T == 2:
                bg = self.p1w_items(1) + [w4.pop(0) for _ in range(12)]
                mains[0](); mains[1]()
                self.weave(mains[2:], epi(1), budget=bud, bg=bg, bg_every=2)
                self.take(bg, len(bg))
            else:
                p1v = self.p1w_items(2)
                bg = []
                while w4 or p1v:
                    for _ in range(3):
                        if w4: bg.append(w4.pop(0))
                    if p1v: bg.append(p1v.pop(0))
                mains[0](); mains[1]()
                self.weave(mains[2:], epi(2), budget=bud, bg=bg, bg_every=2)
                self.take(bg, len(bg))
        self.mark("p3_loop")
        self.emits(epi(3))
        self.mark("p3_epi")
        self.arrive(3, S_RB, "hst")
        self.mark("S4_arr")

    def p4(self):
        a, o = self.a, self.o
        n = self.name
        ACC, HR, NR = 16, 96, 16
        LA = int(o.get("la4", 6))
        self.poll(3, S_RB, 14)
        self.mark("S4_poll")
        for b in range(2):
            d = (S_A, S_B)[b]
            a.e(f"s_xor_b32 s{d}, s{S_TT}, {b}\ns_lshl_b32 s{S_T1}, s{S_RB}, 1\ns_add_u32 s{S_T1}, s{S_T1}, s{S_TH}\ns_lshl_b32 s{S_T1}, s{S_T1}, 1\ns_add_u32 s{d}, s{d}, s{S_T1}")
            a.e(f"s_mul_i32 s{d}, s{d}, 112\ns_mul_i32 s{S_T1}, s{S_W}, 28\ns_add_u32 s{d}, s{d}, s{S_T1}\ns_lshl_b32 s{d}, s{d}, 10")
            a.e(f"s_mul_i32 s{S_T1}, s{S_L}, {HSZ}\ns_add_u32 s{d}, s{d}, s{S_T1}\ns_add_u32 s{d}, s{d}, {HB}")
        def ld(i, b):
            self.bload(ar(HR + 8 * (i % NR) + 4 * b), V_L16, (S_A, S_B)[b], (i % 4) * 1024, f"h{i}")
            if b == 1 and i % 4 == 3 and i != 27: a.e(f"s_add_u32 s{S_A}, s{S_A}, 4096\ns_add_u32 s{S_B}, s{S_B}, 4096")
        for i in range(LA): ld(i, 0); ld(i, 1)
        for i in range(28):
            a.wait_vm((f"h{i}", f"w4_{i}"))
            for b in range(2):
                for sl in range(2):
                    u = 2 * b + sl
                    a.e(f"{MF} {vr(ACC+16*u,16)}, {self.w4_reg(i, sl)}, {ar(HR+8*(i%NR)+4*b)}, {vr(ACC+16*u,16) if i else 0}")
                if i + LA < 28: ld(i + LA, b)
        self.mark("p4_mfma")
        self.reduce_epilogue(ACC)
        self.mark("p4_red")
        fin = a.newlabel("fin")
        a.e(f"s_cmp_lg_u32 s{S_L}, 0\ns_cbranch_scc1 {fin}")
        self.store_x_and_stats(2)
        self.arrive(4, S_RB, "xst")
        a.e(f"s_branch {n}_next")
        a.label(fin)
        PK = self.PK
        a.e(f"s_mul_i32 s{S_T0}, s{S_A}, {32*896}\ns_lshl_b32 s{S_B}, s{S_B}, 6\ns_add_u32 s{S_T0}, s{S_T0}, s{S_B}")
        a.e(f"v_mul_u32_u24 v{V_T0}, 112, v{V_I8}\nv_lshrrev_b32 v{V_T1}, 5, v{V_L16}\nv_and_b32 v{V_T1}, 16, v{V_T1}\nv_add_u32 v{V_T0}, v{V_T0}, v{V_T1}")
        a.e(f"v_permlane32_swap_b32 v{PK}, v{PK+2}\nv_permlane32_swap_b32 v{PK+1}, v{PK+3}")
        a.e(f"v_permlane32_swap_b32 v{PK+4}, v{PK+6}\nv_permlane32_swap_b32 v{PK+5}, v{PK+7}")
        a.e(f"buffer_store_dwordx4 {vr(PK)}, v{V_T0}, s[8:11], s{S_T0} offen")
        a.e(f"buffer_store_dwordx4 {vr(PK+4)}, v{V_T0}, s[8:11], s{S_T0} offen offset:32")
        a.e(f"s_branch {n}_done")

    def build(self):
        a, n = self.a, self.name
        self.prologue()
        head_q = list(a.vmq)
        a.label(f"{n}_layer")
        a.vmq = list(head_q); a.lgq = []
        lab = a.newlabel("nos5")
        a.e(f"s_cmp_eq_u32 s{S_L}, 0\ns_cbranch_scc1 {lab}")
        self.poll(4, S_RB, 14, prev_layer=True)
        a.label(lab)
        self.p1()
        if self.end_if_stop("p1"): return self.fin()
        self.p2a()
        if self.end_if_stop("p2a"): return self.fin()
        a.e(f"s_cmp_lt_u32 s{S_Q}, 7\ns_cbranch_scc1 {n}_act")
        a.e(f"s_cmp_lg_u32 s{S_L}, 0\ns_cbranch_scc1 {n}_done")
        vq = list(a.vmq)
        for it in self.p1w_items(0) + self.p1w_items(1) + self.p1w_items(2): self.emits(it)
        a.e("s_waitcnt vmcnt(0)")
        a.e(f"s_branch {n}_next")
        a.vmq = vq
        a.label(f"{n}_act")
        self.p2b()
        if self.end_if_stop("p2b"): return self.fin()
        self.p3()
        if self.end_if_stop("p3"): return self.fin()
        self.p4()
        a.label(f"{n}_next")
        self.has_next = True
        if self.stop == "l0":
            a.e("s_waitcnt vmcnt(0) lgkmcnt(0)")
            return self.fin()
        a.e("s_waitcnt vmcnt(0)")
        a.e(f"s_add_u32 s{S_L}, s{S_L}, 1")
        a.e(f"s_branch {n}_layer")
        return self.fin()

    def fin(self):
        a = self.a
        if not getattr(self, "has_next", False): a.label(f"{self.name}_next")
        a.label(f"{self.name}_done")
        if self.o.get("prof"):
            a.e(f"s_memrealtime s[36:37]\ns_waitcnt lgkmcnt(0)\ns_mov_b32 s95, s36")
            self.dump_marks()
        a.e("s_endpgm")
        return a.finalize()
```

```python
import sys, prep, kd, mainvk
from layout import *
def build(stop=None, opts=None, with_header=True):
    p = prep.gen_prep("prep_kernel")
    g = mainvk.Gen("main_kernel", stop=stop, opts=opts)
    m = g.build()
    hdr = ""
    if with_header:
        ref = open("interleave_layers__linear_kernel_hedgehog__geglu_ffn__prompt.s.ref").read().split("\n")
        keep = [l for l in ref if l.startswith(";") and "@launch" not in l and "Override launch" not in l and "grid=ceil" not in l]
        hdr = "\n".join(keep) + "\n"
        hdr += f"; @launch kernel=prep_kernel grid=({prep.NPREP},1,1) block=(256,1,1) lds=1024\n"
        hdr += f"; @launch kernel=main_kernel grid=(256,1,1) block=(256,1,1) lds={mainvk.LDS_BYTES}\n"
    src = hdr + '.amdgcn_target "amdgcn-amd-amdhsa--gfx950"\n.text\n'
    src += kd.head("prep_kernel") + p.text() + kd.head("main_kernel") + m.text()
    src += '.section .rodata,"a"\n' + kd.kd("prep_kernel", 128, 128) + kd.kd("main_kernel", 512, 256, 100)
    build.marks = getattr(g, "marks", [])
    return src, (len(p.ins), p.nops_added, len(m.ins), m.nops_added)
if __name__ == "__main__":
    stop = sys.argv[2] if len(sys.argv) > 2 and sys.argv[2] != "none" else None
    opts = dict(kv.split("=") for kv in sys.argv[3:])
    src, info = build(stop, opts)
    open(sys.argv[1], "w").write(src)
    if build.marks: open(sys.argv[1] + ".marks", "w").write("\n".join(build.marks))
    print("prep instrs/nops, main instrs/nops:", info, "bytes", len(src))
```

```python
from asmlib import Asm
from layout import *
import struct
def hexf(x): return "0x%08x" % struct.unpack("<I", struct.pack("<f", x))[0]

L_W1   = 0
L_XR   = 86016
XSLOT  = 29696
L_KVR  = 86016
L_KVA  = 118784
L_RED  = 86016
L_SCR3 = 145408
L_SCR  = 147456
LDS_BYTES = 163840

S_RB, S_J, S_W, S_L, S_TH, S_CB, S_TT, S_NT = 12, 13, 14, 15, 16, 17, 18, 19
S_T0, S_T1, S_T2, S_T3 = 20, 21, 22, 23
S_SEL_LO, S_SEL_HI = 24, 25
S_UP = 26
S_CNT, S_JS, S_Q, S_M = 28, 29, 30, 31
S_A, S_B, S_C, S_D = 32, 33, 34, 35
S_E, S_F = 38, 39
S_G = [40, 41, 42, 43, 44, 45, 46, 47]
S_FRB, S_FJ = 48, 49
S_TILE, S_N = 50, 51
S_XT = 52
F_S1, F_S2, F_S3, F_S4E, F_S4L, F_S5 = 0, 1, 2, 3, 5, 7

V_POLL, V_L16, V_L16H, V_STL, V_I8, V_ONE, V_C, V_MARK = 0, 1, 2, 3, 4, 5, 6, 7
V_T0, V_T1, V_T2, V_T3, V_T4, V_T5, V_T6, V_T7 = 8, 9, 10, 11, 12, 13, 14, 15
A_PHI, A_ID, A_RES = 232, 240, 248

def vr(b, n=4): return f"v[{b}:{b+n-1}]"
def ar(b, n=4): return f"a[{b}:{b+n-1}]"
MF = "v_mfma_f32_32x32x16_bf16"
def cost_of(t):
    if t.startswith(("v_exp", "v_rcp", "v_rsq")): return 8
    if t.startswith("v_mfma"): return 32
    if t.startswith("@"): return 2
    return 4

class Gen:
    def __init__(self, name, stop=None, opts=None):
        self.a = Asm(); self.name = name; self.stop = stop; self.o = opts or {}
        self.marks = []
    def opt(self, k, d): return int(self.o.get(k, d))

    def emit(self, t):
        a = self.a
        if t.startswith("@waitlg "): a.wait_lg(tuple(t.split()[1:]))
        elif t.startswith("@waitvm "): a.wait_vm(tuple(t.split()[1:]))
        elif "|" in t:
            txt, tag = t.split("|"); a.e(txt, tag=tag)
        else: a.e(t)
    def emits(self, L):
        for t in L: self.emit(t)
    def sa(self, dst, terms, const=0):
        L = []
        first = True
        for r, m in terms:
            tgt = dst if first else S_T3
            if m == 1:
                if first: L.append(f"s_mov_b32 s{dst}, s{r}")
                else: L.append(f"s_add_u32 s{dst}, s{dst}, s{r}")
                first = False
                continue
            if m & (m - 1) == 0: L.append(f"s_lshl_b32 s{tgt}, s{r}, {m.bit_length()-1}")
            else: L.append(f"s_mul_i32 s{tgt}, s{r}, {m}")
            if not first: L.append(f"s_add_u32 s{dst}, s{dst}, s{S_T3}")
            first = False
        if first: L.append(f"s_mov_b32 s{dst}, {const}")
        elif const: L.append(f"s_add_u32 s{dst}, s{dst}, {const}")
        return L
    def ld(self, dst, soff, imm, tag, sc1=True, n=4, vaddr=V_L16):
        op = {4: "buffer_load_dwordx4", 2: "buffer_load_dwordx2", 1: "buffer_load_dword"}[n]
        return f"{op} {dst}, v{vaddr}, s[4:7], s{soff} offen" + (f" offset:{imm}" if imm else "") + (" sc1" if sc1 else "") + f"|{tag}"
    def st(self, src, soff, imm, tag, n=4, vaddr=V_L16):
        op = {4: "buffer_store_dwordx4", 2: "buffer_store_dwordx2"}[n]
        return f"{op} {src}, v{vaddr}, s[4:7], s{soff} offen" + (f" offset:{imm}" if imm else "") + f" sc1|{tag}"
    def seq_items(self, n, dstf, cur, tagf, sc1):
        items = []
        for i in range(n):
            it = [self.ld(dstf(i), cur, (i % 4) * 1024, tagf(i), sc1)]
            if i % 4 == 3 and i != n - 1: it.append(f"s_add_u32 s{cur}, s{cur}, 4096")
            items.append(it)
        return items
    def dma_items(self, n, lds, cur, tag, sc1):
        items = []
        for i in range(n):
            it = []
            if i % 4 == 0: it += [f"s_mov_b32 m0, s{lds}", "s_nop 0"]
            it.append(f"buffer_load_dwordx4 v{V_L16}, s[4:7], s{cur} offen" + (f" offset:{(i%4)*1024}" if i % 4 else "") + (" sc1" if sc1 else "") + f" lds|{tag}")
            if i % 4 == 3 and i != n - 1: it += [f"s_add_u32 s{cur}, s{cur}, 4096", f"s_add_u32 s{lds}, s{lds}, 4096"]
            items.append(it)
        return items
    @staticmethod
    def zip2(x, y):
        out = []
        for i in range(max(len(x), len(y))):
            if i < len(x): out.append(x[i])
            if i < len(y): out.append(y[i])
        return out
    def take(self, bg, n):
        for _ in range(n):
            if bg: self.emits(bg.pop(0))
    def ldsaddr(self, off):
        if off < 65536: return V_L16, off
        assert off < 131072
        return V_L16H, off - 65536

    def weave(self, mains, fills, bg=None, bg_every=2, bg_start=0, caps=(24,), bg_phase=0):
        fi = 0
        nb = 0
        for k, m in enumerate(mains):
            m()
            cap = caps[k % len(caps)]
            c = 0
            if bg and k >= bg_start and (k - bg_start) % bg_every == bg_phase:
                it = bg.pop(0)
                self.emits(it); c += 12 if any(" lds" in t for t in it) else 8
            nv = 0
            while fi < len(fills):
                t = fills[fi]
                if t.startswith("s_") or t.startswith("@"):
                    self.emit(t); fi += 1; continue
                w = cost_of(t)
                if t.startswith("ds_read") or t.startswith("ds_write") or t.startswith("buffer_"): w = 8
                lim = cap if (w == 8 or nv * 4 != c) else min(cap, 20)
                if c + w > lim: break
                self.emit(t); fi += 1; c += w
                if w == 4: nv += 1
        while fi < len(fills):
            self.emit(fills[fi]); fi += 1
    def emits_bg(self, L, bg, n, first=0, every=10):
        k = 0
        for i, t in enumerate(L):
            if k < n and bg and i >= first and (i - first) % every == 0:
                self.emits(bg.pop(0)); k += 1
            self.emit(t)

    def mark(self, name):
        if not self.o.get("prof"): return
        a = self.a
        k = len(self.marks); self.marks.append(name)
        a.e(("s_memtime" if self.opt("prof", 0) == 2 else "s_memrealtime") + " s[36:37]\ns_waitcnt lgkmcnt(0)")
        a.lgq = []
        a.e(f"v_writelane_b32 v{V_MARK}, s36, {k}")
    def dump_marks(self):
        a = self.a
        lab = a.newlabel("dm")
        a.e("s_memrealtime s[36:37]\ns_waitcnt lgkmcnt(0)")
        a.e(f"v_writelane_b32 v{V_MARK}, s36, 63")
        a.e(f"s_cmp_lg_u32 s{S_W}, 0\ns_cbranch_scc1 {lab}")
        a.e(f"s_lshl_b32 s{S_T0}, s2, 9\ns_add_u32 s{S_T0}, s{S_T0}, {DBG}")
        a.e(f"v_lshrrev_b32 v{V_T0}, 2, v{V_L16}")
        a.e(f"v_accvgpr_read_b32 v{V_T1}, a224")
        a.e(f"buffer_store_dword v{V_T1}, v{V_T0}, s[4:7], s{S_T0} offen")
        a.e(f"buffer_store_dword v{V_MARK}, v{V_T0}, s[4:7], s{S_T0} offen offset:256")
        a.e("s_waitcnt vmcnt(0)")
        a.label(lab)

    def arrive(self, base, slot, tags, slot_sreg=None, barrier=True):
        a = self.a
        a.wait_vm(tags)
        if barrier: a.e("s_barrier")
        a.e(f"s_add_u32 s{S_T2}, s{base}, {slot*2048}")
        if slot_sreg is not None: a.e(f"s_lshl_b32 s{S_T3}, s{slot_sreg}, 11\ns_add_u32 s{S_T2}, s{S_T2}, s{S_T3}")
        a.e(f"v_mov_b32 v{V_T7}, 1\ns_cmp_eq_u32 s{S_W}, 0\ns_cselect_b64 exec, 1, 0")
        a.e_uncounted(f"buffer_atomic_add v{V_T7}, off, s[4:7], s{S_T2} sc1")
        a.e("s_mov_b64 exec, -1")
    def poll(self, base, slot, target, slot_sreg=None, extra=0):
        a = self.a
        lab, lp, lx = a.newlabel("pol"), a.newlabel("plp"), a.newlabel("plx")
        a.e(f"s_add_u32 s{S_T2}, s{base}, {slot*2048 + extra}")
        if slot_sreg is not None: a.e(f"s_lshl_b32 s{S_T3}, s{slot_sreg}, 11\ns_add_u32 s{S_T2}, s{S_T2}, s{S_T3}")
        a.e(f"s_cmp_lg_u32 s{S_W}, 0\ns_cbranch_scc1 {lab}")
        vq, lq = list(a.vmq), list(a.lgq)
        dep = self.opt("pdepth", 2)
        a.e(f"s_mov_b32 s{S_CNT}, 0")
        for k in range(dep):
            a.e(f"s_mov_b64 exec, {1 << k}\nbuffer_load_dword v{V_POLL}, off, s[4:7], s{S_T2} sc1")
            if k != dep - 1: a.e(f"s_sleep {self.opt('psleep', 2)}")
        a.label(lp)
        for k in range(dep):
            a.e(f"s_waitcnt vmcnt({dep-1})\nv_readlane_b32 s{S_T3}, v{V_POLL}, {k}")
            a.e(f"s_cmp_ge_u32 s{S_T3}, {target}\ns_cbranch_scc1 {lx}")
            a.e(f"s_mov_b64 exec, {1 << k}\nbuffer_load_dword v{V_POLL}, off, s[4:7], s{S_T2} sc1")
        a.e(f"s_add_u32 s{S_CNT}, s{S_CNT}, 1\ns_cmp_lt_u32 s{S_CNT}, 200000\ns_cbranch_scc1 {lp}")
        a.label(lx)
        a.e("s_mov_b64 exec, -1")
        a.vmq, a.lgq = vq, lq
        a.label(lab)
        a.e("s_barrier")

    def apoll_issue(self, base, slot, lane, slot_sreg, dst):
        a = self.a
        a.e(f"s_lshl_b32 s{dst}, s{slot_sreg}, 11\ns_add_u32 s{dst}, s{dst}, s{base}\ns_add_u32 s{dst}, s{dst}, {slot*2048}")
        a.e(f"s_mov_b64 exec, {1 << lane}")
        a.e(f"buffer_load_dword v{V_POLL}, off, s[4:7], s{dst} sc1", tag=f"ap{lane}")
        a.e("s_mov_b64 exec, -1")
    def apoll_check(self, lane, target, dst):
        a = self.a
        ok, lp = a.newlabel("apk"), a.newlabel("apl")
        a.wait_vm(f"ap{lane}")
        a.e(f"v_readlane_b32 s{S_T3}, v{V_POLL}, {lane}\ns_cmp_ge_u32 s{S_T3}, {target}\ns_cbranch_scc1 {ok}")
        vq, lq = list(a.vmq), list(a.lgq)
        a.e(f"s_mov_b32 s{S_CNT}, 0\ns_mov_b64 exec, {1 << lane}")
        a.label(lp)
        a.e(f"buffer_load_dword v{V_POLL}, off, s[4:7], s{dst} sc1")
        a.e(f"s_add_u32 s{S_CNT}, s{S_CNT}, 1\ns_cmp_gt_u32 s{S_CNT}, 200000\ns_cbranch_scc1 {lp}_x")
        a.e(f"s_waitcnt vmcnt(0)\nv_readlane_b32 s{S_T3}, v{V_POLL}, {lane}\ns_cmp_lt_u32 s{S_T3}, {target}\ns_cbranch_scc1 {lp}")
        a.label(f"{lp}_x")
        a.e("s_waitcnt vmcnt(0)\ns_mov_b64 exec, -1")
        a.vmq, a.lgq = vq, lq
        a.label(ok)

    @staticmethod
    def bc(r): return f"v[{r & ~1}:{(r & ~1) + 1}]", r & 1
    def pk_fma_bc(self, dst, src, rb, rc, neg_a=0, neg_c=0):
        (tb, sb), (tc, sc) = self.bc(rb), self.bc(rc)
        return (f"v_pk_fma_f32 v[{dst}:{dst+1}], v[{src}:{src+1}], {tb}, {tc} op_sel:[0,{sb},{sc}] op_sel_hi:[1,{sb},{sc}]"
                f" neg_lo:[{neg_a},0,{neg_c}] neg_hi:[{neg_a},0,{neg_c}]")
    def pk_mul_bc(self, dst, src, rb):
        tb, sb = self.bc(rb)
        return f"v_pk_mul_f32 v[{dst}:{dst+1}], v[{src}:{src+1}], {tb} op_sel:[0,{sb}] op_sel_hi:[1,{sb}]"
    @staticmethod
    def pk_add(dst, x, y): return f"v_pk_add_f32 v[{dst}:{dst+1}], v[{x}:{x+1}], v[{y}:{y+1}]"

    def stats_reduce(self, b, vV, vM, t0, t1):
        L = []
        for k in (0, 1):
            L += [f"v_add_f32 v{b+k}, v{b+k}, v{b+2+k}", f"v_add_f32 v{b+4+k}, v{b+4+k}, v{b+6+k}", f"v_add_f32 v{b+8+k}, v{b+8+k}, v{b+10+k}"]
        for k in (0, 1):
            L += [f"v_add_f32 v{b+k}, v{b+k}, v{b+4+k}", f"v_add_f32 v{b+8+k}, v{b+8+k}, v{b+12+k}"]
        for k in (0, 1): L += [f"v_add_f32 v{b+k}, v{b+k}, v{b+8+k}"]
        L += [f"v_mov_b32 v{t0}, v{b}", f"v_mov_b32 v{t1}, v{b+1}", "s_nop 0",
              f"v_permlane32_swap_b32 v{t0}, v{b}", f"v_permlane32_swap_b32 v{t1}, v{b+1}",
              f"v_add_f32 v{b}, v{b}, v{t0}", f"v_add_f32 v{b+1}, v{b+1}, v{t1}",
              f"v_mul_f32 v{vM}, {hexf(1.0/D)}, v{b}",
              f"v_mul_f32 v{t1}, {hexf(1.0/D)}, v{b+1}",
              f"v_mul_f32 v{t0}, v{vM}, v{vM}",
              f"v_sub_f32 v{vV}, v{t1}, v{t0}",
              f"v_max_f32 v{vV}, 0, v{vV}",
              f"v_add_f32 v{vV}, {hexf(1e-5)}, v{vV}"]
        return L

    def softmax(self, R, P, t):
        mx, mn, u, w, bp, bn, bpm, bnm = [t + k for k in range(8)]
        L = [f"v_max3_f32 v{mx}, v{R}, v{R+1}, v{R+2}", f"v_min3_f32 v{mn}, v{R}, v{R+1}, v{R+2}",
             f"v_max3_f32 v{u}, v{R+3}, v{R+4}, v{R+5}", f"v_min3_f32 v{w}, v{R+3}, v{R+4}, v{R+5}"]
        for k in (6, 10):
            L += [f"v_max3_f32 v{mx}, v{mx}, v{R+k}, v{R+k+1}", f"v_min3_f32 v{mn}, v{mn}, v{R+k}, v{R+k+1}",
                  f"v_max3_f32 v{u}, v{u}, v{R+k+2}, v{R+k+3}", f"v_min3_f32 v{w}, v{w}, v{R+k+2}, v{R+k+3}"]
        L += [f"v_max3_f32 v{mx}, v{mx}, v{R+14}, v{R+15}", f"v_min3_f32 v{mn}, v{mn}, v{R+14}, v{R+15}",
              f"v_max_f32 v{mx}, v{mx}, v{u}", f"v_min_f32 v{mn}, v{mn}, v{w}",
              f"v_mov_b32 v{u}, v{mx}", f"v_mov_b32 v{w}, v{mn}",
              f"v_mov_b32 v{bpm}, {hexf(1e30)}", f"v_mov_b32 v{bnm}, {hexf(-1e30)}",
              f"v_permlane32_swap_b32 v{u}, v{mx}", f"v_permlane32_swap_b32 v{w}, v{mn}",
              f"v_max_f32 v{mx}, v{mx}, v{u}", f"v_min_f32 v{mn}, v{mn}, v{w}",
              f"v_mul_f32 v{bp}, v{V_C}, v{mx}", f"v_mul_f32 v{bn}, v{V_C}, v{mn}",
              f"v_cndmask_b32 v{bpm}, v{bp}, v{bpm}, s[{S_UP}:{S_UP+1}]",
              f"v_cndmask_b32 v{bnm}, v{bn}, v{bnm}, s[{S_UP}:{S_UP+1}]"]
        for g in range(4):
            for k in (0, 2): L.append(self.pk_fma_bc(P + 4*g + k, R + 4*g + k, V_C, bpm if g == 3 else bp, 0, 1))
            for k in (0, 2): L.append(self.pk_fma_bc(R + 4*g + k, R + 4*g + k, V_C, bnm if g == 3 else bn, 1, 0))
        for g in range(4):
            for k in range(4): L.append(f"v_exp_f32 v{P+4*g+k}, v{P+4*g+k}")
            for k in range(4): L.append(f"v_exp_f32 v{R+4*g+k}, v{R+4*g+k}")
            if g == 1: L += [self.pk_add(mx, P, P + 2), self.pk_add(u, R, R + 2)]
            elif g >= 2:
                for k in (0, 2): L += [self.pk_add(mx, mx, P + 4*(g-1) + k), self.pk_add(u, u, R + 4*(g-1) + k)]
        for k in (0, 2): L += [self.pk_add(mx, mx, P + 12 + k), self.pk_add(u, u, R + 12 + k)]
        L += [f"v_add_f32 v{mx}, v{mx}, v{mn}", f"v_add_f32 v{u}, v{u}, v{w}",
              f"v_mov_b32 v{mn}, v{mx}", f"v_mov_b32 v{w}, v{u}", "s_nop 0",
              f"v_permlane32_swap_b32 v{mn}, v{mx}", f"v_permlane32_swap_b32 v{w}, v{u}",
              f"v_add_f32 v{mx}, v{mx}, v{mn}", f"v_add_f32 v{u}, v{u}, v{w}",
              f"v_rcp_f32 v{mx}, v{mx}", f"v_rcp_f32 v{u}, v{u}"]
        for k in range(0, 16, 2): L.append(self.pk_mul_bc(P + k, P + k, mx))
        for k in range(0, 16, 2): L.append(self.pk_mul_bc(R + k, R + k, u))
        for d in range(8): L.append(f"v_cvt_pk_bf16_f32 v{P+d}, v{P+2*d}, v{P+2*d+1}")
        for d in range(8): L.append(f"v_cvt_pk_bf16_f32 v{R+d}, v{R+2*d}, v{R+2*d+1}")
        return L

    def phi_apply(self, R, tb):
        L = [f"v_cvt_pk_bf16_f32 v{tb+d}, v{R+2*d}, v{R+2*d+1}" for d in range(8)]
        L.append(f"{MF} {vr(R,16)}, {ar(A_PHI)}, {vr(tb)}, 0")
        L.append(f"{MF} {vr(R,16)}, {ar(A_PHI+4)}, {vr(tb+4)}, {vr(R,16)}")
        return L

    def w3_stream(self):
        g0, g1 = S_G[0], S_G[1]
        pre = self.sa(g0, [(S_JS, 4 * 56 * KB), (S_W, 56 * KB)], WGU) + [f"s_add_u32 s{g1}, s{g0}, {28*KB}"]
        its = self.zip2(self.seq_items(28, lambda s: ar(8*s), g0, lambda s: f"w3_{s}", False),
                        self.seq_items(28, lambda s: ar(8*s+4), g1, lambda s: f"w3_{s}", False))
        self.emits(pre)
        return its
    def wo_stream(self):
        its = []
        for sl in range(2):
            c = S_G[2 + sl]
            pre = [f"s_xor_b32 s{c}, s{S_NT}, {sl}"] + [f"s_lshl_b32 s{c}, s{c}, 15"] + self.sa(S_T0, [(S_CB, 2 * 32 * KB), (S_W, 8 * KB)], WO) + [f"s_add_u32 s{c}, s{c}, s{S_T0}"]
            x = self.seq_items(8, lambda i: vr(16 + 32 * sl + 4 * i), c, lambda i: "wo", False)
            self.emits(pre)
            its.append(x)
        return self.zip2(its[0], its[1])
    W4A = 128
    def w4_reg(self, i, sl):
        return vr(self.W4A + 8*i + 4*sl) if i < 16 else ar(8*(i - 16) + 4*sl)
    def kseg(self, dst, late):
        if late: return self.sa(dst, [(S_TH, 56), (S_W, 14)], 0)
        return self.sa(dst, [(S_W, 14)], 56) + [f"s_mul_i32 s{S_T3}, s{S_TH}, 56", f"s_sub_u32 s{dst}, s{dst}, s{S_T3}"]
    def w4_stream(self):
        out = []
        for late in (0, 1):
            its = []
            for sl in range(2):
                c = S_G[2 * late + sl]
                pre = self.kseg(S_T0, late) + [f"s_xor_b32 s{c}, s{S_NT}, {sl}", f"s_mul_i32 s{c}, s{c}, 112", f"s_add_u32 s{c}, s{c}, s{S_T0}"]
                pre += [f"s_mul_i32 s{S_T0}, s{S_CB}, 224", f"s_add_u32 s{c}, s{c}, s{S_T0}", f"s_lshl_b32 s{c}, s{c}, 10", f"s_add_u32 s{c}, s{c}, {WD}"]
                x = self.seq_items(14, lambda i: self.w4_reg(14 * late + i, sl), c, lambda i: f"w4_{14*late+i}", False)
                self.emits(pre)
                its.append(x)
            out += self.zip2(its[0], its[1])
        return out
    def p1w_items(self, part):
        c, l = S_G[4], S_G[5]
        its = self.dma_items(7, l, c, "w1" + "qkv"[part], False)
        pre = self.sa(l, [(S_W, 7 * KB)], L_W1 + part * 28 * KB) + self.sa(c, [(S_J, 84 * KB), (S_W, 7 * KB)], WQKV + part * 28 * KB)
        its[0] = pre + its[0]
        return its

    def prologue(self):
        a, n = self.a, self.name
        a.label(n)
        a.e(f"s_cmp_lt_u32 s2, 256\ns_cbranch_scc1 {n}_go\ns_endpgm")
        a.label(f"{n}_go")
        a.e("s_load_dwordx2 s[4:5], s[0:1], 80\ns_load_dwordx2 s[8:9], s[0:1], 64")
        a.e(f"s_mov_b32 s6, {WS_USED}\ns_mov_b32 s7, 0x20000\ns_mov_b32 s10, {S*D*2}\ns_mov_b32 s11, 0x20000")
        a.e(f"s_and_b32 s{S_T0}, s2, 7\ns_lshr_b32 s{S_T1}, s2, 3")
        a.e(f"s_and_b32 s{S_TH}, s{S_T0}, 1\ns_lshr_b32 s{S_T0}, s{S_T0}, 1\ns_lshl_b32 s{S_T0}, s{S_T0}, 2")
        a.e(f"s_and_b32 s{S_RB}, s{S_T1}, 3\ns_add_u32 s{S_RB}, s{S_RB}, s{S_T0}")
        a.e(f"s_lshr_b32 s{S_Q}, s{S_T1}, 2\ns_lshl_b32 s{S_J}, s{S_TH}, 3\ns_add_u32 s{S_J}, s{S_J}, s{S_Q}")
        a.e(f"s_min_u32 s{S_CB}, s{S_Q}, 6\ns_mul_i32 s{S_JS}, s{S_TH}, 7\ns_add_u32 s{S_JS}, s{S_JS}, s{S_CB}")
        a.e(f"s_lshl_b32 s{S_M}, s{S_TH}, 1\ns_sub_u32 s{S_M}, 2, s{S_M}")
        a.e(f"v_lshrrev_b32 v{V_T0}, 6, v0\nv_and_b32 v{V_T1}, 63, v0\nv_lshlrev_b32 v{V_L16}, 4, v{V_T1}")
        a.e(f"v_readfirstlane_b32 s{S_W}, v{V_T0}")
        a.e(f"v_add_u32 v{V_L16H}, 0x10000, v{V_L16}")
        a.e(f"v_and_b32 v{V_T2}, 31, v0\nv_bfe_u32 v{V_T3}, v0, 5, 1")
        a.e(f"v_lshlrev_b32 v{V_I8}, 3, v{V_T2}")
        a.e(f"v_mul_u32_u24 v{V_STL}, 1792, v{V_T3}\nv_add_u32 v{V_STL}, v{V_STL}, v{V_I8}")
        a.e(f"s_lshr_b32 s{S_TT}, s{S_W}, 1\ns_and_b32 s{S_NT}, s{S_W}, 1")
        a.e(f"s_mov_b32 s{S_SEL_LO}, 0x3f80\ns_mov_b32 s{S_SEL_HI}, 0x3f800000")
        a.e(f"s_mov_b32 s{S_UP}, 0\ns_mov_b32 s{S_UP+1}, -1")
        a.e(f"s_mov_b32 s{S_L}, 0")
        self.emits(self.sa(S_TILE, [(S_RB, 4), (S_TH, 2), (S_TT, 1)]))
        self.emits(self.sa(S_N, [(S_CB, 2), (S_NT, 1)]))
        self.emits(self.sa(S_XT, [(S_RB, 4), (S_W, 1)]))
        if self.o.get("prof"): a.e(f"v_mov_b32 v{V_MARK}, 0")
        a.e("s_waitcnt lgkmcnt(0)")
        for it in self.p1w_items(1) + self.p1w_items(2): self.emits(it)
        self.emits(self.sa(S_T0, [(S_J, 2 * KB)], PHI))
        for it in self.seq_items(2, lambda i: ar(A_PHI + 4*i), S_T0, lambda i: "phi", False): self.emits(it)
        self.emits(self.sa(S_T0, [(S_TILE, 28 * KB), (S_N, 2 * KB)], X))
        for it in self.seq_items(2, lambda i: ar(A_RES + 4*i), S_T0, lambda i: "res", False): self.emits(it)
        for it in self.p1w_items(0): self.emits(it)
        a.e(f"v_cmp_eq_u32 vcc, 28, v{V_T2}\nv_mov_b32 v{V_T4}, 1.0\nv_mov_b32 v{V_ONE}, 0\nv_cndmask_b32 v{V_ONE}, v{V_ONE}, v{V_T4}, vcc")
        a.e(f"v_lshlrev_b32 v{V_T3}, 2, v{V_T3}\nv_sub_u32 v{V_T2}, v{V_T2}, v{V_T3}")
        a.e(f"v_mov_b32 v{V_T4}, 0x3f80\nv_mov_b32 v{V_T5}, 0x3f800000")
        for s in range(2):
            for d in range(4):
                j = 2 * d
                c = 16 * s + 8 * (j // 4) + (j % 4)
                a.e(f"v_mov_b32 v{V_T6}, 0")
                a.e(f"v_cmp_eq_u32 vcc, {c}, v{V_T2}\nv_cndmask_b32 v{V_T6}, v{V_T6}, v{V_T4}, vcc")
                a.e(f"v_cmp_eq_u32 vcc, {c+1}, v{V_T2}\nv_cndmask_b32 v{V_T6}, v{V_T6}, v{V_T5}, vcc")
                a.e(f"v_accvgpr_write_b32 a{A_ID+4*s+d}, v{V_T6}")

    def layer_setup(self):
        self.emits(self.sa(S_FRB, [(S_L, NSYNC * 2048), (S_RB, 128)], FLAGS))
        self.emits(self.sa(S_FJ, [(S_L, NSYNC * 2048), (S_J, 128)], FLAGS))

    def p1(self):
        a = self.a
        XF, RK, RV, RQ, RING, RA, RB, TB = 16, 128, 144, 160, 176, 208, 224, 240
        RS, KR, QRING = 160, 176, 192
        LA = self.opt("la1", 6)
        self.mark("p1_start")
        self.emits(self.sa(S_A, [(S_XT, 28 * KB), (S_L, 2 * XSZ)], X))
        xi = self.seq_items(28, lambda s: vr(XF + 4*s), S_A, lambda s: f"x{s}", True)
        self.take(xi, 2)
        self.emits(self.sa(S_B, [(S_XT, 3584), (S_L, 2 * STSZ)], ST))
        for k in range(7): self.emit(self.ld(vr(RA + 2*k, 2), S_B, k * 256, "st", n=2, vaddr=V_STL))
        self.take(xi, LA - 2)
        a.wait_vm(("w1k", "w1v", "phi", "res"))
        a.e("s_barrier")
        self.mark("p1_wready")
        def rdA(s):
            sl = RING + 8 * (s % 4)
            r, of = self.ldsaddr(L_W1 + (28 + s) * KB); a.e(f"ds_read_b128 {vr(sl)}, v{r} offset:{of}", tag=f"a{s}")
            r, of = self.ldsaddr(L_W1 + (56 + s) * KB); a.e(f"ds_read_b128 {vr(sl+4)}, v{r} offset:{of}", tag=f"a{s}")
        for s in range(3): rdA(s)
        def mk(s):
            def f():
                if s + 3 < 28: rdA(s + 3)
                self.take(xi, 1)
                a.wait_both(f"x{s}", f"a{s}")
                sl = RING + 8 * (s % 4)
                a.e(f"{MF} {vr(RK,16)}, {vr(sl)}, {vr(XF+4*s)}, {vr(RK,16) if s else 0}")
            return f
        def mv(s):
            def f():
                sl = RING + 8 * (s % 4)
                a.e(f"{MF} {vr(RV,16)}, {vr(XF+4*s)}, {vr(sl+4)}, {vr(RV,16) if s else 0}")
            return f
        mains = []
        for s in range(28): mains += [mk(s), mv(s)]
        fills = ["@waitvm st"] + self.stats_reduce(RA, V_T0, V_T1, V_T2, V_T3)
        fills += [f"v_rsq_f32 v{V_T0}, v{V_T0}", f"v_lshrrev_b32 v{V_T1}, 1, v{V_I8}"]
        fills += self.sa(S_T0, [(S_W, 128)], L_SCR)
        fills += [f"v_add_u32 v{V_T1}, s{S_T0}, v{V_T1}", f"ds_write_b32 v{V_T1}, v{V_T0}|scw",
                  f"v_mul_f32 v{V_C}, {hexf(1.4426950408889634)}, v{V_T0}",
                  f"v_lshrrev_b32 v{V_T1}, 5, v{V_L16}", f"v_and_b32 v{V_T1}, 16, v{V_T1}",
                  f"v_add_u32 v{V_T1}, s{S_T0}, v{V_T1}", "@waitlg scw"]
        fills += [f"ds_read_b128 {vr(RS+4*g)}, v{V_T1} offset:{g*32}|rs" for g in range(4)]
        self.weave(mains, fills, caps=(20, 0))
        self.mark("p1_loopA")
        w3 = self.w3_stream()
        vch = ["@waitlg rs"] + [f"v_pk_fma_f32 v[{RV+r}:{RV+r+1}], v[{RV+r}:{RV+r+1}], v[{RS+r}:{RS+r+1}], v[4:5] op_sel:[0,0,1] op_sel_hi:[1,1,1]" for r in range(0, 16, 2)]
        vch += [f"v_cvt_pk_bf16_f32 v{RV+d}, v{RV+2*d}, v{RV+2*d+1}" for d in range(8)]
        nk = self.opt("bg_k", 8)
        self.take(w3, nk // 2)
        self.emits(self.phi_apply(RK, TB))
        self.emits(vch)
        self.emits_bg(self.softmax(RK, RA, V_T0), w3, nk - nk // 2, first=0, every=6)
        self.mark("p1_kepi")
        a.e(f"{MF} {vr(RB,16)}, {vr(RA)}, {ar(A_ID)}, 0")
        a.e(f"{MF} {vr(RB,16)}, {vr(RA+4)}, {ar(A_ID+4)}, {vr(RB,16)}")
        a.e(f"{MF} {vr(RA,16)}, {vr(RK)}, {ar(A_ID)}, 0")
        a.e(f"{MF} {vr(RA,16)}, {vr(RK+4)}, {ar(A_ID+4)}, {vr(RA,16)}")
        self.emits(self.sa(S_T0, [(S_W, 2048)], L_KVR) + [f"v_add_u32 v{V_T0}, s{S_T0}, v{V_L16}"])
        self.emits(self.sa(S_T0, [(S_W, 8192)], L_KVR) + [f"v_add_u32 v{V_T1}, s{S_T0}, v{V_L16}"])
        self.emits(self.sa(S_C, [(S_J, 4 * 16 * KB), (S_W, 16 * KB), (S_L, SLABSZ)], SLAB))
        for d in range(8): a.e(f"v_cvt_pk_bf16_f32 v{RB+d}, v{RB+2*d}, v{RB+2*d+1}")
        a.e(f"{MF} {vr(RK,16)}, {vr(RB)}, {vr(RV)}, 0")
        a.e(f"{MF} {vr(RK,16)}, {vr(RB+4)}, {vr(RV+4)}, {vr(RK,16)}")
        for d in range(8): a.e(f"v_cvt_pk_bf16_f32 v{RA+d}, v{RA+2*d}, v{RA+2*d+1}")
        a.e(f"{MF} {vr(RB,16)}, {vr(RA)}, {vr(RV)}, 0")
        a.e(f"{MF} {vr(RB,16)}, {vr(RA+4)}, {vr(RV+4)}, {vr(RB,16)}")
        self.emits(self.sa(S_D, [(S_RB, KB), (S_C, 1)]))
        for t, R in ((0, RK), (1, RB)):
            for s in range(2):
                for g in range(2):
                    a.e(f"ds_write_b128 v{V_T0}, {vr(R+8*s+4*g)} offset:{(2*t+s)*8192+g*1024}", tag="kw")
        a.wait_vm("w1q")
        a.e("s_waitcnt lgkmcnt(0)\ns_barrier")
        for ws in range(4):
            for g in range(2):
                a.e(f"ds_read_b128 {vr(KR+8*ws+4*g)}, v{V_T1} offset:{(ws*2+g)*1024}", tag=f"kr{ws}")
        def rdB(s):
            sl = QRING + 4 * (s % 4) + 16
            r, of = self.ldsaddr(L_W1 + s * KB); a.e(f"ds_read_b128 {vr(sl)}, v{r} offset:{of}", tag=f"b{s}")
        a.wait_lg("kr1")
        for r in range(0, 8, 2): a.e(self.pk_add(KR + r, KR + r, KR + 8 + r))
        a.wait_lg("kr3")
        for r in range(0, 8, 2): a.e(self.pk_add(KR + 16 + r, KR + 16 + r, KR + 24 + r))
        for r in range(0, 8, 2): a.e(self.pk_add(KR + r, KR + r, KR + 16 + r))
        for d in range(4): a.e(f"v_cvt_pk_bf16_f32 v{KR+d}, v{KR+2*d}, v{KR+2*d+1}")
        self.emit(self.st(vr(KR), S_D, 0, "slab"))
        self.mark("p1_slab")
        for s in range(3): rdB(s)
        ARR = self.opt("arr1", 20)
        def mq(s):
            def f():
                if s == ARR: self.arrive(S_FJ, F_S1, "slab")
                if s + 3 < 28: rdB(s + 3)
                a.wait_lg(f"b{s}")
                sl = QRING + 4 * (s % 4) + 16
                a.e(f"{MF} {vr(RQ,16)}, {vr(sl)}, {vr(XF+4*s)}, {vr(RQ,16) if s else 0}")
            return f
        self.weave([mq(s) for s in range(28)], [], bg=w3, bg_every=self.opt("bg_q_every", 2))
        self.mark("p1_qpass")
        wo = self.wo_stream()
        qe = self.phi_apply(RQ, TB) + self.softmax(RQ, RA, V_T0)
        cut = self.opt("ap1", 70)
        self.emits_bg(qe[:cut], wo, self.opt("bg_qe", 6), first=0, every=11)
        if self.opt("async1", 1):
            a.e(f"s_mov_b32 s{S_E}, 0")
            self.apoll_issue(S_FJ, F_S1, 10, S_E, S_F)
        self.emits(qe[cut:])
        self.mark("p1_qepi")
        self.RA, self.RQ, self.w3, self.wo = RA, RQ, w3, wo

    def p2a(self):
        a = self.a
        RA, RQ = self.RA, self.RQ
        SL, AC, KA, RB, TB = 80, 176, 188, 224, 240
        if self.opt("async1", 1): self.apoll_check(10, 16, S_F)
        else: self.poll(S_FJ, F_S1, 16)
        self.mark("S1_poll")
        for it in self.seq_items(16, lambda i: vr(SL + 4*i), S_C, lambda i: f"sl{i}", True): self.emits(it)
        bg2 = list(self.wo) + [self.w3.pop(0) for _ in range(self.opt("bg_2a", 0))]
        self.wo = []
        for i in range(16):
            if i >= self.opt("bg_2a_first", 4) and bg2: self.emits(bg2.pop(0))
            a.wait_vm(f"sl{i}")
            for d in range(4):
                a.e(f"v_dot2_f32_bf16 v{AC+2*d}, v{SL+4*i+d}, s{S_SEL_LO}, {'v%d' % (AC+2*d) if i else 0}")
                a.e(f"v_dot2_f32_bf16 v{AC+2*d+1}, v{SL+4*i+d}, s{S_SEL_HI}, {'v%d' % (AC+2*d+1) if i else 0}")
        self.take(bg2, len(bg2))
        self.emits(self.sa(S_T0, [(S_W, KB)], L_KVA) + [f"v_add_u32 v{V_T0}, s{S_T0}, v{V_L16}"])
        self.emits(self.sa(S_A, [(S_XT, 32 * KB), (S_J, 2 * KB), (S_L, OSZ)], O))
        for d in range(4): a.e(f"v_cvt_pk_bf16_f32 v{AC+8+d}, v{AC+2*d}, v{AC+2*d+1}")
        a.e(f"ds_write_b128 v{V_T0}, {vr(AC+8)}")
        a.e("s_waitcnt lgkmcnt(0)\ns_barrier")
        for p in range(4):
            r, of = self.ldsaddr(L_KVA + p * KB)
            a.e(f"ds_read_b128 {vr(KA+4*p)}, v{r} offset:{of}", tag=f"ka{p}")
        Bs = [RA, RA + 4, RQ, RQ + 4]
        for p in range(4):
            a.wait_lg(f"ka{p}")
            a.e(f"{MF} {vr(RB,16)}, {vr(KA+4*p)}, {vr(Bs[p])}, {vr(RB,16) if p else 0}")
        a.e(f"v_mov_b32 v{V_T0}, v{RB+12}\nv_mov_b32 v{V_T1}, v{RB+12}")
        a.e(f"v_permlane32_swap_b32 v{V_T0}, v{V_T1}")
        a.e(f"v_add_f32 v{V_T1}, {hexf(1e-6)}, v{V_T1}\nv_rcp_f32 v{V_T1}, v{V_T1}")
        for r in range(0, 16, 2): a.e(self.pk_mul_bc(RB + r, RB + r, V_T1))
        for d in range(8): a.e(f"v_cvt_pk_bf16_f32 v{TB+d}, v{RB+2*d}, v{RB+2*d+1}")
        self.emit(self.st(vr(TB), S_A, 0, "ost")); self.emit(self.st(vr(TB+4), S_A, 1024, "ost"))
        self.mark("p2a_ost")
        self.arrive(S_FRB, F_S2, "ost")
        self.take(self.w3, self.opt("bg_s2", 0))
        self.mark("S2_arr")

    def red_addr(self):
        L = []
        for u in range(1, 4):
            L += [f"s_xor_b32 s{S_T0}, s{S_W}, {u}", f"s_mul_i32 s{S_T0}, s{S_T0}, 12288", f"s_add_u32 s{S_T0}, s{S_T0}, {L_RED+(u-1)*4096}",
                  f"v_add_u32 v{V_T0+u}, s{S_T0}, v{V_L16}"]
        L += self.sa(S_T0, [(S_W, 12288)], L_RED) + [f"v_add_u32 v{V_T0}, s{S_T0}, v{V_L16}"]
        return L
    def red_write(self, ACC, u):
        return [f"ds_write_b128 v{V_T0+u}, {vr(ACC+16*u+4*g)} offset:{g*1024}|rw" for g in range(4)]
    def res_unpack(self, TR):
        L = [f"v_accvgpr_read_b32 v{TR+16+d}, a{A_RES+d}" for d in range(8)]
        for d in range(8):
            L += [f"v_lshlrev_b32 v{TR+2*d}, 16, v{TR+16+d}", f"v_and_b32 v{TR+2*d+1}, 0xffff0000, v{TR+16+d}"]
        return L
    def red_finish(self, ACC, TR):
        a = self.a
        for r in range(0, 16, 2): a.e(self.pk_add(ACC + r, ACC + r, TR + r))
        a.e("s_waitcnt lgkmcnt(0)\ns_barrier")
        RD = ACC + 16
        for u in range(3):
            for g in range(4):
                a.e(f"ds_read_b128 {vr(RD+16*u+4*g)}, v{V_T0} offset:{u*4096+g*1024}", tag=f"rr{u}")
        for u in range(3):
            a.wait_lg(f"rr{u}")
            for r in range(0, 16, 2): a.e(self.pk_add(ACC + r, ACC + r, RD + 16*u + r))
        for d in range(8): a.e(f"v_cvt_pk_bf16_f32 v{TR+d}, v{ACC+2*d}, v{ACC+2*d+1}")
        self.PK, self.ACC = TR, ACC
    def x_store_addr(self, xsel):
        return (self.sa(S_E, [(S_TILE, 28 * KB), (S_N, 2 * KB), (S_L, 2 * XSZ)], X + xsel * XSZ) +
                self.sa(S_F, [(S_TILE, 3584), (S_N, 256), (S_L, 2 * STSZ)], ST + xsel * STSZ))
    def store_x_and_stats(self):
        a = self.a
        PK, ACC = self.PK, self.ACC
        self.emit(self.st(vr(PK), S_E, 0, "xst")); self.emit(self.st(vr(PK+4), S_E, 1024, "xst"))
        t = PK + 8
        a.e(self.pk_add(t, ACC, ACC + 2))
        a.e(f"v_pk_mul_f32 v[{t+2}:{t+3}], v[{ACC}:{ACC+1}], v[{ACC}:{ACC+1}]")
        for r in range(2, 16, 2):
            if r > 2: a.e(self.pk_add(t, t, ACC + r))
            a.e(f"v_pk_fma_f32 v[{t+2}:{t+3}], v[{ACC+r}:{ACC+r+1}], v[{ACC+r}:{ACC+r+1}], v[{t+2}:{t+3}]")
        a.e(f"v_add_f32 v{t}, v{t}, v{t+1}\nv_add_f32 v{t+1}, v{t+2}, v{t+3}")
        a.e(f"v_mov_b32 v{t+2}, v{t}\nv_mov_b32 v{t+3}, v{t+1}")
        a.e(f"v_permlane32_swap_b32 v{t+2}, v{t}\nv_permlane32_swap_b32 v{t+3}, v{t+1}")
        a.e(self.pk_add(t, t, t + 2))
        a.e("s_mov_b32 exec_hi, 0")
        self.emit(self.st(f"v[{t}:{t+1}]", S_F, 0, "xst", n=2, vaddr=V_I8))
        a.e("s_mov_b32 exec_hi, -1")
        for d in range(8): a.e(f"v_accvgpr_write_b32 a{A_RES+d}, v{PK+d}")

    def p2b(self):
        a = self.a
        OB, ACC, TR = 80, 144, 208
        pre = []
        for b, c in ((0, S_A), (1, S_B)):
            pre += [f"s_xor_b32 s{c}, s{S_TILE}, {b}", f"s_lshl_b32 s{c}, s{c}, 15"] + self.sa(S_T0, [(S_W, 8 * KB), (S_L, OSZ)], O) + [f"s_add_u32 s{c}, s{c}, s{S_T0}"]
        self.emits(pre)
        self.poll(S_FRB, F_S2, 16)
        self.mark("S2_poll")
        ob = [self.seq_items(8, lambda i: vr(OB + 32*b + 4*i), (S_A, S_B)[b], lambda i: f"o{b}_{i}", True) for b in range(2)]
        for it in ob[1] + ob[0]: self.emits(it)
        nb = self.opt("bg_2b", 14)
        self.emits(self.red_addr() + self.x_store_addr(1))
        a.wait_vm("wo")
        def mf(u, i):
            b, sl = u >> 1, u & 1
            a.e(f"{MF} {vr(ACC+16*u,16)}, {vr(16+32*sl+4*i)}, {vr(OB+32*b+4*i)}, {vr(ACC+16*u,16) if i else 0}")
        for i in range(8):
            a.wait_vm(f"o1_{i}")
            mf(2, i); mf(3, i)
            if i < nb: self.take(self.w3, 1)
        resu = self.res_unpack(TR)
        wr = self.red_write(ACC, 2) + self.red_write(ACC, 3)
        for i in range(8):
            a.wait_vm(f"o0_{i}")
            mf(1, i)
            if i >= 2 and wr: self.emit(wr.pop(0))
            self.emits(resu[3*i:3*i+3])
            mf(0, i)
            if i >= 2 and wr: self.emit(wr.pop(0))
            if 8 + i < nb: self.take(self.w3, 1)
        self.emits(wr)
        self.mark("p2b_mfma")
        self.emits(self.red_write(ACC, 1))
        self.red_finish(ACC, TR)
        self.store_x_and_stats()
        self.mark("p2b_st")
        self.arrive(S_FRB, F_S3, "xst")
        self.take(self.w3, self.opt("bg_s3", 0))
        self.mark("S3_arr")

    def p3(self):
        a = self.a
        ACC0, ACC1, RING, CC, TT, HP, STB = 16, 48, 80, 96, 100, 116, 100
        V_X1, V_CA, V_CB = V_T5, V_T4, V_T6
        xds = []
        for p in range(4):
            gc, gl = 56 + 2 * p, 57 + 2 * p
            self.emits([f"s_xor_b32 s{S_T0}, s{S_M}, {p}"] + self.sa(gc, [(S_T0, 28 * KB), (S_RB, 4 * 28 * KB), (S_W, 7 * KB), (S_L, 2 * XSZ)], X + XSZ))
            self.emits(self.sa(gl, [(S_W, 7 * KB)], L_XR + (p & 1) * XSLOT))
            xds.append(self.dma_items(7, gl, gc, f"xt{p}", True))
        def xd(p): return xds[p]
        x0, x1 = xd(0), xd(1)
        self.poll(S_FRB, F_S3, 14)
        self.mark("S3_poll")
        self.take(x0, 7)
        self.emits(self.sa(S_T0, [(S_XT, 3584), (S_L, 2 * STSZ)], ST + STSZ))
        for k in range(7): self.emit(self.ld(vr(STB + 2*k, 2), S_T0, k * 256, "st", n=2, vaddr=V_STL))
        self.take(self.w3, len(self.w3))
        a.e(f"v_add_u32 v{V_X1}, {L_XR + XSLOT}, v{V_L16}")
        def hbase(p):
            return [f"s_xor_b32 s{S_T0}, s{S_M}, {p}"] + self.sa(S_C, [(S_T0, 112 * KB), (S_RB, 4 * 112 * KB), (S_JS, 8 * KB), (S_W, 2 * KB), (S_L, HSZ)], HB)
        c1 = -2.0 * 0.7978845608028654 * 1.4426950408889634
        c2 = c1 * 0.044715
        stf = ["@waitvm st"] + self.stats_reduce(STB, V_T0, V_T1, V_T2, V_T3)
        stf += [f"v_rsq_f32 v{V_T1}, v{V_T0}", f"v_lshrrev_b32 v{V_CA}, 1, v{V_I8}"] + self.sa(S_T0, [(S_W, 384)], L_SCR3)
        stf += [f"v_add_u32 v{V_CB}, s{S_T0}, v{V_CA}",
                f"v_mul_f32 v{V_T2}, v{V_T1}, v{V_T1}", f"v_mul_f32 v{V_T3}, {hexf(c1)}, v{V_T1}", f"v_mul_f32 v{V_T2}, v{V_T2}, v{V_T1}", f"v_mul_f32 v{V_T2}, {hexf(c2)}, v{V_T2}",
                f"ds_write_b32 v{V_CB}, v{V_T3}|cw", f"ds_write_b32 v{V_CB}, v{V_T2} offset:128|cw", f"ds_write_b32 v{V_CB}, v{V_T0} offset:256|cw"]
        stf += self.sa(S_T0, [(S_M, 384)], L_SCR3) + [f"s_mul_i32 s{S_T1}, s{S_M}, 384", f"s_sub_u32 s{S_T1}, {L_SCR3 + 768}, s{S_T1}",
                f"v_add_u32 v{V_CB}, s{S_T1}, v{V_CA}", f"v_add_u32 v{V_CA}, s{S_T0}, v{V_CA}"]

        def epi(p):
            A = ACC0 if p % 2 == 0 else ACC1
            G, U = A, A + 16
            va = V_CA if p < 2 else V_CB
            L = [f"ds_read_b32 v{CC+q}, v{va} offset:{(p&1)*384+q*128}|cc" for q in range(3)] + hbase(p)
            for g in range(4):
                rr = [4*g + k for k in range(4)]
                for k, r in enumerate(rr): L.append(f"v_mul_f32 v{TT+k}, v{G+r}, v{G+r}")
                for k, r in enumerate(rr): L.append(f"v_mul_f32 v{TT+4+k}, v{G+r}, v{U+r}")
                if g == 0: L.append("@waitlg cc")
                for k, r in enumerate(rr): L.append(f"v_fma_f32 v{TT+k}, v{TT+k}, v{CC+1}, v{CC}")
                for k, r in enumerate(rr): L.append(f"v_mul_f32 v{TT+k}, v{TT+k}, v{G+r}")
                for k, r in enumerate(rr): L.append(f"v_exp_f32 v{TT+k}, v{TT+k}")
                for k, r in enumerate(rr): L.append(f"v_fma_f32 v{TT+k}, v{TT+k}, v{CC+2}, v{CC+2}")
                for k, r in enumerate(rr): L.append(f"v_rcp_f32 v{TT+k}, v{TT+k}")
                for k in range(4): L.append(f"v_mul_f32 v{TT+4+k}, v{TT+4+k}, v{TT+k}")
                L.append(f"v_cvt_pk_bf16_f32 v{HP+2*g}, v{TT+4}, v{TT+5}")
                L.append(f"v_cvt_pk_bf16_f32 v{HP+2*g+1}, v{TT+6}, v{TT+7}")
                if g % 2 == 1 and not (self.opt("x_nost", 0) and p < 2): L.append(self.st(vr(HP + 4*(g//2)), S_C, 1024 * (g // 2), f"hst{p}"))
            if self.opt("x_noepi", 0) and p < 2: L = [t for t in L if t.startswith("buffer_") or t.startswith("s_")]
            return L

        w4 = None
        for p in range(4):
            A = ACC0 if p % 2 == 0 else ACC1
            a.wait_vm(f"xt{p}")
            a.e("s_waitcnt lgkmcnt(0)\ns_barrier")
            if p in (0, 1, 3): self.mark(f"p3_T{p}")
            def rd(s):
                if p & 1 == 0:
                    r, of = self.ldsaddr(L_XR + s * KB)
                else: r, of = V_X1, s * KB
                a.e(f"ds_read_b128 {vr(RING+4*(s%4))}, v{r} offset:{of}", tag=f"b{s}")
            for s in range(3): rd(s)
            def mg(s):
                def f():
                    if s + 3 < 28: rd(s + 3)
                    a.wait_both(f"w3_{s}" if p == 0 else None, f"b{s}")
                    a.e(f"{MF} {vr(A,16)}, {ar(8*s)}, {vr(RING+4*(s%4))}, {vr(A,16) if s else 0}")
                return f
            def mu(s):
                def f(): a.e(f"{MF} {vr(A+16,16)}, {ar(8*s+4)}, {vr(RING+4*(s%4))}, {vr(A+16,16) if s else 0}")
                return f
            mains = []
            for s in range(28): mains += [mg(s), mu(s)]
            if p == 0:
                w4 = self.w4_stream()
                bg = x1 + [w4.pop(0) for _ in range(self.opt("w4_p0", 12))]
                self.weave(mains, stf, bg=bg, bg_every=2, bg_phase=1, caps=(16, 8))
            elif p == 1:
                bg = xd(2) + [w4.pop(0) for _ in range(self.opt("w4_p1", 12))]
                if self.opt("x_nobg", 0): bg = xd(2)
                mains[0](); mains[1]()
                self.weave(mains[2:], epi(0), bg=bg, bg_every=2, bg_phase=1, caps=(self.opt('cap1', 24), self.opt('cap2', 8)))
            elif p == 2:
                na = 32 - self.opt("w4_p0", 12) - self.opt("w4_p1", 12)
                bg = xd(3) + [w4.pop(0) for _ in range(na)]
                if self.opt("x_nobg", 0): bg = xd(3)
                mains[0](); mains[1]()
                self.weave(mains[2:], epi(1), bg=bg, bg_every=2, bg_phase=1, caps=(self.opt('cap1', 24), self.opt('cap2', 8)))
            else:
                bg = w4
                mains[0](); mains[1]()
                a.e(f"s_xor_b32 s{S_E}, s{S_TH}, 1")
                AP = self.opt("ap4e", 46)
                orig = mains[AP]
                def with_poll():
                    self.apoll_issue(S_FRB, F_S4E, 8, S_E, S_F)
                    orig()
                mains[AP] = with_poll
                AE = self.opt("arr4e", 22)
                orig2 = mains[AE]
                def with_arr():
                    self.arrive(S_FRB, F_S4E, ("hst0", "hst1"), slot_sreg=S_TH)
                    orig2()
                mains[AE] = with_arr
                self.weave(mains[2:], epi(2), bg=bg, bg_every=2, bg_phase=1, caps=(self.opt('cap1', 24), self.opt('cap2', 8)))
            self.take(bg, len(bg))
        self.mark("p3_loop")
        self.p4_setup()
        self.apoll_check(8, 7, S_F)
        LA = self.opt("la4", 6)
        first = []
        for i in range(LA): first += [self.hi[(i, 0)], self.hi[(i, 1)]]
        self.emits_bg(epi(3), first, len(first), first=self.opt("e3first", 20), every=self.opt("e3every", 9))
        self.take(first, len(first))
        self.mark("p3_epi")

    def p4_setup(self):
        HR, NR = 96, 16
        cur = [S_G[4], S_G[5], S_G[6], S_G[7]]
        pre = []
        for late in (0, 1):
            for b in range(2):
                c = cur[2*late + b]
                pre += self.kseg(S_T0, late) + [f"s_xor_b32 s{c}, s{S_TILE}, {b}", f"s_mul_i32 s{c}, s{c}, 112", f"s_add_u32 s{c}, s{c}, s{S_T0}", f"s_lshl_b32 s{c}, s{c}, 10"]
                pre += self.sa(S_T0, [(S_L, HSZ)], HB) + [f"s_add_u32 s{c}, s{c}, s{S_T0}"]
        self.emits(pre)
        self.hi = {}
        for late in (0, 1):
            for b in range(2):
                x = self.seq_items(14, lambda i: ar(HR + 8*((14*late + i) % NR) + 4*b), cur[2*late + b], lambda i: f"h{14*late+i}_{b}", True)
                for i in range(14): self.hi[(14*late + i, b)] = x[i]

    def p4(self):
        a = self.a
        n = self.name
        ACC, HR, NR, TR = 16, 96, 16, 80
        LA = self.opt("la4", 6)
        hi = self.hi
        self.emits(self.red_addr())
        def mf(u, i):
            b, sl = u >> 1, u & 1
            a.e(f"{MF} {vr(ACC+16*u,16)}, {self.w4_reg(i, sl)}, {ar(HR+8*(i%NR)+4*b)}, {vr(ACC+16*u,16) if i else 0}")
        TAIL = self.opt("tail4", 6)
        PL = 14 - LA
        t0 = 28 - TAIL
        rest0 = [hi[(i, 0)] for i in range(t0, 28)]
        rest1 = [hi[(i, 1)] for i in range(t0, 28)]
        ARR4 = self.opt("arr4", 3)
        APL = self.opt("ap4l", PL - 2)
        for i in range(t0):
            if i == ARR4:
                self.arrive(S_FRB, F_S4L, ("hst2", "hst3"), slot_sreg=S_TH)
                self.mark("S4_arr")
            if i == APL: self.apoll_issue(S_FRB, F_S4L, 9, S_TH, S_F)
            if i == PL:
                self.apoll_check(9, 7, S_F)
                self.mark("S4L_poll")
            a.wait_vm((f"h{i}_0", f"h{i}_1", f"w4_{i}"))
            nxt = i + LA
            mf(0, i); mf(1, i)
            if nxt < t0: self.emits(hi[(nxt, 0)])
            elif rest1: self.emits(rest1.pop(0))
            mf(2, i); mf(3, i)
            if nxt < t0: self.emits(hi[(nxt, 1)])
            elif rest1: self.emits(rest1.pop(0))
            elif rest0: self.emits(rest0.pop(0))
        for it in rest1: self.emits(it)
        for i in range(t0, 28):
            a.wait_vm((f"h{i}_1", f"w4_{i}"))
            mf(2, i)
            if rest0: self.emits(rest0.pop(0))
            mf(3, i)
        resu = self.res_unpack(TR)
        wr = self.red_write(ACC, 2) + self.red_write(ACC, 3)
        k = 0
        for i in range(t0, 28):
            a.wait_vm(f"h{i}_0")
            mf(1, i)
            if i >= t0 + 1 and wr: self.emit(wr.pop(0))
            self.emits(resu[4*k:4*k+4]); k += 1
            mf(0, i)
            if i >= t0 + 1 and wr: self.emit(wr.pop(0))
        self.emits(resu[4*k:]); self.emits(wr)
        self.mark("p4_mfma")
        self.emits(self.red_write(ACC, 1))
        self.emits(self.x_store_addr(2))
        self.red_finish(ACC, TR)
        self.mark("p4_red")
        fin = a.newlabel("fin")
        a.e(f"s_cmp_lg_u32 s{S_L}, 0\ns_cbranch_scc1 {fin}")
        vq = list(a.vmq)
        self.store_x_and_stats()
        self.arrive(S_FRB, F_S5, "xst")
        a.e(f"s_branch {n}_next")
        a.vmq = vq
        a.label(fin)
        PK = self.PK
        self.emits(self.sa(S_T0, [(S_TILE, 32 * 896), (S_N, 64)]))
        a.e(f"v_mul_u32_u24 v{V_T0}, 112, v{V_I8}\nv_lshrrev_b32 v{V_T1}, 5, v{V_L16}\nv_and_b32 v{V_T1}, 16, v{V_T1}\nv_add_u32 v{V_T0}, v{V_T0}, v{V_T1}")
        a.e(f"v_permlane32_swap_b32 v{PK}, v{PK+2}\nv_permlane32_swap_b32 v{PK+1}, v{PK+3}")
        a.e(f"v_permlane32_swap_b32 v{PK+4}, v{PK+6}\nv_permlane32_swap_b32 v{PK+5}, v{PK+7}")
        a.e(f"buffer_store_dwordx4 {vr(PK)}, v{V_T0}, s[8:11], s{S_T0} offen")
        a.e(f"buffer_store_dwordx4 {vr(PK+4)}, v{V_T0}, s[8:11], s{S_T0} offen offset:32")
        a.e(f"s_branch {n}_done")

    def build(self):
        a, n = self.a, self.name
        self.prologue()
        head_q = list(a.vmq)
        a.label(f"{n}_layer")
        a.vmq = list(head_q); a.lgq = []
        self.layer_setup()
        lab = a.newlabel("nos5")
        a.e(f"s_cmp_eq_u32 s{S_L}, 0\ns_cbranch_scc1 {lab}")
        self.poll(S_FRB, F_S5, 14, extra=-NSYNC * 2048)
        a.label(lab)
        self.p1()
        self.p2a()
        a.e(f"s_cmp_lt_u32 s{S_Q}, 7\ns_cbranch_scc1 {n}_act")
        a.e(f"s_cmp_lg_u32 s{S_L}, 0\ns_cbranch_scc1 {n}_done")
        a.e(f"s_branch {n}_next")
        a.label(f"{n}_act")
        self.p2b()
        self.p3()
        self.p4()
        a.label(f"{n}_next")
        a.e("s_waitcnt vmcnt(0)")
        if self.o.get("prof"): a.e(f"v_accvgpr_write_b32 a224, v{V_MARK}\nv_mov_b32 v{V_MARK}, 0")
        a.e(f"s_add_u32 s{S_L}, s{S_L}, 1")
        a.e(f"s_branch {n}_layer")
        a.label(f"{n}_done")
        if self.o.get("prof"): self.dump_marks()
        a.e("s_endpgm")
        return a.finalize()
```

```python
from asmlib import Asm
from layout import *
import struct
def hexf(x): return "0x%08x" % struct.unpack("<I", struct.pack("<f", x))[0]
OOB = 0x7ff00000
LOOB = 0x30000
NA, NB, NC, ND, NE = 48, 112, 14, 56, 64
B0 = NA; C0 = B0 + NB; D0 = C0 + NC; E0 = D0 + ND; F0 = E0 + NE; G0 = F0 + 1
NPREP = G0 + 1
PREP_LDS = 29696
L_SUM = 28672

def load_src(a, karg_off, size):
    a.e(f"s_load_dwordx2 s[8:9], s[0:1], {karg_off}")
    a.e(f"s_mov_b32 s10, {size}\ns_mov_b32 s11, 0x20000")
    a.e("s_waitcnt lgkmcnt(0)")

def gen_prep(name):
    a = Asm()
    a.label(name)
    a.e(f"s_cmp_ge_u32 s2, {NPREP}")
    a.e(f"s_cbranch_scc1 {name}_done")
    a.e("s_load_dwordx2 s[4:5], s[0:1], 80")
    a.e(f"s_mov_b32 s6, {WS_USED}\ns_mov_b32 s7, 0x20000")
    a.e("v_and_b32 v7, 63, v0\nv_lshlrev_b32 v1, 4, v7")
    a.e("v_and_b32 v2, 31, v0\nv_bfe_u32 v3, v0, 5, 1")
    a.e("v_lshrrev_b32 v4, 6, v0\nv_readfirstlane_b32 s12, v4")
    a.e("v_bfe_u32 v8, v7, 2, 2\nv_and_b32 v9, 3, v7\nv_bfe_u32 v10, v7, 4, 1")
    a.e("v_lshl_add_u32 v8, v3, 2, v8\nv_lshlrev_b32 v8, 6, v8")
    a.e("v_lshlrev_b32 v11, 5, v10\nv_lshl_add_u32 v11, v9, 3, v11\nv_add_u32 v8, v8, v11")
    a.e(f"s_mul_i32 s13, s12, {7*KB}\nv_add_u32 v8, s13, v8")
    a.e("v_lshrrev_b32 v12, 2, v7\nv_lshlrev_b32 v13, 4, v9")
    a.e("s_waitcnt lgkmcnt(0)")
    for lim, lab in ((B0, "A"), (C0, "B"), (D0, "C"), (E0, "Dn"), (F0, "E"), (G0, "F")):
        a.e(f"s_cmp_lt_u32 s2, {lim}\ns_cbranch_scc1 {name}_{lab}")
    a.e("v_mov_b32 v16, 0\nv_mov_b32 v17, 0\nv_mov_b32 v18, 0\nv_mov_b32 v19, 0")
    a.e("v_lshlrev_b32 v5, 4, v0")
    a.e(f"s_mov_b32 s20, {FLAGS}")
    for i in range(2 * NSYNC * 16 * 128 // 4096):
        a.e("buffer_store_dwordx4 v[16:19], v5, s[4:7], s20 offen")
        a.e("s_add_u32 s20, s20, 4096")
    a.e(f"s_branch {name}_done")

    def stage(nins):
        a.e(f"s_mul_i32 s22, s12, {7*KB}")
        for i in range(nins):
            a.e("s_mov_b32 m0, s22\ns_nop 0")
            a.e("buffer_load_dwordx4 v4, s[8:11], s20 offen lds", tag="raw")
            if i != nins - 1: a.e("s_add_u32 s20, s20, s21\ns_add_u32 s22, s22, 1024")
    def lanes(rb_sreg, col_sreg):
        a.e(f"v_mul_lo_u32 v4, s{rb_sreg}, v12\nv_add3_u32 v4, v4, v13, s{col_sreg}")
    def trread(dst, va, off):
        a.e(f"ds_read_b64_tr_b16 v[{dst}:{dst+1}], v{va} offset:{off}", tag="tr")

    a.label(f"{name}_A")
    load_src(a, 8, D * 3 * D * 2)
    a.e("s_mul_i32 s13, s2, 43691\ns_lshr_b32 s13, s13, 17")
    a.e("s_mul_i32 s14, s13, 3\ns_sub_u32 s14, s2, s14")
    a.e("s_mul_i32 s14, s14, 896\ns_mul_i32 s13, s13, 56\ns_add_u32 s15, s13, s14")
    a.e("s_mov_b32 s16, 2688")
    a.e(f"s_mul_i32 s18, s2, {28*KB}\ns_add_u32 s18, s18, {WQKV}")
    a.e(f"v_and_b32 v11, v10, v9\nv_lshrrev_b32 v14, 1, v9\nv_and_b32 v11, v11, v14\nv_cmp_eq_u32 vcc, 1, v11\nv_mov_b32 v14, {LOOB}\nv_cndmask_b32 v8, v8, v14, vcc")
    a.e(f"s_branch {name}_AB")
    a.label(f"{name}_B")
    a.e(f"s_sub_u32 s13, s2, {B0}\ns_and_b32 s14, s13, 1\ns_cmp_eq_u32 s14, 0")
    a.e(f"s_cbranch_scc1 {name}_Bg")
    load_src(a, 48, D * F * 2)
    a.e(f"s_branch {name}_B2")
    a.label(f"{name}_Bg")
    load_src(a, 40, D * F * 2)
    a.label(f"{name}_B2")
    a.e("s_lshr_b32 s15, s13, 1\ns_lshl_b32 s15, s15, 6")
    a.e("s_mov_b32 s16, 3584")
    a.e(f"s_mul_i32 s18, s13, {28*KB}\ns_add_u32 s18, s18, {WGU}")
    a.label(f"{name}_AB")
    lanes(16, 15)
    a.e("s_mul_i32 s20, s12, 112\ns_mul_i32 s20, s20, s16\ns_lshl_b32 s21, s16, 4")
    stage(7)
    a.e("s_mov_b32 s23, 0x3f803f80")
    a.e(f"s_mul_i32 s24, s12, {7*KB}\ns_add_u32 s24, s24, s18")
    a.e("s_waitcnt vmcnt(0)")
    a.vmq = []
    FR = 16
    for s in range(7):
        trread(FR + 4*s, 8, s * 1024); trread(FR + 4*s + 2, 8, s * 1024 + 512)
    a.e("v_mov_b32 v48, 0\nv_mov_b32 v49, 0")
    for s in range(7):
        a.e(f"s_waitcnt lgkmcnt({min(15, 12 - 2*s)})")
        for d in range(4): a.e(f"v_dot2_f32_bf16 v{48 + d % 2}, v{FR+4*s+d}, s23, v{48 + d % 2}")
    a.lgq = []
    a.e(f"v_add_f32 v48, v48, v49\nv_lshlrev_b32 v9, 2, v0\nv_add_u32 v9, {L_SUM}, v9")
    a.e("ds_write_b32 v9, v48")
    a.e("s_waitcnt lgkmcnt(0)\ns_barrier")
    a.e(f"v_lshlrev_b32 v9, 2, v2\nv_add_u32 v9, {L_SUM}, v9")
    for q in range(8): a.e(f"ds_read_b32 v{50+q}, v9 offset:{q*128}")
    a.e("s_waitcnt lgkmcnt(0)")
    a.e("v_add_f32 v50, v50, v51\nv_add_f32 v52, v52, v53\nv_add_f32 v54, v54, v55\nv_add_f32 v56, v56, v57")
    a.e("v_add_f32 v50, v50, v52\nv_add_f32 v54, v54, v56\nv_add_f32 v50, v50, v54")
    a.e(f"v_mul_f32 v50, {hexf(-1.0/448)}, v50")
    for s in range(7):
        for d in range(4):
            r = FR + 4*s + d
            t = 52 + 2 * (d % 2)
            a.e(f"v_lshlrev_b32 v{t}, 16, v{r}\nv_and_b32 v{t+1}, 0xffff0000, v{r}")
            a.e(f"v_pk_add_f32 v[{t}:{t+1}], v[{t}:{t+1}], v[50:51] op_sel:[0,0] op_sel_hi:[1,0]")
            a.e(f"v_cvt_pk_bf16_f32 v{r}, v{t}, v{t+1}")
        a.e(f"buffer_store_dwordx4 v[{FR+4*s}:{FR+4*s+3}], v1, s[4:7], s24 offen")
        a.e("s_add_u32 s24, s24, 1024")
    a.e(f"s_branch {name}_done")

    a.vmq = []; a.lgq = []
    a.label(f"{name}_C")
    load_src(a, 24, D * D * 2)
    a.e(f"s_sub_u32 s13, s2, {C0}\ns_lshl_b32 s15, s13, 6\ns_mov_b32 s16, 896")
    lanes(16, 15)
    a.e(f"s_mul_i32 s20, s12, {112*896}\ns_mov_b32 s21, {16*896}")
    stage(7)
    a.e(f"v_mov_b32 v14, {LOOB}\nv_cmp_eq_u32 vcc, 0, v3\nv_cndmask_b32 v9, v14, v8, vcc")
    a.e(f"s_lshl_b32 s24, s13, 5\ns_lshl_b32 s25, s12, 3\ns_add_u32 s24, s24, s25\ns_lshl_b32 s24, s24, 10\ns_add_u32 s24, s24, {WO}")
    a.e("s_waitcnt vmcnt(0)")
    a.vmq = []
    for fr in range(8):
        q, e = fr // 2, fr % 2
        off = (28 * q + 16 * e) * 64
        trread(FR + 4*fr, 8, off); trread(FR + 4*fr + 2, 9 if e else 8, off + 512)
    for fr in range(8):
        a.e(f"s_waitcnt lgkmcnt({min(15, 14 - 2*fr)})")
        a.e(f"buffer_store_dwordx4 v[{FR+4*fr}:{FR+4*fr+3}], v1, s[4:7], s24 offen")
        a.e("s_add_u32 s24, s24, 1024")
    a.e(f"s_branch {name}_done")

    a.vmq = []; a.lgq = []
    a.label(f"{name}_Dn")
    load_src(a, 56, F * D * 2)
    a.e(f"s_sub_u32 s13, s2, {D0}\ns_lshr_b32 s14, s13, 2\ns_and_b32 s13, s13, 3")
    a.e("s_lshl_b32 s15, s14, 6\ns_mov_b32 s16, 896")
    lanes(16, 15)
    a.e(f"s_lshl_b32 s20, s13, 2\ns_add_u32 s20, s20, s12\ns_mul_i32 s20, s20, {112*896}\ns_mov_b32 s21, {16*896}")
    stage(7)
    a.e(f"s_mul_i32 s24, s14, 112\ns_mul_i32 s25, s13, 28\ns_add_u32 s24, s24, s25\ns_mul_i32 s25, s12, 7\ns_add_u32 s24, s24, s25\ns_lshl_b32 s24, s24, 10\ns_add_u32 s24, s24, {WD}")
    a.e("s_waitcnt vmcnt(0)")
    a.vmq = []
    for s in range(7):
        trread(FR + 4*s, 8, s * 1024); trread(FR + 4*s + 2, 8, s * 1024 + 512)
    for s in range(7):
        a.e(f"s_waitcnt lgkmcnt({min(15, 12 - 2*s)})")
        a.e(f"buffer_store_dwordx4 v[{FR+4*s}:{FR+4*s+3}], v1, s[4:7], s24 offen")
        a.e("s_add_u32 s24, s24, 1024")
    a.e(f"s_branch {name}_done")

    a.vmq = []; a.lgq = []
    a.label(f"{name}_F")
    load_src(a, 16, H * DH * DH * 2)
    a.e(f"v_mov_b32 v4, v1\ns_mul_i32 s20, s12, {4*1568}\ns_mov_b32 s21, 1024")
    stage(7)
    a.e("v_and_b32 v9, 3, v7\nv_bfe_u32 v10, v7, 4, 1\nv_bfe_u32 v11, v7, 2, 2")
    a.e("v_lshl_add_u32 v14, v10, 2, v9\nv_min_u32 v14, 6, v14\nv_lshlrev_b32 v14, 3, v14")
    a.e("v_lshl_add_u32 v11, v3, 2, v11\nv_mul_u32_u24 v11, 56, v11\nv_add_u32 v8, v11, v14")
    a.e(f"s_mul_i32 s13, s12, {7*KB}\nv_add_u32 v8, s13, v8")
    a.e(f"v_mov_b32 v14, {LOOB}\nv_cmp_eq_u32 vcc, 0, v3\nv_cndmask_b32 v9, v14, v8, vcc")
    a.e(f"s_lshl_b32 s24, s12, 13\ns_add_u32 s24, s24, {PHI}")
    a.e("s_waitcnt vmcnt(0)")
    a.vmq = []
    for fr in range(8):
        q, e = fr // 2, fr % 2
        off = q * 1568 + 16 * e * 56
        trread(FR + 4*fr, 8, off); trread(FR + 4*fr + 2, 9 if e else 8, off + 8 * 56)
    for fr in range(8):
        a.e(f"s_waitcnt lgkmcnt({min(15, 14 - 2*fr)})")
        a.e(f"buffer_store_dwordx4 v[{FR+4*fr}:{FR+4*fr+3}], v1, s[4:7], s24 offen")
        a.e("s_add_u32 s24, s24, 1024")
    a.e(f"s_branch {name}_done")

    a.vmq = []; a.lgq = []
    a.label(f"{name}_E")
    load_src(a, 0, S * D * 2)
    a.e(f"s_sub_u32 s14, s2, {E0}")
    a.e("s_min_u32 s13, s12, 2\ns_mul_i32 s15, s12, 4\ns_max_u32 s16, s12, 2\ns_sub_u32 s16, s16, 2\ns_sub_u32 s15, s15, s16")
    a.e("v_mul_u32_u24 v4, 896, v2\nv_lshlrev_b32 v5, 3, v3\nv_add_u32 v4, v4, v5")
    a.e("s_mul_i32 s20, s14, 28672\ns_lshl_b32 s16, s15, 6\ns_add_u32 s20, s20, s16")
    for n in range(4):
        for g in range(4):
            a.e(f"buffer_load_dwordx2 v[{16+8*n+2*g}:{17+8*n+2*g}], v4, s[8:11], s20 offen offset:{n*64+g*16}", tag=f"x{n}")
    a.e(f"s_mul_i32 s21, s14, 28\ns_lshl_b32 s16, s15, 1\ns_add_u32 s21, s21, s16\ns_lshl_b32 s21, s21, 10\ns_add_u32 s21, s21, {X}")
    a.e(f"s_mul_i32 s22, s14, 3584\ns_lshl_b32 s16, s15, 8\ns_add_u32 s22, s22, s16\ns_add_u32 s22, s22, {ST}")
    a.e("s_mov_b32 s23, 0x3f803f80")
    a.e("v_lshlrev_b32 v6, 3, v2")
    for n in range(4):
        if n == 3:
            a.e(f"s_cmp_ge_u32 s12, 2\ns_cbranch_scc1 {name}_done")
        a.wait_vm(f"x{n}")
        for s in range(2):
            a.e(f"buffer_store_dwordx4 v[{16+8*n+4*s}:{19+8*n+4*s}], v1, s[4:7], s21 offen", tag="st")
            a.e("s_add_u32 s21, s21, 1024")
        a.e("v_mov_b32 v8, 0\nv_mov_b32 v9, 0")
        for q in range(8):
            a.e(f"v_dot2_f32_bf16 v8, v{16+8*n+q}, s23, v8")
            a.e(f"v_dot2_f32_bf16 v9, v{16+8*n+q}, v{16+8*n+q}, v9")
        a.e("v_mov_b32 v10, v8\nv_mov_b32 v11, v9")
        a.e("v_permlane32_swap_b32 v10, v8\nv_permlane32_swap_b32 v11, v9")
        a.e("v_add_f32 v12, v8, v10\nv_add_f32 v13, v9, v11")
        a.e("s_mov_b32 exec_hi, 0")
        a.e(f"buffer_store_dwordx2 v[12:13], v6, s[4:7], s22 offen offset:{n*256}", tag="st")
        a.e("s_mov_b32 exec_hi, -1")
    a.label(f"{name}_done")
    a.e("s_endpgm")
    return a.finalize()
```

```python
import sys, kd
import prep2 as prep
import main3 as mainvk
from layout import *
def build(stop=None, opts=None, with_header=True):
    p = prep.gen_prep("prep_kernel", opts)
    g = mainvk.Gen("main_kernel", stop=stop, opts=opts)
    m = g.build()
    hdr = ""
    if with_header:
        ref = open("interleave_layers__linear_kernel_hedgehog__geglu_ffn__prompt.s.ref").read().split("\n")
        keep = [l for l in ref if l.startswith(";") and "@launch" not in l and "Override launch" not in l and "grid=ceil" not in l]
        hdr = "\n".join(keep) + "\n"
        hdr += f"; @launch kernel=prep_kernel grid=({prep.NPREP},1,1) block=(256,1,1) lds={prep.PREP_LDS}\n"
        hdr += f"; @launch kernel=main_kernel grid=(256,1,1) block=(256,1,1) lds={mainvk.LDS_BYTES}\n"
    src = hdr + '.amdgcn_target "amdgcn-amd-amdhsa--gfx950"\n.text\n'
    src += kd.head("prep_kernel") + p.text() + kd.head("main_kernel") + m.text()
    src += '.section .rodata,"a"\n' + kd.kd("prep_kernel", 64, 64) + kd.kd("main_kernel", 512, 256, 100)
    build.marks = getattr(g, "marks", [])
    return src, (len(p.ins), p.nops_added, len(m.ins), m.nops_added)
if __name__ == "__main__":
    stop = sys.argv[2] if len(sys.argv) > 2 and sys.argv[2] != "none" else None
    opts = dict(kv.split("=") for kv in sys.argv[3:])
    src, info = build(stop, opts)
    open(sys.argv[1], "w").write(src)
    if build.marks: open(sys.argv[1] + ".marks", "w").write("\n".join(build.marks))
    print("prep instrs/nops, main instrs/nops:", info, "bytes", len(src))
```

```python
from asmlib import Asm
from layout import *
import struct
def hexf(x): return "0x%08x" % struct.unpack("<I", struct.pack("<f", x))[0]

L_W1   = 0
L_XR   = 86016
XSLOT  = 29696
L_KVR  = 86016
L_KVA  = 118784
L_RED  = 86016
L_SCR3 = 145408
L_SCR  = 147456
LDS_BYTES = 163840

S_RB, S_J, S_W, S_L, S_TH, S_CB, S_TT, S_NT = 12, 13, 14, 15, 16, 17, 18, 19
S_T0, S_T1, S_T2, S_T3 = 20, 21, 22, 23
S_SEL_LO, S_SEL_HI = 24, 25
S_UP = 26
S_CNT, S_JS, S_Q, S_M = 28, 29, 30, 31
S_A, S_B, S_C, S_D = 32, 33, 34, 35
S_E, S_F = 38, 39
S_G = [40, 41, 42, 43, 44, 45, 46, 47]
S_FRB, S_FJ = 48, 49
S_TILE, S_N = 50, 51
S_XT = 52
F_S1, F_S2, F_S3, F_S4E, F_S4L, F_S5 = 0, 1, 2, 3, 5, 7

V_POLL, V_L16, V_L16H, V_STL, V_I8, V_ONE, V_C, V_MARK = 0, 1, 2, 3, 4, 5, 6, 7
V_T0, V_T1, V_T2, V_T3, V_T4, V_T5, V_T6, V_T7 = 8, 9, 10, 11, 12, 13, 14, 15
A_PHI, A_ID, A_RES = 232, 240, 248

def vr(b, n=4): return f"v[{b}:{b+n-1}]"
def ar(b, n=4): return f"a[{b}:{b+n-1}]"
MF = "v_mfma_f32_32x32x16_bf16"
def cost_of(t):
    if t.startswith(("v_exp", "v_rcp", "v_rsq")): return 8
    if t.startswith("v_mfma"): return 32
    if t.startswith("@"): return 2
    return 4

class Gen:
    def __init__(self, name, stop=None, opts=None):
        self.a = Asm(); self.name = name; self.stop = stop; self.o = opts or {}
        self.marks = []
    def opt(self, k, d): return int(self.o.get(k, d))

    def emit(self, t):
        a = self.a
        if t.startswith("@waitlg "): a.wait_lg(tuple(t.split()[1:]))
        elif t.startswith("@waitvm "): a.wait_vm(tuple(t.split()[1:]))
        elif "|" in t:
            txt, tag = t.split("|"); a.e(txt, tag=tag)
        else: a.e(t)
    def emits(self, L):
        for t in L: self.emit(t)
    def sa(self, dst, terms, const=0):
        L = []
        first = True
        for r, m in terms:
            tgt = dst if first else S_T3
            if m == 1:
                if first: L.append(f"s_mov_b32 s{dst}, s{r}")
                else: L.append(f"s_add_u32 s{dst}, s{dst}, s{r}")
                first = False
                continue
            if m & (m - 1) == 0: L.append(f"s_lshl_b32 s{tgt}, s{r}, {m.bit_length()-1}")
            else: L.append(f"s_mul_i32 s{tgt}, s{r}, {m}")
            if not first: L.append(f"s_add_u32 s{dst}, s{dst}, s{S_T3}")
            first = False
        if first: L.append(f"s_mov_b32 s{dst}, {const}")
        elif const: L.append(f"s_add_u32 s{dst}, s{dst}, {const}")
        return L
    def ld(self, dst, soff, imm, tag, sc1=True, n=4, vaddr=V_L16):
        op = {4: "buffer_load_dwordx4", 2: "buffer_load_dwordx2", 1: "buffer_load_dword"}[n]
        return f"{op} {dst}, v{vaddr}, s[4:7], s{soff} offen" + (f" offset:{imm}" if imm else "") + (" sc1" if sc1 else "") + f"|{tag}"
    def st(self, src, soff, imm, tag, n=4, vaddr=V_L16):
        op = {4: "buffer_store_dwordx4", 2: "buffer_store_dwordx2"}[n]
        return f"{op} {src}, v{vaddr}, s[4:7], s{soff} offen" + (f" offset:{imm}" if imm else "") + f" sc1|{tag}"
    def seq_items(self, n, dstf, cur, tagf, sc1):
        items = []
        for i in range(n):
            it = [self.ld(dstf(i), cur, (i % 4) * 1024, tagf(i), sc1)]
            if i % 4 == 3 and i != n - 1: it.append(f"s_add_u32 s{cur}, s{cur}, 4096")
            items.append(it)
        return items
    def dma_items(self, n, lds, cur, tag, sc1):
        items = []
        for i in range(n):
            it = []
            if i % 4 == 0: it += [f"s_mov_b32 m0, s{lds}", "s_nop 0"]
            it.append(f"buffer_load_dwordx4 v{V_L16}, s[4:7], s{cur} offen" + (f" offset:{(i%4)*1024}" if i % 4 else "") + (" sc1" if sc1 else "") + f" lds|{tag}")
            if i % 4 == 3 and i != n - 1: it += [f"s_add_u32 s{cur}, s{cur}, 4096", f"s_add_u32 s{lds}, s{lds}, 4096"]
            items.append(it)
        return items
    @staticmethod
    def zip2(x, y):
        out = []
        for i in range(max(len(x), len(y))):
            if i < len(x): out.append(x[i])
            if i < len(y): out.append(y[i])
        return out
    def take(self, bg, n):
        for _ in range(n):
            if bg: self.emits(bg.pop(0))
    def ldsaddr(self, off):
        if off < 65536: return V_L16, off
        assert off < 131072
        return V_L16H, off - 65536

    def weave(self, mains, fills, bg=None, bg_every=2, bg_start=0, caps=(24,), bg_phase=0):
        fi = 0
        nb = 0
        for k, m in enumerate(mains):
            m()
            cap = caps[k % len(caps)]
            c = 0
            if bg and k >= bg_start and (k - bg_start) % bg_every == bg_phase:
                it = bg.pop(0)
                self.emits(it); c += 12 if any(" lds" in t for t in it) else 8
            nv = 0
            while fi < len(fills):
                t = fills[fi]
                if t.startswith("s_") or t.startswith("@"):
                    self.emit(t); fi += 1; continue
                w = cost_of(t)
                if t.startswith("ds_read") or t.startswith("ds_write") or t.startswith("buffer_"): w = 8
                lim = cap if (w == 8 or nv * 4 != c) else min(cap, 20)
                if c + w > lim: break
                self.emit(t); fi += 1; c += w
                if w == 4: nv += 1
        while fi < len(fills):
            self.emit(fills[fi]); fi += 1
    def emits_bg(self, L, bg, n, first=0, every=10):
        k = 0
        for i, t in enumerate(L):
            if k < n and bg and i >= first and (i - first) % every == 0:
                self.emits(bg.pop(0)); k += 1
            self.emit(t)

    def mark(self, name):
        if not self.o.get("prof"): return
        if self.opt("prof", 0) == 3 and name != "p1_start": return
        a = self.a
        k = len(self.marks); self.marks.append(name)
        a.e(("s_memtime" if self.opt("prof", 0) == 2 else "s_memrealtime") + " s[36:37]\ns_waitcnt lgkmcnt(0)")
        a.lgq = []
        a.e(f"v_writelane_b32 v{V_MARK}, s36, {k}")
    def dump_marks(self):
        a = self.a
        lab = a.newlabel("dm")
        a.e("s_memrealtime s[36:37]\ns_waitcnt lgkmcnt(0)")
        a.e(f"v_writelane_b32 v{V_MARK}, s36, 63")
        a.e(f"s_cmp_lg_u32 s{S_W}, 0\ns_cbranch_scc1 {lab}")
        a.e(f"s_lshl_b32 s{S_T0}, s2, 9\ns_add_u32 s{S_T0}, s{S_T0}, {DBG}")
        a.e(f"v_lshrrev_b32 v{V_T0}, 2, v{V_L16}")
        a.e(f"v_accvgpr_read_b32 v{V_T1}, a224")
        a.e(f"buffer_store_dword v{V_T1}, v{V_T0}, s[4:7], s{S_T0} offen")
        a.e(f"buffer_store_dword v{V_MARK}, v{V_T0}, s[4:7], s{S_T0} offen offset:256")
        a.e("s_waitcnt vmcnt(0)")
        a.label(lab)

    def arrive(self, base, slot, tags, slot_sreg=None, barrier=True):
        a = self.a
        a.wait_vm(tags)
        if barrier: a.e("s_barrier")
        a.e(f"s_add_u32 s{S_T2}, s{base}, {slot*2048}")
        if slot_sreg is not None: a.e(f"s_lshl_b32 s{S_T3}, s{slot_sreg}, 11\ns_add_u32 s{S_T2}, s{S_T2}, s{S_T3}")
        a.e(f"v_mov_b32 v{V_T7}, 1\ns_cmp_eq_u32 s{S_W}, 0\ns_cselect_b64 exec, 1, 0")
        a.e_uncounted(f"buffer_atomic_add v{V_T7}, off, s[4:7], s{S_T2} sc1")
        a.e("s_mov_b64 exec, -1")
    def poll(self, base, slot, target, slot_sreg=None, extra=0):
        a = self.a
        lab, lp, lx = a.newlabel("pol"), a.newlabel("plp"), a.newlabel("plx")
        a.e(f"s_add_u32 s{S_T2}, s{base}, {slot*2048 + extra}")
        if slot_sreg is not None: a.e(f"s_lshl_b32 s{S_T3}, s{slot_sreg}, 11\ns_add_u32 s{S_T2}, s{S_T2}, s{S_T3}")
        a.e(f"s_cmp_lg_u32 s{S_W}, 0\ns_cbranch_scc1 {lab}")
        vq, lq = list(a.vmq), list(a.lgq)
        dep = self.opt("pdepth", 2)
        a.e(f"s_mov_b32 s{S_CNT}, 0")
        for k in range(dep):
            a.e(f"s_mov_b64 exec, {1 << k}\nbuffer_load_dword v{V_POLL}, off, s[4:7], s{S_T2} sc1")
            if k != dep - 1: a.e(f"s_sleep {self.opt('psleep', 2)}")
        a.label(lp)
        for k in range(dep):
            a.e(f"s_waitcnt vmcnt({dep-1})\nv_readlane_b32 s{S_T3}, v{V_POLL}, {k}")
            a.e(f"s_cmp_ge_u32 s{S_T3}, {target}\ns_cbranch_scc1 {lx}")
            a.e(f"s_mov_b64 exec, {1 << k}\nbuffer_load_dword v{V_POLL}, off, s[4:7], s{S_T2} sc1")
        a.e(f"s_add_u32 s{S_CNT}, s{S_CNT}, 1\ns_cmp_lt_u32 s{S_CNT}, 200000\ns_cbranch_scc1 {lp}")
        a.label(lx)
        a.e("s_mov_b64 exec, -1")
        a.vmq, a.lgq = vq, lq
        a.label(lab)
        a.e("s_barrier")

    def apoll_issue(self, base, slot, lane, slot_sreg, dst):
        a = self.a
        a.e(f"s_lshl_b32 s{dst}, s{slot_sreg}, 11\ns_add_u32 s{dst}, s{dst}, s{base}\ns_add_u32 s{dst}, s{dst}, {slot*2048}")
        a.e(f"s_mov_b64 exec, {1 << lane}")
        a.e(f"buffer_load_dword v{V_POLL}, off, s[4:7], s{dst} sc1", tag=f"ap{lane}")
        a.e("s_mov_b64 exec, -1")
    def apoll_check(self, lane, target, dst):
        a = self.a
        ok, lp = a.newlabel("apk"), a.newlabel("apl")
        a.wait_vm(f"ap{lane}")
        a.e(f"v_readlane_b32 s{S_T3}, v{V_POLL}, {lane}\ns_cmp_ge_u32 s{S_T3}, {target}\ns_cbranch_scc1 {ok}")
        vq, lq = list(a.vmq), list(a.lgq)
        a.e(f"s_mov_b32 s{S_CNT}, 0\ns_mov_b64 exec, {1 << lane}")
        a.label(lp)
        a.e(f"buffer_load_dword v{V_POLL}, off, s[4:7], s{dst} sc1")
        a.e(f"s_add_u32 s{S_CNT}, s{S_CNT}, 1\ns_cmp_gt_u32 s{S_CNT}, 200000\ns_cbranch_scc1 {lp}_x")
        a.e(f"s_waitcnt vmcnt(0)\nv_readlane_b32 s{S_T3}, v{V_POLL}, {lane}\ns_cmp_lt_u32 s{S_T3}, {target}\ns_cbranch_scc1 {lp}")
        a.label(f"{lp}_x")
        a.e("s_waitcnt vmcnt(0)\ns_mov_b64 exec, -1")
        a.vmq, a.lgq = vq, lq
        a.label(ok)

    @staticmethod
    def bc(r): return f"v[{r & ~1}:{(r & ~1) + 1}]", r & 1
    def pk_fma_bc(self, dst, src, rb, rc, neg_a=0, neg_c=0):
        (tb, sb), (tc, sc) = self.bc(rb), self.bc(rc)
        return (f"v_pk_fma_f32 v[{dst}:{dst+1}], v[{src}:{src+1}], {tb}, {tc} op_sel:[0,{sb},{sc}] op_sel_hi:[1,{sb},{sc}]"
                f" neg_lo:[{neg_a},0,{neg_c}] neg_hi:[{neg_a},0,{neg_c}]")
    def pk_mul_bc(self, dst, src, rb):
        tb, sb = self.bc(rb)
        return f"v_pk_mul_f32 v[{dst}:{dst+1}], v[{src}:{src+1}], {tb} op_sel:[0,{sb}] op_sel_hi:[1,{sb}]"
    @staticmethod
    def pk_add(dst, x, y): return f"v_pk_add_f32 v[{dst}:{dst+1}], v[{x}:{x+1}], v[{y}:{y+1}]"

    def stats_reduce(self, b, vV, vM, t0, t1):
        L = []
        for k in (0, 1):
            L += [f"v_add_f32 v{b+k}, v{b+k}, v{b+2+k}", f"v_add_f32 v{b+4+k}, v{b+4+k}, v{b+6+k}", f"v_add_f32 v{b+8+k}, v{b+8+k}, v{b+10+k}"]
        for k in (0, 1):
            L += [f"v_add_f32 v{b+k}, v{b+k}, v{b+4+k}", f"v_add_f32 v{b+8+k}, v{b+8+k}, v{b+12+k}"]
        for k in (0, 1): L += [f"v_add_f32 v{b+k}, v{b+k}, v{b+8+k}"]
        L += [f"v_mov_b32 v{t0}, v{b}", f"v_mov_b32 v{t1}, v{b+1}", "s_nop 0",
              f"v_permlane32_swap_b32 v{t0}, v{b}", f"v_permlane32_swap_b32 v{t1}, v{b+1}",
              f"v_add_f32 v{b}, v{b}, v{t0}", f"v_add_f32 v{b+1}, v{b+1}, v{t1}",
              f"v_mul_f32 v{vM}, {hexf(1.0/D)}, v{b}",
              f"v_mul_f32 v{t1}, {hexf(1.0/D)}, v{b+1}",
              f"v_mul_f32 v{t0}, v{vM}, v{vM}",
              f"v_sub_f32 v{vV}, v{t1}, v{t0}",
              f"v_max_f32 v{vV}, 0, v{vV}",
              f"v_add_f32 v{vV}, {hexf(1e-5)}, v{vV}"]
        return L

    def softmax(self, R, P, t):
        mx, mn, u, w, bp, bn, bpm, bnm = [t + k for k in range(8)]
        L = [f"v_max3_f32 v{mx}, v{R}, v{R+1}, v{R+2}", f"v_min3_f32 v{mn}, v{R}, v{R+1}, v{R+2}",
             f"v_max3_f32 v{u}, v{R+3}, v{R+4}, v{R+5}", f"v_min3_f32 v{w}, v{R+3}, v{R+4}, v{R+5}"]
        for k in (6, 10):
            L += [f"v_max3_f32 v{mx}, v{mx}, v{R+k}, v{R+k+1}", f"v_min3_f32 v{mn}, v{mn}, v{R+k}, v{R+k+1}",
                  f"v_max3_f32 v{u}, v{u}, v{R+k+2}, v{R+k+3}", f"v_min3_f32 v{w}, v{w}, v{R+k+2}, v{R+k+3}"]
        L += [f"v_max3_f32 v{mx}, v{mx}, v{R+14}, v{R+15}", f"v_min3_f32 v{mn}, v{mn}, v{R+14}, v{R+15}",
              f"v_max_f32 v{mx}, v{mx}, v{u}", f"v_min_f32 v{mn}, v{mn}, v{w}",
              f"v_mov_b32 v{u}, v{mx}", f"v_mov_b32 v{w}, v{mn}",
              f"v_mov_b32 v{bpm}, {hexf(1e30)}", f"v_mov_b32 v{bnm}, {hexf(-1e30)}",
              f"v_permlane32_swap_b32 v{u}, v{mx}", f"v_permlane32_swap_b32 v{w}, v{mn}",
              f"v_max_f32 v{mx}, v{mx}, v{u}", f"v_min_f32 v{mn}, v{mn}, v{w}",
              f"v_mul_f32 v{bp}, v{V_C}, v{mx}", f"v_mul_f32 v{bn}, v{V_C}, v{mn}",
              f"v_cndmask_b32 v{bpm}, v{bp}, v{bpm}, s[{S_UP}:{S_UP+1}]",
              f"v_cndmask_b32 v{bnm}, v{bn}, v{bnm}, s[{S_UP}:{S_UP+1}]"]
        for g in range(4):
            for k in (0, 2): L.append(self.pk_fma_bc(P + 4*g + k, R + 4*g + k, V_C, bpm if g == 3 else bp, 0, 1))
            for k in (0, 2): L.append(self.pk_fma_bc(R + 4*g + k, R + 4*g + k, V_C, bnm if g == 3 else bn, 1, 0))
        for g in range(4):
            for k in range(4): L.append(f"v_exp_f32 v{P+4*g+k}, v{P+4*g+k}")
            for k in range(4): L.append(f"v_exp_f32 v{R+4*g+k}, v{R+4*g+k}")
            if g == 1: L += [self.pk_add(mx, P, P + 2), self.pk_add(u, R, R + 2)]
            elif g >= 2:
                for k in (0, 2): L += [self.pk_add(mx, mx, P + 4*(g-1) + k), self.pk_add(u, u, R + 4*(g-1) + k)]
        for k in (0, 2): L += [self.pk_add(mx, mx, P + 12 + k), self.pk_add(u, u, R + 12 + k)]
        L += [f"v_add_f32 v{mx}, v{mx}, v{mn}", f"v_add_f32 v{u}, v{u}, v{w}",
              f"v_mov_b32 v{mn}, v{mx}", f"v_mov_b32 v{w}, v{u}", "s_nop 0",
              f"v_permlane32_swap_b32 v{mn}, v{mx}", f"v_permlane32_swap_b32 v{w}, v{u}",
              f"v_add_f32 v{mx}, v{mx}, v{mn}", f"v_add_f32 v{u}, v{u}, v{w}",
              f"v_rcp_f32 v{mx}, v{mx}", f"v_rcp_f32 v{u}, v{u}"]
        for k in range(0, 16, 2): L.append(self.pk_mul_bc(P + k, P + k, mx))
        for k in range(0, 16, 2): L.append(self.pk_mul_bc(R + k, R + k, u))
        for d in range(8): L.append(f"v_cvt_pk_bf16_f32 v{P+d}, v{P+2*d}, v{P+2*d+1}")
        for d in range(8): L.append(f"v_cvt_pk_bf16_f32 v{R+d}, v{R+2*d}, v{R+2*d+1}")
        return L

    def phi_apply(self, R, tb):
        L = [f"v_cvt_pk_bf16_f32 v{tb+d}, v{R+2*d}, v{R+2*d+1}" for d in range(8)]
        L.append(f"{MF} {vr(R,16)}, {ar(A_PHI)}, {vr(tb)}, 0")
        L.append(f"{MF} {vr(R,16)}, {ar(A_PHI+4)}, {vr(tb+4)}, {vr(R,16)}")
        return L

    def w3_stream(self):
        g0, g1 = S_G[0], S_G[1]
        pre = self.sa(g0, [(S_JS, 4 * 56 * KB), (S_W, 56 * KB)], WGU) + [f"s_add_u32 s{g1}, s{g0}, {28*KB}"]
        its = self.zip2(self.seq_items(28, lambda s: ar(8*s), g0, lambda s: f"w3_{s}", False),
                        self.seq_items(28, lambda s: ar(8*s+4), g1, lambda s: f"w3_{s}", False))
        self.emits(pre)
        return its
    def wo_stream(self):
        its = []
        for sl in range(2):
            c = S_G[2 + sl]
            pre = [f"s_xor_b32 s{c}, s{S_NT}, {sl}"] + [f"s_lshl_b32 s{c}, s{c}, 15"] + self.sa(S_T0, [(S_CB, 2 * 32 * KB), (S_W, 8 * KB)], WO) + [f"s_add_u32 s{c}, s{c}, s{S_T0}"]
            x = self.seq_items(8, lambda i: vr(16 + 32 * sl + 4 * i), c, lambda i: "wo", False)
            self.emits(pre)
            its.append(x)
        return self.zip2(its[0], its[1])
    W4A = 128
    def w4_reg(self, i, sl):
        return vr(self.W4A + 8*i + 4*sl) if i < 16 else ar(8*(i - 16) + 4*sl)
    def kseg(self, dst, late):
        if late: return self.sa(dst, [(S_TH, 56), (S_W, 14)], 0)
        return self.sa(dst, [(S_W, 14)], 56) + [f"s_mul_i32 s{S_T3}, s{S_TH}, 56", f"s_sub_u32 s{dst}, s{dst}, s{S_T3}"]
    def w4_stream(self):
        out = []
        for late in (0, 1):
            its = []
            for sl in range(2):
                c = S_G[2 * late + sl]
                pre = self.kseg(S_T0, late) + [f"s_xor_b32 s{c}, s{S_NT}, {sl}", f"s_mul_i32 s{c}, s{c}, 112", f"s_add_u32 s{c}, s{c}, s{S_T0}"]
                pre += [f"s_mul_i32 s{S_T0}, s{S_CB}, 224", f"s_add_u32 s{c}, s{c}, s{S_T0}", f"s_lshl_b32 s{c}, s{c}, 10", f"s_add_u32 s{c}, s{c}, {WD}"]
                x = self.seq_items(14, lambda i: self.w4_reg(14 * late + i, sl), c, lambda i: f"w4_{14*late+i}", False)
                self.emits(pre)
                its.append(x)
            out += self.zip2(its[0], its[1])
        return out
    def p1w_items(self, part):
        c, l = S_G[4], S_G[5]
        its = self.dma_items(7, l, c, "w1" + "qkv"[part], False)
        pre = self.sa(l, [(S_W, 7 * KB)], L_W1 + part * 28 * KB) + self.sa(c, [(S_J, 84 * KB), (S_W, 7 * KB)], WQKV + part * 28 * KB)
        its[0] = pre + its[0]
        return its

    def prologue(self):
        a, n = self.a, self.name
        a.label(n)
        a.e(f"s_cmp_lt_u32 s2, 256\ns_cbranch_scc1 {n}_go\ns_endpgm")
        a.label(f"{n}_go")
        a.e("s_load_dwordx2 s[4:5], s[0:1], 80\ns_load_dwordx2 s[8:9], s[0:1], 64")
        if self.opt("pf_main", 0):
            nl = self.opt("pf_lines", 16)
            a.e("s_getpc_b64 s[60:61]")
            a.label(f"{n}_pc")
            a.e(f"s_sub_u32 s60, s60, {n}_pc-{n}\ns_subb_u32 s61, s61, 0")
            a.e(f"s_lshr_b32 s62, s2, 3\ns_and_b32 s62, s62, 31\ns_mul_i32 s62, s62, {nl*64}\ns_min_u32 s62, s62, {n}_end-{n}-{nl*64}\ns_add_u32 s60, s60, s62\ns_addc_u32 s61, s61, 0")
            for i in range(nl): a.e(f"s_load_dwordx16 s[64:79], s[60:61], {i*64}")
        a.e(f"s_mov_b32 s6, {WS_USED}\ns_mov_b32 s7, 0x20000\ns_mov_b32 s10, {S*D*2}\ns_mov_b32 s11, 0x20000")
        if self.opt("antimap", 0): a.e(f"s_lshr_b32 s{S_T0}, s2, 5\ns_and_b32 s{S_T1}, s2, 31")
        else: a.e(f"s_and_b32 s{S_T0}, s2, 7\ns_lshr_b32 s{S_T1}, s2, 3")
        a.e(f"s_and_b32 s{S_TH}, s{S_T0}, 1\ns_lshr_b32 s{S_T0}, s{S_T0}, 1\ns_lshl_b32 s{S_T0}, s{S_T0}, 2")
        a.e(f"s_and_b32 s{S_RB}, s{S_T1}, 3\ns_add_u32 s{S_RB}, s{S_RB}, s{S_T0}")
        a.e(f"s_lshr_b32 s{S_Q}, s{S_T1}, 2\ns_lshl_b32 s{S_J}, s{S_TH}, 3\ns_add_u32 s{S_J}, s{S_J}, s{S_Q}")
        a.e(f"s_min_u32 s{S_CB}, s{S_Q}, 6\ns_mul_i32 s{S_JS}, s{S_TH}, 7\ns_add_u32 s{S_JS}, s{S_JS}, s{S_CB}")
        a.e(f"s_lshl_b32 s{S_M}, s{S_TH}, 1\ns_sub_u32 s{S_M}, 2, s{S_M}")
        a.e(f"v_lshrrev_b32 v{V_T0}, 6, v0\nv_and_b32 v{V_T1}, 63, v0\nv_lshlrev_b32 v{V_L16}, 4, v{V_T1}")
        a.e(f"v_readfirstlane_b32 s{S_W}, v{V_T0}")
        a.e(f"v_add_u32 v{V_L16H}, 0x10000, v{V_L16}")
        a.e(f"v_and_b32 v{V_T2}, 31, v0\nv_bfe_u32 v{V_T3}, v0, 5, 1")
        a.e(f"v_lshlrev_b32 v{V_I8}, 3, v{V_T2}")
        a.e(f"v_mul_u32_u24 v{V_STL}, 1792, v{V_T3}\nv_add_u32 v{V_STL}, v{V_STL}, v{V_I8}")
        a.e(f"s_lshr_b32 s{S_TT}, s{S_W}, 1\ns_and_b32 s{S_NT}, s{S_W}, 1")
        a.e(f"s_mov_b32 s{S_SEL_LO}, 0x3f80\ns_mov_b32 s{S_SEL_HI}, 0x3f800000")
        a.e(f"s_mov_b32 s{S_UP}, 0\ns_mov_b32 s{S_UP+1}, -1")
        a.e(f"s_mov_b32 s{S_L}, 0")
        self.emits(self.sa(S_TILE, [(S_RB, 4), (S_TH, 2), (S_TT, 1)]))
        self.emits(self.sa(S_N, [(S_CB, 2), (S_NT, 1)]))
        self.emits(self.sa(S_XT, [(S_RB, 4), (S_W, 1)]))
        if self.o.get("prof"): a.e(f"v_mov_b32 v{V_MARK}, 0")
        a.e("s_waitcnt lgkmcnt(0)")
        for it in self.p1w_items(1) + self.p1w_items(2): self.emits(it)
        self.emits(self.sa(S_T0, [(S_J, 2 * KB)], PHI))
        for it in self.seq_items(2, lambda i: ar(A_PHI + 4*i), S_T0, lambda i: "phi", False): self.emits(it)
        self.emits(self.sa(S_T0, [(S_TILE, 28 * KB), (S_N, 2 * KB)], X))
        for it in self.seq_items(2, lambda i: ar(A_RES + 4*i), S_T0, lambda i: "res", False): self.emits(it)
        for it in self.p1w_items(0): self.emits(it)
        a.e(f"v_cmp_eq_u32 vcc, 28, v{V_T2}\nv_mov_b32 v{V_T4}, 1.0\nv_mov_b32 v{V_ONE}, 0\nv_cndmask_b32 v{V_ONE}, v{V_ONE}, v{V_T4}, vcc")
        a.e(f"v_lshlrev_b32 v{V_T3}, 2, v{V_T3}\nv_sub_u32 v{V_T2}, v{V_T2}, v{V_T3}")
        a.e(f"v_mov_b32 v{V_T4}, 0x3f80\nv_mov_b32 v{V_T5}, 0x3f800000")
        for s in range(2):
            for d in range(4):
                j = 2 * d
                c = 16 * s + 8 * (j // 4) + (j % 4)
                a.e(f"v_mov_b32 v{V_T6}, 0")
                a.e(f"v_cmp_eq_u32 vcc, {c}, v{V_T2}\nv_cndmask_b32 v{V_T6}, v{V_T6}, v{V_T4}, vcc")
                a.e(f"v_cmp_eq_u32 vcc, {c+1}, v{V_T2}\nv_cndmask_b32 v{V_T6}, v{V_T6}, v{V_T5}, vcc")
                a.e(f"v_accvgpr_write_b32 a{A_ID+4*s+d}, v{V_T6}")

    def layer_setup(self):
        self.emits(self.sa(S_FRB, [(S_L, NSYNC * 2048), (S_RB, 128)], FLAGS))
        self.emits(self.sa(S_FJ, [(S_L, NSYNC * 2048), (S_J, 128)], FLAGS))

    def p1(self):
        a = self.a
        XF, RK, RV, RQ, RING, RA, RB, TB = 16, 128, 144, 160, 176, 208, 224, 240
        RS, KR, QRING = 160, 176, 192
        LA = self.opt("la1", 6)
        self.mark("p1_start")
        self.emits(self.sa(S_A, [(S_XT, 28 * KB), (S_L, 2 * XSZ)], X))
        xi = self.seq_items(28, lambda s: vr(XF + 4*s), S_A, lambda s: f"x{s}", True)
        self.take(xi, 2)
        self.emits(self.sa(S_B, [(S_XT, 3584), (S_L, 2 * STSZ)], ST))
        for k in range(7): self.emit(self.ld(vr(RA + 2*k, 2), S_B, k * 256, "st", n=2, vaddr=V_STL))
        self.take(xi, LA - 2)
        a.wait_vm(("w1k", "w1v", "phi", "res"))
        a.e("s_barrier")
        self.mark("p1_wready")
        def rdA(s):
            sl = RING + 8 * (s % 4)
            r, of = self.ldsaddr(L_W1 + (28 + s) * KB); a.e(f"ds_read_b128 {vr(sl)}, v{r} offset:{of}", tag=f"a{s}")
            r, of = self.ldsaddr(L_W1 + (56 + s) * KB); a.e(f"ds_read_b128 {vr(sl+4)}, v{r} offset:{of}", tag=f"a{s}")
        for s in range(3): rdA(s)
        def mk(s):
            def f():
                if s + 3 < 28: rdA(s + 3)
                self.take(xi, 1)
                a.wait_both(f"x{s}", f"a{s}")
                sl = RING + 8 * (s % 4)
                a.e(f"{MF} {vr(RK,16)}, {vr(sl)}, {vr(XF+4*s)}, {vr(RK,16) if s else 0}")
            return f
        def mv(s):
            def f():
                sl = RING + 8 * (s % 4)
                a.e(f"{MF} {vr(RV,16)}, {vr(XF+4*s)}, {vr(sl+4)}, {vr(RV,16) if s else 0}")
            return f
        mains = []
        for s in range(28): mains += [mk(s), mv(s)]
        fills = ["@waitvm st"] + self.stats_reduce(RA, V_T0, V_T1, V_T2, V_T3)
        fills += [f"v_rsq_f32 v{V_T0}, v{V_T0}", f"v_lshrrev_b32 v{V_T1}, 1, v{V_I8}"]
        fills += self.sa(S_T0, [(S_W, 128)], L_SCR)
        fills += [f"v_add_u32 v{V_T1}, s{S_T0}, v{V_T1}", f"ds_write_b32 v{V_T1}, v{V_T0}|scw",
                  f"v_mul_f32 v{V_C}, {hexf(1.4426950408889634)}, v{V_T0}",
                  f"v_lshrrev_b32 v{V_T1}, 5, v{V_L16}", f"v_and_b32 v{V_T1}, 16, v{V_T1}",
                  f"v_add_u32 v{V_T1}, s{S_T0}, v{V_T1}", "@waitlg scw"]
        fills += [f"ds_read_b128 {vr(RS+4*g)}, v{V_T1} offset:{g*32}|rs" for g in range(4)]
        self.weave(mains, fills, caps=(20, 0))
        self.mark("p1_loopA")
        w3 = self.w3_stream()
        vch = ["@waitlg rs"] + [f"v_pk_fma_f32 v[{RV+r}:{RV+r+1}], v[{RV+r}:{RV+r+1}], v[{RS+r}:{RS+r+1}], v[4:5] op_sel:[0,0,1] op_sel_hi:[1,1,1]" for r in range(0, 16, 2)]
        vch += [f"v_cvt_pk_bf16_f32 v{RV+d}, v{RV+2*d}, v{RV+2*d+1}" for d in range(8)]
        nk = self.opt("bg_k", 8)
        self.take(w3, nk // 2)
        self.emits(self.phi_apply(RK, TB))
        self.emits(vch)
        self.emits_bg(self.softmax(RK, RA, V_T0), w3, nk - nk // 2, first=0, every=6)
        self.mark("p1_kepi")
        a.e(f"{MF} {vr(RB,16)}, {vr(RA)}, {ar(A_ID)}, 0")
        a.e(f"{MF} {vr(RB,16)}, {vr(RA+4)}, {ar(A_ID+4)}, {vr(RB,16)}")
        a.e(f"{MF} {vr(RA,16)}, {vr(RK)}, {ar(A_ID)}, 0")
        a.e(f"{MF} {vr(RA,16)}, {vr(RK+4)}, {ar(A_ID+4)}, {vr(RA,16)}")
        self.emits(self.sa(S_T0, [(S_W, 2048)], L_KVR) + [f"v_add_u32 v{V_T0}, s{S_T0}, v{V_L16}"])
        self.emits(self.sa(S_T0, [(S_W, 8192)], L_KVR) + [f"v_add_u32 v{V_T1}, s{S_T0}, v{V_L16}"])
        self.emits(self.sa(S_C, [(S_J, 4 * 16 * KB), (S_W, 16 * KB), (S_L, SLABSZ)], SLAB))
        for d in range(8): a.e(f"v_cvt_pk_bf16_f32 v{RB+d}, v{RB+2*d}, v{RB+2*d+1}")
        a.e(f"{MF} {vr(RK,16)}, {vr(RB)}, {vr(RV)}, 0")
        a.e(f"{MF} {vr(RK,16)}, {vr(RB+4)}, {vr(RV+4)}, {vr(RK,16)}")
        for d in range(8): a.e(f"v_cvt_pk_bf16_f32 v{RA+d}, v{RA+2*d}, v{RA+2*d+1}")
        a.e(f"{MF} {vr(RB,16)}, {vr(RA)}, {vr(RV)}, 0")
        a.e(f"{MF} {vr(RB,16)}, {vr(RA+4)}, {vr(RV+4)}, {vr(RB,16)}")
        self.emits(self.sa(S_D, [(S_RB, KB), (S_C, 1)]))
        for t, R in ((0, RK), (1, RB)):
            for s in range(2):
                for g in range(2):
                    a.e(f"ds_write_b128 v{V_T0}, {vr(R+8*s+4*g)} offset:{(2*t+s)*8192+g*1024}", tag="kw")
        a.wait_vm("w1q")
        a.e("s_waitcnt lgkmcnt(0)\ns_barrier")
        for ws in range(4):
            for g in range(2):
                a.e(f"ds_read_b128 {vr(KR+8*ws+4*g)}, v{V_T1} offset:{(ws*2+g)*1024}", tag=f"kr{ws}")
        def rdB(s):
            sl = QRING + 4 * (s % 4) + 16
            r, of = self.ldsaddr(L_W1 + s * KB); a.e(f"ds_read_b128 {vr(sl)}, v{r} offset:{of}", tag=f"b{s}")
        a.wait_lg("kr1")
        for r in range(0, 8, 2): a.e(self.pk_add(KR + r, KR + r, KR + 8 + r))
        a.wait_lg("kr3")
        for r in range(0, 8, 2): a.e(self.pk_add(KR + 16 + r, KR + 16 + r, KR + 24 + r))
        for r in range(0, 8, 2): a.e(self.pk_add(KR + r, KR + r, KR + 16 + r))
        for d in range(4): a.e(f"v_cvt_pk_bf16_f32 v{KR+d}, v{KR+2*d}, v{KR+2*d+1}")
        self.emit(self.st(vr(KR), S_D, 0, "slab"))
        self.mark("p1_slab")
        for s in range(3): rdB(s)
        ARR = self.opt("arr1", 20)
        def mq(s):
            def f():
                if s == ARR: self.arrive(S_FJ, F_S1, "slab")
                if s + 3 < 28: rdB(s + 3)
                a.wait_lg(f"b{s}")
                sl = QRING + 4 * (s % 4) + 16
                a.e(f"{MF} {vr(RQ,16)}, {vr(sl)}, {vr(XF+4*s)}, {vr(RQ,16) if s else 0}")
            return f
        self.weave([mq(s) for s in range(28)], [], bg=w3, bg_every=self.opt("bg_q_every", 2))
        self.mark("p1_qpass")
        wo = self.wo_stream()
        qe = self.phi_apply(RQ, TB) + self.softmax(RQ, RA, V_T0)
        cut = self.opt("ap1", 70)
        self.emits_bg(qe[:cut], wo, self.opt("bg_qe", 6), first=0, every=11)
        if self.opt("async1", 1):
            a.e(f"s_mov_b32 s{S_E}, 0")
            self.apoll_issue(S_FJ, F_S1, 10, S_E, S_F)
        self.emits(qe[cut:])
        self.mark("p1_qepi")
        self.RA, self.RQ, self.w3, self.wo = RA, RQ, w3, wo

    def p2a(self):
        a = self.a
        RA, RQ = self.RA, self.RQ
        SL, AC, KA, RB, TB = 80, 176, 188, 224, 240
        if self.opt("async1", 1): self.apoll_check(10, 16, S_F)
        else: self.poll(S_FJ, F_S1, 16)
        self.mark("S1_poll")
        for it in self.seq_items(16, lambda i: vr(SL + 4*i), S_C, lambda i: f"sl{i}", True): self.emits(it)
        bg2 = list(self.wo) + [self.w3.pop(0) for _ in range(self.opt("bg_2a", 0))]
        self.wo = []
        for i in range(16):
            if i >= self.opt("bg_2a_first", 4) and bg2: self.emits(bg2.pop(0))
            a.wait_vm(f"sl{i}")
            for d in range(4):
                a.e(f"v_dot2_f32_bf16 v{AC+2*d}, v{SL+4*i+d}, s{S_SEL_LO}, {'v%d' % (AC+2*d) if i else 0}")
                a.e(f"v_dot2_f32_bf16 v{AC+2*d+1}, v{SL+4*i+d}, s{S_SEL_HI}, {'v%d' % (AC+2*d+1) if i else 0}")
        self.take(bg2, len(bg2))
        self.emits(self.sa(S_T0, [(S_W, KB)], L_KVA) + [f"v_add_u32 v{V_T0}, s{S_T0}, v{V_L16}"])
        self.emits(self.sa(S_A, [(S_XT, 32 * KB), (S_J, 2 * KB), (S_L, OSZ)], O))
        for d in range(4): a.e(f"v_cvt_pk_bf16_f32 v{AC+8+d}, v{AC+2*d}, v{AC+2*d+1}")
        a.e(f"ds_write_b128 v{V_T0}, {vr(AC+8)}")
        a.e("s_waitcnt lgkmcnt(0)\ns_barrier")
        for p in range(4):
            r, of = self.ldsaddr(L_KVA + p * KB)
            a.e(f"ds_read_b128 {vr(KA+4*p)}, v{r} offset:{of}", tag=f"ka{p}")
        Bs = [RA, RA + 4, RQ, RQ + 4]
        for p in range(4):
            a.wait_lg(f"ka{p}")
            a.e(f"{MF} {vr(RB,16)}, {vr(KA+4*p)}, {vr(Bs[p])}, {vr(RB,16) if p else 0}")
        a.e(f"v_mov_b32 v{V_T0}, v{RB+12}\nv_mov_b32 v{V_T1}, v{RB+12}")
        a.e(f"v_permlane32_swap_b32 v{V_T0}, v{V_T1}")
        a.e(f"v_add_f32 v{V_T1}, {hexf(1e-6)}, v{V_T1}\nv_rcp_f32 v{V_T1}, v{V_T1}")
        for r in range(0, 16, 2): a.e(self.pk_mul_bc(RB + r, RB + r, V_T1))
        for d in range(8): a.e(f"v_cvt_pk_bf16_f32 v{TB+d}, v{RB+2*d}, v{RB+2*d+1}")
        self.emit(self.st(vr(TB), S_A, 0, "ost")); self.emit(self.st(vr(TB+4), S_A, 1024, "ost"))
        self.mark("p2a_ost")
        self.arrive(S_FRB, F_S2, "ost")
        self.take(self.w3, self.opt("bg_s2", 0))
        self.mark("S2_arr")

    def red_addr(self):
        L = []
        for u in range(1, 4):
            L += [f"s_xor_b32 s{S_T0}, s{S_W}, {u}", f"s_mul_i32 s{S_T0}, s{S_T0}, 12288", f"s_add_u32 s{S_T0}, s{S_T0}, {L_RED+(u-1)*4096}",
                  f"v_add_u32 v{V_T0+u}, s{S_T0}, v{V_L16}"]
        L += self.sa(S_T0, [(S_W, 12288)], L_RED) + [f"v_add_u32 v{V_T0}, s{S_T0}, v{V_L16}"]
        return L
    def red_write(self, ACC, u):
        return [f"ds_write_b128 v{V_T0+u}, {vr(ACC+16*u+4*g)} offset:{g*1024}|rw" for g in range(4)]
    def res_unpack(self, TR):
        L = [f"v_accvgpr_read_b32 v{TR+16+d}, a{A_RES+d}" for d in range(8)]
        for d in range(8):
            L += [f"v_lshlrev_b32 v{TR+2*d}, 16, v{TR+16+d}", f"v_and_b32 v{TR+2*d+1}, 0xffff0000, v{TR+16+d}"]
        return L
    def red_finish(self, ACC, TR):
        a = self.a
        for r in range(0, 16, 2): a.e(self.pk_add(ACC + r, ACC + r, TR + r))
        a.e("s_waitcnt lgkmcnt(0)\ns_barrier")
        RD = ACC + 16
        for u in range(3):
            for g in range(4):
                a.e(f"ds_read_b128 {vr(RD+16*u+4*g)}, v{V_T0} offset:{u*4096+g*1024}", tag=f"rr{u}")
        for u in range(3):
            a.wait_lg(f"rr{u}")
            for r in range(0, 16, 2): a.e(self.pk_add(ACC + r, ACC + r, RD + 16*u + r))
        for d in range(8): a.e(f"v_cvt_pk_bf16_f32 v{TR+d}, v{ACC+2*d}, v{ACC+2*d+1}")
        self.PK, self.ACC = TR, ACC
    def x_store_addr(self, xsel):
        return (self.sa(S_E, [(S_TILE, 28 * KB), (S_N, 2 * KB), (S_L, 2 * XSZ)], X + xsel * XSZ) +
                self.sa(S_F, [(S_TILE, 3584), (S_N, 256), (S_L, 2 * STSZ)], ST + xsel * STSZ))
    def store_x_and_stats(self):
        a = self.a
        PK, ACC = self.PK, self.ACC
        self.emit(self.st(vr(PK), S_E, 0, "xst")); self.emit(self.st(vr(PK+4), S_E, 1024, "xst"))
        t = PK + 8
        a.e(self.pk_add(t, ACC, ACC + 2))
        a.e(f"v_pk_mul_f32 v[{t+2}:{t+3}], v[{ACC}:{ACC+1}], v[{ACC}:{ACC+1}]")
        for r in range(2, 16, 2):
            if r > 2: a.e(self.pk_add(t, t, ACC + r))
            a.e(f"v_pk_fma_f32 v[{t+2}:{t+3}], v[{ACC+r}:{ACC+r+1}], v[{ACC+r}:{ACC+r+1}], v[{t+2}:{t+3}]")
        a.e(f"v_add_f32 v{t}, v{t}, v{t+1}\nv_add_f32 v{t+1}, v{t+2}, v{t+3}")
        a.e(f"v_mov_b32 v{t+2}, v{t}\nv_mov_b32 v{t+3}, v{t+1}")
        a.e(f"v_permlane32_swap_b32 v{t+2}, v{t}\nv_permlane32_swap_b32 v{t+3}, v{t+1}")
        a.e(self.pk_add(t, t, t + 2))
        a.e("s_mov_b32 exec_hi, 0")
        self.emit(self.st(f"v[{t}:{t+1}]", S_F, 0, "xst", n=2, vaddr=V_I8))
        a.e("s_mov_b32 exec_hi, -1")
        for d in range(8): a.e(f"v_accvgpr_write_b32 a{A_RES+d}, v{PK+d}")

    def p2b(self):
        a = self.a
        OB, ACC, TR = 80, 144, 208
        pre = []
        for b, c in ((0, S_A), (1, S_B)):
            pre += [f"s_xor_b32 s{c}, s{S_TILE}, {b}", f"s_lshl_b32 s{c}, s{c}, 15"] + self.sa(S_T0, [(S_W, 8 * KB), (S_L, OSZ)], O) + [f"s_add_u32 s{c}, s{c}, s{S_T0}"]
        self.emits(pre)
        self.poll(S_FRB, F_S2, 16)
        self.mark("S2_poll")
        ob = [self.seq_items(8, lambda i: vr(OB + 32*b + 4*i), (S_A, S_B)[b], lambda i: f"o{b}_{i}", True) for b in range(2)]
        for it in ob[1] + ob[0]: self.emits(it)
        nb = self.opt("bg_2b", 14)
        self.emits(self.red_addr() + self.x_store_addr(1))
        a.wait_vm("wo")
        def mf(u, i):
            b, sl = u >> 1, u & 1
            a.e(f"{MF} {vr(ACC+16*u,16)}, {vr(16+32*sl+4*i)}, {vr(OB+32*b+4*i)}, {vr(ACC+16*u,16) if i else 0}")
        for i in range(8):
            a.wait_vm(f"o1_{i}")
            mf(2, i); mf(3, i)
            if i < nb: self.take(self.w3, 1)
        resu = self.res_unpack(TR)
        wr = self.red_write(ACC, 2) + self.red_write(ACC, 3)
        for i in range(8):
            a.wait_vm(f"o0_{i}")
            mf(1, i)
            if i >= 2 and wr: self.emit(wr.pop(0))
            self.emits(resu[3*i:3*i+3])
            mf(0, i)
            if i >= 2 and wr: self.emit(wr.pop(0))
            if 8 + i < nb: self.take(self.w3, 1)
        self.emits(wr)
        self.mark("p2b_mfma")
        self.emits(self.red_write(ACC, 1))
        self.red_finish(ACC, TR)
        self.store_x_and_stats()
        self.mark("p2b_st")
        self.arrive(S_FRB, F_S3, "xst")
        self.take(self.w3, self.opt("bg_s3", 0))
        self.mark("S3_arr")

    def p3(self):
        a = self.a
        ACC0, ACC1, RING, CC, TT, HP, STB = 16, 48, 80, 96, 100, 116, 100
        V_X1, V_CA, V_CB = V_T5, V_T4, V_T6
        xds = []
        for p in range(4):
            gc, gl = 56 + 2 * p, 57 + 2 * p
            self.emits([f"s_xor_b32 s{S_T0}, s{S_M}, {p}"] + self.sa(gc, [(S_T0, 28 * KB), (S_RB, 4 * 28 * KB), (S_W, 7 * KB), (S_L, 2 * XSZ)], X + XSZ))
            self.emits(self.sa(gl, [(S_W, 7 * KB)], L_XR + (p & 1) * XSLOT))
            xds.append(self.dma_items(7, gl, gc, f"xt{p}", True))
        def xd(p): return xds[p]
        x0, x1 = xd(0), xd(1)
        self.poll(S_FRB, F_S3, 14)
        self.mark("S3_poll")
        self.take(x0, 7)
        self.emits(self.sa(S_T0, [(S_XT, 3584), (S_L, 2 * STSZ)], ST + STSZ))
        for k in range(7): self.emit(self.ld(vr(STB + 2*k, 2), S_T0, k * 256, "st", n=2, vaddr=V_STL))
        self.take(self.w3, len(self.w3))
        a.e(f"v_add_u32 v{V_X1}, {L_XR + XSLOT}, v{V_L16}")
        def hbase(p):
            return [f"s_xor_b32 s{S_T0}, s{S_M}, {p}"] + self.sa(S_C, [(S_T0, 112 * KB), (S_RB, 4 * 112 * KB), (S_JS, 8 * KB), (S_W, 2 * KB), (S_L, HSZ)], HB)
        c1 = -2.0 * 0.7978845608028654 * 1.4426950408889634
        c2 = c1 * 0.044715
        stf = ["@waitvm st"] + self.stats_reduce(STB, V_T0, V_T1, V_T2, V_T3)
        stf += [f"v_rsq_f32 v{V_T1}, v{V_T0}", f"v_lshrrev_b32 v{V_CA}, 1, v{V_I8}"] + self.sa(S_T0, [(S_W, 384)], L_SCR3)
        stf += [f"v_add_u32 v{V_CB}, s{S_T0}, v{V_CA}",
                f"v_mul_f32 v{V_T2}, v{V_T1}, v{V_T1}", f"v_mul_f32 v{V_T3}, {hexf(c1)}, v{V_T1}", f"v_mul_f32 v{V_T2}, v{V_T2}, v{V_T1}", f"v_mul_f32 v{V_T2}, {hexf(c2)}, v{V_T2}",
                f"ds_write_b32 v{V_CB}, v{V_T3}|cw", f"ds_write_b32 v{V_CB}, v{V_T2} offset:128|cw", f"ds_write_b32 v{V_CB}, v{V_T0} offset:256|cw"]
        stf += self.sa(S_T0, [(S_M, 384)], L_SCR3) + [f"s_mul_i32 s{S_T1}, s{S_M}, 384", f"s_sub_u32 s{S_T1}, {L_SCR3 + 768}, s{S_T1}",
                f"v_add_u32 v{V_CB}, s{S_T1}, v{V_CA}", f"v_add_u32 v{V_CA}, s{S_T0}, v{V_CA}"]

        def epi(p):
            A = ACC0 if p % 2 == 0 else ACC1
            G, U = A, A + 16
            va = V_CA if p < 2 else V_CB
            L = [f"ds_read_b32 v{CC+q}, v{va} offset:{(p&1)*384+q*128}|cc" for q in range(3)] + hbase(p)
            for g in range(4):
                rr = [4*g + k for k in range(4)]
                for k, r in enumerate(rr): L.append(f"v_mul_f32 v{TT+k}, v{G+r}, v{G+r}")
                for k, r in enumerate(rr): L.append(f"v_mul_f32 v{TT+4+k}, v{G+r}, v{U+r}")
                if g == 0: L.append("@waitlg cc")
                for k, r in enumerate(rr): L.append(f"v_fma_f32 v{TT+k}, v{TT+k}, v{CC+1}, v{CC}")
                for k, r in enumerate(rr): L.append(f"v_mul_f32 v{TT+k}, v{TT+k}, v{G+r}")
                for k, r in enumerate(rr): L.append(f"v_exp_f32 v{TT+k}, v{TT+k}")
                for k, r in enumerate(rr): L.append(f"v_fma_f32 v{TT+k}, v{TT+k}, v{CC+2}, v{CC+2}")
                for k, r in enumerate(rr): L.append(f"v_rcp_f32 v{TT+k}, v{TT+k}")
                for k in range(4): L.append(f"v_mul_f32 v{TT+4+k}, v{TT+4+k}, v{TT+k}")
                L.append(f"v_cvt_pk_bf16_f32 v{HP+2*g}, v{TT+4}, v{TT+5}")
                L.append(f"v_cvt_pk_bf16_f32 v{HP+2*g+1}, v{TT+6}, v{TT+7}")
                if g % 2 == 1 and not (self.opt("x_nost", 0) and p < 2): L.append(self.st(vr(HP + 4*(g//2)), S_C, 1024 * (g // 2), f"hst{p}"))
            if self.opt("x_noepi", 0) and p < 2: L = [t for t in L if t.startswith("buffer_") or t.startswith("s_")]
            return L

        w4 = None
        for p in range(4):
            A = ACC0 if p % 2 == 0 else ACC1
            a.wait_vm(f"xt{p}")
            a.e("s_waitcnt lgkmcnt(0)\ns_barrier")
            if p in (0, 1, 3): self.mark(f"p3_T{p}")
            def rd(s):
                if p & 1 == 0:
                    r, of = self.ldsaddr(L_XR + s * KB)
                else: r, of = V_X1, s * KB
                a.e(f"ds_read_b128 {vr(RING+4*(s%4))}, v{r} offset:{of}", tag=f"b{s}")
            for s in range(3): rd(s)
            def mg(s):
                def f():
                    if s + 3 < 28: rd(s + 3)
                    a.wait_both(f"w3_{s}" if p == 0 else None, f"b{s}")
                    a.e(f"{MF} {vr(A,16)}, {ar(8*s)}, {vr(RING+4*(s%4))}, {vr(A,16) if s else 0}")
                return f
            def mu(s):
                def f(): a.e(f"{MF} {vr(A+16,16)}, {ar(8*s+4)}, {vr(RING+4*(s%4))}, {vr(A+16,16) if s else 0}")
                return f
            mains = []
            for s in range(28): mains += [mg(s), mu(s)]
            if p == 0:
                w4 = self.w4_stream()
                bg = x1 + [w4.pop(0) for _ in range(self.opt("w4_p0", 12))]
                self.weave(mains, stf, bg=bg, bg_every=2, bg_phase=1, caps=(16, 8))
            elif p == 1:
                bg = xd(2) + [w4.pop(0) for _ in range(self.opt("w4_p1", 12))]
                if self.opt("x_nobg", 0): bg = xd(2)
                mains[0](); mains[1]()
                self.weave(mains[2:], epi(0), bg=bg, bg_every=2, bg_phase=1, caps=(self.opt('cap1', 24), self.opt('cap2', 8)))
            elif p == 2:
                na = 32 - self.opt("w4_p0", 12) - self.opt("w4_p1", 12)
                bg = xd(3) + [w4.pop(0) for _ in range(na)]
                if self.opt("x_nobg", 0): bg = xd(3)
                mains[0](); mains[1]()
                self.weave(mains[2:], epi(1), bg=bg, bg_every=2, bg_phase=1, caps=(self.opt('cap1', 24), self.opt('cap2', 8)))
            else:
                bg = w4
                mains[0](); mains[1]()
                a.e(f"s_xor_b32 s{S_E}, s{S_TH}, 1")
                AP = self.opt("ap4e", 46)
                orig = mains[AP]
                def with_poll():
                    self.apoll_issue(S_FRB, F_S4E, 8, S_E, S_F)
                    orig()
                mains[AP] = with_poll
                AE = self.opt("arr4e", 22)
                orig2 = mains[AE]
                def with_arr():
                    self.arrive(S_FRB, F_S4E, ("hst0", "hst1"), slot_sreg=S_TH)
                    orig2()
                mains[AE] = with_arr
                self.weave(mains[2:], epi(2), bg=bg, bg_every=2, bg_phase=1, caps=(self.opt('cap1', 24), self.opt('cap2', 8)))
            self.take(bg, len(bg))
        self.mark("p3_loop")
        self.p4_setup()
        self.apoll_check(8, 7, S_F)
        LA = self.opt("la4", 6)
        first = []
        for i in range(LA): first += [self.hi[(i, 0)], self.hi[(i, 1)]]
        self.emits_bg(epi(3), first, len(first), first=self.opt("e3first", 20), every=self.opt("e3every", 9))
        self.take(first, len(first))
        self.mark("p3_epi")

    def p4_setup(self):
        HR, NR = 96, 16
        cur = [S_G[4], S_G[5], S_G[6], S_G[7]]
        pre = []
        for late in (0, 1):
            for b in range(2):
                c = cur[2*late + b]
                pre += self.kseg(S_T0, late) + [f"s_xor_b32 s{c}, s{S_TILE}, {b}", f"s_mul_i32 s{c}, s{c}, 112", f"s_add_u32 s{c}, s{c}, s{S_T0}", f"s_lshl_b32 s{c}, s{c}, 10"]
                pre += self.sa(S_T0, [(S_L, HSZ)], HB) + [f"s_add_u32 s{c}, s{c}, s{S_T0}"]
        self.emits(pre)
        self.hi = {}
        for late in (0, 1):
            for b in range(2):
                x = self.seq_items(14, lambda i: ar(HR + 8*((14*late + i) % NR) + 4*b), cur[2*late + b], lambda i: f"h{14*late+i}_{b}", True)
                for i in range(14): self.hi[(14*late + i, b)] = x[i]

    def p4(self):
        a = self.a
        n = self.name
        ACC, HR, NR, TR = 16, 96, 16, 80
        LA = self.opt("la4", 6)
        hi = self.hi
        self.emits(self.red_addr())
        def mf(u, i):
            b, sl = u >> 1, u & 1
            a.e(f"{MF} {vr(ACC+16*u,16)}, {self.w4_reg(i, sl)}, {ar(HR+8*(i%NR)+4*b)}, {vr(ACC+16*u,16) if i else 0}")
        TAIL = self.opt("tail4", 6)
        PL = 14 - LA
        t0 = 28 - TAIL
        rest0 = [hi[(i, 0)] for i in range(t0, 28)]
        rest1 = [hi[(i, 1)] for i in range(t0, 28)]
        ARR4 = self.opt("arr4", 3)
        APL = self.opt("ap4l", PL - 2)
        for i in range(t0):
            if i == ARR4:
                self.arrive(S_FRB, F_S4L, ("hst2", "hst3"), slot_sreg=S_TH)
                self.mark("S4_arr")
            if i == APL: self.apoll_issue(S_FRB, F_S4L, 9, S_TH, S_F)
            if i == PL:
                self.apoll_check(9, 7, S_F)
                self.mark("S4L_poll")
            a.wait_vm((f"h{i}_0", f"h{i}_1", f"w4_{i}"))
            nxt = i + LA
            mf(0, i); mf(1, i)
            if nxt < t0: self.emits(hi[(nxt, 0)])
            elif rest1: self.emits(rest1.pop(0))
            mf(2, i); mf(3, i)
            if nxt < t0: self.emits(hi[(nxt, 1)])
            elif rest1: self.emits(rest1.pop(0))
            elif rest0: self.emits(rest0.pop(0))
        for it in rest1: self.emits(it)
        for i in range(t0, 28):
            a.wait_vm((f"h{i}_1", f"w4_{i}"))
            mf(2, i)
            if rest0: self.emits(rest0.pop(0))
            mf(3, i)
        resu = self.res_unpack(TR)
        wr = self.red_write(ACC, 2) + self.red_write(ACC, 3)
        k = 0
        for i in range(t0, 28):
            a.wait_vm(f"h{i}_0")
            mf(1, i)
            if i >= t0 + 1 and wr: self.emit(wr.pop(0))
            self.emits(resu[4*k:4*k+4]); k += 1
            mf(0, i)
            if i >= t0 + 1 and wr: self.emit(wr.pop(0))
        self.emits(resu[4*k:]); self.emits(wr)
        self.mark("p4_mfma")
        self.emits(self.red_write(ACC, 1))
        self.emits(self.x_store_addr(2))
        self.red_finish(ACC, TR)
        self.mark("p4_red")
        fin = a.newlabel("fin")
        a.e(f"s_cmp_lg_u32 s{S_L}, 0\ns_cbranch_scc1 {fin}")
        vq = list(a.vmq)
        self.store_x_and_stats()
        self.arrive(S_FRB, F_S5, "xst")
        a.e(f"s_branch {n}_next")
        a.vmq = vq
        a.label(fin)
        PK = self.PK
        self.emits(self.sa(S_T0, [(S_TILE, 32 * 896), (S_N, 64)]))
        a.e(f"v_mul_u32_u24 v{V_T0}, 112, v{V_I8}\nv_lshrrev_b32 v{V_T1}, 5, v{V_L16}\nv_and_b32 v{V_T1}, 16, v{V_T1}\nv_add_u32 v{V_T0}, v{V_T0}, v{V_T1}")
        a.e(f"v_permlane32_swap_b32 v{PK}, v{PK+2}\nv_permlane32_swap_b32 v{PK+1}, v{PK+3}")
        a.e(f"v_permlane32_swap_b32 v{PK+4}, v{PK+6}\nv_permlane32_swap_b32 v{PK+5}, v{PK+7}")
        osc = " sc1" if self.opt("out_sc1", 0) else ""
        a.e(f"buffer_store_dwordx4 {vr(PK)}, v{V_T0}, s[8:11], s{S_T0} offen" + osc)
        a.e(f"buffer_store_dwordx4 {vr(PK+4)}, v{V_T0}, s[8:11], s{S_T0} offen offset:32" + osc)
        a.e(f"s_branch {n}_done")

    def build(self):
        a, n = self.a, self.name
        self.prologue()
        head_q = list(a.vmq)
        a.label(f"{n}_layer")
        a.vmq = list(head_q); a.lgq = []
        self.layer_setup()
        lab = a.newlabel("nos5")
        a.e(f"s_cmp_eq_u32 s{S_L}, 0\ns_cbranch_scc1 {lab}")
        self.poll(S_FRB, F_S5, 14, extra=-NSYNC * 2048)
        a.label(lab)
        self.p1()
        self.p2a()
        a.e(f"s_cmp_lt_u32 s{S_Q}, 7\ns_cbranch_scc1 {n}_act")
        a.e(f"s_cmp_lg_u32 s{S_L}, 0\ns_cbranch_scc1 {n}_done")
        a.e(f"s_branch {n}_next")
        a.label(f"{n}_act")
        self.p2b()
        self.p3()
        self.p4()
        a.label(f"{n}_next")
        a.e("s_waitcnt vmcnt(0)")
        if self.o.get("prof"): a.e(f"v_accvgpr_write_b32 a224, v{V_MARK}\nv_mov_b32 v{V_MARK}, 0")
        a.e(f"s_add_u32 s{S_L}, s{S_L}, 1")
        a.e(f"s_branch {n}_layer")
        a.label(f"{n}_done")
        if self.o.get("prof"): self.dump_marks()
        a.e("s_endpgm")
        a.label(f"{n}_end")
        return a.finalize()
```

```python
from asmlib import Asm
from layout import *
import struct
def hexf(x): return "0x%08x" % struct.unpack("<I", struct.pack("<f", x))[0]
OOB = 0x7ff00000
LOOB = 0x30000
NA, NB, NC, ND, NE = 48, 112, 14, 56, 64
B0 = NA; C0 = B0 + NB; D0 = C0 + NC; E0 = D0 + ND; F0 = E0 + NE; G0 = F0 + 1
NPREP = G0 + 1
PREP_LDS = 29696
L_SUM = 28672

def load_src(a, karg_off, size):
    a.e(f"s_load_dwordx2 s[8:9], s[0:1], {karg_off}")
    a.e(f"s_mov_b32 s10, {size}\ns_mov_b32 s11, 0x20000")
    a.e("s_waitcnt lgkmcnt(0)")

def gen_prep(name, opts=None):
    opts = opts or {}
    SC = ' sc1' if int(opts.get('prep_sc1', 0)) else ''
    a = Asm()
    a.label(name)
    a.e(f"s_cmp_ge_u32 s2, {NPREP}")
    a.e(f"s_cbranch_scc1 {name}_done")
    a.e("s_load_dwordx2 s[4:5], s[0:1], 80")
    if int(opts.get("pf_code", 0)):
        n = int(opts.get("pf_lines", 16))
        a.e("s_getpc_b64 s[28:29]")
        a.label(f"{name}_pc")
        a.e(f"s_add_u32 s28, s28, main_kernel-{name}_pc\ns_addc_u32 s29, s29, 0")
        a.e(f"s_lshr_b32 s30, s2, 3\ns_and_b32 s30, s30, 31\ns_mul_i32 s30, s30, {n*64}\ns_min_u32 s30, s30, main_kernel_end-main_kernel-{n*64}\ns_add_u32 s28, s28, s30\ns_addc_u32 s29, s29, 0")
        for i in range(n): a.e(f"s_load_dwordx16 s[32:47], s[28:29], {i*64}")
    a.e(f"s_mov_b32 s6, {WS_USED}\ns_mov_b32 s7, 0x20000")
    a.e("v_and_b32 v7, 63, v0\nv_lshlrev_b32 v1, 4, v7")
    a.e("v_and_b32 v2, 31, v0\nv_bfe_u32 v3, v0, 5, 1")
    a.e("v_lshrrev_b32 v4, 6, v0\nv_readfirstlane_b32 s12, v4")
    a.e("v_bfe_u32 v8, v7, 2, 2\nv_and_b32 v9, 3, v7\nv_bfe_u32 v10, v7, 4, 1")
    a.e("v_lshl_add_u32 v8, v3, 2, v8\nv_lshlrev_b32 v8, 6, v8")
    a.e("v_lshlrev_b32 v11, 5, v10\nv_lshl_add_u32 v11, v9, 3, v11\nv_add_u32 v8, v8, v11")
    a.e(f"s_mul_i32 s13, s12, {7*KB}\nv_add_u32 v8, s13, v8")
    a.e("v_lshrrev_b32 v12, 2, v7\nv_lshlrev_b32 v13, 4, v9")
    a.e("s_waitcnt lgkmcnt(0)")
    for lim, lab in ((B0, "A"), (C0, "B"), (D0, "C"), (E0, "Dn"), (F0, "E"), (G0, "F")):
        a.e(f"s_cmp_lt_u32 s2, {lim}\ns_cbranch_scc1 {name}_{lab}")
    a.e("v_mov_b32 v16, 0\nv_mov_b32 v17, 0\nv_mov_b32 v18, 0\nv_mov_b32 v19, 0")
    a.e("v_lshlrev_b32 v5, 4, v0")
    a.e(f"s_mov_b32 s20, {FLAGS}")
    for i in range(2 * NSYNC * 16 * 128 // 4096):
        a.e("buffer_store_dwordx4 v[16:19], v5, s[4:7], s20 offen" + SC)
        a.e("s_add_u32 s20, s20, 4096")
    a.e(f"s_branch {name}_done")

    def stage(nins):
        a.e(f"s_mul_i32 s22, s12, {7*KB}")
        for i in range(nins):
            a.e("s_mov_b32 m0, s22\ns_nop 0")
            a.e("buffer_load_dwordx4 v4, s[8:11], s20 offen lds", tag="raw")
            if i != nins - 1: a.e("s_add_u32 s20, s20, s21\ns_add_u32 s22, s22, 1024")
    def lanes(rb_sreg, col_sreg):
        a.e(f"v_mul_lo_u32 v4, s{rb_sreg}, v12\nv_add3_u32 v4, v4, v13, s{col_sreg}")
    def trread(dst, va, off):
        a.e(f"ds_read_b64_tr_b16 v[{dst}:{dst+1}], v{va} offset:{off}", tag="tr")

    a.label(f"{name}_A")
    load_src(a, 8, D * 3 * D * 2)
    a.e("s_mul_i32 s13, s2, 43691\ns_lshr_b32 s13, s13, 17")
    a.e("s_mul_i32 s14, s13, 3\ns_sub_u32 s14, s2, s14")
    a.e("s_mul_i32 s14, s14, 896\ns_mul_i32 s13, s13, 56\ns_add_u32 s15, s13, s14")
    a.e("s_mov_b32 s16, 2688")
    a.e(f"s_mul_i32 s18, s2, {28*KB}\ns_add_u32 s18, s18, {WQKV}")
    a.e(f"v_and_b32 v11, v10, v9\nv_lshrrev_b32 v14, 1, v9\nv_and_b32 v11, v11, v14\nv_cmp_eq_u32 vcc, 1, v11\nv_mov_b32 v14, {LOOB}\nv_cndmask_b32 v8, v8, v14, vcc")
    a.e(f"s_branch {name}_AB")
    a.label(f"{name}_B")
    a.e(f"s_sub_u32 s13, s2, {B0}\ns_and_b32 s14, s13, 1\ns_cmp_eq_u32 s14, 0")
    a.e(f"s_cbranch_scc1 {name}_Bg")
    load_src(a, 48, D * F * 2)
    a.e(f"s_branch {name}_B2")
    a.label(f"{name}_Bg")
    load_src(a, 40, D * F * 2)
    a.label(f"{name}_B2")
    a.e("s_lshr_b32 s15, s13, 1\ns_lshl_b32 s15, s15, 6")
    a.e("s_mov_b32 s16, 3584")
    a.e(f"s_mul_i32 s18, s13, {28*KB}\ns_add_u32 s18, s18, {WGU}")
    a.label(f"{name}_AB")
    lanes(16, 15)
    a.e("s_mul_i32 s20, s12, 112\ns_mul_i32 s20, s20, s16\ns_lshl_b32 s21, s16, 4")
    stage(7)
    a.e("s_mov_b32 s23, 0x3f803f80")
    a.e(f"s_mul_i32 s24, s12, {7*KB}\ns_add_u32 s24, s24, s18")
    a.e("s_waitcnt vmcnt(0)")
    a.vmq = []
    FR = 16
    for s in range(7):
        trread(FR + 4*s, 8, s * 1024); trread(FR + 4*s + 2, 8, s * 1024 + 512)
    a.e("v_mov_b32 v48, 0\nv_mov_b32 v49, 0")
    for s in range(7):
        a.e(f"s_waitcnt lgkmcnt({min(15, 12 - 2*s)})")
        for d in range(4): a.e(f"v_dot2_f32_bf16 v{48 + d % 2}, v{FR+4*s+d}, s23, v{48 + d % 2}")
    a.lgq = []
    a.e(f"v_add_f32 v48, v48, v49\nv_lshlrev_b32 v9, 2, v0\nv_add_u32 v9, {L_SUM}, v9")
    a.e("ds_write_b32 v9, v48")
    a.e("s_waitcnt lgkmcnt(0)\ns_barrier")
    a.e(f"v_lshlrev_b32 v9, 2, v2\nv_add_u32 v9, {L_SUM}, v9")
    for q in range(8): a.e(f"ds_read_b32 v{50+q}, v9 offset:{q*128}")
    a.e("s_waitcnt lgkmcnt(0)")
    a.e("v_add_f32 v50, v50, v51\nv_add_f32 v52, v52, v53\nv_add_f32 v54, v54, v55\nv_add_f32 v56, v56, v57")
    a.e("v_add_f32 v50, v50, v52\nv_add_f32 v54, v54, v56\nv_add_f32 v50, v50, v54")
    a.e(f"v_mul_f32 v50, {hexf(-1.0/448)}, v50")
    for s in range(7):
        for d in range(4):
            r = FR + 4*s + d
            t = 52 + 2 * (d % 2)
            a.e(f"v_lshlrev_b32 v{t}, 16, v{r}\nv_and_b32 v{t+1}, 0xffff0000, v{r}")
            a.e(f"v_pk_add_f32 v[{t}:{t+1}], v[{t}:{t+1}], v[50:51] op_sel:[0,0] op_sel_hi:[1,0]")
            a.e(f"v_cvt_pk_bf16_f32 v{r}, v{t}, v{t+1}")
        a.e(f"buffer_store_dwordx4 v[{FR+4*s}:{FR+4*s+3}], v1, s[4:7], s24 offen" + SC)
        a.e("s_add_u32 s24, s24, 1024")
    a.e(f"s_branch {name}_done")

    a.vmq = []; a.lgq = []
    a.label(f"{name}_C")
    load_src(a, 24, D * D * 2)
    a.e(f"s_sub_u32 s13, s2, {C0}\ns_lshl_b32 s15, s13, 6\ns_mov_b32 s16, 896")
    lanes(16, 15)
    a.e(f"s_mul_i32 s20, s12, {112*896}\ns_mov_b32 s21, {16*896}")
    stage(7)
    a.e(f"v_mov_b32 v14, {LOOB}\nv_cmp_eq_u32 vcc, 0, v3\nv_cndmask_b32 v9, v14, v8, vcc")
    a.e(f"s_lshl_b32 s24, s13, 5\ns_lshl_b32 s25, s12, 3\ns_add_u32 s24, s24, s25\ns_lshl_b32 s24, s24, 10\ns_add_u32 s24, s24, {WO}")
    a.e("s_waitcnt vmcnt(0)")
    a.vmq = []
    for fr in range(8):
        q, e = fr // 2, fr % 2
        off = (28 * q + 16 * e) * 64
        trread(FR + 4*fr, 8, off); trread(FR + 4*fr + 2, 9 if e else 8, off + 512)
    for fr in range(8):
        a.e(f"s_waitcnt lgkmcnt({min(15, 14 - 2*fr)})")
        a.e(f"buffer_store_dwordx4 v[{FR+4*fr}:{FR+4*fr+3}], v1, s[4:7], s24 offen" + SC)
        a.e("s_add_u32 s24, s24, 1024")
    a.e(f"s_branch {name}_done")

    a.vmq = []; a.lgq = []
    a.label(f"{name}_Dn")
    load_src(a, 56, F * D * 2)
    a.e(f"s_sub_u32 s13, s2, {D0}\ns_lshr_b32 s14, s13, 2\ns_and_b32 s13, s13, 3")
    a.e("s_lshl_b32 s15, s14, 6\ns_mov_b32 s16, 896")
    lanes(16, 15)
    a.e(f"s_lshl_b32 s20, s13, 2\ns_add_u32 s20, s20, s12\ns_mul_i32 s20, s20, {112*896}\ns_mov_b32 s21, {16*896}")
    stage(7)
    a.e(f"s_mul_i32 s24, s14, 112\ns_mul_i32 s25, s13, 28\ns_add_u32 s24, s24, s25\ns_mul_i32 s25, s12, 7\ns_add_u32 s24, s24, s25\ns_lshl_b32 s24, s24, 10\ns_add_u32 s24, s24, {WD}")
    a.e("s_waitcnt vmcnt(0)")
    a.vmq = []
    for s in range(7):
        trread(FR + 4*s, 8, s * 1024); trread(FR + 4*s + 2, 8, s * 1024 + 512)
    for s in range(7):
        a.e(f"s_waitcnt lgkmcnt({min(15, 12 - 2*s)})")
        a.e(f"buffer_store_dwordx4 v[{FR+4*s}:{FR+4*s+3}], v1, s[4:7], s24 offen" + SC)
        a.e("s_add_u32 s24, s24, 1024")
    a.e(f"s_branch {name}_done")

    a.vmq = []; a.lgq = []
    a.label(f"{name}_F")
    load_src(a, 16, H * DH * DH * 2)
    a.e(f"v_mov_b32 v4, v1\ns_mul_i32 s20, s12, {4*1568}\ns_mov_b32 s21, 1024")
    stage(7)
    a.e("v_and_b32 v9, 3, v7\nv_bfe_u32 v10, v7, 4, 1\nv_bfe_u32 v11, v7, 2, 2")
    a.e("v_lshl_add_u32 v14, v10, 2, v9\nv_min_u32 v14, 6, v14\nv_lshlrev_b32 v14, 3, v14")
    a.e("v_lshl_add_u32 v11, v3, 2, v11\nv_mul_u32_u24 v11, 56, v11\nv_add_u32 v8, v11, v14")
    a.e(f"s_mul_i32 s13, s12, {7*KB}\nv_add_u32 v8, s13, v8")
    a.e(f"v_mov_b32 v14, {LOOB}\nv_cmp_eq_u32 vcc, 0, v3\nv_cndmask_b32 v9, v14, v8, vcc")
    a.e(f"s_lshl_b32 s24, s12, 13\ns_add_u32 s24, s24, {PHI}")
    a.e("s_waitcnt vmcnt(0)")
    a.vmq = []
    for fr in range(8):
        q, e = fr // 2, fr % 2
        off = q * 1568 + 16 * e * 56
        trread(FR + 4*fr, 8, off); trread(FR + 4*fr + 2, 9 if e else 8, off + 8 * 56)
    for fr in range(8):
        a.e(f"s_waitcnt lgkmcnt({min(15, 14 - 2*fr)})")
        a.e(f"buffer_store_dwordx4 v[{FR+4*fr}:{FR+4*fr+3}], v1, s[4:7], s24 offen" + SC)
        a.e("s_add_u32 s24, s24, 1024")
    a.e(f"s_branch {name}_done")

    a.vmq = []; a.lgq = []
    a.label(f"{name}_E")
    load_src(a, 0, S * D * 2)
    a.e(f"s_sub_u32 s14, s2, {E0}")
    a.e("s_min_u32 s13, s12, 2\ns_mul_i32 s15, s12, 4\ns_max_u32 s16, s12, 2\ns_sub_u32 s16, s16, 2\ns_sub_u32 s15, s15, s16")
    a.e("v_mul_u32_u24 v4, 896, v2\nv_lshlrev_b32 v5, 3, v3\nv_add_u32 v4, v4, v5")
    a.e("s_mul_i32 s20, s14, 28672\ns_lshl_b32 s16, s15, 6\ns_add_u32 s20, s20, s16")
    for n in range(4):
        for g in range(4):
            a.e(f"buffer_load_dwordx2 v[{16+8*n+2*g}:{17+8*n+2*g}], v4, s[8:11], s20 offen offset:{n*64+g*16}", tag=f"x{n}")
    a.e(f"s_mul_i32 s21, s14, 28\ns_lshl_b32 s16, s15, 1\ns_add_u32 s21, s21, s16\ns_lshl_b32 s21, s21, 10\ns_add_u32 s21, s21, {X}")
    a.e(f"s_mul_i32 s22, s14, 3584\ns_lshl_b32 s16, s15, 8\ns_add_u32 s22, s22, s16\ns_add_u32 s22, s22, {ST}")
    a.e("s_mov_b32 s23, 0x3f803f80")
    a.e("v_lshlrev_b32 v6, 3, v2")
    for n in range(4):
        if n == 3:
            a.e(f"s_cmp_ge_u32 s12, 2\ns_cbranch_scc1 {name}_done")
        a.wait_vm(f"x{n}")
        for s in range(2):
            a.e(f"buffer_store_dwordx4 v[{16+8*n+4*s}:{19+8*n+4*s}], v1, s[4:7], s21 offen" + SC, tag="st")
            a.e("s_add_u32 s21, s21, 1024")
        a.e("v_mov_b32 v8, 0\nv_mov_b32 v9, 0")
        for q in range(8):
            a.e(f"v_dot2_f32_bf16 v8, v{16+8*n+q}, s23, v8")
            a.e(f"v_dot2_f32_bf16 v9, v{16+8*n+q}, v{16+8*n+q}, v9")
        a.e("v_mov_b32 v10, v8\nv_mov_b32 v11, v9")
        a.e("v_permlane32_swap_b32 v10, v8\nv_permlane32_swap_b32 v11, v9")
        a.e("v_add_f32 v12, v8, v10\nv_add_f32 v13, v9, v11")
        a.e("s_mov_b32 exec_hi, 0")
        a.e(f"buffer_store_dwordx2 v[12:13], v6, s[4:7], s22 offen offset:{n*256}" + SC, tag="st")
        a.e("s_mov_b32 exec_hi, -1")
    a.label(f"{name}_done")
    a.e("s_endpgm")
    return a.finalize()
```

```python
from asmlib import Asm
from layout import *
import struct
def hexf(x): return "0x%08x" % struct.unpack("<I", struct.pack("<f", x))[0]

L_W1   = 0
L_XR   = 86016
XSLOT  = 29696
L_KVR  = 86016
L_KVA  = 118784
L_RED  = 86016
L_SCR3 = 145408
L_SCR  = 147456
LDS_BYTES = 163840

S_RB, S_J, S_W, S_L, S_TH, S_CB, S_TT, S_NT = 12, 13, 14, 15, 16, 17, 18, 19
S_T0, S_T1, S_T2, S_T3 = 20, 21, 22, 23
S_SEL_LO, S_SEL_HI = 24, 25
S_UP = 26
S_CNT, S_JS, S_Q, S_M = 28, 29, 30, 31
S_A, S_B, S_C, S_D = 32, 33, 34, 35
S_E, S_F = 38, 39
S_G = [40, 41, 42, 43, 44, 45, 46, 47]
S_FRB, S_FJ = 48, 49
S_TILE, S_N = 50, 51
S_XT = 52
F_S1, F_S2, F_S3, F_S4E, F_S4L, F_S5 = 0, 1, 2, 3, 5, 7

V_POLL, V_L16, V_L16H, V_STL, V_I8, V_ONE, V_C, V_MARK = 0, 1, 2, 3, 4, 5, 6, 7
V_T0, V_T1, V_T2, V_T3, V_T4, V_T5, V_T6, V_T7 = 8, 9, 10, 11, 12, 13, 14, 15
A_PHI, A_ID, A_RES = 232, 240, 248

def vr(b, n=4): return f"v[{b}:{b+n-1}]"
def ar(b, n=4): return f"a[{b}:{b+n-1}]"
MF = "v_mfma_f32_32x32x16_bf16"
def cost_of(t):
    if t.startswith(("v_exp", "v_rcp", "v_rsq")): return 8
    if t.startswith("v_mfma"): return 32
    if t.startswith("@"): return 2
    return 4

class Gen:
    def __init__(self, name, stop=None, opts=None):
        self.a = Asm(); self.name = name; self.stop = stop; self.o = opts or {}
        self.marks = []
    def opt(self, k, d): return int(self.o.get(k, d))

    def emit(self, t):
        a = self.a
        if t.startswith("@waitlg "): a.wait_lg(tuple(t.split()[1:]))
        elif t.startswith("@waitvm "): a.wait_vm(tuple(t.split()[1:]))
        elif "|" in t:
            txt, tag = t.split("|"); a.e(txt, tag=tag)
        else: a.e(t)
    def emits(self, L):
        for t in L: self.emit(t)
    def sa(self, dst, terms, const=0):
        L = []
        first = True
        for r, m in terms:
            tgt = dst if first else S_T3
            if m == 1:
                if first: L.append(f"s_mov_b32 s{dst}, s{r}")
                else: L.append(f"s_add_u32 s{dst}, s{dst}, s{r}")
                first = False
                continue
            if m & (m - 1) == 0: L.append(f"s_lshl_b32 s{tgt}, s{r}, {m.bit_length()-1}")
            else: L.append(f"s_mul_i32 s{tgt}, s{r}, {m}")
            if not first: L.append(f"s_add_u32 s{dst}, s{dst}, s{S_T3}")
            first = False
        if first: L.append(f"s_mov_b32 s{dst}, {const}")
        elif const: L.append(f"s_add_u32 s{dst}, s{dst}, {const}")
        return L
    def ld(self, dst, soff, imm, tag, sc1=True, n=4, vaddr=V_L16):
        op = {4: "buffer_load_dwordx4", 2: "buffer_load_dwordx2", 1: "buffer_load_dword"}[n]
        return f"{op} {dst}, v{vaddr}, s[4:7], s{soff} offen" + (f" offset:{imm}" if imm else "") + (" sc1" if sc1 else "") + f"|{tag}"
    def st(self, src, soff, imm, tag, n=4, vaddr=V_L16):
        op = {4: "buffer_store_dwordx4", 2: "buffer_store_dwordx2"}[n]
        return f"{op} {src}, v{vaddr}, s[4:7], s{soff} offen" + (f" offset:{imm}" if imm else "") + f" sc1|{tag}"
    def seq_items(self, n, dstf, cur, tagf, sc1):
        items = []
        for i in range(n):
            it = [self.ld(dstf(i), cur, (i % 4) * 1024, tagf(i), sc1)]
            if i % 4 == 3 and i != n - 1: it.append(f"s_add_u32 s{cur}, s{cur}, 4096")
            items.append(it)
        return items
    def dma_items(self, n, lds, cur, tag, sc1):
        items = []
        for i in range(n):
            it = []
            if i % 4 == 0: it += [f"s_mov_b32 m0, s{lds}", "s_nop 0"]
            it.append(f"buffer_load_dwordx4 v{V_L16}, s[4:7], s{cur} offen" + (f" offset:{(i%4)*1024}" if i % 4 else "") + (" sc1" if sc1 else "") + f" lds|{tag}")
            if i % 4 == 3 and i != n - 1: it += [f"s_add_u32 s{cur}, s{cur}, 4096", f"s_add_u32 s{lds}, s{lds}, 4096"]
            items.append(it)
        return items
    @staticmethod
    def zip2(x, y):
        out = []
        for i in range(max(len(x), len(y))):
            if i < len(x): out.append(x[i])
            if i < len(y): out.append(y[i])
        return out
    def take(self, bg, n):
        for _ in range(n):
            if bg: self.emits(bg.pop(0))
    def ldsaddr(self, off):
        if off < 65536: return V_L16, off
        assert off < 131072
        return V_L16H, off - 65536

    def weave(self, mains, fills, bg=None, bg_every=2, bg_start=0, caps=(24,), bg_phase=0):
        fi = 0
        nb = 0
        for k, m in enumerate(mains):
            m()
            cap = caps[k % len(caps)]
            c = 0
            if bg and k >= bg_start and (k - bg_start) % bg_every == bg_phase:
                it = bg.pop(0)
                self.emits(it); c += 12 if any(" lds" in t for t in it) else 8
            nv = 0
            while fi < len(fills):
                t = fills[fi]
                if t.startswith("s_") or t.startswith("@"):
                    self.emit(t); fi += 1; continue
                w = cost_of(t)
                if t.startswith("ds_read") or t.startswith("ds_write") or t.startswith("buffer_"): w = 8
                lim = cap if (w == 8 or nv * 4 != c) else min(cap, 20)
                if c + w > lim: break
                self.emit(t); fi += 1; c += w
                if w == 4: nv += 1
        while fi < len(fills):
            self.emit(fills[fi]); fi += 1
    def emits_bg(self, L, bg, n, first=0, every=10):
        k = 0
        for i, t in enumerate(L):
            if k < n and bg and i >= first and (i - first) % every == 0:
                self.emits(bg.pop(0)); k += 1
            self.emit(t)

    def mark(self, name):
        if not self.o.get("prof"): return
        if self.opt("prof", 0) == 3 and (name != "p1_start" or self.opt("single", 0)): return
        a = self.a
        k = len(self.marks); self.marks.append(name)
        a.e(("s_memtime" if self.opt("prof", 0) == 2 else "s_memrealtime") + " s[36:37]\ns_waitcnt lgkmcnt(0)")
        a.lgq = []
        a.e(f"v_writelane_b32 v{V_MARK}, s36, {k}")
    def dump_marks(self):
        a = self.a
        lab = a.newlabel("dm")
        a.e("s_memrealtime s[36:37]\ns_waitcnt lgkmcnt(0)")
        a.e(f"v_writelane_b32 v{V_MARK}, s36, 63")
        a.e(f"s_cmp_lg_u32 s{S_W}, 0\ns_cbranch_scc1 {lab}")
        a.e(f"s_lshl_b32 s{S_T0}, s2, 9\ns_add_u32 s{S_T0}, s{S_T0}, {DBG}")
        a.e(f"v_lshrrev_b32 v{V_T0}, 2, v{V_L16}")
        a.e(f"v_accvgpr_read_b32 v{V_T1}, a224")
        a.e(f"buffer_store_dword v{V_T1}, v{V_T0}, s[4:7], s{S_T0} offen")
        a.e(f"buffer_store_dword v{V_MARK}, v{V_T0}, s[4:7], s{S_T0} offen offset:256")
        a.e("s_waitcnt vmcnt(0)")
        a.label(lab)

    def arrive(self, base, slot, tags, slot_sreg=None, barrier=True):
        a = self.a
        a.wait_vm(tags)
        if barrier: a.e("s_barrier")
        a.e(f"s_add_u32 s{S_T2}, s{base}, {slot*2048}")
        if slot_sreg is not None: a.e(f"s_lshl_b32 s{S_T3}, s{slot_sreg}, 11\ns_add_u32 s{S_T2}, s{S_T2}, s{S_T3}")
        a.e(f"v_mov_b32 v{V_T7}, 1\ns_cmp_eq_u32 s{S_W}, 0\ns_cselect_b64 exec, 1, 0")
        a.e_uncounted(f"buffer_atomic_add v{V_T7}, off, s[4:7], s{S_T2} sc1")
        a.e("s_mov_b64 exec, -1")
    def poll(self, base, slot, target, slot_sreg=None, extra=0):
        a = self.a
        lab, lp, lx = a.newlabel("pol"), a.newlabel("plp"), a.newlabel("plx")
        a.e(f"s_add_u32 s{S_T2}, s{base}, {slot*2048 + extra}")
        if slot_sreg is not None: a.e(f"s_lshl_b32 s{S_T3}, s{slot_sreg}, 11\ns_add_u32 s{S_T2}, s{S_T2}, s{S_T3}")
        a.e(f"s_cmp_lg_u32 s{S_W}, 0\ns_cbranch_scc1 {lab}")
        vq, lq = list(a.vmq), list(a.lgq)
        dep = self.opt("pdepth", 2)
        a.e(f"s_mov_b32 s{S_CNT}, 0")
        for k in range(dep):
            a.e(f"s_mov_b64 exec, {1 << k}\nbuffer_load_dword v{V_POLL}, off, s[4:7], s{S_T2} sc1")
            if k != dep - 1: a.e(f"s_sleep {self.opt('psleep', 2)}")
        a.label(lp)
        for k in range(dep):
            a.e(f"s_waitcnt vmcnt({dep-1})\nv_readlane_b32 s{S_T3}, v{V_POLL}, {k}")
            a.e(f"s_cmp_ge_u32 s{S_T3}, {target}\ns_cbranch_scc1 {lx}")
            a.e(f"s_mov_b64 exec, {1 << k}\nbuffer_load_dword v{V_POLL}, off, s[4:7], s{S_T2} sc1")
        a.e(f"s_add_u32 s{S_CNT}, s{S_CNT}, 1\ns_cmp_lt_u32 s{S_CNT}, 200000\ns_cbranch_scc1 {lp}")
        a.label(lx)
        a.e("s_mov_b64 exec, -1")
        a.vmq, a.lgq = vq, lq
        a.label(lab)
        a.e("s_barrier")

    def apoll_issue(self, base, slot, lane, slot_sreg, dst):
        a = self.a
        a.e(f"s_lshl_b32 s{dst}, s{slot_sreg}, 11\ns_add_u32 s{dst}, s{dst}, s{base}\ns_add_u32 s{dst}, s{dst}, {slot*2048}")
        a.e(f"s_mov_b64 exec, {1 << lane}")
        a.e(f"buffer_load_dword v{V_POLL}, off, s[4:7], s{dst} sc1", tag=f"ap{lane}")
        a.e("s_mov_b64 exec, -1")
    def apoll_check(self, lane, target, dst):
        a = self.a
        ok, lp = a.newlabel("apk"), a.newlabel("apl")
        a.wait_vm(f"ap{lane}")
        a.e(f"v_readlane_b32 s{S_T3}, v{V_POLL}, {lane}\ns_cmp_ge_u32 s{S_T3}, {target}\ns_cbranch_scc1 {ok}")
        vq, lq = list(a.vmq), list(a.lgq)
        a.e(f"s_mov_b32 s{S_CNT}, 0\ns_mov_b64 exec, {1 << lane}")
        a.label(lp)
        a.e(f"buffer_load_dword v{V_POLL}, off, s[4:7], s{dst} sc1")
        a.e(f"s_add_u32 s{S_CNT}, s{S_CNT}, 1\ns_cmp_gt_u32 s{S_CNT}, 200000\ns_cbranch_scc1 {lp}_x")
        a.e(f"s_waitcnt vmcnt(0)\nv_readlane_b32 s{S_T3}, v{V_POLL}, {lane}\ns_cmp_lt_u32 s{S_T3}, {target}\ns_cbranch_scc1 {lp}")
        a.label(f"{lp}_x")
        a.e("s_waitcnt vmcnt(0)\ns_mov_b64 exec, -1")
        a.vmq, a.lgq = vq, lq
        a.label(ok)

    @staticmethod
    def bc(r): return f"v[{r & ~1}:{(r & ~1) + 1}]", r & 1
    def pk_fma_bc(self, dst, src, rb, rc, neg_a=0, neg_c=0):
        (tb, sb), (tc, sc) = self.bc(rb), self.bc(rc)
        return (f"v_pk_fma_f32 v[{dst}:{dst+1}], v[{src}:{src+1}], {tb}, {tc} op_sel:[0,{sb},{sc}] op_sel_hi:[1,{sb},{sc}]"
                f" neg_lo:[{neg_a},0,{neg_c}] neg_hi:[{neg_a},0,{neg_c}]")
    def pk_mul_bc(self, dst, src, rb):
        tb, sb = self.bc(rb)
        return f"v_pk_mul_f32 v[{dst}:{dst+1}], v[{src}:{src+1}], {tb} op_sel:[0,{sb}] op_sel_hi:[1,{sb}]"
    @staticmethod
    def pk_add(dst, x, y): return f"v_pk_add_f32 v[{dst}:{dst+1}], v[{x}:{x+1}], v[{y}:{y+1}]"

    def stats_reduce(self, b, vV, vM, t0, t1):
        L = []
        for k in (0, 1):
            L += [f"v_add_f32 v{b+k}, v{b+k}, v{b+2+k}", f"v_add_f32 v{b+4+k}, v{b+4+k}, v{b+6+k}", f"v_add_f32 v{b+8+k}, v{b+8+k}, v{b+10+k}"]
        for k in (0, 1):
            L += [f"v_add_f32 v{b+k}, v{b+k}, v{b+4+k}", f"v_add_f32 v{b+8+k}, v{b+8+k}, v{b+12+k}"]
        for k in (0, 1): L += [f"v_add_f32 v{b+k}, v{b+k}, v{b+8+k}"]
        L += [f"v_mov_b32 v{t0}, v{b}", f"v_mov_b32 v{t1}, v{b+1}", "s_nop 0",
              f"v_permlane32_swap_b32 v{t0}, v{b}", f"v_permlane32_swap_b32 v{t1}, v{b+1}",
              f"v_add_f32 v{b}, v{b}, v{t0}", f"v_add_f32 v{b+1}, v{b+1}, v{t1}",
              f"v_mul_f32 v{vM}, {hexf(1.0/D)}, v{b}",
              f"v_mul_f32 v{t1}, {hexf(1.0/D)}, v{b+1}",
              f"v_mul_f32 v{t0}, v{vM}, v{vM}",
              f"v_sub_f32 v{vV}, v{t1}, v{t0}",
              f"v_max_f32 v{vV}, 0, v{vV}",
              f"v_add_f32 v{vV}, {hexf(1e-5)}, v{vV}"]
        return L

    def softmax(self, R, P, t):
        mx, mn, u, w, bp, bn, bpm, bnm = [t + k for k in range(8)]
        L = [f"v_max3_f32 v{mx}, v{R}, v{R+1}, v{R+2}", f"v_min3_f32 v{mn}, v{R}, v{R+1}, v{R+2}",
             f"v_max3_f32 v{u}, v{R+3}, v{R+4}, v{R+5}", f"v_min3_f32 v{w}, v{R+3}, v{R+4}, v{R+5}"]
        for k in (6, 10):
            L += [f"v_max3_f32 v{mx}, v{mx}, v{R+k}, v{R+k+1}", f"v_min3_f32 v{mn}, v{mn}, v{R+k}, v{R+k+1}",
                  f"v_max3_f32 v{u}, v{u}, v{R+k+2}, v{R+k+3}", f"v_min3_f32 v{w}, v{w}, v{R+k+2}, v{R+k+3}"]
        L += [f"v_max3_f32 v{mx}, v{mx}, v{R+14}, v{R+15}", f"v_min3_f32 v{mn}, v{mn}, v{R+14}, v{R+15}",
              f"v_max_f32 v{mx}, v{mx}, v{u}", f"v_min_f32 v{mn}, v{mn}, v{w}",
              f"v_mov_b32 v{u}, v{mx}", f"v_mov_b32 v{w}, v{mn}",
              f"v_mov_b32 v{bpm}, {hexf(1e30)}", f"v_mov_b32 v{bnm}, {hexf(-1e30)}",
              f"v_permlane32_swap_b32 v{u}, v{mx}", f"v_permlane32_swap_b32 v{w}, v{mn}",
              f"v_max_f32 v{mx}, v{mx}, v{u}", f"v_min_f32 v{mn}, v{mn}, v{w}",
              f"v_mul_f32 v{bp}, v{V_C}, v{mx}", f"v_mul_f32 v{bn}, v{V_C}, v{mn}",
              f"v_cndmask_b32 v{bpm}, v{bp}, v{bpm}, s[{S_UP}:{S_UP+1}]",
              f"v_cndmask_b32 v{bnm}, v{bn}, v{bnm}, s[{S_UP}:{S_UP+1}]"]
        for g in range(4):
            for k in (0, 2): L.append(self.pk_fma_bc(P + 4*g + k, R + 4*g + k, V_C, bpm if g == 3 else bp, 0, 1))
            for k in (0, 2): L.append(self.pk_fma_bc(R + 4*g + k, R + 4*g + k, V_C, bnm if g == 3 else bn, 1, 0))
        for g in range(4):
            for k in range(4): L.append(f"v_exp_f32 v{P+4*g+k}, v{P+4*g+k}")
            for k in range(4): L.append(f"v_exp_f32 v{R+4*g+k}, v{R+4*g+k}")
            if g == 1: L += [self.pk_add(mx, P, P + 2), self.pk_add(u, R, R + 2)]
            elif g >= 2:
                for k in (0, 2): L += [self.pk_add(mx, mx, P + 4*(g-1) + k), self.pk_add(u, u, R + 4*(g-1) + k)]
        for k in (0, 2): L += [self.pk_add(mx, mx, P + 12 + k), self.pk_add(u, u, R + 12 + k)]
        L += [f"v_add_f32 v{mx}, v{mx}, v{mn}", f"v_add_f32 v{u}, v{u}, v{w}",
              f"v_mov_b32 v{mn}, v{mx}", f"v_mov_b32 v{w}, v{u}", "s_nop 0",
              f"v_permlane32_swap_b32 v{mn}, v{mx}", f"v_permlane32_swap_b32 v{w}, v{u}",
              f"v_add_f32 v{mx}, v{mx}, v{mn}", f"v_add_f32 v{u}, v{u}, v{w}",
              f"v_rcp_f32 v{mx}, v{mx}", f"v_rcp_f32 v{u}, v{u}"]
        for k in range(0, 16, 2): L.append(self.pk_mul_bc(P + k, P + k, mx))
        for k in range(0, 16, 2): L.append(self.pk_mul_bc(R + k, R + k, u))
        for d in range(8): L.append(f"v_cvt_pk_bf16_f32 v{P+d}, v{P+2*d}, v{P+2*d+1}")
        for d in range(8): L.append(f"v_cvt_pk_bf16_f32 v{R+d}, v{R+2*d}, v{R+2*d+1}")
        return L

    def phi_apply(self, R, tb):
        L = [f"v_cvt_pk_bf16_f32 v{tb+d}, v{R+2*d}, v{R+2*d+1}" for d in range(8)]
        L.append(f"{MF} {vr(R,16)}, {ar(A_PHI)}, {vr(tb)}, 0")
        L.append(f"{MF} {vr(R,16)}, {ar(A_PHI+4)}, {vr(tb+4)}, {vr(R,16)}")
        return L

    def w3_stream(self):
        g0, g1 = S_G[0], S_G[1]
        pre = self.sa(g0, [(S_JS, 4 * 56 * KB), (S_W, 56 * KB)], WGU) + [f"s_add_u32 s{g1}, s{g0}, {28*KB}"]
        its = self.zip2(self.seq_items(28, lambda s: ar(8*s), g0, lambda s: f"w3_{s}", False),
                        self.seq_items(28, lambda s: ar(8*s+4), g1, lambda s: f"w3_{s}", False))
        self.emits(pre)
        return its
    def wo_stream(self):
        its = []
        for sl in range(2):
            c = S_G[2 + sl]
            pre = [f"s_xor_b32 s{c}, s{S_NT}, {sl}"] + [f"s_lshl_b32 s{c}, s{c}, 15"] + self.sa(S_T0, [(S_CB, 2 * 32 * KB), (S_W, 8 * KB)], WO) + [f"s_add_u32 s{c}, s{c}, s{S_T0}"]
            x = self.seq_items(8, lambda i: vr(16 + 32 * sl + 4 * i), c, lambda i: "wo", False)
            self.emits(pre)
            its.append(x)
        return self.zip2(its[0], its[1])
    W4A = 128
    def w4_reg(self, i, sl):
        return vr(self.W4A + 8*i + 4*sl) if i < 16 else ar(8*(i - 16) + 4*sl)
    def kseg(self, dst, late):
        if late: return self.sa(dst, [(S_TH, 56), (S_W, 14)], 0)
        return self.sa(dst, [(S_W, 14)], 56) + [f"s_mul_i32 s{S_T3}, s{S_TH}, 56", f"s_sub_u32 s{dst}, s{dst}, s{S_T3}"]
    def w4_stream(self):
        out = []
        for late in (0, 1):
            its = []
            for sl in range(2):
                c = S_G[2 * late + sl]
                pre = self.kseg(S_T0, late) + [f"s_xor_b32 s{c}, s{S_NT}, {sl}", f"s_mul_i32 s{c}, s{c}, 112", f"s_add_u32 s{c}, s{c}, s{S_T0}"]
                pre += [f"s_mul_i32 s{S_T0}, s{S_CB}, 224", f"s_add_u32 s{c}, s{c}, s{S_T0}", f"s_lshl_b32 s{c}, s{c}, 10", f"s_add_u32 s{c}, s{c}, {WD}"]
                x = self.seq_items(14, lambda i: self.w4_reg(14 * late + i, sl), c, lambda i: f"w4_{14*late+i}", False)
                self.emits(pre)
                its.append(x)
            out += self.zip2(its[0], its[1])
        return out
    def p1w_items(self, part):
        c, l = S_G[4], S_G[5]
        its = self.dma_items(7, l, c, "w1" + "qkv"[part], False)
        pre = self.sa(l, [(S_W, 7 * KB)], L_W1 + part * 28 * KB) + self.sa(c, [(S_J, 84 * KB), (S_W, 7 * KB)], WQKV + part * 28 * KB)
        its[0] = pre + its[0]
        return its

    def prologue(self):
        a, n = self.a, self.name
        a.label(n)
        a.e(f"s_cmp_lt_u32 s2, 256\ns_cbranch_scc1 {n}_go\ns_endpgm")
        a.label(f"{n}_go")
        if self.opt("single", 0):
            import prep3
            a.e("s_load_dwordx16 s[64:79], s[0:1], 0\ns_load_dwordx4 s[80:83], s[0:1], 64\ns_load_dwordx2 s[4:5], s[0:1], 80")
            if self.o.get("prof"): a.e("s_memrealtime s[84:85]")
            prep3.emit_prep(a, n, self.o)
            a.e("s_mov_b32 s8, s80\ns_mov_b32 s9, s81")
        else:
            a.e("s_load_dwordx2 s[4:5], s[0:1], 80\ns_load_dwordx2 s[8:9], s[0:1], 64")
        if self.opt("pf_main", 0):
            nl = self.opt("pf_lines", 16)
            a.e("s_getpc_b64 s[60:61]")
            a.label(f"{n}_pc")
            a.e(f"s_sub_u32 s60, s60, {n}_pc-{n}\ns_subb_u32 s61, s61, 0")
            a.e(f"s_lshr_b32 s62, s2, 3\ns_and_b32 s62, s62, 31\ns_mul_i32 s62, s62, {nl*64}\ns_min_u32 s62, s62, {n}_end-{n}-{nl*64}\ns_add_u32 s60, s60, s62\ns_addc_u32 s61, s61, 0")
            for i in range(nl): a.e(f"s_load_dwordx16 s[64:79], s[60:61], {i*64}")
        a.e(f"s_mov_b32 s6, {WS_USED}\ns_mov_b32 s7, 0x20000\ns_mov_b32 s10, {S*D*2}\ns_mov_b32 s11, 0x20000")
        if self.opt("antimap", 0): a.e(f"s_lshr_b32 s{S_T0}, s2, 5\ns_and_b32 s{S_T1}, s2, 31")
        else: a.e(f"s_and_b32 s{S_T0}, s2, 7\ns_lshr_b32 s{S_T1}, s2, 3")
        a.e(f"s_and_b32 s{S_TH}, s{S_T0}, 1\ns_lshr_b32 s{S_T0}, s{S_T0}, 1\ns_lshl_b32 s{S_T0}, s{S_T0}, 2")
        a.e(f"s_and_b32 s{S_RB}, s{S_T1}, 3\ns_add_u32 s{S_RB}, s{S_RB}, s{S_T0}")
        a.e(f"s_lshr_b32 s{S_Q}, s{S_T1}, 2\ns_lshl_b32 s{S_J}, s{S_TH}, 3\ns_add_u32 s{S_J}, s{S_J}, s{S_Q}")
        a.e(f"s_min_u32 s{S_CB}, s{S_Q}, 6\ns_mul_i32 s{S_JS}, s{S_TH}, 7\ns_add_u32 s{S_JS}, s{S_JS}, s{S_CB}")
        a.e(f"s_lshl_b32 s{S_M}, s{S_TH}, 1\ns_sub_u32 s{S_M}, 2, s{S_M}")
        a.e(f"v_lshrrev_b32 v{V_T0}, 6, v0\nv_and_b32 v{V_T1}, 63, v0\nv_lshlrev_b32 v{V_L16}, 4, v{V_T1}")
        a.e(f"v_readfirstlane_b32 s{S_W}, v{V_T0}")
        a.e(f"v_add_u32 v{V_L16H}, 0x10000, v{V_L16}")
        a.e(f"v_and_b32 v{V_T2}, 31, v0\nv_bfe_u32 v{V_T3}, v0, 5, 1")
        a.e(f"v_lshlrev_b32 v{V_I8}, 3, v{V_T2}")
        a.e(f"v_mul_u32_u24 v{V_STL}, 1792, v{V_T3}\nv_add_u32 v{V_STL}, v{V_STL}, v{V_I8}")
        a.e(f"s_lshr_b32 s{S_TT}, s{S_W}, 1\ns_and_b32 s{S_NT}, s{S_W}, 1")
        a.e(f"s_mov_b32 s{S_SEL_LO}, 0x3f80\ns_mov_b32 s{S_SEL_HI}, 0x3f800000")
        a.e(f"s_mov_b32 s{S_UP}, 0\ns_mov_b32 s{S_UP+1}, -1")
        a.e(f"s_mov_b32 s{S_L}, 0")
        self.emits(self.sa(S_TILE, [(S_RB, 4), (S_TH, 2), (S_TT, 1)]))
        self.emits(self.sa(S_N, [(S_CB, 2), (S_NT, 1)]))
        self.emits(self.sa(S_XT, [(S_RB, 4), (S_W, 1)]))
        if self.o.get("prof"):
            a.e(f"v_mov_b32 v{V_MARK}, 0")
            if self.opt("single", 0):
                k = len(self.marks); self.marks.append("start")
                a.e(f"v_writelane_b32 v{V_MARK}, s84, {k}")
                for nm, r in (("t_ldiss", 94), ("t_landed", 92), ("t_issued", 86), ("t_drained", 88), ("t_zeroseen", 90)):
                    k = len(self.marks); self.marks.append(nm)
                    a.e(f"v_writelane_b32 v{V_MARK}, s{r}, {k}")
                self.mark("prepdone")
        a.e("s_waitcnt lgkmcnt(0)")
        for it in self.p1w_items(1) + self.p1w_items(2): self.emits(it)
        self.emits(self.sa(S_T0, [(S_J, 2 * KB)], PHI))
        for it in self.seq_items(2, lambda i: ar(A_PHI + 4*i), S_T0, lambda i: "phi", False): self.emits(it)
        self.emits(self.sa(S_T0, [(S_TILE, 28 * KB), (S_N, 2 * KB)], X))
        for it in self.seq_items(2, lambda i: ar(A_RES + 4*i), S_T0, lambda i: "res", False): self.emits(it)
        for it in self.p1w_items(0): self.emits(it)
        a.e(f"v_cmp_eq_u32 vcc, 28, v{V_T2}\nv_mov_b32 v{V_T4}, 1.0\nv_mov_b32 v{V_ONE}, 0\nv_cndmask_b32 v{V_ONE}, v{V_ONE}, v{V_T4}, vcc")
        a.e(f"v_lshlrev_b32 v{V_T3}, 2, v{V_T3}\nv_sub_u32 v{V_T2}, v{V_T2}, v{V_T3}")
        a.e(f"v_mov_b32 v{V_T4}, 0x3f80\nv_mov_b32 v{V_T5}, 0x3f800000")
        for s in range(2):
            for d in range(4):
                j = 2 * d
                c = 16 * s + 8 * (j // 4) + (j % 4)
                a.e(f"v_mov_b32 v{V_T6}, 0")
                a.e(f"v_cmp_eq_u32 vcc, {c}, v{V_T2}\nv_cndmask_b32 v{V_T6}, v{V_T6}, v{V_T4}, vcc")
                a.e(f"v_cmp_eq_u32 vcc, {c+1}, v{V_T2}\nv_cndmask_b32 v{V_T6}, v{V_T6}, v{V_T5}, vcc")
                a.e(f"v_accvgpr_write_b32 a{A_ID+4*s+d}, v{V_T6}")

    def layer_setup(self):
        self.emits(self.sa(S_FRB, [(S_L, NSYNC * 2048), (S_RB, 128)], FLAGS))
        self.emits(self.sa(S_FJ, [(S_L, NSYNC * 2048), (S_J, 128)], FLAGS))

    def p1(self):
        a = self.a
        XF, RK, RV, RQ, RING, RA, RB, TB = 16, 128, 144, 160, 176, 208, 224, 240
        RS, KR, QRING = 160, 176, 192
        LA = self.opt("la1", 6)
        self.mark("p1_start")
        self.emits(self.sa(S_A, [(S_XT, 28 * KB), (S_L, 2 * XSZ)], X))
        xi = self.seq_items(28, lambda s: vr(XF + 4*s), S_A, lambda s: f"x{s}", True)
        self.take(xi, 2)
        self.emits(self.sa(S_B, [(S_XT, 3584), (S_L, 2 * STSZ)], ST))
        for k in range(7): self.emit(self.ld(vr(RA + 2*k, 2), S_B, k * 256, "st", n=2, vaddr=V_STL))
        self.take(xi, LA - 2)
        a.wait_vm(("w1k", "w1v", "phi", "res"))
        a.e("s_barrier")
        self.mark("p1_wready")
        def rdA(s):
            sl = RING + 8 * (s % 4)
            r, of = self.ldsaddr(L_W1 + (28 + s) * KB); a.e(f"ds_read_b128 {vr(sl)}, v{r} offset:{of}", tag=f"a{s}")
            r, of = self.ldsaddr(L_W1 + (56 + s) * KB); a.e(f"ds_read_b128 {vr(sl+4)}, v{r} offset:{of}", tag=f"a{s}")
        for s in range(3): rdA(s)
        def mk(s):
            def f():
                if s + 3 < 28: rdA(s + 3)
                self.take(xi, 1)
                a.wait_both(f"x{s}", f"a{s}")
                sl = RING + 8 * (s % 4)
                a.e(f"{MF} {vr(RK,16)}, {vr(sl)}, {vr(XF+4*s)}, {vr(RK,16) if s else 0}")
            return f
        def mv(s):
            def f():
                sl = RING + 8 * (s % 4)
                a.e(f"{MF} {vr(RV,16)}, {vr(XF+4*s)}, {vr(sl+4)}, {vr(RV,16) if s else 0}")
            return f
        mains = []
        for s in range(28): mains += [mk(s), mv(s)]
        fills = ["@waitvm st"] + self.stats_reduce(RA, V_T0, V_T1, V_T2, V_T3)
        fills += [f"v_rsq_f32 v{V_T0}, v{V_T0}", f"v_lshrrev_b32 v{V_T1}, 1, v{V_I8}"]
        fills += self.sa(S_T0, [(S_W, 128)], L_SCR)
        fills += [f"v_add_u32 v{V_T1}, s{S_T0}, v{V_T1}", f"ds_write_b32 v{V_T1}, v{V_T0}|scw",
                  f"v_mul_f32 v{V_C}, {hexf(1.4426950408889634)}, v{V_T0}",
                  f"v_lshrrev_b32 v{V_T1}, 5, v{V_L16}", f"v_and_b32 v{V_T1}, 16, v{V_T1}",
                  f"v_add_u32 v{V_T1}, s{S_T0}, v{V_T1}", "@waitlg scw"]
        fills += [f"ds_read_b128 {vr(RS+4*g)}, v{V_T1} offset:{g*32}|rs" for g in range(4)]
        self.weave(mains, fills, caps=(20, 0))
        self.mark("p1_loopA")
        w3 = self.w3_stream()
        vch = ["@waitlg rs"] + [f"v_pk_fma_f32 v[{RV+r}:{RV+r+1}], v[{RV+r}:{RV+r+1}], v[{RS+r}:{RS+r+1}], v[4:5] op_sel:[0,0,1] op_sel_hi:[1,1,1]" for r in range(0, 16, 2)]
        vch += [f"v_cvt_pk_bf16_f32 v{RV+d}, v{RV+2*d}, v{RV+2*d+1}" for d in range(8)]
        nk = self.opt("bg_k", 8)
        self.take(w3, nk // 2)
        self.emits(self.phi_apply(RK, TB))
        self.emits(vch)
        self.emits_bg(self.softmax(RK, RA, V_T0), w3, nk - nk // 2, first=0, every=6)
        self.mark("p1_kepi")
        a.e(f"{MF} {vr(RB,16)}, {vr(RA)}, {ar(A_ID)}, 0")
        a.e(f"{MF} {vr(RB,16)}, {vr(RA+4)}, {ar(A_ID+4)}, {vr(RB,16)}")
        a.e(f"{MF} {vr(RA,16)}, {vr(RK)}, {ar(A_ID)}, 0")
        a.e(f"{MF} {vr(RA,16)}, {vr(RK+4)}, {ar(A_ID+4)}, {vr(RA,16)}")
        self.emits(self.sa(S_T0, [(S_W, 2048)], L_KVR) + [f"v_add_u32 v{V_T0}, s{S_T0}, v{V_L16}"])
        self.emits(self.sa(S_T0, [(S_W, 8192)], L_KVR) + [f"v_add_u32 v{V_T1}, s{S_T0}, v{V_L16}"])
        self.emits(self.sa(S_C, [(S_J, 4 * 16 * KB), (S_W, 16 * KB), (S_L, SLABSZ)], SLAB))
        for d in range(8): a.e(f"v_cvt_pk_bf16_f32 v{RB+d}, v{RB+2*d}, v{RB+2*d+1}")
        a.e(f"{MF} {vr(RK,16)}, {vr(RB)}, {vr(RV)}, 0")
        a.e(f"{MF} {vr(RK,16)}, {vr(RB+4)}, {vr(RV+4)}, {vr(RK,16)}")
        for d in range(8): a.e(f"v_cvt_pk_bf16_f32 v{RA+d}, v{RA+2*d}, v{RA+2*d+1}")
        a.e(f"{MF} {vr(RB,16)}, {vr(RA)}, {vr(RV)}, 0")
        a.e(f"{MF} {vr(RB,16)}, {vr(RA+4)}, {vr(RV+4)}, {vr(RB,16)}")
        self.emits(self.sa(S_D, [(S_RB, KB), (S_C, 1)]))
        for t, R in ((0, RK), (1, RB)):
            for s in range(2):
                for g in range(2):
                    a.e(f"ds_write_b128 v{V_T0}, {vr(R+8*s+4*g)} offset:{(2*t+s)*8192+g*1024}", tag="kw")
        a.wait_vm("w1q")
        a.e("s_waitcnt lgkmcnt(0)\ns_barrier")
        for ws in range(4):
            for g in range(2):
                a.e(f"ds_read_b128 {vr(KR+8*ws+4*g)}, v{V_T1} offset:{(ws*2+g)*1024}", tag=f"kr{ws}")
        def rdB(s):
            sl = QRING + 4 * (s % 4) + 16
            r, of = self.ldsaddr(L_W1 + s * KB); a.e(f"ds_read_b128 {vr(sl)}, v{r} offset:{of}", tag=f"b{s}")
        a.wait_lg("kr1")
        for r in range(0, 8, 2): a.e(self.pk_add(KR + r, KR + r, KR + 8 + r))
        a.wait_lg("kr3")
        for r in range(0, 8, 2): a.e(self.pk_add(KR + 16 + r, KR + 16 + r, KR + 24 + r))
        for r in range(0, 8, 2): a.e(self.pk_add(KR + r, KR + r, KR + 16 + r))
        for d in range(4): a.e(f"v_cvt_pk_bf16_f32 v{KR+d}, v{KR+2*d}, v{KR+2*d+1}")
        self.emit(self.st(vr(KR), S_D, 0, "slab"))
        self.mark("p1_slab")
        for s in range(3): rdB(s)
        ARR = self.opt("arr1", 20)
        def mq(s):
            def f():
                if s == ARR: self.arrive(S_FJ, F_S1, "slab")
                if s + 3 < 28: rdB(s + 3)
                a.wait_lg(f"b{s}")
                sl = QRING + 4 * (s % 4) + 16
                a.e(f"{MF} {vr(RQ,16)}, {vr(sl)}, {vr(XF+4*s)}, {vr(RQ,16) if s else 0}")
            return f
        self.weave([mq(s) for s in range(28)], [], bg=w3, bg_every=self.opt("bg_q_every", 2))
        self.mark("p1_qpass")
        wo = self.wo_stream()
        qe = self.phi_apply(RQ, TB) + self.softmax(RQ, RA, V_T0)
        cut = self.opt("ap1", 70)
        self.emits_bg(qe[:cut], wo, self.opt("bg_qe", 6), first=0, every=11)
        if self.opt("async1", 1):
            a.e(f"s_mov_b32 s{S_E}, 0")
            self.apoll_issue(S_FJ, F_S1, 10, S_E, S_F)
        self.emits(qe[cut:])
        self.mark("p1_qepi")
        self.RA, self.RQ, self.w3, self.wo = RA, RQ, w3, wo

    def p2a(self):
        a = self.a
        RA, RQ = self.RA, self.RQ
        SL, AC, KA, RB, TB = 80, 176, 188, 224, 240
        if self.opt("async1", 1): self.apoll_check(10, 16, S_F)
        else: self.poll(S_FJ, F_S1, 16)
        self.mark("S1_poll")
        for it in self.seq_items(16, lambda i: vr(SL + 4*i), S_C, lambda i: f"sl{i}", True): self.emits(it)
        bg2 = list(self.wo) + [self.w3.pop(0) for _ in range(self.opt("bg_2a", 0))]
        self.wo = []
        for i in range(16):
            if i >= self.opt("bg_2a_first", 4) and bg2: self.emits(bg2.pop(0))
            a.wait_vm(f"sl{i}")
            for d in range(4):
                a.e(f"v_dot2_f32_bf16 v{AC+2*d}, v{SL+4*i+d}, s{S_SEL_LO}, {'v%d' % (AC+2*d) if i else 0}")
                a.e(f"v_dot2_f32_bf16 v{AC+2*d+1}, v{SL+4*i+d}, s{S_SEL_HI}, {'v%d' % (AC+2*d+1) if i else 0}")
        self.take(bg2, len(bg2))
        self.emits(self.sa(S_T0, [(S_W, KB)], L_KVA) + [f"v_add_u32 v{V_T0}, s{S_T0}, v{V_L16}"])
        self.emits(self.sa(S_A, [(S_XT, 32 * KB), (S_J, 2 * KB), (S_L, OSZ)], O))
        for d in range(4): a.e(f"v_cvt_pk_bf16_f32 v{AC+8+d}, v{AC+2*d}, v{AC+2*d+1}")
        a.e(f"ds_write_b128 v{V_T0}, {vr(AC+8)}")
        a.e("s_waitcnt lgkmcnt(0)\ns_barrier")
        for p in range(4):
            r, of = self.ldsaddr(L_KVA + p * KB)
            a.e(f"ds_read_b128 {vr(KA+4*p)}, v{r} offset:{of}", tag=f"ka{p}")
        Bs = [RA, RA + 4, RQ, RQ + 4]
        for p in range(4):
            a.wait_lg(f"ka{p}")
            a.e(f"{MF} {vr(RB,16)}, {vr(KA+4*p)}, {vr(Bs[p])}, {vr(RB,16) if p else 0}")
        a.e(f"v_mov_b32 v{V_T0}, v{RB+12}\nv_mov_b32 v{V_T1}, v{RB+12}")
        a.e(f"v_permlane32_swap_b32 v{V_T0}, v{V_T1}")
        a.e(f"v_add_f32 v{V_T1}, {hexf(1e-6)}, v{V_T1}\nv_rcp_f32 v{V_T1}, v{V_T1}")
        for r in range(0, 16, 2): a.e(self.pk_mul_bc(RB + r, RB + r, V_T1))
        for d in range(8): a.e(f"v_cvt_pk_bf16_f32 v{TB+d}, v{RB+2*d}, v{RB+2*d+1}")
        self.emit(self.st(vr(TB), S_A, 0, "ost")); self.emit(self.st(vr(TB+4), S_A, 1024, "ost"))
        self.mark("p2a_ost")
        self.arrive(S_FRB, F_S2, "ost")
        self.take(self.w3, self.opt("bg_s2", 0))
        self.mark("S2_arr")

    def red_addr(self):
        L = []
        for u in range(1, 4):
            L += [f"s_xor_b32 s{S_T0}, s{S_W}, {u}", f"s_mul_i32 s{S_T0}, s{S_T0}, 12288", f"s_add_u32 s{S_T0}, s{S_T0}, {L_RED+(u-1)*4096}",
                  f"v_add_u32 v{V_T0+u}, s{S_T0}, v{V_L16}"]
        L += self.sa(S_T0, [(S_W, 12288)], L_RED) + [f"v_add_u32 v{V_T0}, s{S_T0}, v{V_L16}"]
        return L
    def red_write(self, ACC, u):
        return [f"ds_write_b128 v{V_T0+u}, {vr(ACC+16*u+4*g)} offset:{g*1024}|rw" for g in range(4)]
    def res_unpack(self, TR):
        L = [f"v_accvgpr_read_b32 v{TR+16+d}, a{A_RES+d}" for d in range(8)]
        for d in range(8):
            L += [f"v_lshlrev_b32 v{TR+2*d}, 16, v{TR+16+d}", f"v_and_b32 v{TR+2*d+1}, 0xffff0000, v{TR+16+d}"]
        return L
    def red_finish(self, ACC, TR):
        a = self.a
        for r in range(0, 16, 2): a.e(self.pk_add(ACC + r, ACC + r, TR + r))
        a.e("s_waitcnt lgkmcnt(0)\ns_barrier")
        RD = ACC + 16
        for u in range(3):
            for g in range(4):
                a.e(f"ds_read_b128 {vr(RD+16*u+4*g)}, v{V_T0} offset:{u*4096+g*1024}", tag=f"rr{u}")
        for u in range(3):
            a.wait_lg(f"rr{u}")
            for r in range(0, 16, 2): a.e(self.pk_add(ACC + r, ACC + r, RD + 16*u + r))
        for d in range(8): a.e(f"v_cvt_pk_bf16_f32 v{TR+d}, v{ACC+2*d}, v{ACC+2*d+1}")
        self.PK, self.ACC = TR, ACC
    def x_store_addr(self, xsel):
        return (self.sa(S_E, [(S_TILE, 28 * KB), (S_N, 2 * KB), (S_L, 2 * XSZ)], X + xsel * XSZ) +
                self.sa(S_F, [(S_TILE, 3584), (S_N, 256), (S_L, 2 * STSZ)], ST + xsel * STSZ))
    def store_x_and_stats(self):
        a = self.a
        PK, ACC = self.PK, self.ACC
        self.emit(self.st(vr(PK), S_E, 0, "xst")); self.emit(self.st(vr(PK+4), S_E, 1024, "xst"))
        t = PK + 8
        a.e(self.pk_add(t, ACC, ACC + 2))
        a.e(f"v_pk_mul_f32 v[{t+2}:{t+3}], v[{ACC}:{ACC+1}], v[{ACC}:{ACC+1}]")
        for r in range(2, 16, 2):
            if r > 2: a.e(self.pk_add(t, t, ACC + r))
            a.e(f"v_pk_fma_f32 v[{t+2}:{t+3}], v[{ACC+r}:{ACC+r+1}], v[{ACC+r}:{ACC+r+1}], v[{t+2}:{t+3}]")
        a.e(f"v_add_f32 v{t}, v{t}, v{t+1}\nv_add_f32 v{t+1}, v{t+2}, v{t+3}")
        a.e(f"v_mov_b32 v{t+2}, v{t}\nv_mov_b32 v{t+3}, v{t+1}")
        a.e(f"v_permlane32_swap_b32 v{t+2}, v{t}\nv_permlane32_swap_b32 v{t+3}, v{t+1}")
        a.e(self.pk_add(t, t, t + 2))
        a.e("s_mov_b32 exec_hi, 0")
        self.emit(self.st(f"v[{t}:{t+1}]", S_F, 0, "xst", n=2, vaddr=V_I8))
        a.e("s_mov_b32 exec_hi, -1")
        for d in range(8): a.e(f"v_accvgpr_write_b32 a{A_RES+d}, v{PK+d}")

    def p2b(self):
        a = self.a
        OB, ACC, TR = 80, 144, 208
        pre = []
        for b, c in ((0, S_A), (1, S_B)):
            pre += [f"s_xor_b32 s{c}, s{S_TILE}, {b}", f"s_lshl_b32 s{c}, s{c}, 15"] + self.sa(S_T0, [(S_W, 8 * KB), (S_L, OSZ)], O) + [f"s_add_u32 s{c}, s{c}, s{S_T0}"]
        self.emits(pre)
        self.poll(S_FRB, F_S2, 16)
        self.mark("S2_poll")
        ob = [self.seq_items(8, lambda i: vr(OB + 32*b + 4*i), (S_A, S_B)[b], lambda i: f"o{b}_{i}", True) for b in range(2)]
        for it in ob[1] + ob[0]: self.emits(it)
        nb = self.opt("bg_2b", 14)
        self.emits(self.red_addr() + self.x_store_addr(1))
        a.wait_vm("wo")
        def mf(u, i):
            b, sl = u >> 1, u & 1
            a.e(f"{MF} {vr(ACC+16*u,16)}, {vr(16+32*sl+4*i)}, {vr(OB+32*b+4*i)}, {vr(ACC+16*u,16) if i else 0}")
        for i in range(8):
            a.wait_vm(f"o1_{i}")
            mf(2, i); mf(3, i)
            if i < nb: self.take(self.w3, 1)
        resu = self.res_unpack(TR)
        wr = self.red_write(ACC, 2) + self.red_write(ACC, 3)
        for i in range(8):
            a.wait_vm(f"o0_{i}")
            mf(1, i)
            if i >= 2 and wr: self.emit(wr.pop(0))
            self.emits(resu[3*i:3*i+3])
            mf(0, i)
            if i >= 2 and wr: self.emit(wr.pop(0))
            if 8 + i < nb: self.take(self.w3, 1)
        self.emits(wr)
        self.mark("p2b_mfma")
        self.emits(self.red_write(ACC, 1))
        self.red_finish(ACC, TR)
        self.store_x_and_stats()
        self.mark("p2b_st")
        self.arrive(S_FRB, F_S3, "xst")
        self.take(self.w3, self.opt("bg_s3", 0))
        self.mark("S3_arr")

    def p3(self):
        a = self.a
        ACC0, ACC1, RING, CC, TT, HP, STB = 16, 48, 80, 96, 100, 116, 100
        V_X1, V_CA, V_CB = V_T5, V_T4, V_T6
        xds = []
        for p in range(4):
            gc, gl = 56 + 2 * p, 57 + 2 * p
            self.emits([f"s_xor_b32 s{S_T0}, s{S_M}, {p}"] + self.sa(gc, [(S_T0, 28 * KB), (S_RB, 4 * 28 * KB), (S_W, 7 * KB), (S_L, 2 * XSZ)], X + XSZ))
            self.emits(self.sa(gl, [(S_W, 7 * KB)], L_XR + (p & 1) * XSLOT))
            xds.append(self.dma_items(7, gl, gc, f"xt{p}", True))
        def xd(p): return xds[p]
        x0, x1 = xd(0), xd(1)
        self.poll(S_FRB, F_S3, 14)
        self.mark("S3_poll")
        self.take(x0, 7)
        self.emits(self.sa(S_T0, [(S_XT, 3584), (S_L, 2 * STSZ)], ST + STSZ))
        for k in range(7): self.emit(self.ld(vr(STB + 2*k, 2), S_T0, k * 256, "st", n=2, vaddr=V_STL))
        self.take(self.w3, len(self.w3))
        a.e(f"v_add_u32 v{V_X1}, {L_XR + XSLOT}, v{V_L16}")
        def hbase(p):
            return [f"s_xor_b32 s{S_T0}, s{S_M}, {p}"] + self.sa(S_C, [(S_T0, 112 * KB), (S_RB, 4 * 112 * KB), (S_JS, 8 * KB), (S_W, 2 * KB), (S_L, HSZ)], HB)
        c1 = -2.0 * 0.7978845608028654 * 1.4426950408889634
        c2 = c1 * 0.044715
        stf = ["@waitvm st"] + self.stats_reduce(STB, V_T0, V_T1, V_T2, V_T3)
        stf += [f"v_rsq_f32 v{V_T1}, v{V_T0}", f"v_lshrrev_b32 v{V_CA}, 1, v{V_I8}"] + self.sa(S_T0, [(S_W, 384)], L_SCR3)
        stf += [f"v_add_u32 v{V_CB}, s{S_T0}, v{V_CA}",
                f"v_mul_f32 v{V_T2}, v{V_T1}, v{V_T1}", f"v_mul_f32 v{V_T3}, {hexf(c1)}, v{V_T1}", f"v_mul_f32 v{V_T2}, v{V_T2}, v{V_T1}", f"v_mul_f32 v{V_T2}, {hexf(c2)}, v{V_T2}",
                f"ds_write_b32 v{V_CB}, v{V_T3}|cw", f"ds_write_b32 v{V_CB}, v{V_T2} offset:128|cw", f"ds_write_b32 v{V_CB}, v{V_T0} offset:256|cw"]
        stf += self.sa(S_T0, [(S_M, 384)], L_SCR3) + [f"s_mul_i32 s{S_T1}, s{S_M}, 384", f"s_sub_u32 s{S_T1}, {L_SCR3 + 768}, s{S_T1}",
                f"v_add_u32 v{V_CB}, s{S_T1}, v{V_CA}", f"v_add_u32 v{V_CA}, s{S_T0}, v{V_CA}"]

        def epi(p):
            A = ACC0 if p % 2 == 0 else ACC1
            G, U = A, A + 16
            va = V_CA if p < 2 else V_CB
            L = [f"ds_read_b32 v{CC+q}, v{va} offset:{(p&1)*384+q*128}|cc" for q in range(3)] + hbase(p)
            for g in range(4):
                rr = [4*g + k for k in range(4)]
                for k, r in enumerate(rr): L.append(f"v_mul_f32 v{TT+k}, v{G+r}, v{G+r}")
                for k, r in enumerate(rr): L.append(f"v_mul_f32 v{TT+4+k}, v{G+r}, v{U+r}")
                if g == 0: L.append("@waitlg cc")
                for k, r in enumerate(rr): L.append(f"v_fma_f32 v{TT+k}, v{TT+k}, v{CC+1}, v{CC}")
                for k, r in enumerate(rr): L.append(f"v_mul_f32 v{TT+k}, v{TT+k}, v{G+r}")
                for k, r in enumerate(rr): L.append(f"v_exp_f32 v{TT+k}, v{TT+k}")
                for k, r in enumerate(rr): L.append(f"v_fma_f32 v{TT+k}, v{TT+k}, v{CC+2}, v{CC+2}")
                for k, r in enumerate(rr): L.append(f"v_rcp_f32 v{TT+k}, v{TT+k}")
                for k in range(4): L.append(f"v_mul_f32 v{TT+4+k}, v{TT+4+k}, v{TT+k}")
                L.append(f"v_cvt_pk_bf16_f32 v{HP+2*g}, v{TT+4}, v{TT+5}")
                L.append(f"v_cvt_pk_bf16_f32 v{HP+2*g+1}, v{TT+6}, v{TT+7}")
                if g % 2 == 1 and not (self.opt("x_nost", 0) and p < 2): L.append(self.st(vr(HP + 4*(g//2)), S_C, 1024 * (g // 2), f"hst{p}"))
            if self.opt("x_noepi", 0) and p < 2: L = [t for t in L if t.startswith("buffer_") or t.startswith("s_")]
            return L

        w4 = None
        for p in range(4):
            A = ACC0 if p % 2 == 0 else ACC1
            a.wait_vm(f"xt{p}")
            a.e("s_waitcnt lgkmcnt(0)\ns_barrier")
            if p in (0, 1, 3): self.mark(f"p3_T{p}")
            def rd(s):
                if p & 1 == 0:
                    r, of = self.ldsaddr(L_XR + s * KB)
                else: r, of = V_X1, s * KB
                a.e(f"ds_read_b128 {vr(RING+4*(s%4))}, v{r} offset:{of}", tag=f"b{s}")
            for s in range(3): rd(s)
            def mg(s):
                def f():
                    if s + 3 < 28: rd(s + 3)
                    a.wait_both(f"w3_{s}" if p == 0 else None, f"b{s}")
                    a.e(f"{MF} {vr(A,16)}, {ar(8*s)}, {vr(RING+4*(s%4))}, {vr(A,16) if s else 0}")
                return f
            def mu(s):
                def f(): a.e(f"{MF} {vr(A+16,16)}, {ar(8*s+4)}, {vr(RING+4*(s%4))}, {vr(A+16,16) if s else 0}")
                return f
            mains = []
            for s in range(28): mains += [mg(s), mu(s)]
            if p == 0:
                w4 = self.w4_stream()
                bg = x1 + [w4.pop(0) for _ in range(self.opt("w4_p0", 12))]
                self.weave(mains, stf, bg=bg, bg_every=2, bg_phase=1, caps=(16, 8))
            elif p == 1:
                bg = xd(2) + [w4.pop(0) for _ in range(self.opt("w4_p1", 12))]
                if self.opt("x_nobg", 0): bg = xd(2)
                mains[0](); mains[1]()
                self.weave(mains[2:], epi(0), bg=bg, bg_every=2, bg_phase=1, caps=(self.opt('cap1', 24), self.opt('cap2', 8)))
            elif p == 2:
                na = 32 - self.opt("w4_p0", 12) - self.opt("w4_p1", 12)
                bg = xd(3) + [w4.pop(0) for _ in range(na)]
                if self.opt("x_nobg", 0): bg = xd(3)
                mains[0](); mains[1]()
                self.weave(mains[2:], epi(1), bg=bg, bg_every=2, bg_phase=1, caps=(self.opt('cap1', 24), self.opt('cap2', 8)))
            else:
                bg = w4
                mains[0](); mains[1]()
                a.e(f"s_xor_b32 s{S_E}, s{S_TH}, 1")
                AP = self.opt("ap4e", 46)
                orig = mains[AP]
                def with_poll():
                    self.apoll_issue(S_FRB, F_S4E, 8, S_E, S_F)
                    orig()
                mains[AP] = with_poll
                AE = self.opt("arr4e", 22)
                orig2 = mains[AE]
                def with_arr():
                    self.arrive(S_FRB, F_S4E, ("hst0", "hst1"), slot_sreg=S_TH)
                    orig2()
                mains[AE] = with_arr
                self.weave(mains[2:], epi(2), bg=bg, bg_every=2, bg_phase=1, caps=(self.opt('cap1', 24), self.opt('cap2', 8)))
            self.take(bg, len(bg))
        self.mark("p3_loop")
        self.p4_setup()
        self.apoll_check(8, 7, S_F)
        LA = self.opt("la4", 6)
        first = []
        for i in range(LA): first += [self.hi[(i, 0)], self.hi[(i, 1)]]
        self.emits_bg(epi(3), first, len(first), first=self.opt("e3first", 20), every=self.opt("e3every", 9))
        self.take(first, len(first))
        self.mark("p3_epi")

    def p4_setup(self):
        HR, NR = 96, 16
        cur = [S_G[4], S_G[5], S_G[6], S_G[7]]
        pre = []
        for late in (0, 1):
            for b in range(2):
                c = cur[2*late + b]
                pre += self.kseg(S_T0, late) + [f"s_xor_b32 s{c}, s{S_TILE}, {b}", f"s_mul_i32 s{c}, s{c}, 112", f"s_add_u32 s{c}, s{c}, s{S_T0}", f"s_lshl_b32 s{c}, s{c}, 10"]
                pre += self.sa(S_T0, [(S_L, HSZ)], HB) + [f"s_add_u32 s{c}, s{c}, s{S_T0}"]
        self.emits(pre)
        self.hi = {}
        for late in (0, 1):
            for b in range(2):
                x = self.seq_items(14, lambda i: ar(HR + 8*((14*late + i) % NR) + 4*b), cur[2*late + b], lambda i: f"h{14*late+i}_{b}", True)
                for i in range(14): self.hi[(14*late + i, b)] = x[i]

    def p4(self):
        a = self.a
        n = self.name
        ACC, HR, NR, TR = 16, 96, 16, 80
        LA = self.opt("la4", 6)
        hi = self.hi
        self.emits(self.red_addr())
        def mf(u, i):
            b, sl = u >> 1, u & 1
            a.e(f"{MF} {vr(ACC+16*u,16)}, {self.w4_reg(i, sl)}, {ar(HR+8*(i%NR)+4*b)}, {vr(ACC+16*u,16) if i else 0}")
        TAIL = self.opt("tail4", 6)
        PL = 14 - LA
        t0 = 28 - TAIL
        rest0 = [hi[(i, 0)] for i in range(t0, 28)]
        rest1 = [hi[(i, 1)] for i in range(t0, 28)]
        ARR4 = self.opt("arr4", 3)
        APL = self.opt("ap4l", PL - 2)
        for i in range(t0):
            if i == ARR4:
                self.arrive(S_FRB, F_S4L, ("hst2", "hst3"), slot_sreg=S_TH)
                self.mark("S4_arr")
            if i == APL: self.apoll_issue(S_FRB, F_S4L, 9, S_TH, S_F)
            if i == PL:
                self.apoll_check(9, 7, S_F)
                self.mark("S4L_poll")
            a.wait_vm((f"h{i}_0", f"h{i}_1", f"w4_{i}"))
            nxt = i + LA
            mf(0, i); mf(1, i)
            if nxt < t0: self.emits(hi[(nxt, 0)])
            elif rest1: self.emits(rest1.pop(0))
            mf(2, i); mf(3, i)
            if nxt < t0: self.emits(hi[(nxt, 1)])
            elif rest1: self.emits(rest1.pop(0))
            elif rest0: self.emits(rest0.pop(0))
        for it in rest1: self.emits(it)
        for i in range(t0, 28):
            a.wait_vm((f"h{i}_1", f"w4_{i}"))
            mf(2, i)
            if rest0: self.emits(rest0.pop(0))
            mf(3, i)
        resu = self.res_unpack(TR)
        wr = self.red_write(ACC, 2) + self.red_write(ACC, 3)
        k = 0
        for i in range(t0, 28):
            a.wait_vm(f"h{i}_0")
            mf(1, i)
            if i >= t0 + 1 and wr: self.emit(wr.pop(0))
            self.emits(resu[4*k:4*k+4]); k += 1
            mf(0, i)
            if i >= t0 + 1 and wr: self.emit(wr.pop(0))
        self.emits(resu[4*k:]); self.emits(wr)
        self.mark("p4_mfma")
        self.emits(self.red_write(ACC, 1))
        self.emits(self.x_store_addr(2))
        self.red_finish(ACC, TR)
        self.mark("p4_red")
        fin = a.newlabel("fin")
        a.e(f"s_cmp_lg_u32 s{S_L}, 0\ns_cbranch_scc1 {fin}")
        vq = list(a.vmq)
        self.store_x_and_stats()
        self.arrive(S_FRB, F_S5, "xst")
        a.e(f"s_branch {n}_next")
        a.vmq = vq
        a.label(fin)
        PK = self.PK
        self.emits(self.sa(S_T0, [(S_TILE, 32 * 896), (S_N, 64)]))
        a.e(f"v_mul_u32_u24 v{V_T0}, 112, v{V_I8}\nv_lshrrev_b32 v{V_T1}, 5, v{V_L16}\nv_and_b32 v{V_T1}, 16, v{V_T1}\nv_add_u32 v{V_T0}, v{V_T0}, v{V_T1}")
        a.e(f"v_permlane32_swap_b32 v{PK}, v{PK+2}\nv_permlane32_swap_b32 v{PK+1}, v{PK+3}")
        a.e(f"v_permlane32_swap_b32 v{PK+4}, v{PK+6}\nv_permlane32_swap_b32 v{PK+5}, v{PK+7}")
        osc = " sc1" if self.opt("out_sc1", 0) else ""
        a.e(f"buffer_store_dwordx4 {vr(PK)}, v{V_T0}, s[8:11], s{S_T0} offen" + osc)
        a.e(f"buffer_store_dwordx4 {vr(PK+4)}, v{V_T0}, s[8:11], s{S_T0} offen offset:32" + osc)
        a.e(f"s_branch {n}_done")

    def build(self):
        a, n = self.a, self.name
        self.prologue()
        head_q = list(a.vmq)
        a.label(f"{n}_layer")
        a.vmq = list(head_q); a.lgq = []
        self.layer_setup()
        lab = a.newlabel("nos5")
        a.e(f"s_cmp_eq_u32 s{S_L}, 0\ns_cbranch_scc1 {lab}")
        self.poll(S_FRB, F_S5, 14, extra=-NSYNC * 2048)
        a.label(lab)
        self.p1()
        self.p2a()
        a.e(f"s_cmp_lt_u32 s{S_Q}, 7\ns_cbranch_scc1 {n}_act")
        a.e(f"s_cmp_lg_u32 s{S_L}, 0\ns_cbranch_scc1 {n}_done")
        a.e(f"s_branch {n}_next")
        a.label(f"{n}_act")
        self.p2b()
        self.p3()
        self.p4()
        a.label(f"{n}_next")
        a.e("s_waitcnt vmcnt(0)")
        if self.o.get("prof"): a.e(f"v_accvgpr_write_b32 a224, v{V_MARK}\nv_mov_b32 v{V_MARK}, 0")
        a.e(f"s_add_u32 s{S_L}, s{S_L}, 1")
        a.e(f"s_branch {n}_layer")
        a.label(f"{n}_done")
        if self.o.get("prof"): self.dump_marks()
        a.e("s_endpgm")
        a.label(f"{n}_end")
        return a.finalize()
```

```python
from asmlib import Asm
from layout import *
import struct
def hexf(x): return "0x%08x" % struct.unpack("<I", struct.pack("<f", x))[0]
OOB = 0x7ff00000
LOOB = 0x30000
NA, NB, NC, ND, NE = 48, 112, 14, 56, 64
B0 = NA; C0 = B0 + NB; D0 = C0 + NC; E0 = D0 + ND; F0 = E0 + NE; G0 = F0 + 1
NPREP = G0 + 1
PREP_LDS = 29696
L_SUM = 28672

def load_src(a, karg_off, size):
    r = 48 + karg_off // 4
    a.e(f"s_mov_b32 s8, s{r}\ns_mov_b32 s9, s{r+1}\ns_mov_b32 s10, {size}\ns_mov_b32 s11, 0x20000")

def gen_prep(name, opts=None):
    opts = opts or {}
    SC = ' sc1' if int(opts.get('prep_sc1', 0)) else ''
    a = Asm()
    a.label(name)
    if opts.get("prof"): a.e("s_memrealtime s[64:65]")
    a.e(f"s_cmp_lt_u32 s2, {NPREP}")
    a.e(f"s_cbranch_scc1 {name}_go\ns_endpgm")
    a.label(f"{name}_go")
    a.e("s_load_dwordx16 s[48:63], s[0:1], 0\ns_load_dwordx2 s[4:5], s[0:1], 80")
    if int(opts.get("pf_code", 0)):
        n = int(opts.get("pf_lines", 16))
        a.e("s_getpc_b64 s[28:29]")
        a.label(f"{name}_pc")
        a.e(f"s_add_u32 s28, s28, main_kernel-{name}_pc\ns_addc_u32 s29, s29, 0")
        a.e(f"s_lshr_b32 s30, s2, 3\ns_and_b32 s30, s30, 31\ns_mul_i32 s30, s30, {n*64}\ns_min_u32 s30, s30, main_kernel_end-main_kernel-{n*64}\ns_add_u32 s28, s28, s30\ns_addc_u32 s29, s29, 0")
        for i in range(n): a.e(f"s_load_dwordx16 s[32:47], s[28:29], {i*64}")
    a.e(f"s_mov_b32 s6, {WS_USED}\ns_mov_b32 s7, 0x20000")
    a.e("v_and_b32 v7, 63, v0\nv_lshlrev_b32 v1, 4, v7")
    a.e("v_and_b32 v2, 31, v0\nv_bfe_u32 v3, v0, 5, 1")
    a.e("v_lshrrev_b32 v4, 6, v0\nv_readfirstlane_b32 s12, v4")
    a.e("v_bfe_u32 v8, v7, 2, 2\nv_and_b32 v9, 3, v7\nv_bfe_u32 v10, v7, 4, 1")
    a.e("v_lshl_add_u32 v8, v3, 2, v8\nv_lshlrev_b32 v8, 6, v8")
    a.e("v_lshlrev_b32 v11, 5, v10\nv_lshl_add_u32 v11, v9, 3, v11\nv_add_u32 v8, v8, v11")
    a.e(f"s_mul_i32 s13, s12, {7*KB}\nv_add_u32 v8, s13, v8")
    a.e("v_lshrrev_b32 v12, 2, v7\nv_lshlrev_b32 v13, 4, v9")
    a.e("s_waitcnt lgkmcnt(0)")
    for lim, lab in ((B0, "A"), (C0, "B"), (D0, "C"), (E0, "Dn"), (F0, "E"), (G0, "F")):
        a.e(f"s_cmp_lt_u32 s2, {lim}\ns_cbranch_scc1 {name}_{lab}")
    a.e("v_mov_b32 v16, 0\nv_mov_b32 v17, 0\nv_mov_b32 v18, 0\nv_mov_b32 v19, 0")
    a.e("v_lshlrev_b32 v5, 4, v0")
    a.e(f"s_mov_b32 s20, {FLAGS}")
    for i in range(2 * NSYNC * 16 * 128 // 4096):
        a.e("buffer_store_dwordx4 v[16:19], v5, s[4:7], s20 offen" + SC)
        a.e("s_add_u32 s20, s20, 4096")
    a.e(f"s_branch {name}_done")

    def stage(nins):
        a.e(f"s_mul_i32 s22, s12, {7*KB}")
        for i in range(nins):
            a.e("s_mov_b32 m0, s22\ns_nop 0")
            a.e("buffer_load_dwordx4 v4, s[8:11], s20 offen lds", tag="raw")
            if i != nins - 1: a.e("s_add_u32 s20, s20, s21\ns_add_u32 s22, s22, 1024")
    def lanes(rb_sreg, col_sreg):
        a.e(f"v_mul_lo_u32 v4, s{rb_sreg}, v12\nv_add3_u32 v4, v4, v13, s{col_sreg}")
    def trread(dst, va, off):
        a.e(f"ds_read_b64_tr_b16 v[{dst}:{dst+1}], v{va} offset:{off}", tag="tr")

    a.label(f"{name}_A")
    load_src(a, 8, D * 3 * D * 2)
    a.e("s_mul_i32 s13, s2, 43691\ns_lshr_b32 s13, s13, 17")
    a.e("s_mul_i32 s14, s13, 3\ns_sub_u32 s14, s2, s14")
    a.e("s_mul_i32 s14, s14, 896\ns_mul_i32 s13, s13, 56\ns_add_u32 s15, s13, s14")
    a.e("s_mov_b32 s16, 2688")
    a.e(f"s_mul_i32 s18, s2, {28*KB}\ns_add_u32 s18, s18, {WQKV}")
    a.e(f"v_and_b32 v11, v10, v9\nv_lshrrev_b32 v14, 1, v9\nv_and_b32 v11, v11, v14\nv_cmp_eq_u32 vcc, 1, v11\nv_mov_b32 v14, {LOOB}\nv_cndmask_b32 v8, v8, v14, vcc")
    a.e(f"s_branch {name}_AB")
    a.label(f"{name}_B")
    a.e(f"s_sub_u32 s13, s2, {B0}\ns_and_b32 s14, s13, 1\ns_cmp_eq_u32 s14, 0")
    a.e(f"s_cbranch_scc1 {name}_Bg")
    load_src(a, 48, D * F * 2)
    a.e(f"s_branch {name}_B2")
    a.label(f"{name}_Bg")
    load_src(a, 40, D * F * 2)
    a.label(f"{name}_B2")
    a.e("s_lshr_b32 s15, s13, 1\ns_lshl_b32 s15, s15, 6")
    a.e("s_mov_b32 s16, 3584")
    a.e(f"s_mul_i32 s18, s13, {28*KB}\ns_add_u32 s18, s18, {WGU}")
    a.label(f"{name}_AB")
    lanes(16, 15)
    a.e("s_mul_i32 s20, s12, 112\ns_mul_i32 s20, s20, s16\ns_lshl_b32 s21, s16, 4")
    stage(7)
    a.e("s_mov_b32 s23, 0x3f803f80")
    a.e(f"s_mul_i32 s24, s12, {7*KB}\ns_add_u32 s24, s24, s18")
    a.e("s_waitcnt vmcnt(0)")
    a.vmq = []
    FR = 16
    for s in range(7):
        trread(FR + 4*s, 8, s * 1024); trread(FR + 4*s + 2, 8, s * 1024 + 512)
    a.e("v_mov_b32 v48, 0\nv_mov_b32 v49, 0")
    for s in range(7):
        a.e(f"s_waitcnt lgkmcnt({min(15, 12 - 2*s)})")
        for d in range(4): a.e(f"v_dot2_f32_bf16 v{48 + d % 2}, v{FR+4*s+d}, s23, v{48 + d % 2}")
    a.lgq = []
    a.e(f"v_add_f32 v48, v48, v49\nv_lshlrev_b32 v9, 2, v0\nv_add_u32 v9, {L_SUM}, v9")
    a.e("ds_write_b32 v9, v48")
    a.e("s_waitcnt lgkmcnt(0)\ns_barrier")
    a.e(f"v_lshlrev_b32 v9, 2, v2\nv_add_u32 v9, {L_SUM}, v9")
    for q in range(8): a.e(f"ds_read_b32 v{50+q}, v9 offset:{q*128}")
    a.e("s_waitcnt lgkmcnt(0)")
    a.e("v_add_f32 v50, v50, v51\nv_add_f32 v52, v52, v53\nv_add_f32 v54, v54, v55\nv_add_f32 v56, v56, v57")
    a.e("v_add_f32 v50, v50, v52\nv_add_f32 v54, v54, v56\nv_add_f32 v50, v50, v54")
    a.e(f"v_mul_f32 v50, {hexf(-1.0/448)}, v50")
    for s in range(7):
        for d in range(4):
            r = FR + 4*s + d
            t = 52 + 2 * (d % 2)
            a.e(f"v_lshlrev_b32 v{t}, 16, v{r}\nv_and_b32 v{t+1}, 0xffff0000, v{r}")
            a.e(f"v_pk_add_f32 v[{t}:{t+1}], v[{t}:{t+1}], v[50:51] op_sel:[0,0] op_sel_hi:[1,0]")
            a.e(f"v_cvt_pk_bf16_f32 v{r}, v{t}, v{t+1}")
        a.e(f"buffer_store_dwordx4 v[{FR+4*s}:{FR+4*s+3}], v1, s[4:7], s24 offen" + SC)
        a.e("s_add_u32 s24, s24, 1024")
    a.e(f"s_branch {name}_done")

    a.vmq = []; a.lgq = []
    a.label(f"{name}_C")
    load_src(a, 24, D * D * 2)
    a.e(f"s_sub_u32 s13, s2, {C0}\ns_lshl_b32 s15, s13, 6\ns_mov_b32 s16, 896")
    lanes(16, 15)
    a.e(f"s_mul_i32 s20, s12, {112*896}\ns_mov_b32 s21, {16*896}")
    stage(7)
    a.e(f"v_mov_b32 v14, {LOOB}\nv_cmp_eq_u32 vcc, 0, v3\nv_cndmask_b32 v9, v14, v8, vcc")
    a.e(f"s_lshl_b32 s24, s13, 5\ns_lshl_b32 s25, s12, 3\ns_add_u32 s24, s24, s25\ns_lshl_b32 s24, s24, 10\ns_add_u32 s24, s24, {WO}")
    a.e("s_waitcnt vmcnt(0)")
    a.vmq = []
    for fr in range(8):
        q, e = fr // 2, fr % 2
        off = (28 * q + 16 * e) * 64
        trread(FR + 4*fr, 8, off); trread(FR + 4*fr + 2, 9 if e else 8, off + 512)
    for fr in range(8):
        a.e(f"s_waitcnt lgkmcnt({min(15, 14 - 2*fr)})")
        a.e(f"buffer_store_dwordx4 v[{FR+4*fr}:{FR+4*fr+3}], v1, s[4:7], s24 offen" + SC)
        a.e("s_add_u32 s24, s24, 1024")
    a.e(f"s_branch {name}_done")

    a.vmq = []; a.lgq = []
    a.label(f"{name}_Dn")
    load_src(a, 56, F * D * 2)
    a.e(f"s_sub_u32 s13, s2, {D0}\ns_lshr_b32 s14, s13, 2\ns_and_b32 s13, s13, 3")
    a.e("s_lshl_b32 s15, s14, 6\ns_mov_b32 s16, 896")
    lanes(16, 15)
    a.e(f"s_lshl_b32 s20, s13, 2\ns_add_u32 s20, s20, s12\ns_mul_i32 s20, s20, {112*896}\ns_mov_b32 s21, {16*896}")
    stage(7)
    a.e(f"s_mul_i32 s24, s14, 112\ns_mul_i32 s25, s13, 28\ns_add_u32 s24, s24, s25\ns_mul_i32 s25, s12, 7\ns_add_u32 s24, s24, s25\ns_lshl_b32 s24, s24, 10\ns_add_u32 s24, s24, {WD}")
    a.e("s_waitcnt vmcnt(0)")
    a.vmq = []
    for s in range(7):
        trread(FR + 4*s, 8, s * 1024); trread(FR + 4*s + 2, 8, s * 1024 + 512)
    for s in range(7):
        a.e(f"s_waitcnt lgkmcnt({min(15, 12 - 2*s)})")
        a.e(f"buffer_store_dwordx4 v[{FR+4*s}:{FR+4*s+3}], v1, s[4:7], s24 offen" + SC)
        a.e("s_add_u32 s24, s24, 1024")
    a.e(f"s_branch {name}_done")

    a.vmq = []; a.lgq = []
    a.label(f"{name}_F")
    load_src(a, 16, H * DH * DH * 2)
    a.e(f"v_mov_b32 v4, v1\ns_mul_i32 s20, s12, {4*1568}\ns_mov_b32 s21, 1024")
    stage(7)
    a.e("v_and_b32 v9, 3, v7\nv_bfe_u32 v10, v7, 4, 1\nv_bfe_u32 v11, v7, 2, 2")
    a.e("v_lshl_add_u32 v14, v10, 2, v9\nv_min_u32 v14, 6, v14\nv_lshlrev_b32 v14, 3, v14")
    a.e("v_lshl_add_u32 v11, v3, 2, v11\nv_mul_u32_u24 v11, 56, v11\nv_add_u32 v8, v11, v14")
    a.e(f"s_mul_i32 s13, s12, {7*KB}\nv_add_u32 v8, s13, v8")
    a.e(f"v_mov_b32 v14, {LOOB}\nv_cmp_eq_u32 vcc, 0, v3\nv_cndmask_b32 v9, v14, v8, vcc")
    a.e(f"s_lshl_b32 s24, s12, 13\ns_add_u32 s24, s24, {PHI}")
    a.e("s_waitcnt vmcnt(0)")
    a.vmq = []
    for fr in range(8):
        q, e = fr // 2, fr % 2
        off = q * 1568 + 16 * e * 56
        trread(FR + 4*fr, 8, off); trread(FR + 4*fr + 2, 9 if e else 8, off + 8 * 56)
    for fr in range(8):
        a.e(f"s_waitcnt lgkmcnt({min(15, 14 - 2*fr)})")
        a.e(f"buffer_store_dwordx4 v[{FR+4*fr}:{FR+4*fr+3}], v1, s[4:7], s24 offen" + SC)
        a.e("s_add_u32 s24, s24, 1024")
    a.e(f"s_branch {name}_done")

    a.vmq = []; a.lgq = []
    a.label(f"{name}_E")
    load_src(a, 0, S * D * 2)
    a.e(f"s_sub_u32 s14, s2, {E0}")
    a.e("s_min_u32 s13, s12, 2\ns_mul_i32 s15, s12, 4\ns_max_u32 s16, s12, 2\ns_sub_u32 s16, s16, 2\ns_sub_u32 s15, s15, s16")
    a.e("v_mul_u32_u24 v4, 896, v2\nv_lshlrev_b32 v5, 3, v3\nv_add_u32 v4, v4, v5")
    a.e("s_mul_i32 s20, s14, 28672\ns_lshl_b32 s16, s15, 6\ns_add_u32 s20, s20, s16")
    for n in range(4):
        for g in range(4):
            a.e(f"buffer_load_dwordx2 v[{16+8*n+2*g}:{17+8*n+2*g}], v4, s[8:11], s20 offen offset:{n*64+g*16}", tag=f"x{n}")
    a.e(f"s_mul_i32 s21, s14, 28\ns_lshl_b32 s16, s15, 1\ns_add_u32 s21, s21, s16\ns_lshl_b32 s21, s21, 10\ns_add_u32 s21, s21, {X}")
    a.e(f"s_mul_i32 s22, s14, 3584\ns_lshl_b32 s16, s15, 8\ns_add_u32 s22, s22, s16\ns_add_u32 s22, s22, {ST}")
    a.e("s_mov_b32 s23, 0x3f803f80")
    a.e("v_lshlrev_b32 v6, 3, v2")
    for n in range(4):
        if n == 3:
            a.e(f"s_cmp_ge_u32 s12, 2\ns_cbranch_scc1 {name}_done")
        a.wait_vm(f"x{n}")
        for s in range(2):
            a.e(f"buffer_store_dwordx4 v[{16+8*n+4*s}:{19+8*n+4*s}], v1, s[4:7], s21 offen" + SC, tag="st")
            a.e("s_add_u32 s21, s21, 1024")
        a.e("v_mov_b32 v8, 0\nv_mov_b32 v9, 0")
        for q in range(8):
            a.e(f"v_dot2_f32_bf16 v8, v{16+8*n+q}, s23, v8")
            a.e(f"v_dot2_f32_bf16 v9, v{16+8*n+q}, v{16+8*n+q}, v9")
        a.e("v_mov_b32 v10, v8\nv_mov_b32 v11, v9")
        a.e("v_permlane32_swap_b32 v10, v8\nv_permlane32_swap_b32 v11, v9")
        a.e("v_add_f32 v12, v8, v10\nv_add_f32 v13, v9, v11")
        a.e("s_mov_b32 exec_hi, 0")
        a.e(f"buffer_store_dwordx2 v[12:13], v6, s[4:7], s22 offen offset:{n*256}" + SC, tag="st")
        a.e("s_mov_b32 exec_hi, -1")
    a.label(f"{name}_done")
    if opts.get("prof"):
        a.e("s_waitcnt vmcnt(0)\ns_memrealtime s[66:67]\ns_waitcnt lgkmcnt(0)")
        a.e(f"s_lshl_b32 s20, s2, 3\ns_add_u32 s20, s20, {DBG + 256*512}\nv_mov_b32 v16, s64\nv_mov_b32 v17, s66\ns_mov_b64 exec, 1")
        a.e("buffer_store_dwordx2 v[16:17], off, s[4:7], s20")
    a.e("s_endpgm")
    return a.finalize()
```

```python
from layout import *
import struct
def hexf(x): return "0x%08x" % struct.unpack("<I", struct.pack("<f", x))[0]
LOOB = 0x30000
NA, NB, ND, NC = 48, 112, 49, 14
B0 = NA; D0 = B0 + NB; C0 = D0 + ND + 7; E0 = C0 + 16; F0 = 255
NXB = 224
WREG = 8192
L_SUM = 4 * WREG
P_X, P_WQKV, P_WPHI, P_WO, P_WG, P_WU, P_WD, P_OUT, P_DBG = 64, 66, 68, 70, 74, 76, 78, 80, 82

def emit_prep(a, name, opts):
    SC = " sc1"
    def src(ptr, size): a.e(f"s_mov_b32 s8, s{ptr}\ns_mov_b32 s9, s{ptr+1}\ns_mov_b32 s10, {size}\ns_mov_b32 s11, 0x20000")
    a.e("v_and_b32 v7, 63, v0\nv_lshlrev_b32 v1, 4, v7")
    a.e("v_and_b32 v2, 31, v0\nv_bfe_u32 v3, v0, 5, 1")
    a.e("v_lshrrev_b32 v4, 6, v0\nv_readfirstlane_b32 s12, v4")
    a.e("v_bfe_u32 v8, v7, 2, 2\nv_and_b32 v9, 3, v7\nv_bfe_u32 v10, v7, 4, 1")
    a.e("v_lshl_add_u32 v8, v3, 2, v8\nv_lshlrev_b32 v8, 6, v8")
    a.e("v_lshlrev_b32 v11, 5, v10\nv_lshl_add_u32 v11, v9, 3, v11\nv_add_u32 v8, v8, v11")
    a.e(f"s_lshl_b32 s13, s12, 13\nv_add_u32 v8, s13, v8")
    a.e("v_lshrrev_b32 v12, 2, v7\nv_lshlrev_b32 v13, 4, v9")
    a.e("s_waitcnt lgkmcnt(0)")
    a.e(f"s_mov_b32 s6, {WS_USED}\ns_mov_b32 s7, 0x20000")
    a.e(f"s_cmp_ge_u32 s2, {NXB}\ns_cbranch_scc1 {name}_nox")
    a.e(f"s_mov_b32 s8, s{P_X}\ns_mov_b32 s9, s{P_X+1}\ns_mov_b32 s10, {S*D*2}\ns_mov_b32 s11, 0x20000")
    a.e("s_mul_i32 s13, s2, 9363\ns_lshr_b32 s13, s13, 16")
    a.e("s_mul_i32 s14, s13, 7\ns_sub_u32 s14, s2, s14")
    a.e("s_lshr_b32 s15, s12, 1\ns_lshl_b32 s13, s13, 1\ns_add_u32 s30, s13, s15")
    a.e("s_and_b32 s15, s12, 1\ns_lshl_b32 s14, s14, 1\ns_add_u32 s31, s14, s15")
    a.e("v_mul_u32_u24 v4, 896, v2\nv_lshlrev_b32 v5, 3, v3\nv_add_u32 v4, v4, v5")
    a.e("s_mul_i32 s20, s30, 28672\ns_lshl_b32 s15, s31, 6\ns_add_u32 s20, s20, s15")
    for g in range(4):
        a.e(f"buffer_load_dwordx2 v[{64+2*g}:{65+2*g}], v4, s[8:11], s20 offen offset:{g*16}")
    a.label(f"{name}_nox")
    for lim, lab in ((B0, "A"), (D0, "B"), (D0 + ND, "Dn"), (C0, "pdone0"), (E0, "C"), (F0, "pdone0")):
        a.e(f"s_cmp_lt_u32 s2, {lim}\ns_cbranch_scc1 {name}_{lab}")
    a.vmq = []

    def stage(nins):
        a.e("s_lshl_b32 s22, s12, 13")
        for i in range(nins):
            a.e("s_mov_b32 m0, s22\ns_nop 0")
            a.e("buffer_load_dwordx4 v4, s[8:11], s20 offen lds", tag="raw")
            if i != nins - 1: a.e("s_add_u32 s20, s20, s21\ns_add_u32 s22, s22, 1024")
    def lanes(rb, col): a.e(f"v_mul_lo_u32 v4, s{rb}, v12\nv_add3_u32 v4, v4, v13, s{col}")
    def trread(dst, va, off): a.e(f"ds_read_b64_tr_b16 v[{dst}:{dst+1}], v{va} offset:{off}", tag="tr")
    def reset(): a.vmq = []; a.lgq = []
    def ts0(r):
        if opts.get("prof"): a.e(f"s_memrealtime s[{r}:{r+1}]\ns_waitcnt lgkmcnt(0)")
    FR = 16
    def ship(n):
        for fr in range(n):
            a.e(f"s_waitcnt lgkmcnt({min(15, 2*n - 2 - 2*fr)})")
            a.e(f"buffer_store_dwordx4 v[{FR+4*fr}:{FR+4*fr+3}], v1, s[4:7], s24 offen" + SC)
            a.e("s_add_u32 s24, s24, 1024")

    a.e("v_mov_b32 v16, 0\nv_mov_b32 v17, 0\nv_mov_b32 v18, 0\nv_mov_b32 v19, 0")
    a.e(f"v_lshlrev_b32 v5, 4, v0\ns_mov_b32 s20, {FLAGS}")
    for i in range(FLAGZ // 4096):
        a.e("buffer_store_dwordx4 v[16:19], v5, s[4:7], s20 offen" + SC)
        a.e("s_add_u32 s20, s20, 4096")
    src(P_WPHI, H * DH * DH * 2)
    a.e(f"v_mov_b32 v4, v1\ns_mul_i32 s20, s12, {4*1568}\ns_mov_b32 s21, 1024")
    stage(7)
    a.e("s_waitcnt vmcnt(7)\ns_barrier")
    a.e(f"s_mov_b32 s16, s{P_DBG}\ns_mov_b32 s17, s{P_DBG+1}\ns_mov_b32 s18, 256\ns_mov_b32 s19, 0x20000")
    a.e("v_mov_b32 v5, 1\ns_cmp_eq_u32 s12, 0\ns_cselect_b64 exec, 1, 0")
    a.e("buffer_store_dword v5, off, s[16:19], 0 sc1")
    a.e("s_mov_b64 exec, -1")
    a.e("v_and_b32 v9, 3, v7\nv_bfe_u32 v10, v7, 4, 1\nv_bfe_u32 v11, v7, 2, 2")
    a.e("v_lshl_add_u32 v14, v10, 2, v9\nv_min_u32 v14, 6, v14\nv_lshlrev_b32 v14, 3, v14")
    a.e("v_lshl_add_u32 v11, v3, 2, v11\nv_mul_u32_u24 v11, 56, v11\nv_add_u32 v8, v11, v14")
    a.e("s_lshl_b32 s13, s12, 13\nv_add_u32 v8, s13, v8")
    a.e(f"v_mov_b32 v14, {LOOB}\nv_cmp_eq_u32 vcc, 0, v3\nv_cndmask_b32 v9, v14, v8, vcc")
    a.e(f"s_lshl_b32 s24, s12, 13\ns_add_u32 s24, s24, {PHI}")
    ts0(94)
    a.e("s_waitcnt vmcnt(0)")
    ts0(92)
    reset()
    for fr in range(8):
        q, e = fr // 2, fr % 2
        off = q * 1568 + 16 * e * 56
        trread(FR + 4*fr, 8, off); trread(FR + 4*fr + 2, 9 if e else 8, off + 8 * 56)
    ship(8)
    a.e(f"s_branch {name}_pdone")

    reset()
    a.label(f"{name}_A")
    src(P_WQKV, D * 3 * D * 2)
    a.e("s_and_b32 s13, s2, 7\ns_lshr_b32 s14, s2, 3\ns_lshl_b32 s13, s13, 1\ns_and_b32 s15, s14, 1\ns_add_u32 s13, s13, s15\ns_lshr_b32 s14, s14, 1")
    a.e(f"s_mul_i32 s18, s13, 3\ns_add_u32 s18, s18, s14\ns_mul_i32 s18, s18, {28*KB}\ns_add_u32 s18, s18, {WQKV}")
    a.e("s_mul_i32 s14, s14, 896\ns_mul_i32 s13, s13, 56\ns_add_u32 s15, s13, s14")
    a.e("s_mov_b32 s16, 2688")
    a.e(f"v_and_b32 v11, v10, v9\nv_lshrrev_b32 v14, 1, v9\nv_and_b32 v11, v11, v14\nv_cmp_eq_u32 vcc, 1, v11\nv_mov_b32 v14, {LOOB}\nv_cndmask_b32 v8, v8, v14, vcc")
    a.e(f"s_branch {name}_AB")
    a.label(f"{name}_B")
    a.e(f"s_sub_u32 s13, s2, {B0}\ns_and_b32 s14, s13, 7\ns_lshr_b32 s13, s13, 3\ns_and_b32 s15, s13, 1\ns_lshr_b32 s13, s13, 1")
    a.e("s_lshl_b32 s13, s13, 3\ns_add_u32 s13, s13, s14")
    a.e("s_and_b32 s14, s13, 1\ns_lshr_b32 s13, s13, 1\ns_lshl_b32 s13, s13, 1\ns_add_u32 s13, s13, s15")
    a.e("s_lshl_b32 s13, s13, 1\ns_add_u32 s13, s13, s14")
    a.e("s_cmp_eq_u32 s14, 0")
    a.e(f"s_cselect_b32 s8, s{P_WG}, s{P_WU}\ns_cselect_b32 s9, s{P_WG+1}, s{P_WU+1}\ns_mov_b32 s10, {D*F*2}\ns_mov_b32 s11, 0x20000")
    a.e("s_lshr_b32 s15, s13, 1\ns_lshl_b32 s15, s15, 6")
    a.e("s_mov_b32 s16, 3584")
    a.e(f"s_mul_i32 s18, s13, {28*KB}\ns_add_u32 s18, s18, {WGU}")
    a.label(f"{name}_AB")
    lanes(16, 15)
    a.e("s_mul_i32 s20, s12, 112\ns_mul_i32 s20, s20, s16\ns_lshl_b32 s21, s16, 4")
    stage(7)
    a.e("s_mov_b32 s23, 0x3f803f80")
    a.e(f"s_mul_i32 s24, s12, {7*KB}\ns_add_u32 s24, s24, s18")
    ts0(94)
    a.e("s_waitcnt vmcnt(0)")
    ts0(92)
    reset()
    for s in range(7):
        trread(FR + 4*s, 8, s * 1024); trread(FR + 4*s + 2, 8, s * 1024 + 512)
    a.e("v_mov_b32 v48, 0\nv_mov_b32 v49, 0")
    for s in range(7):
        a.e(f"s_waitcnt lgkmcnt({min(15, 12 - 2*s)})")
        for d in range(4): a.e(f"v_dot2_f32_bf16 v{48 + d % 2}, v{FR+4*s+d}, s23, v{48 + d % 2}")
    a.lgq = []
    a.e(f"v_add_f32 v48, v48, v49\nv_lshlrev_b32 v9, 2, v0\nv_add_u32 v9, {L_SUM}, v9")
    a.e("ds_write_b32 v9, v48")
    a.e("s_waitcnt lgkmcnt(0)\ns_barrier")
    a.e(f"v_lshlrev_b32 v9, 2, v2\nv_add_u32 v9, {L_SUM}, v9")
    for q in range(8): a.e(f"ds_read_b32 v{50+q}, v9 offset:{q*128}")
    a.e("s_waitcnt lgkmcnt(0)")
    a.e("v_add_f32 v50, v50, v51\nv_add_f32 v52, v52, v53\nv_add_f32 v54, v54, v55\nv_add_f32 v56, v56, v57")
    a.e("v_add_f32 v50, v50, v52\nv_add_f32 v54, v54, v56\nv_add_f32 v50, v50, v54")
    a.e(f"v_mul_f32 v50, {hexf(-1.0/448)}, v50")
    for s in range(7):
        for d in range(4):
            r = FR + 4*s + d
            t = 52 + 2 * (d % 2)
            a.e(f"v_lshlrev_b32 v{t}, 16, v{r}\nv_and_b32 v{t+1}, 0xffff0000, v{r}")
            a.e(f"v_pk_add_f32 v[{t}:{t+1}], v[{t}:{t+1}], v[50:51] op_sel:[0,0] op_sel_hi:[1,0]")
            a.e(f"v_cvt_pk_bf16_f32 v{r}, v{t}, v{t+1}")
        a.e(f"buffer_store_dwordx4 v[{FR+4*s}:{FR+4*s+3}], v1, s[4:7], s24 offen" + SC)
        a.e("s_add_u32 s24, s24, 1024")
    a.e(f"s_branch {name}_pdone")

    reset()
    a.label(f"{name}_C")
    src(P_WO, D * D * 2)
    a.e(f"s_sub_u32 s13, s2, {C0}\ns_and_b32 s14, s13, 7\ns_lshr_b32 s13, s13, 3")
    a.e(f"s_cmp_eq_u32 s14, 7\ns_cbranch_scc1 {name}_pdone0")
    a.e("s_lshl_b32 s14, s14, 1\ns_add_u32 s13, s13, s14\ns_lshl_b32 s15, s13, 6\ns_mov_b32 s16, 896")
    lanes(16, 15)
    a.e(f"s_mul_i32 s20, s12, {112*896}\ns_mov_b32 s21, {16*896}")
    stage(7)
    a.e(f"v_mov_b32 v14, {LOOB}\nv_cmp_eq_u32 vcc, 0, v3\nv_cndmask_b32 v9, v14, v8, vcc")
    a.e(f"s_lshl_b32 s24, s13, 5\ns_lshl_b32 s25, s12, 3\ns_add_u32 s24, s24, s25\ns_lshl_b32 s24, s24, 10\ns_add_u32 s24, s24, {WO}")
    ts0(94)
    a.e("s_waitcnt vmcnt(0)")
    ts0(92)
    reset()
    for fr in range(8):
        q, e = fr // 2, fr % 2
        off = (28 * q + 16 * e) * 64
        trread(FR + 4*fr, 8, off); trread(FR + 4*fr + 2, 9 if e else 8, off + 512)
    ship(8)
    a.e(f"s_branch {name}_pdone")

    reset()
    a.label(f"{name}_Dn")
    src(P_WD, F * D * 2)
    a.e(f"s_sub_u32 s13, s2, {D0}\ns_mul_i32 s14, s13, 9363\ns_lshr_b32 s14, s14, 16")
    a.e("s_mul_i32 s25, s14, 7\ns_sub_u32 s25, s13, s25\ns_lshl_b32 s25, s25, 2\ns_add_u32 s25, s25, s12")
    a.e("v_lshrrev_b32 v4, 3, v7\nv_mul_u32_u24 v4, 896, v4\nv_and_b32 v5, 7, v7\nv_lshlrev_b32 v5, 4, v5\ns_lshl_b32 s15, s14, 7\nv_add3_u32 v4, v4, v5, s15")
    a.e(f"s_mul_i32 s20, s25, {64*896}\ns_mov_b32 s21, {8*896}")
    stage(8)
    a.e("v_bfe_u32 v8, v7, 2, 2\nv_lshl_add_u32 v8, v3, 2, v8\nv_lshlrev_b32 v8, 7, v8\nv_add_u32 v8, v8, v11")
    a.e("s_lshl_b32 s13, s12, 13\nv_add_u32 v8, s13, v8")
    a.e(f"s_mul_i32 s24, s14, 224\ns_lshl_b32 s26, s25, 2\ns_add_u32 s24, s24, s26\ns_lshl_b32 s24, s24, 10\ns_add_u32 s24, s24, {WD}")
    ts0(94)
    a.e("s_waitcnt vmcnt(0)")
    ts0(92)
    reset()
    for e in range(2):
        for s in range(4):
            fr = 4 * e + s
            trread(FR + 4*fr, 8, s * 2048 + e * 64); trread(FR + 4*fr + 2, 8, s * 2048 + e * 64 + 1024)
    for fr in range(8):
        a.e(f"s_waitcnt lgkmcnt({min(15, 14 - 2*fr)})")
        a.e(f"buffer_store_dwordx4 v[{FR+4*fr}:{FR+4*fr+3}], v1, s[4:7], s24 offen" + SC)
        a.e(f"s_add_u32 s24, s24, {1024 if fr != 3 else (112 - 3) * 1024}")
    a.e(f"s_branch {name}_pdone")

    reset()
    a.label(f"{name}_pdone0")
    a.e("s_waitcnt vmcnt(0)")
    if opts.get("prof"): a.e("s_memrealtime s[92:93]\ns_memrealtime s[94:95]\ns_waitcnt lgkmcnt(0)")
    a.label(f"{name}_pdone")
    a.e(f"s_cmp_ge_u32 s2, {NXB}\ns_cbranch_scc1 {name}_nox2")
    a.e(f"s_mul_i32 s21, s30, 28\ns_lshl_b32 s15, s31, 1\ns_add_u32 s21, s21, s15\ns_lshl_b32 s21, s21, 10\ns_add_u32 s21, s21, {X}")
    a.e(f"s_mul_i32 s22, s30, 3584\ns_lshl_b32 s15, s31, 8\ns_add_u32 s22, s22, s15\ns_add_u32 s22, s22, {ST}")
    a.e("s_mov_b32 s23, 0x3f803f80\nv_lshlrev_b32 v6, 3, v2\nv_mov_b32 v8, 0\nv_mov_b32 v9, 0")
    a.e("buffer_store_dwordx4 v[64:67], v1, s[4:7], s21 offen" + SC)
    a.e("buffer_store_dwordx4 v[68:71], v1, s[4:7], s21 offen offset:1024" + SC)
    for q in range(8):
        a.e(f"v_dot2_f32_bf16 v8, v{64+q}, s23, v8")
        a.e(f"v_dot2_f32_bf16 v9, v{64+q}, v{64+q}, v9")
    a.e("v_mov_b32 v10, v8\nv_mov_b32 v11, v9")
    a.e("v_permlane32_swap_b32 v10, v8\nv_permlane32_swap_b32 v11, v9")
    a.e("v_add_f32 v12, v8, v10\nv_add_f32 v13, v9, v11")
    a.e("s_mov_b32 exec_hi, 0")
    a.e("buffer_store_dwordx2 v[12:13], v6, s[4:7], s22 offen" + SC)
    a.e("s_mov_b32 exec_hi, -1")
    a.label(f"{name}_nox2")
    lab = f"{name}_pw"
    a.e(f"s_mov_b32 s16, s{P_DBG}\ns_mov_b32 s17, s{P_DBG+1}\ns_mov_b32 s18, 256\ns_mov_b32 s19, 0x20000")
    def ts(r):
        if opts.get("prof"): a.e(f"s_memrealtime s[{r}:{r+1}]\ns_waitcnt lgkmcnt(0)")
    ts(86)
    a.e("s_waitcnt vmcnt(0) lgkmcnt(0)\ns_barrier")
    ts(88)
    a.e(f"s_cmp_lg_u32 s12, 0\ns_cbranch_scc1 {lab}_skip")
    a.e("s_mov_b64 exec, 1\ns_mov_b32 s28, 0")
    a.label(f"{lab}_z")
    a.e("buffer_load_dword v5, off, s[16:19], 0 sc1")
    a.e(f"s_add_u32 s28, s28, 1\ns_cmp_gt_u32 s28, 200000\ns_cbranch_scc1 {lab}_zx")
    a.e(f"s_waitcnt vmcnt(0)\nv_readfirstlane_b32 s23, v5\ns_cmp_eq_u32 s23, 0\ns_cbranch_scc1 {lab}_z")
    a.label(f"{lab}_zx")
    ts(90)
    a.e(f"s_and_b32 s20, s2, 15\ns_lshl_b32 s20, s20, 7\ns_add_u32 s20, s20, {PFLAG}")
    a.e("v_mov_b32 v5, 1\ns_waitcnt vmcnt(0)")
    a.e("buffer_atomic_add v5, off, s[4:7], s20 sc1")
    a.e(f"s_mov_b64 exec, 0xffff\nv_and_b32 v6, 15, v0\nv_lshlrev_b32 v6, 7, v6\ns_mov_b32 s20, {PFLAG}\ns_mov_b32 s28, 0")
    a.label(f"{lab}_p")
    if int(opts.get("psl0", 0)): a.e(f"s_sleep {int(opts.get('psl0'))}")
    a.e("buffer_load_dword v5, v6, s[4:7], s20 offen sc1")
    a.e(f"s_add_u32 s28, s28, 1\ns_cmp_gt_u32 s28, 200000\ns_cbranch_scc1 {lab}_px")
    a.e(f"s_waitcnt vmcnt(0)\nv_cmp_gt_u32 vcc, 16, v5\ns_cbranch_vccnz {lab}_p")
    a.label(f"{lab}_px")
    a.e("s_waitcnt vmcnt(0)\ns_mov_b64 exec, -1")
    a.label(f"{lab}_skip")
    a.e("s_barrier")
    reset()
```

```python
import sys, kd
import prep2 as prep
import main3 as mainvk
from layout import *
KNAME = "interleave_layers__linear_kernel_hedgehog__geglu_ffn__prompt_kernel"
def build_single(opts):
    g = mainvk.Gen(KNAME, opts=opts)
    m = g.build()
    ref = open("interleave_layers__linear_kernel_hedgehog__geglu_ffn__prompt.s.ref").read().split("\n")
    keep = [l for l in ref if l.startswith(";") and "@launch" not in l and "Override launch" not in l and "grid=ceil" not in l]
    src = "\n".join(keep) + "\n" + f"; @launch grid=(256,1,1) block=(256,1,1) lds={mainvk.LDS_BYTES}\n"
    src += '.amdgcn_target "amdgcn-amd-amdhsa--gfx950"\n.text\n' + kd.head(KNAME) + m.text()
    src += '.section .rodata,"a"\n' + kd.kd(KNAME, 512, 256, 100)
    build.marks = getattr(g, "marks", [])
    return src, (0, 0, len(m.ins), m.nops_added)
def build(stop=None, opts=None, with_header=True):
    if opts and int(opts.get("single", 0)): return build_single(opts)
    p = prep.gen_prep("prep_kernel", opts)
    g = mainvk.Gen("main_kernel", stop=stop, opts=opts)
    m = g.build()
    hdr = ""
    if with_header:
        ref = open("interleave_layers__linear_kernel_hedgehog__geglu_ffn__prompt.s.ref").read().split("\n")
        keep = [l for l in ref if l.startswith(";") and "@launch" not in l and "Override launch" not in l and "grid=ceil" not in l]
        hdr = "\n".join(keep) + "\n"
        hdr += f"; @launch kernel=prep_kernel grid=({prep.NPREP},1,1) block=(256,1,1) lds={prep.PREP_LDS}\n"
        hdr += f"; @launch kernel=main_kernel grid=(256,1,1) block=(256,1,1) lds={mainvk.LDS_BYTES}\n"
    src = hdr + '.amdgcn_target "amdgcn-amd-amdhsa--gfx950"\n.text\n'
    src += kd.head("prep_kernel") + p.text() + kd.head("main_kernel") + m.text()
    src += '.section .rodata,"a"\n' + kd.kd("prep_kernel", 64, 64) + kd.kd("main_kernel", 512, 256, 100)
    build.marks = getattr(g, "marks", [])
    return src, (len(p.ins), p.nops_added, len(m.ins), m.nops_added)
if __name__ == "__main__":
    stop = sys.argv[2] if len(sys.argv) > 2 and sys.argv[2] != "none" else None
    opts = dict(kv.split("=") for kv in sys.argv[3:])
    src, info = build(stop, opts)
    open(sys.argv[1], "w").write(src)
    if build.marks: open(sys.argv[1] + ".marks", "w").write("\n".join(build.marks))
    print("prep instrs/nops, main instrs/nops:", info, "bytes", len(src))
```

```python
import re

TRANS = ("v_exp_f32", "v_log_f32", "v_rcp_f32", "v_rsq_f32", "v_sqrt_f32", "v_sin_f32", "v_cos_f32")

def split_ops(s):
    out, depth, cur = [], 0, ""
    for ch in s:
        if ch == "[": depth += 1
        if ch == "]": depth -= 1
        if ch == "," and depth == 0:
            out.append(cur.strip()); cur = ""
        else:
            cur += ch
    if cur.strip(): out.append(cur.strip())
    return out

_reg1 = re.compile(r"^-?(?:abs\()?\|?([vas])(\d+)\|?\)?$")
_regn = re.compile(r"^-?([vas])\[(\d+):(\d+)\]$")

def regs_of(tok):
    tok = tok.strip()
    first = tok.split()[0] if tok else ""
    m = _reg1.match(first)
    if m: return [(m.group(1), int(m.group(2)))]
    m = _regn.match(first)
    if m: return [(m.group(1), i) for i in range(int(m.group(2)), int(m.group(3)) + 1)]
    if first == "vcc": return [("s", "vcc")]
    if first in ("vcc_lo", "vcc_hi"): return [("s", "vcc")]
    if first == "m0": return [("s", "m0")]
    if first in ("exec", "exec_lo", "exec_hi"): return [("s", "exec")]
    return []

class Ins:
    __slots__ = ("text", "op", "defs", "uses", "kind", "srcC", "srcAB", "cost", "tag")
    def __init__(self, text):
        self.text = text
        self.tag = None
        t = text.split(";")[0].strip()
        self.defs, self.uses, self.srcC, self.srcAB = [], [], [], []
        if not t or t.endswith(":") or t.startswith("."):
            self.op = "label" if t.endswith(":") else "none"
            self.kind = self.op
            return
        parts = t.split(None, 1)
        op = self.op = parts[0]
        ops = split_ops(parts[1]) if len(parts) > 1 else []
        R = [regs_of(o) for o in ops]
        flat = lambda L: [r for x in L for r in x]
        if op.startswith("v_mfma"):
            self.kind = "mfma"
            self.defs = R[0]; self.srcAB = R[1] + R[2]; self.srcC = R[3]
            self.uses = self.srcAB + self.srcC
        elif op.startswith("buffer_") or op.startswith("global_"):
            self.kind = "vmem"
            is_lds = " lds" in (" " + t)
            if "_load" in op and not is_lds:
                self.defs = R[0]; self.uses = flat(R[1:])
            else:
                self.uses = flat(R)
                if is_lds: self.uses += [("s", "m0")]
            if "_store" in op or "_atomic" in op: self.kind = "vmem_st"
        elif op.startswith("ds_"):
            self.kind = "ds"
            if op.startswith("ds_read") or op.startswith("ds_bpermute") or op.startswith("ds_swizzle"):
                self.defs = R[0]; self.uses = flat(R[1:])
            else:
                self.uses = flat(R)
        elif op.startswith("v_"):
            self.kind = "valu"
            if op in TRANS or op.replace("_e32", "") in TRANS: self.kind = "trans"
            if op.startswith("v_dot2"): self.kind = "dot"
            if op.startswith("v_permlane"):
                self.kind = "perm"
                self.defs = R[0] + R[1]; self.uses = R[0] + R[1]
            elif op.startswith("v_readfirstlane") or op.startswith("v_readlane"):
                self.kind = "rdlane"
                self.defs = R[0]; self.uses = flat(R[1:])
            elif op.startswith("v_cmp"):
                self.defs = R[0]; self.uses = flat(R[1:])
            elif op.startswith("v_fmac") or op.startswith("v_dot2c") or op.startswith("v_pk_fmac"):
                self.defs = R[0]; self.uses = flat(R)
            elif op.startswith("v_cndmask") and len(ops) == 3:
                self.defs = R[0]; self.uses = flat(R[1:]) + [("s", "vcc")]
            elif op.startswith("v_add_co") or op.startswith("v_addc_co"):
                self.defs = R[0] + R[1]; self.uses = flat(R[2:])
            else:
                self.defs = R[0]; self.uses = flat(R[1:])
        elif op.startswith("s_"):
            self.kind = "salu"
            if op in ("s_waitcnt", "s_barrier", "s_nop", "s_endpgm", "s_sleep", "s_setprio") or op.startswith("s_cbranch") or op == "s_branch":
                self.kind = op if op in ("s_nop",) else ("branch" if ("branch" in op) else "sctl")
            elif op.startswith("s_cmp"):
                self.uses = flat(R)
            elif op.startswith("s_load") or op.startswith("s_mem"):
                self.kind = "smem"; self.defs = R[0]; self.uses = flat(R[1:])
            else:
                self.defs = R[0]; self.uses = flat(R[1:])
        else:
            raise ValueError("unknown instruction: " + text)

    def states(self):
        if self.kind in ("label", "none"): return 0
        if self.op == "s_nop":
            return int(self.text.split()[1], 0) + 1
        return 1

class Asm:
    def __init__(self):
        self.ins = []
        self.vmq = []
        self.lgq = []
        self.uid = 0
        self.vm_total = 0

    def e(self, text, tag=None):
        for line in text.split("\n"):
            line = line.strip()
            if not line: continue
            i = Ins(line)
            i.tag = tag
            self.ins.append(i)
            if i.kind in ("vmem", "vmem_st"):
                self.vmq.append(tag); self.vm_total += 1
            elif i.kind == "ds": self.lgq.append(tag)
            elif i.op == "s_waitcnt":
                m = re.search(r"vmcnt\((\d+)\)", line)
                if m:
                    n = int(m.group(1))
                    self.vmq = self.vmq[len(self.vmq) - n:] if n < len(self.vmq) and n > 0 else ([] if n == 0 else self.vmq)
                m = re.search(r"lgkmcnt\((\d+)\)", line)
                if m:
                    n = int(m.group(1))
                    self.lgq = self.lgq[len(self.lgq) - n:] if n < len(self.lgq) and n > 0 else ([] if n == 0 else self.lgq)
    def label(self, name): self.e(name + ":")
    def newlabel(self, base):
        self.uid += 1
        return "%s_%d" % (base, self.uid)
    def e_uncounted(self, text):
        vq, lq, vt = list(self.vmq), list(self.lgq), self.vm_total
        self.e(text)
        self.vmq, self.lgq, self.vm_total = vq, lq, vt

    def _need(self, q, tags):
        if isinstance(tags, str): tags = (tags,)
        last = -1
        for i, t in enumerate(q):
            if t in tags: last = i
        if last < 0: return None
        return len(q) - 1 - last
    def wait_vm(self, tags):
        n = self._need(self.vmq, tags)
        if n is not None: self.e("s_waitcnt vmcnt(%d)" % min(n, 63))
    def wait_lg(self, tags):
        n = self._need(self.lgq, tags)
        if n is not None: self.e("s_waitcnt lgkmcnt(%d)" % min(n, 15))
    def wait_both(self, vtags, ltags):
        n = self._need(self.vmq, vtags) if vtags else None
        m = self._need(self.lgq, ltags) if ltags else None
        s = []
        if n is not None: s.append("vmcnt(%d)" % min(n, 63))
        if m is not None: s.append("lgkmcnt(%d)" % min(m, 15))
        if s: self.e("s_waitcnt " + " ".join(s))

    def finalize(self):
        out = []
        pos = 0
        wr = {}
        rdC = {}
        st = {}
        added = 0
        def need_for(i):
            need = 0
            def req(p, n):
                nonlocal need
                need = max(need, n - (pos - p - 1))
            k = i.kind
            for r in i.uses:
                if r in wr:
                    p, wk = wr[r]
                    if wk == "mfma":
                        if k == "mfma":
                            if r in i.srcC and i.srcC == i.defs and wr.get(("mf", r)) == tuple(i.srcC): pass
                            elif r in i.srcC: req(p, 10)
                            if r in i.srcAB: req(p, 12)
                        elif k in ("valu", "trans", "dot", "perm", "rdlane", "vmem", "vmem_st", "ds"): req(p, 12)
                    elif wk in ("valu", "trans", "dot", "perm", "rdlane", "cmp"):
                        isv = r[0] in "va"
                        if isv:
                            if k == "mfma": req(p, 2)
                            if k == "perm": req(p, 2)
                            if k == "rdlane": req(p, 1)
                            if wk == "trans" and k != "trans": req(p, 1)
                            if wk == "dot" and not (k == "dot"): req(p, 3)
                            if wk == "dot" and k == "dot": req(p, 3 if r not in i.defs else 0)
                            if "dpp" in i.text: req(p, 2)
                        else:
                            if k in ("valu", "trans", "dot", "perm"): req(p, 2)
                            if k in ("vmem", "vmem_st"): req(p, 5)
                            if k == "rdlane": req(p, 4)
                            if k in ("salu", "branch", "smem"): req(p, 1)
                    elif wk == "salu":
                        if r == ("s", "m0") and k in ("vmem", "vmem_st", "ds"): req(p, 1)
            for r in i.defs:
                if r in wr and wr[r][1] == "mfma" and k != "mfma": req(wr[r][0], 12)
                if r in wr and wr[r][1] == "mfma" and k == "mfma" and not (r in i.srcC and i.srcC == i.defs):
                    req(wr[r][0], 10)
                if r in rdC and k in ("valu", "trans", "dot", "perm", "rdlane"): req(rdC[r], 7)
                if r in st and k != "salu": req(st[r], 2)
            return need
        for i in self.ins:
            if i.kind == "none":
                out.append(i); continue
            if i.kind == "label" or i.kind == "branch":
                worst = 0
                for r, (p, wk) in [(r, v) for r, v in wr.items() if r[0] != "mf"]:
                    n = {"mfma": 12, "valu": 2, "trans": 2, "dot": 3, "perm": 2, "rdlane": 5, "salu": 1, "cmp": 5}.get(wk, 0)
                    if r[0] == "s" and wk in ("valu", "rdlane", "trans"): n = 5
                    worst = max(worst, n - (pos - p - 1))
                for r, p in rdC.items(): worst = max(worst, 7 - (pos - p - 1))
                for r, p in st.items(): worst = max(worst, 2 - (pos - p - 1))
                while worst > 0:
                    n = min(worst, 16)
                    out.append(Ins("s_nop %d" % (n - 1))); pos += n; worst -= n; added += 1
                out.append(i)
                if i.kind == "branch": pos += 1
                continue
            need = need_for(i)
            while need > 0:
                n = min(need, 16)
                out.append(Ins("s_nop %d" % (n - 1))); pos += n; need -= n; added += 1
            out.append(i)
            for r in i.defs:
                wr[r] = (pos, i.kind)
                wr.pop(("mf", r), None)
            if i.kind == "mfma":
                for r in i.defs: wr[("mf", r)] = tuple(i.defs)
                for r in i.srcC: rdC[r] = pos
            if i.kind == "vmem_st" and ("x4" in i.op or "x3" in i.op):
                for r in i.uses:
                    if r[0] in "va": st[r] = pos
            pos += i.states()
            if len(wr) > 4000:
                wr = {r: v for r, v in wr.items() if r[0] == "mf" or pos - v[0] < 40}
        self.ins = out
        self.nops_added = added
        return self

    def text(self):
        L = []
        for i in self.ins:
            L.append(i.text if i.kind == "label" else "    " + i.text)
        return "\n".join(L) + "\n"

def interleave(main, fill, budget=24):
    raise NotImplementedError
```

```python
from asmlib import Asm
from layout import *
import struct
def hexf(x): return "0x%08x" % struct.unpack("<I", struct.pack("<f", x))[0]

L_W1   = 0
L_XR   = 86016
XSLOT  = 29696
L_KVR  = 86016
L_KVA  = 118784
L_RED  = 86016
L_SCR3 = 145408
L_SCR  = 147456
LDS_BYTES = 163840

S_RB, S_J, S_W, S_L, S_TH, S_CB, S_TT, S_NT = 12, 13, 14, 15, 16, 17, 18, 19
S_T0, S_T1, S_T2, S_T3 = 20, 21, 22, 23
S_SEL_LO, S_SEL_HI = 24, 25
S_UP = 26
S_CNT, S_JS, S_Q, S_M = 28, 29, 30, 31
S_A, S_B, S_C, S_D = 32, 33, 34, 35
S_E, S_F = 38, 39
S_G = [40, 41, 42, 43, 44, 45, 46, 47]
S_FRB, S_FJ = 48, 49
S_TILE, S_N = 50, 51
S_XT = 52
F_S1, F_S2, F_S3, F_S4E, F_S4L, F_S5 = 0, 1, 2, 3, 5, 7

V_POLL, V_L16, V_L16H, V_STL, V_I8, V_ONE, V_C, V_MARK = 0, 1, 2, 3, 4, 5, 6, 7
V_T0, V_T1, V_T2, V_T3, V_T4, V_T5, V_T6, V_T7 = 8, 9, 10, 11, 12, 13, 14, 15
A_PHI, A_ID, A_RES = 232, 240, 248

def vr(b, n=4): return f"v[{b}:{b+n-1}]"
def ar(b, n=4): return f"a[{b}:{b+n-1}]"
MF = "v_mfma_f32_32x32x16_bf16"
def cost_of(t):
    if t.startswith(("v_exp", "v_rcp", "v_rsq")): return 8
    if t.startswith("v_mfma"): return 32
    if t.startswith("@"): return 2
    return 4

class Gen:
    def __init__(self, name, stop=None, opts=None):
        self.a = Asm(); self.name = name; self.stop = stop; self.o = opts or {}
        self.marks = []
    def opt(self, k, d): return int(self.o.get(k, d))

    def emit(self, t):
        a = self.a
        if t.startswith("@waitlg "): a.wait_lg(tuple(t.split()[1:]))
        elif t.startswith("@waitvm "): a.wait_vm(tuple(t.split()[1:]))
        elif "|" in t:
            txt, tag = t.split("|"); a.e(txt, tag=tag)
        else: a.e(t)
    def emits(self, L):
        for t in L: self.emit(t)
    def sa(self, dst, terms, const=0):
        L = []
        first = True
        for r, m in terms:
            tgt = dst if first else S_T3
            if m == 1:
                if first: L.append(f"s_mov_b32 s{dst}, s{r}")
                else: L.append(f"s_add_u32 s{dst}, s{dst}, s{r}")
                first = False
                continue
            if m & (m - 1) == 0: L.append(f"s_lshl_b32 s{tgt}, s{r}, {m.bit_length()-1}")
            else: L.append(f"s_mul_i32 s{tgt}, s{r}, {m}")
            if not first: L.append(f"s_add_u32 s{dst}, s{dst}, s{S_T3}")
            first = False
        if first: L.append(f"s_mov_b32 s{dst}, {const}")
        elif const: L.append(f"s_add_u32 s{dst}, s{dst}, {const}")
        return L
    def ld(self, dst, soff, imm, tag, sc1=True, n=4, vaddr=V_L16):
        op = {4: "buffer_load_dwordx4", 2: "buffer_load_dwordx2", 1: "buffer_load_dword"}[n]
        return f"{op} {dst}, v{vaddr}, s[4:7], s{soff} offen" + (f" offset:{imm}" if imm else "") + (" sc1" if sc1 else "") + f"|{tag}"
    def st(self, src, soff, imm, tag, n=4, vaddr=V_L16):
        op = {4: "buffer_store_dwordx4", 2: "buffer_store_dwordx2"}[n]
        return f"{op} {src}, v{vaddr}, s[4:7], s{soff} offen" + (f" offset:{imm}" if imm else "") + f" sc1|{tag}"
    def seq_items(self, n, dstf, cur, tagf, sc1):
        items = []
        for i in range(n):
            it = [self.ld(dstf(i), cur, (i % 4) * 1024, tagf(i), sc1)]
            if i % 4 == 3 and i != n - 1: it.append(f"s_add_u32 s{cur}, s{cur}, 4096")
            items.append(it)
        return items
    def dma_items(self, n, lds, cur, tag, sc1):
        items = []
        for i in range(n):
            it = []
            if i % 4 == 0: it += [f"s_mov_b32 m0, s{lds}", "s_nop 0"]
            it.append(f"buffer_load_dwordx4 v{V_L16}, s[4:7], s{cur} offen" + (f" offset:{(i%4)*1024}" if i % 4 else "") + (" sc1" if sc1 else "") + f" lds|{tag}")
            if i % 4 == 3 and i != n - 1: it += [f"s_add_u32 s{cur}, s{cur}, 4096", f"s_add_u32 s{lds}, s{lds}, 4096"]
            items.append(it)
        return items
    @staticmethod
    def zip2(x, y):
        out = []
        for i in range(max(len(x), len(y))):
            if i < len(x): out.append(x[i])
            if i < len(y): out.append(y[i])
        return out
    def take(self, bg, n):
        for _ in range(n):
            if bg: self.emits(bg.pop(0))
    def ldsaddr(self, off):
        if off < 65536: return V_L16, off
        assert off < 131072
        return V_L16H, off - 65536

    def weave(self, mains, fills, bg=None, bg_every=2, bg_start=0, caps=(24,), bg_phase=0):
        fi = 0
        nb = 0
        for k, m in enumerate(mains):
            m()
            cap = caps[k % len(caps)]
            c = 0
            if bg and k >= bg_start and (k - bg_start) % bg_every == bg_phase:
                it = bg.pop(0)
                self.emits(it); c += 12 if any(" lds" in t for t in it) else 8
            nv = 0
            while fi < len(fills):
                t = fills[fi]
                if t.startswith("s_") or t.startswith("@"):
                    self.emit(t); fi += 1; continue
                w = cost_of(t)
                if t.startswith("ds_read") or t.startswith("ds_write") or t.startswith("buffer_"): w = 8
                lim = cap if (w == 8 or nv * 4 != c) else min(cap, 20)
                if c + w > lim: break
                self.emit(t); fi += 1; c += w
                if w == 4: nv += 1
        while fi < len(fills):
            self.emit(fills[fi]); fi += 1
    def emits_bg(self, L, bg, n, first=0, every=10):
        k = 0
        for i, t in enumerate(L):
            if k < n and bg and i >= first and (i - first) % every == 0:
                self.emits(bg.pop(0)); k += 1
            self.emit(t)

    def mark(self, name):
        if not self.o.get("prof"): return
        if self.opt("prof", 0) == 3 and (name != "p1_start" or self.opt("single", 0) or self.opt("y", 0)): return
        a = self.a
        k = len(self.marks); self.marks.append(name)
        a.e(("s_memtime" if self.opt("prof", 0) == 2 else "s_memrealtime") + " s[36:37]\ns_waitcnt lgkmcnt(0)")
        a.lgq = []
        a.e(f"v_writelane_b32 v{V_MARK}, s36, {k}")
    def dump_marks(self):
        a = self.a
        lab = a.newlabel("dm")
        a.e("s_memrealtime s[36:37]\ns_waitcnt lgkmcnt(0)")
        a.e(f"v_writelane_b32 v{V_MARK}, s36, 63")
        a.e(f"s_cmp_lg_u32 s{S_W}, 0\ns_cbranch_scc1 {lab}")
        a.e(f"s_lshl_b32 s{S_T0}, s2, 9\ns_add_u32 s{S_T0}, s{S_T0}, {DBG}")
        a.e(f"v_lshrrev_b32 v{V_T0}, 2, v{V_L16}")
        a.e(f"v_accvgpr_read_b32 v{V_T1}, a224")
        a.e(f"buffer_store_dword v{V_T1}, v{V_T0}, s[4:7], s{S_T0} offen")
        a.e(f"buffer_store_dword v{V_MARK}, v{V_T0}, s[4:7], s{S_T0} offen offset:256")
        a.e("s_waitcnt vmcnt(0)")
        a.label(lab)

    def arrive(self, base, slot, tags, slot_sreg=None, barrier=True):
        a = self.a
        a.wait_vm(tags)
        if barrier: a.e("s_barrier")
        a.e(f"s_add_u32 s{S_T2}, s{base}, {slot*2048}")
        if slot_sreg is not None: a.e(f"s_lshl_b32 s{S_T3}, s{slot_sreg}, 11\ns_add_u32 s{S_T2}, s{S_T2}, s{S_T3}")
        a.e(f"v_mov_b32 v{V_T7}, 1\ns_cmp_eq_u32 s{S_W}, 0\ns_cselect_b64 exec, 1, 0")
        a.e_uncounted(f"buffer_atomic_add v{V_T7}, off, s[4:7], s{S_T2} sc1")
        a.e("s_mov_b64 exec, -1")
    def poll(self, base, slot, target, slot_sreg=None, extra=0):
        a = self.a
        lab, lp, lx = a.newlabel("pol"), a.newlabel("plp"), a.newlabel("plx")
        a.e(f"s_add_u32 s{S_T2}, s{base}, {slot*2048 + extra}")
        if slot_sreg is not None: a.e(f"s_lshl_b32 s{S_T3}, s{slot_sreg}, 11\ns_add_u32 s{S_T2}, s{S_T2}, s{S_T3}")
        a.e(f"s_cmp_lg_u32 s{S_W}, 0\ns_cbranch_scc1 {lab}")
        vq, lq = list(a.vmq), list(a.lgq)
        dep = self.opt("pdepth", 2)
        a.e(f"s_mov_b32 s{S_CNT}, 0")
        for k in range(dep):
            a.e(f"s_mov_b64 exec, {1 << k}\nbuffer_load_dword v{V_POLL}, off, s[4:7], s{S_T2} sc1")
            if k != dep - 1: a.e(f"s_sleep {self.opt('psleep', 2)}")
        a.label(lp)
        for k in range(dep):
            a.e(f"s_waitcnt vmcnt({dep-1})\nv_readlane_b32 s{S_T3}, v{V_POLL}, {k}")
            a.e(f"s_cmp_ge_u32 s{S_T3}, {target}\ns_cbranch_scc1 {lx}")
            a.e(f"s_mov_b64 exec, {1 << k}\nbuffer_load_dword v{V_POLL}, off, s[4:7], s{S_T2} sc1")
        a.e(f"s_add_u32 s{S_CNT}, s{S_CNT}, 1\ns_cmp_lt_u32 s{S_CNT}, 200000\ns_cbranch_scc1 {lp}")
        a.label(lx)
        a.e("s_mov_b64 exec, -1")
        a.vmq, a.lgq = vq, lq
        a.label(lab)
        a.e("s_barrier")

    def apoll_issue(self, base, slot, lane, slot_sreg, dst):
        a = self.a
        a.e(f"s_lshl_b32 s{dst}, s{slot_sreg}, 11\ns_add_u32 s{dst}, s{dst}, s{base}\ns_add_u32 s{dst}, s{dst}, {slot*2048}")
        a.e(f"s_mov_b64 exec, {1 << lane}")
        a.e(f"buffer_load_dword v{V_POLL}, off, s[4:7], s{dst} sc1", tag=f"ap{lane}")
        a.e("s_mov_b64 exec, -1")
    def apoll_check(self, lane, target, dst):
        a = self.a
        ok, lp = a.newlabel("apk"), a.newlabel("apl")
        a.wait_vm(f"ap{lane}")
        a.e(f"v_readlane_b32 s{S_T3}, v{V_POLL}, {lane}\ns_cmp_ge_u32 s{S_T3}, {target}\ns_cbranch_scc1 {ok}")
        vq, lq = list(a.vmq), list(a.lgq)
        a.e(f"s_mov_b32 s{S_CNT}, 0\ns_mov_b64 exec, {1 << lane}")
        a.label(lp)
        a.e(f"buffer_load_dword v{V_POLL}, off, s[4:7], s{dst} sc1")
        a.e(f"s_add_u32 s{S_CNT}, s{S_CNT}, 1\ns_cmp_gt_u32 s{S_CNT}, 200000\ns_cbranch_scc1 {lp}_x")
        a.e(f"s_waitcnt vmcnt(0)\nv_readlane_b32 s{S_T3}, v{V_POLL}, {lane}\ns_cmp_lt_u32 s{S_T3}, {target}\ns_cbranch_scc1 {lp}")
        a.label(f"{lp}_x")
        a.e("s_waitcnt vmcnt(0)\ns_mov_b64 exec, -1")
        a.vmq, a.lgq = vq, lq
        a.label(ok)

    @staticmethod
    def bc(r): return f"v[{r & ~1}:{(r & ~1) + 1}]", r & 1
    def pk_fma_bc(self, dst, src, rb, rc, neg_a=0, neg_c=0):
        (tb, sb), (tc, sc) = self.bc(rb), self.bc(rc)
        return (f"v_pk_fma_f32 v[{dst}:{dst+1}], v[{src}:{src+1}], {tb}, {tc} op_sel:[0,{sb},{sc}] op_sel_hi:[1,{sb},{sc}]"
                f" neg_lo:[{neg_a},0,{neg_c}] neg_hi:[{neg_a},0,{neg_c}]")
    def pk_mul_bc(self, dst, src, rb):
        tb, sb = self.bc(rb)
        return f"v_pk_mul_f32 v[{dst}:{dst+1}], v[{src}:{src+1}], {tb} op_sel:[0,{sb}] op_sel_hi:[1,{sb}]"
    @staticmethod
    def pk_add(dst, x, y): return f"v_pk_add_f32 v[{dst}:{dst+1}], v[{x}:{x+1}], v[{y}:{y+1}]"

    def stats_reduce(self, b, vV, vM, t0, t1):
        L = []
        for k in (0, 1):
            L += [f"v_add_f32 v{b+k}, v{b+k}, v{b+2+k}", f"v_add_f32 v{b+4+k}, v{b+4+k}, v{b+6+k}", f"v_add_f32 v{b+8+k}, v{b+8+k}, v{b+10+k}"]
        for k in (0, 1):
            L += [f"v_add_f32 v{b+k}, v{b+k}, v{b+4+k}", f"v_add_f32 v{b+8+k}, v{b+8+k}, v{b+12+k}"]
        for k in (0, 1): L += [f"v_add_f32 v{b+k}, v{b+k}, v{b+8+k}"]
        L += [f"v_mov_b32 v{t0}, v{b}", f"v_mov_b32 v{t1}, v{b+1}", "s_nop 0",
              f"v_permlane32_swap_b32 v{t0}, v{b}", f"v_permlane32_swap_b32 v{t1}, v{b+1}",
              f"v_add_f32 v{b}, v{b}, v{t0}", f"v_add_f32 v{b+1}, v{b+1}, v{t1}",
              f"v_mul_f32 v{vM}, {hexf(1.0/D)}, v{b}",
              f"v_mul_f32 v{t1}, {hexf(1.0/D)}, v{b+1}",
              f"v_mul_f32 v{t0}, v{vM}, v{vM}",
              f"v_sub_f32 v{vV}, v{t1}, v{t0}",
              f"v_max_f32 v{vV}, 0, v{vV}",
              f"v_add_f32 v{vV}, {hexf(1e-5)}, v{vV}"]
        return L

    def softmax(self, R, P, t):
        mx, mn, u, w, bp, bn, bpm, bnm = [t + k for k in range(8)]
        L = [f"v_max3_f32 v{mx}, v{R}, v{R+1}, v{R+2}", f"v_min3_f32 v{mn}, v{R}, v{R+1}, v{R+2}",
             f"v_max3_f32 v{u}, v{R+3}, v{R+4}, v{R+5}", f"v_min3_f32 v{w}, v{R+3}, v{R+4}, v{R+5}"]
        for k in (6, 10):
            L += [f"v_max3_f32 v{mx}, v{mx}, v{R+k}, v{R+k+1}", f"v_min3_f32 v{mn}, v{mn}, v{R+k}, v{R+k+1}",
                  f"v_max3_f32 v{u}, v{u}, v{R+k+2}, v{R+k+3}", f"v_min3_f32 v{w}, v{w}, v{R+k+2}, v{R+k+3}"]
        L += [f"v_max3_f32 v{mx}, v{mx}, v{R+14}, v{R+15}", f"v_min3_f32 v{mn}, v{mn}, v{R+14}, v{R+15}",
              f"v_max_f32 v{mx}, v{mx}, v{u}", f"v_min_f32 v{mn}, v{mn}, v{w}",
              f"v_mov_b32 v{u}, v{mx}", f"v_mov_b32 v{w}, v{mn}",
              f"v_mov_b32 v{bpm}, {hexf(1e30)}", f"v_mov_b32 v{bnm}, {hexf(-1e30)}",
              f"v_permlane32_swap_b32 v{u}, v{mx}", f"v_permlane32_swap_b32 v{w}, v{mn}",
              f"v_max_f32 v{mx}, v{mx}, v{u}", f"v_min_f32 v{mn}, v{mn}, v{w}",
              f"v_mul_f32 v{bp}, v{V_C}, v{mx}", f"v_mul_f32 v{bn}, v{V_C}, v{mn}",
              f"v_cndmask_b32 v{bpm}, v{bp}, v{bpm}, s[{S_UP}:{S_UP+1}]",
              f"v_cndmask_b32 v{bnm}, v{bn}, v{bnm}, s[{S_UP}:{S_UP+1}]"]
        for g in range(4):
            for k in (0, 2): L.append(self.pk_fma_bc(P + 4*g + k, R + 4*g + k, V_C, bpm if g == 3 else bp, 0, 1))
            for k in (0, 2): L.append(self.pk_fma_bc(R + 4*g + k, R + 4*g + k, V_C, bnm if g == 3 else bn, 1, 0))
        for g in range(4):
            for k in range(4): L.append(f"v_exp_f32 v{P+4*g+k}, v{P+4*g+k}")
            for k in range(4): L.append(f"v_exp_f32 v{R+4*g+k}, v{R+4*g+k}")
            if g == 1: L += [self.pk_add(mx, P, P + 2), self.pk_add(u, R, R + 2)]
            elif g >= 2:
                for k in (0, 2): L += [self.pk_add(mx, mx, P + 4*(g-1) + k), self.pk_add(u, u, R + 4*(g-1) + k)]
        for k in (0, 2): L += [self.pk_add(mx, mx, P + 12 + k), self.pk_add(u, u, R + 12 + k)]
        L += [f"v_add_f32 v{mx}, v{mx}, v{mn}", f"v_add_f32 v{u}, v{u}, v{w}",
              f"v_mov_b32 v{mn}, v{mx}", f"v_mov_b32 v{w}, v{u}", "s_nop 0",
              f"v_permlane32_swap_b32 v{mn}, v{mx}", f"v_permlane32_swap_b32 v{w}, v{u}",
              f"v_add_f32 v{mx}, v{mx}, v{mn}", f"v_add_f32 v{u}, v{u}, v{w}",
              f"v_rcp_f32 v{mx}, v{mx}", f"v_rcp_f32 v{u}, v{u}"]
        for k in range(0, 16, 2): L.append(self.pk_mul_bc(P + k, P + k, mx))
        for k in range(0, 16, 2): L.append(self.pk_mul_bc(R + k, R + k, u))
        for d in range(8): L.append(f"v_cvt_pk_bf16_f32 v{P+d}, v{P+2*d}, v{P+2*d+1}")
        for d in range(8): L.append(f"v_cvt_pk_bf16_f32 v{R+d}, v{R+2*d}, v{R+2*d+1}")
        return L

    def phi_apply(self, R, tb):
        L = [f"v_cvt_pk_bf16_f32 v{tb+d}, v{R+2*d}, v{R+2*d+1}" for d in range(8)]
        L.append(f"{MF} {vr(R,16)}, {ar(A_PHI)}, {vr(tb)}, 0")
        L.append(f"{MF} {vr(R,16)}, {ar(A_PHI+4)}, {vr(tb+4)}, {vr(R,16)}")
        return L

    def w3_stream(self):
        g0, g1 = S_G[0], S_G[1]
        pre = self.sa(g0, [(S_JS, 4 * 56 * KB), (S_W, 56 * KB)], WGU) + [f"s_add_u32 s{g1}, s{g0}, {28*KB}"]
        its = self.zip2(self.seq_items(28, lambda s: ar(8*s), g0, lambda s: f"w3_{s}", False),
                        self.seq_items(28, lambda s: ar(8*s+4), g1, lambda s: f"w3_{s}", False))
        self.emits(pre)
        return its
    def wo_stream(self):
        its = []
        for sl in range(2):
            c = S_G[2 + sl]
            pre = [f"s_xor_b32 s{c}, s{S_NT}, {sl}"] + [f"s_lshl_b32 s{c}, s{c}, 15"] + self.sa(S_T0, [(S_CB, 2 * 32 * KB), (S_W, 8 * KB)], WO) + [f"s_add_u32 s{c}, s{c}, s{S_T0}"]
            x = self.seq_items(8, lambda i: vr(16 + 32 * sl + 4 * i), c, lambda i: "wo", False)
            self.emits(pre)
            its.append(x)
        return self.zip2(its[0], its[1])
    W4A = 128
    def w4_reg(self, i, sl):
        return vr(self.W4A + 8*i + 4*sl) if i < 16 else ar(8*(i - 16) + 4*sl)
    def kseg(self, dst, late):
        if late: return self.sa(dst, [(S_TH, 56), (S_W, 14)], 0)
        return self.sa(dst, [(S_W, 14)], 56) + [f"s_mul_i32 s{S_T3}, s{S_TH}, 56", f"s_sub_u32 s{dst}, s{dst}, s{S_T3}"]
    def w4_stream(self):
        out = []
        for late in (0, 1):
            its = []
            for sl in range(2):
                c = S_G[2 * late + sl]
                pre = self.kseg(S_T0, late) + [f"s_xor_b32 s{c}, s{S_NT}, {sl}", f"s_mul_i32 s{c}, s{c}, 112", f"s_add_u32 s{c}, s{c}, s{S_T0}"]
                pre += [f"s_mul_i32 s{S_T0}, s{S_CB}, 224", f"s_add_u32 s{c}, s{c}, s{S_T0}", f"s_lshl_b32 s{c}, s{c}, 10", f"s_add_u32 s{c}, s{c}, {WD}"]
                x = self.seq_items(14, lambda i: self.w4_reg(14 * late + i, sl), c, lambda i: f"w4_{14*late+i}", False)
                self.emits(pre)
                its.append(x)
            out += self.zip2(its[0], its[1])
        return out
    def p1w_items(self, part):
        c, l = S_G[4], S_G[5]
        its = self.dma_items(7, l, c, "w1" + "qkv"[part], False)
        pre = self.sa(l, [(S_W, 7 * KB)], L_W1 + part * 28 * KB) + self.sa(c, [(S_J, 84 * KB), (S_W, 7 * KB)], WQKV + part * 28 * KB)
        its[0] = pre + its[0]
        return its

    def prologue(self):
        a, n = self.a, self.name
        a.label(n)
        a.e(f"s_cmp_lt_u32 s2, 256\ns_cbranch_scc1 {n}_go\ns_endpgm")
        a.label(f"{n}_go")
        Y = self.opt("y", 0)
        if Y:
            import start4
            self.st4 = start4.Start(self)
            a.e("s_load_dwordx16 s[64:79], s[0:1], 0\ns_load_dwordx4 s[80:83], s[0:1], 64\ns_load_dwordx2 s[4:5], s[0:1], 80")
            if self.o.get("prof"): a.e("s_memrealtime s[84:85]")
        elif self.opt("single", 0):
            import prep3
            a.e("s_load_dwordx16 s[64:79], s[0:1], 0\ns_load_dwordx4 s[80:83], s[0:1], 64\ns_load_dwordx2 s[4:5], s[0:1], 80")
            if self.o.get("prof"): a.e("s_memrealtime s[84:85]")
            prep3.emit_prep(a, n, self.o)
            a.e("s_mov_b32 s8, s80\ns_mov_b32 s9, s81")
        else:
            a.e("s_load_dwordx2 s[4:5], s[0:1], 80\ns_load_dwordx2 s[8:9], s[0:1], 64")
        if self.opt("pf_main", 0):
            nl = self.opt("pf_lines", 16)
            a.e("s_getpc_b64 s[60:61]")
            a.label(f"{n}_pc")
            a.e(f"s_sub_u32 s60, s60, {n}_pc-{n}\ns_subb_u32 s61, s61, 0")
            a.e(f"s_lshr_b32 s62, s2, 3\ns_and_b32 s62, s62, 31\ns_mul_i32 s62, s62, {nl*64}\ns_min_u32 s62, s62, {n}_end-{n}-{nl*64}\ns_add_u32 s60, s60, s62\ns_addc_u32 s61, s61, 0")
            for i in range(nl): a.e(f"s_load_dwordx16 s[64:79], s[60:61], {i*64}")
        a.e(f"s_mov_b32 s6, {WS_USED}\ns_mov_b32 s7, 0x20000\ns_mov_b32 s10, {S*D*2}\ns_mov_b32 s11, 0x20000")
        if self.opt("antimap", 0): a.e(f"s_lshr_b32 s{S_T0}, s2, 5\ns_and_b32 s{S_T1}, s2, 31")
        else: a.e(f"s_and_b32 s{S_T0}, s2, 7\ns_lshr_b32 s{S_T1}, s2, 3")
        a.e(f"s_and_b32 s{S_TH}, s{S_T0}, 1\ns_lshr_b32 s{S_T0}, s{S_T0}, 1\ns_lshl_b32 s{S_T0}, s{S_T0}, 2")
        a.e(f"s_and_b32 s{S_RB}, s{S_T1}, 3\ns_add_u32 s{S_RB}, s{S_RB}, s{S_T0}")
        a.e(f"s_lshr_b32 s{S_Q}, s{S_T1}, 2\ns_lshl_b32 s{S_J}, s{S_TH}, 3\ns_add_u32 s{S_J}, s{S_J}, s{S_Q}")
        a.e(f"s_min_u32 s{S_CB}, s{S_Q}, 6\ns_mul_i32 s{S_JS}, s{S_TH}, 7\ns_add_u32 s{S_JS}, s{S_JS}, s{S_CB}")
        a.e(f"s_lshl_b32 s{S_M}, s{S_TH}, 1\ns_sub_u32 s{S_M}, 2, s{S_M}")
        a.e(f"v_lshrrev_b32 v{V_T0}, 6, v0\nv_and_b32 v{V_T1}, 63, v0\nv_lshlrev_b32 v{V_L16}, 4, v{V_T1}")
        a.e(f"v_readfirstlane_b32 s{S_W}, v{V_T0}")
        a.e(f"v_add_u32 v{V_L16H}, 0x10000, v{V_L16}")
        a.e(f"v_and_b32 v{V_T2}, 31, v0\nv_bfe_u32 v{V_T3}, v0, 5, 1")
        a.e(f"v_lshlrev_b32 v{V_I8}, 3, v{V_T2}")
        a.e(f"v_mul_u32_u24 v{V_STL}, 1792, v{V_T3}\nv_add_u32 v{V_STL}, v{V_STL}, v{V_I8}")
        a.e(f"s_lshr_b32 s{S_TT}, s{S_W}, 1\ns_and_b32 s{S_NT}, s{S_W}, 1")
        a.e(f"s_mov_b32 s{S_SEL_LO}, 0x3f80\ns_mov_b32 s{S_SEL_HI}, 0x3f800000")
        a.e(f"s_mov_b32 s{S_UP}, 0\ns_mov_b32 s{S_UP+1}, -1")
        a.e(f"s_mov_b32 s{S_L}, 0")
        self.emits(self.sa(S_TILE, [(S_RB, 4), (S_TH, 2), (S_TT, 1)]))
        self.emits(self.sa(S_N, [(S_CB, 2), (S_NT, 1)]))
        self.emits(self.sa(S_XT, [(S_RB, 4), (S_W, 1)]))
        if self.o.get("prof"):
            a.e(f"v_mov_b32 v{V_MARK}, 0")
            if self.opt("single", 0) and not Y:
                k = len(self.marks); self.marks.append("start")
                a.e(f"v_writelane_b32 v{V_MARK}, s84, {k}")
                for nm, r in (("t_ldiss", 94), ("t_landed", 92), ("t_issued", 86), ("t_drained", 88), ("t_zeroseen", 90)):
                    k = len(self.marks); self.marks.append(nm)
                    a.e(f"v_writelane_b32 v{V_MARK}, s{r}, {k}")
                self.mark("prepdone")
        a.e("s_waitcnt lgkmcnt(0)")
        if Y:
            R = dict(W=S_W, J=S_J, L16=V_L16, I8=V_I8, A_PHI=A_PHI, SEL_LO=S_SEL_LO, SEL_HI=S_SEL_HI)
            self.R4 = R
            self.st4.lane_consts(S_W)
            self.st4.front(R)
        else:
            for it in self.p1w_items(1) + self.p1w_items(2): self.emits(it)
            self.emits(self.sa(S_T0, [(S_J, 2 * KB)], PHI))
            for it in self.seq_items(2, lambda i: ar(A_PHI + 4*i), S_T0, lambda i: "phi", False): self.emits(it)
            self.emits(self.sa(S_T0, [(S_TILE, 28 * KB), (S_N, 2 * KB)], X))
            for it in self.seq_items(2, lambda i: ar(A_RES + 4*i), S_T0, lambda i: "res", False): self.emits(it)
            for it in self.p1w_items(0): self.emits(it)
        a.e(f"v_cmp_eq_u32 vcc, 28, v{V_T2}\nv_mov_b32 v{V_T4}, 1.0\nv_mov_b32 v{V_ONE}, 0\nv_cndmask_b32 v{V_ONE}, v{V_ONE}, v{V_T4}, vcc")
        a.e(f"v_lshlrev_b32 v{V_T3}, 2, v{V_T3}\nv_sub_u32 v{V_T2}, v{V_T2}, v{V_T3}")
        a.e(f"v_mov_b32 v{V_T4}, 0x3f80\nv_mov_b32 v{V_T5}, 0x3f800000")
        for s in range(2):
            for d in range(4):
                j = 2 * d
                c = 16 * s + 8 * (j // 4) + (j % 4)
                a.e(f"v_mov_b32 v{V_T6}, 0")
                a.e(f"v_cmp_eq_u32 vcc, {c}, v{V_T2}\nv_cndmask_b32 v{V_T6}, v{V_T6}, v{V_T4}, vcc")
                a.e(f"v_cmp_eq_u32 vcc, {c+1}, v{V_T2}\nv_cndmask_b32 v{V_T6}, v{V_T6}, v{V_T5}, vcc")
                a.e(f"v_accvgpr_write_b32 a{A_ID+4*s+d}, v{V_T6}")
        if Y:
            self.st4.xblock(self.R4)
            self.st4.bg_issue(self.R4)
            a.e(f"s_mov_b32 s8, s80\ns_mov_b32 s9, s81\ns_mov_b32 s10, {S*D*2}\ns_mov_b32 s11, 0x20000")
            self.st4.self_center(self.R4)
            self.st4.ts(86)
            if self.o.get("prof"):
                for nm, r in (("start", 84), ("t_ldiss", 94), ("t_landed", 92), ("t_arr", 90), ("t_center", 86)):
                    k = len(self.marks); self.marks.append(nm)
                    a.e(f"v_writelane_b32 v{V_MARK}, s{r}, {k}")
            a.vmq = []; a.lgq = []

    def layer_setup(self):
        self.emits(self.sa(S_FRB, [(S_L, NSYNC * 2048), (S_RB, 128)], FLAGS))
        self.emits(self.sa(S_FJ, [(S_L, NSYNC * 2048), (S_J, 128)], FLAGS))

    def p1(self):
        a = self.a
        XF, RK, RV, RQ, RING, RA, RB, TB = 16, 128, 144, 160, 176, 208, 224, 240
        RS, KR, QRING = 160, 176, 192
        LA = self.opt("la1", 6)
        self.mark("p1_start")
        self.emits(self.sa(S_A, [(S_XT, 28 * KB), (S_L, 2 * XSZ)], X))
        xi = self.seq_items(28, lambda s: vr(XF + 4*s), S_A, lambda s: f"x{s}", True)
        self.take(xi, 2)
        self.emits(self.sa(S_B, [(S_XT, 3584), (S_L, 2 * STSZ)], ST))
        for k in range(7): self.emit(self.ld(vr(RA + 2*k, 2), S_B, k * 256, "st", n=2, vaddr=V_STL))
        self.take(xi, LA - 2)
        Y = self.opt("y", 0)
        if Y:
            lab = a.newlabel("l0only")
            a.e(f"s_cmp_lg_u32 s{S_L}, 0\ns_cbranch_scc1 {lab}")
            vq, lq, vt = list(a.vmq), list(a.lgq), a.vm_total
            self.st4.bg_finish(self.R4, len(a.vmq))
            self.emits(self.sa(S_T0, [(S_TILE, 28 * KB), (S_N, 2 * KB)], X))
            for it in self.seq_items(2, lambda i: ar(A_RES + 4*i), S_T0, lambda i: "res", True): self.emits(it)
            a.vmq, a.lgq, a.vm_total = vq, lq, vt
            a.label(lab)
            self.vm_mark = a.vm_total
            a.e("s_waitcnt lgkmcnt(0)")
        a.wait_vm(("w1k", "w1v", "phi", "res"))
        a.e("s_barrier")
        self.mark("p1_wready")
        def rdA(s):
            sl = RING + 8 * (s % 4)
            r, of = self.ldsaddr(L_W1 + (28 + s) * KB); a.e(f"ds_read_b128 {vr(sl)}, v{r} offset:{of}", tag=f"a{s}")
            r, of = self.ldsaddr(L_W1 + (56 + s) * KB); a.e(f"ds_read_b128 {vr(sl+4)}, v{r} offset:{of}", tag=f"a{s}")
        for s in range(3): rdA(s)
        def mk(s):
            def f():
                if s + 3 < 28: rdA(s + 3)
                self.take(xi, 1)
                if Y and s == self.opt("bgarr", 14):
                    a.e(f"s_waitcnt vmcnt({min(63, a.vm_total - self.vm_mark)})\ns_barrier")
                    a.e(f"s_and_b32 s{S_T2}, s2, 15\ns_lshl_b32 s{S_T2}, s{S_T2}, 7\ns_add_u32 s{S_T2}, s{S_T2}, {PFLAG + 2048}")
                    a.e(f"v_mov_b32 v{V_T7}, 1\ns_cmp_eq_u32 s{S_W}, 0\ns_cselect_b64 exec, 1, 0")
                    a.e_uncounted(f"buffer_atomic_add v{V_T7}, off, s[4:7], s{S_T2} sc1")
                    a.e("s_mov_b64 exec, -1")
                a.wait_both(f"x{s}", f"a{s}")
                sl = RING + 8 * (s % 4)
                a.e(f"{MF} {vr(RK,16)}, {vr(sl)}, {vr(XF+4*s)}, {vr(RK,16) if s else 0}")
            return f
        def mv(s):
            def f():
                sl = RING + 8 * (s % 4)
                a.e(f"{MF} {vr(RV,16)}, {vr(XF+4*s)}, {vr(sl+4)}, {vr(RV,16) if s else 0}")
            return f
        mains = []
        for s in range(28): mains += [mk(s), mv(s)]
        fills = ["@waitvm st"] + self.stats_reduce(RA, V_T0, V_T1, V_T2, V_T3)
        fills += [f"v_rsq_f32 v{V_T0}, v{V_T0}", f"v_lshrrev_b32 v{V_T1}, 1, v{V_I8}"]
        fills += self.sa(S_T0, [(S_W, 128)], L_SCR)
        fills += [f"v_add_u32 v{V_T1}, s{S_T0}, v{V_T1}", f"ds_write_b32 v{V_T1}, v{V_T0}|scw",
                  f"v_mul_f32 v{V_C}, {hexf(1.4426950408889634)}, v{V_T0}",
                  f"v_lshrrev_b32 v{V_T1}, 5, v{V_L16}", f"v_and_b32 v{V_T1}, 16, v{V_T1}",
                  f"v_add_u32 v{V_T1}, s{S_T0}, v{V_T1}", "@waitlg scw"]
        fills += [f"ds_read_b128 {vr(RS+4*g)}, v{V_T1} offset:{g*32}|rs" for g in range(4)]
        self.weave(mains, fills, caps=(20, 0))
        self.mark("p1_loopA")
        w3 = self.w3_stream()
        vch = ["@waitlg rs"] + [f"v_pk_fma_f32 v[{RV+r}:{RV+r+1}], v[{RV+r}:{RV+r+1}], v[{RS+r}:{RS+r+1}], v[4:5] op_sel:[0,0,1] op_sel_hi:[1,1,1]" for r in range(0, 16, 2)]
        vch += [f"v_cvt_pk_bf16_f32 v{RV+d}, v{RV+2*d}, v{RV+2*d+1}" for d in range(8)]
        nk = self.opt("bg_k", 8) if not Y else 0
        if Y:
            a.e(f"v_lshlrev_b32 v249, 3, v{V_L16}\ns_mov_b32 s{S_F}, {PFLAG + 2048}\ns_mov_b64 exec, 0xffff")
            a.e(f"buffer_load_dword v248, v249, s[4:7], s{S_F} offen sc1", tag="dq")
            a.e("s_mov_b64 exec, -1")
        self.take(w3, nk // 2)
        self.emits(self.phi_apply(RK, TB))
        self.emits(vch)
        self.emits_bg(self.softmax(RK, RA, V_T0), w3, nk - nk // 2, first=0, every=6)
        self.mark("p1_kepi")
        a.e(f"{MF} {vr(RB,16)}, {vr(RA)}, {ar(A_ID)}, 0")
        a.e(f"{MF} {vr(RB,16)}, {vr(RA+4)}, {ar(A_ID+4)}, {vr(RB,16)}")
        a.e(f"{MF} {vr(RA,16)}, {vr(RK)}, {ar(A_ID)}, 0")
        a.e(f"{MF} {vr(RA,16)}, {vr(RK+4)}, {ar(A_ID+4)}, {vr(RA,16)}")
        self.emits(self.sa(S_T0, [(S_W, 2048)], L_KVR) + [f"v_add_u32 v{V_T0}, s{S_T0}, v{V_L16}"])
        self.emits(self.sa(S_T0, [(S_W, 8192)], L_KVR) + [f"v_add_u32 v{V_T1}, s{S_T0}, v{V_L16}"])
        self.emits(self.sa(S_C, [(S_J, 4 * 16 * KB), (S_W, 16 * KB), (S_L, SLABSZ)], SLAB))
        for d in range(8): a.e(f"v_cvt_pk_bf16_f32 v{RB+d}, v{RB+2*d}, v{RB+2*d+1}")
        a.e(f"{MF} {vr(RK,16)}, {vr(RB)}, {vr(RV)}, 0")
        a.e(f"{MF} {vr(RK,16)}, {vr(RB+4)}, {vr(RV+4)}, {vr(RK,16)}")
        for d in range(8): a.e(f"v_cvt_pk_bf16_f32 v{RA+d}, v{RA+2*d}, v{RA+2*d+1}")
        a.e(f"{MF} {vr(RB,16)}, {vr(RA)}, {vr(RV)}, 0")
        a.e(f"{MF} {vr(RB,16)}, {vr(RA+4)}, {vr(RV+4)}, {vr(RB,16)}")
        self.emits(self.sa(S_D, [(S_RB, KB), (S_C, 1)]))
        for t, R in ((0, RK), (1, RB)):
            for s in range(2):
                for g in range(2):
                    a.e(f"ds_write_b128 v{V_T0}, {vr(R+8*s+4*g)} offset:{(2*t+s)*8192+g*1024}", tag="kw")
        a.wait_vm("w1q")
        a.e("s_waitcnt lgkmcnt(0)\ns_barrier")
        for ws in range(4):
            for g in range(2):
                a.e(f"ds_read_b128 {vr(KR+8*ws+4*g)}, v{V_T1} offset:{(ws*2+g)*1024}", tag=f"kr{ws}")
        def rdB(s):
            sl = QRING + 4 * (s % 4) + 16
            r, of = self.ldsaddr(L_W1 + s * KB); a.e(f"ds_read_b128 {vr(sl)}, v{r} offset:{of}", tag=f"b{s}")
        a.wait_lg("kr1")
        for r in range(0, 8, 2): a.e(self.pk_add(KR + r, KR + r, KR + 8 + r))
        a.wait_lg("kr3")
        for r in range(0, 8, 2): a.e(self.pk_add(KR + 16 + r, KR + 16 + r, KR + 24 + r))
        for r in range(0, 8, 2): a.e(self.pk_add(KR + r, KR + r, KR + 16 + r))
        for d in range(4): a.e(f"v_cvt_pk_bf16_f32 v{KR+d}, v{KR+2*d}, v{KR+2*d+1}")
        self.emit(self.st(vr(KR), S_D, 0, "slab"))
        self.mark("p1_slab")
        if Y: self.done_check()
        for s in range(3): rdB(s)
        ARR = self.opt("arr1", 20)
        def mq(s):
            def f():
                if s == ARR: self.arrive(S_FJ, F_S1, "slab")
                if s + 3 < 28: rdB(s + 3)
                a.wait_lg(f"b{s}")
                sl = QRING + 4 * (s % 4) + 16
                a.e(f"{MF} {vr(RQ,16)}, {vr(sl)}, {vr(XF+4*s)}, {vr(RQ,16) if s else 0}")
            return f
        self.weave([mq(s) for s in range(28)], [], bg=w3, bg_every=self.opt("bg_q_every", 2))
        self.mark("p1_qpass")
        wo = self.wo_stream()
        qe = self.phi_apply(RQ, TB) + self.softmax(RQ, RA, V_T0)
        cut = self.opt("ap1", 70)
        self.emits_bg(qe[:cut], wo, self.opt("bg_qe", 6), first=0, every=11)
        if self.opt("async1", 1):
            a.e(f"s_mov_b32 s{S_E}, 0")
            self.apoll_issue(S_FJ, F_S1, 10, S_E, S_F)
        self.emits(qe[cut:])
        self.mark("p1_qepi")
        self.RA, self.RQ, self.w3, self.wo = RA, RQ, w3, wo

    def done_check(self):
        a = self.a
        ok, lp = a.newlabel("dok"), a.newlabel("dlp")
        a.wait_vm("dq")
        a.e(f"s_mov_b64 exec, 0xffff\nv_cmp_gt_u32 vcc, 16, v248\ns_cbranch_vccz {ok}")
        vq, lq, vt = list(a.vmq), list(a.lgq), a.vm_total
        a.e(f"s_mov_b32 s{S_CNT}, 0\ns_mov_b32 s{S_F}, {PFLAG + 2048}")
        a.label(lp)
        a.e(f"buffer_load_dword v248, v249, s[4:7], s{S_F} offen sc1")
        a.e(f"s_add_u32 s{S_CNT}, s{S_CNT}, 1\ns_cmp_gt_u32 s{S_CNT}, 200000\ns_cbranch_scc1 {lp}_x")
        a.e(f"s_waitcnt vmcnt(0)\nv_cmp_gt_u32 vcc, 16, v248\ns_cbranch_vccnz {lp}")
        a.label(f"{lp}_x")
        a.e("s_waitcnt vmcnt(0)")
        a.vmq, a.lgq, a.vm_total = vq, lq, vt
        a.label(ok)
        a.e("s_mov_b64 exec, -1")

    def p2a(self):
        a = self.a
        RA, RQ = self.RA, self.RQ
        SL, AC, KA, RB, TB = 80, 176, 188, 224, 240
        if self.opt("async1", 1): self.apoll_check(10, 16, S_F)
        else: self.poll(S_FJ, F_S1, 16)
        self.mark("S1_poll")
        for it in self.seq_items(16, lambda i: vr(SL + 4*i), S_C, lambda i: f"sl{i}", True): self.emits(it)
        bg2 = list(self.wo) + [self.w3.pop(0) for _ in range(self.opt("bg_2a", 0))]
        self.wo = []
        for i in range(16):
            if i >= self.opt("bg_2a_first", 4) and bg2: self.emits(bg2.pop(0))
            a.wait_vm(f"sl{i}")
            for d in range(4):
                a.e(f"v_dot2_f32_bf16 v{AC+2*d}, v{SL+4*i+d}, s{S_SEL_LO}, {'v%d' % (AC+2*d) if i else 0}")
                a.e(f"v_dot2_f32_bf16 v{AC+2*d+1}, v{SL+4*i+d}, s{S_SEL_HI}, {'v%d' % (AC+2*d+1) if i else 0}")
        self.take(bg2, len(bg2))
        self.emits(self.sa(S_T0, [(S_W, KB)], L_KVA) + [f"v_add_u32 v{V_T0}, s{S_T0}, v{V_L16}"])
        self.emits(self.sa(S_A, [(S_XT, 32 * KB), (S_J, 2 * KB), (S_L, OSZ)], O))
        for d in range(4): a.e(f"v_cvt_pk_bf16_f32 v{AC+8+d}, v{AC+2*d}, v{AC+2*d+1}")
        a.e(f"ds_write_b128 v{V_T0}, {vr(AC+8)}")
        a.e("s_waitcnt lgkmcnt(0)\ns_barrier")
        for p in range(4):
            r, of = self.ldsaddr(L_KVA + p * KB)
            a.e(f"ds_read_b128 {vr(KA+4*p)}, v{r} offset:{of}", tag=f"ka{p}")
        Bs = [RA, RA + 4, RQ, RQ + 4]
        for p in range(4):
            a.wait_lg(f"ka{p}")
            a.e(f"{MF} {vr(RB,16)}, {vr(KA+4*p)}, {vr(Bs[p])}, {vr(RB,16) if p else 0}")
        a.e(f"v_mov_b32 v{V_T0}, v{RB+12}\nv_mov_b32 v{V_T1}, v{RB+12}")
        a.e(f"v_permlane32_swap_b32 v{V_T0}, v{V_T1}")
        a.e(f"v_add_f32 v{V_T1}, {hexf(1e-6)}, v{V_T1}\nv_rcp_f32 v{V_T1}, v{V_T1}")
        for r in range(0, 16, 2): a.e(self.pk_mul_bc(RB + r, RB + r, V_T1))
        for d in range(8): a.e(f"v_cvt_pk_bf16_f32 v{TB+d}, v{RB+2*d}, v{RB+2*d+1}")
        self.emit(self.st(vr(TB), S_A, 0, "ost")); self.emit(self.st(vr(TB+4), S_A, 1024, "ost"))
        self.mark("p2a_ost")
        self.arrive(S_FRB, F_S2, "ost")
        self.take(self.w3, self.opt("bg_s2", 0))
        self.mark("S2_arr")

    def red_addr(self):
        L = []
        for u in range(1, 4):
            L += [f"s_xor_b32 s{S_T0}, s{S_W}, {u}", f"s_mul_i32 s{S_T0}, s{S_T0}, 12288", f"s_add_u32 s{S_T0}, s{S_T0}, {L_RED+(u-1)*4096}",
                  f"v_add_u32 v{V_T0+u}, s{S_T0}, v{V_L16}"]
        L += self.sa(S_T0, [(S_W, 12288)], L_RED) + [f"v_add_u32 v{V_T0}, s{S_T0}, v{V_L16}"]
        return L
    def red_write(self, ACC, u):
        return [f"ds_write_b128 v{V_T0+u}, {vr(ACC+16*u+4*g)} offset:{g*1024}|rw" for g in range(4)]
    def res_unpack(self, TR):
        L = [f"v_accvgpr_read_b32 v{TR+16+d}, a{A_RES+d}" for d in range(8)]
        for d in range(8):
            L += [f"v_lshlrev_b32 v{TR+2*d}, 16, v{TR+16+d}", f"v_and_b32 v{TR+2*d+1}, 0xffff0000, v{TR+16+d}"]
        return L
    def red_finish(self, ACC, TR):
        a = self.a
        for r in range(0, 16, 2): a.e(self.pk_add(ACC + r, ACC + r, TR + r))
        a.e("s_waitcnt lgkmcnt(0)\ns_barrier")
        RD = ACC + 16
        for u in range(3):
            for g in range(4):
                a.e(f"ds_read_b128 {vr(RD+16*u+4*g)}, v{V_T0} offset:{u*4096+g*1024}", tag=f"rr{u}")
        for u in range(3):
            a.wait_lg(f"rr{u}")
            for r in range(0, 16, 2): a.e(self.pk_add(ACC + r, ACC + r, RD + 16*u + r))
        for d in range(8): a.e(f"v_cvt_pk_bf16_f32 v{TR+d}, v{ACC+2*d}, v{ACC+2*d+1}")
        self.PK, self.ACC = TR, ACC
    def x_store_addr(self, xsel):
        return (self.sa(S_E, [(S_TILE, 28 * KB), (S_N, 2 * KB), (S_L, 2 * XSZ)], X + xsel * XSZ) +
                self.sa(S_F, [(S_TILE, 3584), (S_N, 256), (S_L, 2 * STSZ)], ST + xsel * STSZ))
    def store_x_and_stats(self):
        a = self.a
        PK, ACC = self.PK, self.ACC
        self.emit(self.st(vr(PK), S_E, 0, "xst")); self.emit(self.st(vr(PK+4), S_E, 1024, "xst"))
        t = PK + 8
        a.e(self.pk_add(t, ACC, ACC + 2))
        a.e(f"v_pk_mul_f32 v[{t+2}:{t+3}], v[{ACC}:{ACC+1}], v[{ACC}:{ACC+1}]")
        for r in range(2, 16, 2):
            if r > 2: a.e(self.pk_add(t, t, ACC + r))
            a.e(f"v_pk_fma_f32 v[{t+2}:{t+3}], v[{ACC+r}:{ACC+r+1}], v[{ACC+r}:{ACC+r+1}], v[{t+2}:{t+3}]")
        a.e(f"v_add_f32 v{t}, v{t}, v{t+1}\nv_add_f32 v{t+1}, v{t+2}, v{t+3}")
        a.e(f"v_mov_b32 v{t+2}, v{t}\nv_mov_b32 v{t+3}, v{t+1}")
        a.e(f"v_permlane32_swap_b32 v{t+2}, v{t}\nv_permlane32_swap_b32 v{t+3}, v{t+1}")
        a.e(self.pk_add(t, t, t + 2))
        a.e("s_mov_b32 exec_hi, 0")
        self.emit(self.st(f"v[{t}:{t+1}]", S_F, 0, "xst", n=2, vaddr=V_I8))
        a.e("s_mov_b32 exec_hi, -1")
        for d in range(8): a.e(f"v_accvgpr_write_b32 a{A_RES+d}, v{PK+d}")

    def p2b(self):
        a = self.a
        OB, ACC, TR = 80, 144, 208
        pre = []
        for b, c in ((0, S_A), (1, S_B)):
            pre += [f"s_xor_b32 s{c}, s{S_TILE}, {b}", f"s_lshl_b32 s{c}, s{c}, 15"] + self.sa(S_T0, [(S_W, 8 * KB), (S_L, OSZ)], O) + [f"s_add_u32 s{c}, s{c}, s{S_T0}"]
        self.emits(pre)
        self.poll(S_FRB, F_S2, 16)
        self.mark("S2_poll")
        ob = [self.seq_items(8, lambda i: vr(OB + 32*b + 4*i), (S_A, S_B)[b], lambda i: f"o{b}_{i}", True) for b in range(2)]
        for it in ob[1] + ob[0]: self.emits(it)
        nb = self.opt("bg_2b", 14)
        self.emits(self.red_addr() + self.x_store_addr(1))
        a.wait_vm("wo")
        def mf(u, i):
            b, sl = u >> 1, u & 1
            a.e(f"{MF} {vr(ACC+16*u,16)}, {vr(16+32*sl+4*i)}, {vr(OB+32*b+4*i)}, {vr(ACC+16*u,16) if i else 0}")
        for i in range(8):
            a.wait_vm(f"o1_{i}")
            mf(2, i); mf(3, i)
            if i < nb: self.take(self.w3, 1)
        resu = self.res_unpack(TR)
        wr = self.red_write(ACC, 2) + self.red_write(ACC, 3)
        for i in range(8):
            a.wait_vm(f"o0_{i}")
            mf(1, i)
            if i >= 2 and wr: self.emit(wr.pop(0))
            self.emits(resu[3*i:3*i+3])
            mf(0, i)
            if i >= 2 and wr: self.emit(wr.pop(0))
            if 8 + i < nb: self.take(self.w3, 1)
        self.emits(wr)
        self.mark("p2b_mfma")
        self.emits(self.red_write(ACC, 1))
        self.red_finish(ACC, TR)
        self.store_x_and_stats()
        self.mark("p2b_st")
        self.arrive(S_FRB, F_S3, "xst")
        self.take(self.w3, self.opt("bg_s3", 0))
        self.mark("S3_arr")

    def p3(self):
        a = self.a
        ACC0, ACC1, RING, CC, TT, HP, STB = 16, 48, 80, 96, 100, 116, 100
        V_X1, V_CA, V_CB = V_T5, V_T4, V_T6
        xds = []
        for p in range(4):
            gc, gl = 56 + 2 * p, 57 + 2 * p
            self.emits([f"s_xor_b32 s{S_T0}, s{S_M}, {p}"] + self.sa(gc, [(S_T0, 28 * KB), (S_RB, 4 * 28 * KB), (S_W, 7 * KB), (S_L, 2 * XSZ)], X + XSZ))
            self.emits(self.sa(gl, [(S_W, 7 * KB)], L_XR + (p & 1) * XSLOT))
            xds.append(self.dma_items(7, gl, gc, f"xt{p}", True))
        def xd(p): return xds[p]
        x0, x1 = xd(0), xd(1)
        self.poll(S_FRB, F_S3, 14)
        self.mark("S3_poll")
        self.take(x0, 7)
        self.emits(self.sa(S_T0, [(S_XT, 3584), (S_L, 2 * STSZ)], ST + STSZ))
        for k in range(7): self.emit(self.ld(vr(STB + 2*k, 2), S_T0, k * 256, "st", n=2, vaddr=V_STL))
        self.take(self.w3, len(self.w3))
        a.e(f"v_add_u32 v{V_X1}, {L_XR + XSLOT}, v{V_L16}")
        def hbase(p):
            return [f"s_xor_b32 s{S_T0}, s{S_M}, {p}"] + self.sa(S_C, [(S_T0, 112 * KB), (S_RB, 4 * 112 * KB), (S_JS, 8 * KB), (S_W, 2 * KB), (S_L, HSZ)], HB)
        c1 = -2.0 * 0.7978845608028654 * 1.4426950408889634
        c2 = c1 * 0.044715
        stf = ["@waitvm st"] + self.stats_reduce(STB, V_T0, V_T1, V_T2, V_T3)
        stf += [f"v_rsq_f32 v{V_T1}, v{V_T0}", f"v_lshrrev_b32 v{V_CA}, 1, v{V_I8}"] + self.sa(S_T0, [(S_W, 384)], L_SCR3)
        stf += [f"v_add_u32 v{V_CB}, s{S_T0}, v{V_CA}",
                f"v_mul_f32 v{V_T2}, v{V_T1}, v{V_T1}", f"v_mul_f32 v{V_T3}, {hexf(c1)}, v{V_T1}", f"v_mul_f32 v{V_T2}, v{V_T2}, v{V_T1}", f"v_mul_f32 v{V_T2}, {hexf(c2)}, v{V_T2}",
                f"ds_write_b32 v{V_CB}, v{V_T3}|cw", f"ds_write_b32 v{V_CB}, v{V_T2} offset:128|cw", f"ds_write_b32 v{V_CB}, v{V_T0} offset:256|cw"]
        stf += self.sa(S_T0, [(S_M, 384)], L_SCR3) + [f"s_mul_i32 s{S_T1}, s{S_M}, 384", f"s_sub_u32 s{S_T1}, {L_SCR3 + 768}, s{S_T1}",
                f"v_add_u32 v{V_CB}, s{S_T1}, v{V_CA}", f"v_add_u32 v{V_CA}, s{S_T0}, v{V_CA}"]

        def epi(p):
            A = ACC0 if p % 2 == 0 else ACC1
            G, U = A, A + 16
            va = V_CA if p < 2 else V_CB
            L = [f"ds_read_b32 v{CC+q}, v{va} offset:{(p&1)*384+q*128}|cc" for q in range(3)] + hbase(p)
            for g in range(4):
                rr = [4*g + k for k in range(4)]
                for k, r in enumerate(rr): L.append(f"v_mul_f32 v{TT+k}, v{G+r}, v{G+r}")
                for k, r in enumerate(rr): L.append(f"v_mul_f32 v{TT+4+k}, v{G+r}, v{U+r}")
                if g == 0: L.append("@waitlg cc")
                for k, r in enumerate(rr): L.append(f"v_fma_f32 v{TT+k}, v{TT+k}, v{CC+1}, v{CC}")
                for k, r in enumerate(rr): L.append(f"v_mul_f32 v{TT+k}, v{TT+k}, v{G+r}")
                for k, r in enumerate(rr): L.append(f"v_exp_f32 v{TT+k}, v{TT+k}")
                for k, r in enumerate(rr): L.append(f"v_fma_f32 v{TT+k}, v{TT+k}, v{CC+2}, v{CC+2}")
                for k, r in enumerate(rr): L.append(f"v_rcp_f32 v{TT+k}, v{TT+k}")
                for k in range(4): L.append(f"v_mul_f32 v{TT+4+k}, v{TT+4+k}, v{TT+k}")
                L.append(f"v_cvt_pk_bf16_f32 v{HP+2*g}, v{TT+4}, v{TT+5}")
                L.append(f"v_cvt_pk_bf16_f32 v{HP+2*g+1}, v{TT+6}, v{TT+7}")
                if g % 2 == 1 and not (self.opt("x_nost", 0) and p < 2): L.append(self.st(vr(HP + 4*(g//2)), S_C, 1024 * (g // 2), f"hst{p}"))
            if self.opt("x_noepi", 0) and p < 2: L = [t for t in L if t.startswith("buffer_") or t.startswith("s_")]
            return L

        w4 = None
        for p in range(4):
            A = ACC0 if p % 2 == 0 else ACC1
            a.wait_vm(f"xt{p}")
            a.e("s_waitcnt lgkmcnt(0)\ns_barrier")
            if p in (0, 1, 3): self.mark(f"p3_T{p}")
            def rd(s):
                if p & 1 == 0:
                    r, of = self.ldsaddr(L_XR + s * KB)
                else: r, of = V_X1, s * KB
                a.e(f"ds_read_b128 {vr(RING+4*(s%4))}, v{r} offset:{of}", tag=f"b{s}")
            for s in range(3): rd(s)
            def mg(s):
                def f():
                    if s + 3 < 28: rd(s + 3)
                    a.wait_both(f"w3_{s}" if p == 0 else None, f"b{s}")
                    a.e(f"{MF} {vr(A,16)}, {ar(8*s)}, {vr(RING+4*(s%4))}, {vr(A,16) if s else 0}")
                return f
            def mu(s):
                def f(): a.e(f"{MF} {vr(A+16,16)}, {ar(8*s+4)}, {vr(RING+4*(s%4))}, {vr(A+16,16) if s else 0}")
                return f
            mains = []
            for s in range(28): mains += [mg(s), mu(s)]
            if p == 0:
                w4 = self.w4_stream()
                bg = x1 + [w4.pop(0) for _ in range(self.opt("w4_p0", 12))]
                self.weave(mains, stf, bg=bg, bg_every=2, bg_phase=1, caps=(16, 8))
            elif p == 1:
                bg = xd(2) + [w4.pop(0) for _ in range(self.opt("w4_p1", 12))]
                if self.opt("x_nobg", 0): bg = xd(2)
                mains[0](); mains[1]()
                self.weave(mains[2:], epi(0), bg=bg, bg_every=2, bg_phase=1, caps=(self.opt('cap1', 24), self.opt('cap2', 8)))
            elif p == 2:
                na = 32 - self.opt("w4_p0", 12) - self.opt("w4_p1", 12)
                bg = xd(3) + [w4.pop(0) for _ in range(na)]
                if self.opt("x_nobg", 0): bg = xd(3)
                mains[0](); mains[1]()
                self.weave(mains[2:], epi(1), bg=bg, bg_every=2, bg_phase=1, caps=(self.opt('cap1', 24), self.opt('cap2', 8)))
            else:
                bg = w4
                mains[0](); mains[1]()
                a.e(f"s_xor_b32 s{S_E}, s{S_TH}, 1")
                AP = self.opt("ap4e", 46)
                orig = mains[AP]
                def with_poll():
                    self.apoll_issue(S_FRB, F_S4E, 8, S_E, S_F)
                    orig()
                mains[AP] = with_poll
                AE = self.opt("arr4e", 22)
                orig2 = mains[AE]
                def with_arr():
                    self.arrive(S_FRB, F_S4E, ("hst0", "hst1"), slot_sreg=S_TH)
                    orig2()
                mains[AE] = with_arr
                self.weave(mains[2:], epi(2), bg=bg, bg_every=2, bg_phase=1, caps=(self.opt('cap1', 24), self.opt('cap2', 8)))
            self.take(bg, len(bg))
        self.mark("p3_loop")
        self.p4_setup()
        self.apoll_check(8, 7, S_F)
        LA = self.opt("la4", 6)
        first = []
        for i in range(LA): first += [self.hi[(i, 0)], self.hi[(i, 1)]]
        self.emits_bg(epi(3), first, len(first), first=self.opt("e3first", 20), every=self.opt("e3every", 9))
        self.take(first, len(first))
        self.mark("p3_epi")

    def p4_setup(self):
        HR, NR = 96, 16
        cur = [S_G[4], S_G[5], S_G[6], S_G[7]]
        pre = []
        for late in (0, 1):
            for b in range(2):
                c = cur[2*late + b]
                pre += self.kseg(S_T0, late) + [f"s_xor_b32 s{c}, s{S_TILE}, {b}", f"s_mul_i32 s{c}, s{c}, 112", f"s_add_u32 s{c}, s{c}, s{S_T0}", f"s_lshl_b32 s{c}, s{c}, 10"]
                pre += self.sa(S_T0, [(S_L, HSZ)], HB) + [f"s_add_u32 s{c}, s{c}, s{S_T0}"]
        self.emits(pre)
        self.hi = {}
        for late in (0, 1):
            for b in range(2):
                x = self.seq_items(14, lambda i: ar(HR + 8*((14*late + i) % NR) + 4*b), cur[2*late + b], lambda i: f"h{14*late+i}_{b}", True)
                for i in range(14): self.hi[(14*late + i, b)] = x[i]

    def p4(self):
        a = self.a
        n = self.name
        ACC, HR, NR, TR = 16, 96, 16, 80
        LA = self.opt("la4", 6)
        hi = self.hi
        self.emits(self.red_addr())
        def mf(u, i):
            b, sl = u >> 1, u & 1
            a.e(f"{MF} {vr(ACC+16*u,16)}, {self.w4_reg(i, sl)}, {ar(HR+8*(i%NR)+4*b)}, {vr(ACC+16*u,16) if i else 0}")
        TAIL = self.opt("tail4", 6)
        PL = 14 - LA
        t0 = 28 - TAIL
        rest0 = [hi[(i, 0)] for i in range(t0, 28)]
        rest1 = [hi[(i, 1)] for i in range(t0, 28)]
        ARR4 = self.opt("arr4", 3)
        APL = self.opt("ap4l", PL - 2)
        for i in range(t0):
            if i == ARR4:
                self.arrive(S_FRB, F_S4L, ("hst2", "hst3"), slot_sreg=S_TH)
                self.mark("S4_arr")
            if i == APL: self.apoll_issue(S_FRB, F_S4L, 9, S_TH, S_F)
            if i == PL:
                self.apoll_check(9, 7, S_F)
                self.mark("S4L_poll")
            a.wait_vm((f"h{i}_0", f"h{i}_1", f"w4_{i}"))
            nxt = i + LA
            mf(0, i); mf(1, i)
            if nxt < t0: self.emits(hi[(nxt, 0)])
            elif rest1: self.emits(rest1.pop(0))
            mf(2, i); mf(3, i)
            if nxt < t0: self.emits(hi[(nxt, 1)])
            elif rest1: self.emits(rest1.pop(0))
            elif rest0: self.emits(rest0.pop(0))
        for it in rest1: self.emits(it)
        for i in range(t0, 28):
            a.wait_vm((f"h{i}_1", f"w4_{i}"))
            mf(2, i)
            if rest0: self.emits(rest0.pop(0))
            mf(3, i)
        resu = self.res_unpack(TR)
        wr = self.red_write(ACC, 2) + self.red_write(ACC, 3)
        k = 0
        for i in range(t0, 28):
            a.wait_vm(f"h{i}_0")
            mf(1, i)
            if i >= t0 + 1 and wr: self.emit(wr.pop(0))
            self.emits(resu[4*k:4*k+4]); k += 1
            mf(0, i)
            if i >= t0 + 1 and wr: self.emit(wr.pop(0))
        self.emits(resu[4*k:]); self.emits(wr)
        self.mark("p4_mfma")
        self.emits(self.red_write(ACC, 1))
        self.emits(self.x_store_addr(2))
        self.red_finish(ACC, TR)
        self.mark("p4_red")
        fin = a.newlabel("fin")
        a.e(f"s_cmp_lg_u32 s{S_L}, 0\ns_cbranch_scc1 {fin}")
        vq = list(a.vmq)
        self.store_x_and_stats()
        self.arrive(S_FRB, F_S5, "xst")
        a.e(f"s_branch {n}_next")
        a.vmq = vq
        a.label(fin)
        PK = self.PK
        self.emits(self.sa(S_T0, [(S_TILE, 32 * 896), (S_N, 64)]))
        a.e(f"v_mul_u32_u24 v{V_T0}, 112, v{V_I8}\nv_lshrrev_b32 v{V_T1}, 5, v{V_L16}\nv_and_b32 v{V_T1}, 16, v{V_T1}\nv_add_u32 v{V_T0}, v{V_T0}, v{V_T1}")
        a.e(f"v_permlane32_swap_b32 v{PK}, v{PK+2}\nv_permlane32_swap_b32 v{PK+1}, v{PK+3}")
        a.e(f"v_permlane32_swap_b32 v{PK+4}, v{PK+6}\nv_permlane32_swap_b32 v{PK+5}, v{PK+7}")
        osc = " sc1" if self.opt("out_sc1", 0) else ""
        a.e(f"buffer_store_dwordx4 {vr(PK)}, v{V_T0}, s[8:11], s{S_T0} offen" + osc)
        a.e(f"buffer_store_dwordx4 {vr(PK+4)}, v{V_T0}, s[8:11], s{S_T0} offen offset:32" + osc)
        a.e(f"s_branch {n}_done")

    def build(self):
        a, n = self.a, self.name
        self.prologue()
        head_q = list(a.vmq)
        a.label(f"{n}_layer")
        a.vmq = list(head_q); a.lgq = []
        self.layer_setup()
        if self.opt("y", 0):
            a.e(f"s_lshl_b32 s{S_T0}, s{S_RB}, 7\ns_add_u32 s{S_T0}, s{S_T0}, {PFLAG}\ns_add_u32 s{S_E}, s{S_FRB}, {F_S5*2048 - NSYNC*2048}")
            a.e(f"s_cmp_eq_u32 s{S_L}, 0\ns_cselect_b32 s{S_E}, s{S_T0}, s{S_E}")
            self.poll(S_E, 0, 14)
        else:
            lab = a.newlabel("nos5")
            a.e(f"s_cmp_eq_u32 s{S_L}, 0\ns_cbranch_scc1 {lab}")
            self.poll(S_FRB, F_S5, 14, extra=-NSYNC * 2048)
            a.label(lab)
        self.p1()
        self.p2a()
        a.e(f"s_cmp_lt_u32 s{S_Q}, 7\ns_cbranch_scc1 {n}_act")
        a.e(f"s_cmp_lg_u32 s{S_L}, 0\ns_cbranch_scc1 {n}_done")
        a.e(f"s_branch {n}_next")
        a.label(f"{n}_act")
        self.p2b()
        self.p3()
        self.p4()
        a.label(f"{n}_next")
        a.e("s_waitcnt vmcnt(0)")
        if self.o.get("prof"): a.e(f"v_accvgpr_write_b32 a224, v{V_MARK}\nv_mov_b32 v{V_MARK}, 0")
        a.e(f"s_add_u32 s{S_L}, s{S_L}, 1")
        a.e(f"s_branch {n}_layer")
        a.label(f"{n}_done")
        if self.o.get("prof"): self.dump_marks()
        a.e("s_endpgm")
        a.label(f"{n}_end")
        return a.finalize()
```

```python
from layout import *
import struct
def hexf(x): return "0x%08x" % struct.unpack("<I", struct.pack("<f", x))[0]
LOOB = 0x30000
NA, NB, ND, NC = 48, 112, 49, 14
B0 = NA; D0 = B0 + NB; C0 = D0 + ND + 7; E0 = C0 + 16; F0 = 255
NXB = 224
WREG = 8192
L_SUM = 4 * WREG
P_X, P_WQKV, P_WPHI, P_WO, P_WG, P_WU, P_WD, P_OUT, P_DBG = 64, 66, 68, 70, 74, 76, 78, 80, 82

def emit_prep(a, name, opts, standalone=False):
    SC = " sc1" if (not standalone or int(opts.get('prep_sc1', 0))) else ""
    def src(ptr, size): a.e(f"s_mov_b32 s8, s{ptr}\ns_mov_b32 s9, s{ptr+1}\ns_mov_b32 s10, {size}\ns_mov_b32 s11, 0x20000")
    a.e("v_and_b32 v7, 63, v0\nv_lshlrev_b32 v1, 4, v7")
    a.e("v_and_b32 v2, 31, v0\nv_bfe_u32 v3, v0, 5, 1")
    a.e("v_lshrrev_b32 v4, 6, v0\nv_readfirstlane_b32 s12, v4")
    a.e("v_bfe_u32 v8, v7, 2, 2\nv_and_b32 v9, 3, v7\nv_bfe_u32 v10, v7, 4, 1")
    a.e("v_lshl_add_u32 v8, v3, 2, v8\nv_lshlrev_b32 v8, 6, v8")
    a.e("v_lshlrev_b32 v11, 5, v10\nv_lshl_add_u32 v11, v9, 3, v11\nv_add_u32 v8, v8, v11")
    a.e(f"s_lshl_b32 s13, s12, 13\nv_add_u32 v8, s13, v8")
    a.e("v_lshrrev_b32 v12, 2, v7\nv_lshlrev_b32 v13, 4, v9")
    a.e("s_waitcnt lgkmcnt(0)")
    a.e(f"s_mov_b32 s6, {WS_USED}\ns_mov_b32 s7, 0x20000")
    a.e(f"s_cmp_ge_u32 s2, {NXB}\ns_cbranch_scc1 {name}_nox")
    a.e(f"s_mov_b32 s8, s{P_X}\ns_mov_b32 s9, s{P_X+1}\ns_mov_b32 s10, {S*D*2}\ns_mov_b32 s11, 0x20000")
    a.e("s_mul_i32 s13, s2, 9363\ns_lshr_b32 s13, s13, 16")
    a.e("s_mul_i32 s14, s13, 7\ns_sub_u32 s14, s2, s14")
    a.e("s_lshr_b32 s15, s12, 1\ns_lshl_b32 s13, s13, 1\ns_add_u32 s30, s13, s15")
    a.e("s_and_b32 s15, s12, 1\ns_lshl_b32 s14, s14, 1\ns_add_u32 s31, s14, s15")
    a.e("v_mul_u32_u24 v4, 896, v2\nv_lshlrev_b32 v5, 3, v3\nv_add_u32 v4, v4, v5")
    a.e("s_mul_i32 s20, s30, 28672\ns_lshl_b32 s15, s31, 6\ns_add_u32 s20, s20, s15")
    for g in range(4):
        a.e(f"buffer_load_dwordx2 v[{64+2*g}:{65+2*g}], v4, s[8:11], s20 offen offset:{g*16}")
    a.label(f"{name}_nox")
    for lim, lab in ((B0, "A"), (D0, "B"), (D0 + ND, "Dn"), (C0, "pdone0"), (E0, "C"), (F0, "pdone0")):
        a.e(f"s_cmp_lt_u32 s2, {lim}\ns_cbranch_scc1 {name}_{lab}")
    a.vmq = []

    def stage(nins):
        a.e("s_lshl_b32 s22, s12, 13")
        for i in range(nins):
            a.e("s_mov_b32 m0, s22\ns_nop 0")
            a.e("buffer_load_dwordx4 v4, s[8:11], s20 offen lds", tag="raw")
            if i != nins - 1: a.e("s_add_u32 s20, s20, s21\ns_add_u32 s22, s22, 1024")
    def lanes(rb, col): a.e(f"v_mul_lo_u32 v4, s{rb}, v12\nv_add3_u32 v4, v4, v13, s{col}")
    def trread(dst, va, off): a.e(f"ds_read_b64_tr_b16 v[{dst}:{dst+1}], v{va} offset:{off}", tag="tr")
    def reset(): a.vmq = []; a.lgq = []
    def ts0(r):
        if opts.get("prof"): a.e(f"s_memrealtime s[{r}:{r+1}]\ns_waitcnt lgkmcnt(0)")
    FR = 16
    def ship(n):
        for fr in range(n):
            a.e(f"s_waitcnt lgkmcnt({min(15, 2*n - 2 - 2*fr)})")
            a.e(f"buffer_store_dwordx4 v[{FR+4*fr}:{FR+4*fr+3}], v1, s[4:7], s24 offen" + SC)
            a.e("s_add_u32 s24, s24, 1024")

    a.e("v_mov_b32 v16, 0\nv_mov_b32 v17, 0\nv_mov_b32 v18, 0\nv_mov_b32 v19, 0")
    a.e(f"v_lshlrev_b32 v5, 4, v0\ns_mov_b32 s20, {FLAGS}")
    for i in range(FLAGZ // 4096):
        a.e("buffer_store_dwordx4 v[16:19], v5, s[4:7], s20 offen" + SC)
        a.e("s_add_u32 s20, s20, 4096")
    src(P_WPHI, H * DH * DH * 2)
    a.e(f"v_mov_b32 v4, v1\ns_mul_i32 s20, s12, {4*1568}\ns_mov_b32 s21, 1024")
    stage(7)
    if not standalone:
        a.e("s_waitcnt vmcnt(7)\ns_barrier")
        a.e(f"s_mov_b32 s16, s{P_DBG}\ns_mov_b32 s17, s{P_DBG+1}\ns_mov_b32 s18, 256\ns_mov_b32 s19, 0x20000")
        a.e("v_mov_b32 v5, 1\ns_cmp_eq_u32 s12, 0\ns_cselect_b64 exec, 1, 0")
        a.e("buffer_store_dword v5, off, s[16:19], 0 sc1")
        a.e("s_mov_b64 exec, -1")
    a.e("v_and_b32 v9, 3, v7\nv_bfe_u32 v10, v7, 4, 1\nv_bfe_u32 v11, v7, 2, 2")
    a.e("v_lshl_add_u32 v14, v10, 2, v9\nv_min_u32 v14, 6, v14\nv_lshlrev_b32 v14, 3, v14")
    a.e("v_lshl_add_u32 v11, v3, 2, v11\nv_mul_u32_u24 v11, 56, v11\nv_add_u32 v8, v11, v14")
    a.e("s_lshl_b32 s13, s12, 13\nv_add_u32 v8, s13, v8")
    a.e(f"v_mov_b32 v14, {LOOB}\nv_cmp_eq_u32 vcc, 0, v3\nv_cndmask_b32 v9, v14, v8, vcc")
    a.e(f"s_lshl_b32 s24, s12, 13\ns_add_u32 s24, s24, {PHI}")
    ts0(94)
    a.e("s_waitcnt vmcnt(0)")
    ts0(92)
    reset()
    for fr in range(8):
        q, e = fr // 2, fr % 2
        off = q * 1568 + 16 * e * 56
        trread(FR + 4*fr, 8, off); trread(FR + 4*fr + 2, 9 if e else 8, off + 8 * 56)
    ship(8)
    a.e(f"s_branch {name}_pdone")

    reset()
    a.label(f"{name}_A")
    src(P_WQKV, D * 3 * D * 2)
    a.e("s_and_b32 s13, s2, 7\ns_lshr_b32 s14, s2, 3\ns_lshl_b32 s13, s13, 1\ns_and_b32 s15, s14, 1\ns_add_u32 s13, s13, s15\ns_lshr_b32 s14, s14, 1")
    a.e(f"s_mul_i32 s18, s13, 3\ns_add_u32 s18, s18, s14\ns_mul_i32 s18, s18, {28*KB}\ns_add_u32 s18, s18, {WQKV}")
    a.e("s_mul_i32 s14, s14, 896\ns_mul_i32 s13, s13, 56\ns_add_u32 s15, s13, s14")
    a.e("s_mov_b32 s16, 2688")
    a.e(f"v_and_b32 v11, v10, v9\nv_lshrrev_b32 v14, 1, v9\nv_and_b32 v11, v11, v14\nv_cmp_eq_u32 vcc, 1, v11\nv_mov_b32 v14, {LOOB}\nv_cndmask_b32 v8, v8, v14, vcc")
    a.e(f"s_branch {name}_AB")
    a.label(f"{name}_B")
    a.e(f"s_sub_u32 s13, s2, {B0}\ns_and_b32 s14, s13, 7\ns_lshr_b32 s13, s13, 3\ns_and_b32 s15, s13, 1\ns_lshr_b32 s13, s13, 1")
    a.e("s_lshl_b32 s13, s13, 3\ns_add_u32 s13, s13, s14")
    a.e("s_and_b32 s14, s13, 1\ns_lshr_b32 s13, s13, 1\ns_lshl_b32 s13, s13, 1\ns_add_u32 s13, s13, s15")
    a.e("s_lshl_b32 s13, s13, 1\ns_add_u32 s13, s13, s14")
    a.e("s_cmp_eq_u32 s14, 0")
    a.e(f"s_cselect_b32 s8, s{P_WG}, s{P_WU}\ns_cselect_b32 s9, s{P_WG+1}, s{P_WU+1}\ns_mov_b32 s10, {D*F*2}\ns_mov_b32 s11, 0x20000")
    a.e("s_lshr_b32 s15, s13, 1\ns_lshl_b32 s15, s15, 6")
    a.e("s_mov_b32 s16, 3584")
    a.e(f"s_mul_i32 s18, s13, {28*KB}\ns_add_u32 s18, s18, {WGU}")
    a.label(f"{name}_AB")
    lanes(16, 15)
    a.e("s_mul_i32 s20, s12, 112\ns_mul_i32 s20, s20, s16\ns_lshl_b32 s21, s16, 4")
    stage(7)
    a.e("s_mov_b32 s23, 0x3f803f80")
    a.e(f"s_mul_i32 s24, s12, {7*KB}\ns_add_u32 s24, s24, s18")
    ts0(94)
    a.e("s_waitcnt vmcnt(0)")
    ts0(92)
    reset()
    for s in range(7):
        trread(FR + 4*s, 8, s * 1024); trread(FR + 4*s + 2, 8, s * 1024 + 512)
    a.e("v_mov_b32 v48, 0\nv_mov_b32 v49, 0")
    for s in range(7):
        a.e(f"s_waitcnt lgkmcnt({min(15, 12 - 2*s)})")
        for d in range(4): a.e(f"v_dot2_f32_bf16 v{48 + d % 2}, v{FR+4*s+d}, s23, v{48 + d % 2}")
    a.lgq = []
    a.e(f"v_add_f32 v48, v48, v49\nv_lshlrev_b32 v9, 2, v0\nv_add_u32 v9, {L_SUM}, v9")
    a.e("ds_write_b32 v9, v48")
    a.e("s_waitcnt lgkmcnt(0)\ns_barrier")
    a.e(f"v_lshlrev_b32 v9, 2, v2\nv_add_u32 v9, {L_SUM}, v9")
    for q in range(8): a.e(f"ds_read_b32 v{50+q}, v9 offset:{q*128}")
    a.e("s_waitcnt lgkmcnt(0)")
    a.e("v_add_f32 v50, v50, v51\nv_add_f32 v52, v52, v53\nv_add_f32 v54, v54, v55\nv_add_f32 v56, v56, v57")
    a.e("v_add_f32 v50, v50, v52\nv_add_f32 v54, v54, v56\nv_add_f32 v50, v50, v54")
    a.e(f"v_mul_f32 v50, {hexf(-1.0/448)}, v50")
    for s in range(7):
        for d in range(4):
            r = FR + 4*s + d
            t = 52 + 2 * (d % 2)
            a.e(f"v_lshlrev_b32 v{t}, 16, v{r}\nv_and_b32 v{t+1}, 0xffff0000, v{r}")
            a.e(f"v_pk_add_f32 v[{t}:{t+1}], v[{t}:{t+1}], v[50:51] op_sel:[0,0] op_sel_hi:[1,0]")
            a.e(f"v_cvt_pk_bf16_f32 v{r}, v{t}, v{t+1}")
        a.e(f"buffer_store_dwordx4 v[{FR+4*s}:{FR+4*s+3}], v1, s[4:7], s24 offen" + SC)
        a.e("s_add_u32 s24, s24, 1024")
    a.e(f"s_branch {name}_pdone")

    reset()
    a.label(f"{name}_C")
    src(P_WO, D * D * 2)
    a.e(f"s_sub_u32 s13, s2, {C0}\ns_and_b32 s14, s13, 7\ns_lshr_b32 s13, s13, 3")
    a.e(f"s_cmp_eq_u32 s14, 7\ns_cbranch_scc1 {name}_pdone0")
    a.e("s_lshl_b32 s14, s14, 1\ns_add_u32 s13, s13, s14\ns_lshl_b32 s15, s13, 6\ns_mov_b32 s16, 896")
    lanes(16, 15)
    a.e(f"s_mul_i32 s20, s12, {112*896}\ns_mov_b32 s21, {16*896}")
    stage(7)
    a.e(f"v_mov_b32 v14, {LOOB}\nv_cmp_eq_u32 vcc, 0, v3\nv_cndmask_b32 v9, v14, v8, vcc")
    a.e(f"s_lshl_b32 s24, s13, 5\ns_lshl_b32 s25, s12, 3\ns_add_u32 s24, s24, s25\ns_lshl_b32 s24, s24, 10\ns_add_u32 s24, s24, {WO}")
    ts0(94)
    a.e("s_waitcnt vmcnt(0)")
    ts0(92)
    reset()
    for fr in range(8):
        q, e = fr // 2, fr % 2
        off = (28 * q + 16 * e) * 64
        trread(FR + 4*fr, 8, off); trread(FR + 4*fr + 2, 9 if e else 8, off + 512)
    ship(8)
    a.e(f"s_branch {name}_pdone")

    reset()
    a.label(f"{name}_Dn")
    src(P_WD, F * D * 2)
    a.e(f"s_sub_u32 s13, s2, {D0}\ns_mul_i32 s14, s13, 9363\ns_lshr_b32 s14, s14, 16")
    a.e("s_mul_i32 s25, s14, 7\ns_sub_u32 s25, s13, s25\ns_lshl_b32 s25, s25, 2\ns_add_u32 s25, s25, s12")
    a.e("v_lshrrev_b32 v4, 3, v7\nv_mul_u32_u24 v4, 896, v4\nv_and_b32 v5, 7, v7\nv_lshlrev_b32 v5, 4, v5\ns_lshl_b32 s15, s14, 7\nv_add3_u32 v4, v4, v5, s15")
    a.e(f"s_mul_i32 s20, s25, {64*896}\ns_mov_b32 s21, {8*896}")
    stage(8)
    a.e("v_bfe_u32 v8, v7, 2, 2\nv_lshl_add_u32 v8, v3, 2, v8\nv_lshlrev_b32 v8, 7, v8\nv_add_u32 v8, v8, v11")
    a.e("s_lshl_b32 s13, s12, 13\nv_add_u32 v8, s13, v8")
    a.e(f"s_mul_i32 s24, s14, 224\ns_lshl_b32 s26, s25, 2\ns_add_u32 s24, s24, s26\ns_lshl_b32 s24, s24, 10\ns_add_u32 s24, s24, {WD}")
    ts0(94)
    a.e("s_waitcnt vmcnt(0)")
    ts0(92)
    reset()
    for e in range(2):
        for s in range(4):
            fr = 4 * e + s
            trread(FR + 4*fr, 8, s * 2048 + e * 64); trread(FR + 4*fr + 2, 8, s * 2048 + e * 64 + 1024)
    for fr in range(8):
        a.e(f"s_waitcnt lgkmcnt({min(15, 14 - 2*fr)})")
        a.e(f"buffer_store_dwordx4 v[{FR+4*fr}:{FR+4*fr+3}], v1, s[4:7], s24 offen" + SC)
        a.e(f"s_add_u32 s24, s24, {1024 if fr != 3 else (112 - 3) * 1024}")
    a.e(f"s_branch {name}_pdone")

    reset()
    a.label(f"{name}_pdone0")
    a.e("s_waitcnt vmcnt(0)")
    if opts.get("prof"): a.e("s_memrealtime s[92:93]\ns_memrealtime s[94:95]\ns_waitcnt lgkmcnt(0)")
    a.label(f"{name}_pdone")
    a.e(f"s_cmp_ge_u32 s2, {NXB}\ns_cbranch_scc1 {name}_nox2")
    a.e(f"s_mul_i32 s21, s30, 28\ns_lshl_b32 s15, s31, 1\ns_add_u32 s21, s21, s15\ns_lshl_b32 s21, s21, 10\ns_add_u32 s21, s21, {X}")
    a.e(f"s_mul_i32 s22, s30, 3584\ns_lshl_b32 s15, s31, 8\ns_add_u32 s22, s22, s15\ns_add_u32 s22, s22, {ST}")
    a.e("s_mov_b32 s23, 0x3f803f80\nv_lshlrev_b32 v6, 3, v2\nv_mov_b32 v8, 0\nv_mov_b32 v9, 0")
    a.e("buffer_store_dwordx4 v[64:67], v1, s[4:7], s21 offen" + SC)
    a.e("buffer_store_dwordx4 v[68:71], v1, s[4:7], s21 offen offset:1024" + SC)
    for q in range(8):
        a.e(f"v_dot2_f32_bf16 v8, v{64+q}, s23, v8")
        a.e(f"v_dot2_f32_bf16 v9, v{64+q}, v{64+q}, v9")
    a.e("v_mov_b32 v10, v8\nv_mov_b32 v11, v9")
    a.e("v_permlane32_swap_b32 v10, v8\nv_permlane32_swap_b32 v11, v9")
    a.e("v_add_f32 v12, v8, v10\nv_add_f32 v13, v9, v11")
    a.e("s_mov_b32 exec_hi, 0")
    a.e("buffer_store_dwordx2 v[12:13], v6, s[4:7], s22 offen" + SC)
    a.e("s_mov_b32 exec_hi, -1")
    a.label(f"{name}_nox2")
    if standalone: return
    lab = f"{name}_pw"
    a.e(f"s_mov_b32 s16, s{P_DBG}\ns_mov_b32 s17, s{P_DBG+1}\ns_mov_b32 s18, 256\ns_mov_b32 s19, 0x20000")
    def ts(r):
        if opts.get("prof"): a.e(f"s_memrealtime s[{r}:{r+1}]\ns_waitcnt lgkmcnt(0)")
    ts(86)
    a.e("s_waitcnt vmcnt(0) lgkmcnt(0)\ns_barrier")
    ts(88)
    a.e(f"s_cmp_lg_u32 s12, 0\ns_cbranch_scc1 {lab}_skip")
    a.e("s_mov_b64 exec, 1\ns_mov_b32 s28, 0")
    a.label(f"{lab}_z")
    a.e("buffer_load_dword v5, off, s[16:19], 0 sc1")
    a.e(f"s_add_u32 s28, s28, 1\ns_cmp_gt_u32 s28, 200000\ns_cbranch_scc1 {lab}_zx")
    a.e(f"s_waitcnt vmcnt(0)\nv_readfirstlane_b32 s23, v5\ns_cmp_eq_u32 s23, 0\ns_cbranch_scc1 {lab}_z")
    a.label(f"{lab}_zx")
    ts(90)
    a.e(f"s_and_b32 s20, s2, 15\ns_lshl_b32 s20, s20, 7\ns_add_u32 s20, s20, {PFLAG}")
    a.e("v_mov_b32 v5, 1\ns_waitcnt vmcnt(0)")
    a.e("buffer_atomic_add v5, off, s[4:7], s20 sc1")
    a.e(f"s_mov_b64 exec, 0xffff\nv_and_b32 v6, 15, v0\nv_lshlrev_b32 v6, 7, v6\ns_mov_b32 s20, {PFLAG}\ns_mov_b32 s28, 0")
    a.label(f"{lab}_p")
    if int(opts.get("psl0", 0)): a.e(f"s_sleep {int(opts.get('psl0'))}")
    a.e("buffer_load_dword v5, v6, s[4:7], s20 offen sc1")
    a.e(f"s_add_u32 s28, s28, 1\ns_cmp_gt_u32 s28, 200000\ns_cbranch_scc1 {lab}_px")
    a.e(f"s_waitcnt vmcnt(0)\nv_cmp_gt_u32 vcc, 16, v5\ns_cbranch_vccnz {lab}_p")
    a.label(f"{lab}_px")
    a.e("s_waitcnt vmcnt(0)\ns_mov_b64 exec, -1")
    a.label(f"{lab}_skip")
    a.e("s_barrier")
    reset()


NPREP = 256
PREP_LDS = L_SUM + 1024
def gen_prep(name, opts=None):
    from asmlib import Asm
    opts = opts or {}
    a = Asm()
    a.label(name)
    if opts.get("prof"): a.e("s_memrealtime s[84:85]")
    a.e(f"s_cmp_lt_u32 s2, {NPREP}\ns_cbranch_scc1 {name}_go\ns_endpgm")
    a.label(f"{name}_go")
    a.e("s_load_dwordx16 s[64:79], s[0:1], 0\ns_load_dwordx2 s[4:5], s[0:1], 80")
    emit_prep(a, name, dict(opts, prof=None), standalone=True)
    if opts.get("prof"):
        a.e("s_waitcnt vmcnt(0)\ns_memrealtime s[86:87]\ns_waitcnt lgkmcnt(0)")
        a.e(f"s_lshl_b32 s20, s2, 3\ns_add_u32 s20, s20, {DBG + 256*512}\nv_mov_b32 v16, s84\nv_mov_b32 v17, s86\ns_mov_b64 exec, 1")
        a.e("buffer_store_dwordx2 v[16:17], off, s[4:7], s20")
    a.e("s_endpgm")
    return a.finalize()
```

```python
from layout import *
import struct
def hexf(x): return "0x%08x" % struct.unpack("<I", struct.pack("<f", x))[0]
LOOB = 0x30000
NB, ND = 112, 49
D0 = NB; C0 = 168; C1 = C0 + 16; NXB = 224
L_STG = 122880
L_SUMB = 155648
L_SUM3 = 157184
L_PHI = 160256
XFLAG = PFLAG
DFLAG = PFLAG + 2048
P_X, P_WQKV, P_WPHI, P_WO, P_WG, P_WU, P_WD, P_OUT, P_DBG = 64, 66, 68, 70, 74, 76, 78, 80, 82
vLANE, vI, vHH, vTR, vTRZ, vROW, vCH, vC, vG1, vCOL, vTRS, vA, vB, vD, vE = range(224, 239)
FR, XB = 16, 100
SB_T, SB_N, SB_DST, SB_A, SB_B, SB_C, SB_D = 60, 61, 62, 63, 53, 54, 55
DBGSRD = 56

class Start:
    def __init__(self, g):
        self.g, self.a, self.n, self.o = g, g.a, g.name, g.o
    def ts(self, r):
        if self.o.get("prof"): self.a.e(f"s_memrealtime s[{r}:{r+1}]\ns_waitcnt lgkmcnt(0)")
    def src(self, ptr, size):
        self.a.e(f"s_mov_b32 s8, s{ptr}\ns_mov_b32 s9, s{ptr+1}\ns_mov_b32 s10, {size}\ns_mov_b32 s11, 0x20000")
    def trread(self, dst, va, off): self.a.e(f"ds_read_b64_tr_b16 {dst}, v{va} offset:{off}", tag="tr")

    def lane_consts(self, S_W):
        a = self.a
        a.e(f"v_and_b32 v{vLANE}, 63, v0\nv_and_b32 v{vI}, 31, v0\nv_bfe_u32 v{vHH}, v0, 5, 1")
        a.e(f"v_bfe_u32 v{vA}, v{vLANE}, 2, 2\nv_and_b32 v{vC}, 3, v{vLANE}\nv_bfe_u32 v{vG1}, v{vLANE}, 4, 1")
        a.e(f"v_lshl_add_u32 v{vA}, v{vHH}, 2, v{vA}")
        a.e(f"v_lshlrev_b32 v{vCOL}, 5, v{vG1}\nv_lshl_add_u32 v{vCOL}, v{vC}, 3, v{vCOL}")
        a.e(f"v_lshl_add_u32 v{vTR}, v{vA}, 6, v{vCOL}")
        a.e(f"v_lshrrev_b32 v{vROW}, 2, v{vLANE}\nv_lshlrev_b32 v{vCH}, 4, v{vC}")
        a.e(f"s_lshl_b32 s20, s{S_W}, 13\ns_add_u32 s20, s20, {L_STG}\nv_add_u32 v{vTRS}, s20, v{vTR}")
        a.e(f"s_mul_i32 s20, s{S_W}, {7*KB}\nv_add_u32 v{vTRZ}, s20, v{vTR}")
        a.e(f"v_and_b32 v{vB}, v{vG1}, v{vC}\nv_lshrrev_b32 v{vD}, 1, v{vC}\nv_and_b32 v{vB}, v{vB}, v{vD}\nv_cmp_eq_u32 vcc, 1, v{vB}\nv_mov_b32 v{vD}, {LOOB}\nv_cndmask_b32 v{vTRZ}, v{vTRZ}, v{vD}, vcc")

    def front(self, R):
        a, n = self.a, self.n
        W, J = R["W"], R["J"]
        a.e(f"s_mov_b32 s{DBGSRD}, s{P_DBG}\ns_mov_b32 s{DBGSRD+1}, s{P_DBG+1}\ns_mov_b32 s{DBGSRD+2}, 256\ns_mov_b32 s{DBGSRD+3}, 0x20000")
        a.e(f"s_cmp_lg_u32 s2, 255\ns_cbranch_scc1 {n}_noz")
        a.e(f"v_mov_b32 v16, 0\nv_mov_b32 v17, 0\nv_mov_b32 v18, 0\nv_mov_b32 v19, 0\nv_lshlrev_b32 v20, 4, v0\ns_mov_b32 s20, {FLAGS}")
        for i in range(FLAGZ // 4096):
            a.e("buffer_store_dwordx4 v[16:19], v20, s[4:7], s20 offen sc1\ns_add_u32 s20, s20, 4096")
        a.e("s_waitcnt vmcnt(0)\ns_barrier")
        a.e(f"v_mov_b32 v16, 1\ns_cmp_eq_u32 s{W}, 0\ns_cselect_b64 exec, 1, 0")
        a.e(f"buffer_store_dword v16, off, s[{DBGSRD}:{DBGSRD+3}], 0 sc1\ns_mov_b64 exec, -1")
        a.label(f"{n}_noz")
        a.vmq = []
        a.e(f"s_cmp_ge_u32 s2, {NXB}\ns_cbranch_scc1 {n}_nox")
        self.src(P_X, S * D * 2)
        a.e("s_mul_i32 s20, s2, 9363\ns_lshr_b32 s20, s20, 16\ns_mul_i32 s21, s20, 7\ns_sub_u32 s21, s2, s21")
        a.e(f"s_lshr_b32 s22, s{W}, 1\ns_lshl_b32 s20, s20, 1\ns_add_u32 s{SB_T}, s20, s22")
        a.e(f"s_and_b32 s22, s{W}, 1\ns_lshl_b32 s21, s21, 1\ns_add_u32 s{SB_N}, s21, s22")
        a.e(f"v_mul_u32_u24 v{vA}, 896, v{vI}\nv_lshl_add_u32 v{vA}, v{vHH}, 3, v{vA}")
        a.e(f"s_mul_i32 s20, s{SB_T}, 28672\ns_lshl_b32 s21, s{SB_N}, 6\ns_add_u32 s20, s20, s21")
        for g in range(4): a.e(f"buffer_load_dwordx2 v[{XB+2*g}:{XB+2*g+1}], v{vA}, s[8:11], s20 offen offset:{g*16}")
        a.label(f"{n}_nox")
        a.vmq = []
        self.src(P_WQKV, D * 3 * D * 2)
        a.e(f"v_mul_u32_u24 v{vA}, 2688, v{vROW}\ns_mul_i32 s20, s{J}, 56\nv_add3_u32 v{vA}, v{vA}, v{vCH}, s20")
        for p in (1, 2, 0):
            a.e(f"s_mul_i32 s20, s{W}, {112*2688}\ns_add_u32 s20, s20, {p*896}\ns_mul_i32 s22, s{W}, {7*KB}\ns_add_u32 s22, s22, {p*28*KB}")
            for i in range(7):
                a.e("s_mov_b32 m0, s22\ns_nop 0")
                a.e(f"buffer_load_dwordx4 v{vA}, s[8:11], s20 offen lds", tag="wraw")
                if i != 6: a.e(f"s_add_u32 s20, s20, {16*2688}\ns_add_u32 s22, s22, 1024")
        self.src(P_WPHI, H * DH * DH * 2)
        a.e(f"s_mul_i32 s20, s{J}, 1568\ns_mov_b32 m0, {L_PHI}\ns_nop 0")
        a.e(f"buffer_load_dwordx4 v{R['L16']}, s[8:11], s20 offen lds", tag="praw")
        a.e(f"buffer_load_dwordx4 v{R['L16']}, s[8:11], s20 offen offset:1024 lds", tag="praw")
        self.ts(94)

    def xblock(self, R):
        a, n, W = self.a, self.n, R["W"]
        a.e(f"s_cmp_ge_u32 s2, {NXB}\ns_cbranch_scc1 {n}_nox2")
        a.e(f"s_mul_i32 s21, s{SB_T}, 28\ns_lshl_b32 s20, s{SB_N}, 1\ns_add_u32 s21, s21, s20\ns_lshl_b32 s21, s21, 10\ns_add_u32 s21, s21, {X}")
        a.e(f"s_mul_i32 s22, s{SB_T}, 3584\ns_lshl_b32 s20, s{SB_N}, 8\ns_add_u32 s22, s22, s20\ns_add_u32 s22, s22, {ST}")
        a.e(f"s_mov_b32 s23, 0x3f803f80\nv_mov_b32 v{vA}, 0\nv_mov_b32 v{vB}, 0")
        a.e("s_waitcnt vmcnt(23)")
        a.e(f"buffer_store_dwordx4 v[{XB}:{XB+3}], v{R['L16']}, s[4:7], s21 offen sc1")
        a.e(f"buffer_store_dwordx4 v[{XB+4}:{XB+7}], v{R['L16']}, s[4:7], s21 offen offset:1024 sc1")
        for q in range(8):
            a.e(f"v_dot2_f32_bf16 v{vA}, v{XB+q}, s23, v{vA}")
            a.e(f"v_dot2_f32_bf16 v{vB}, v{XB+q}, v{XB+q}, v{vB}")
        a.e(f"v_mov_b32 v{vD}, v{vA}\nv_mov_b32 v{vE}, v{vB}")
        a.e(f"v_permlane32_swap_b32 v{vD}, v{vA}\nv_permlane32_swap_b32 v{vE}, v{vB}")
        a.e(f"v_add_f32 v108, v{vA}, v{vD}\nv_add_f32 v109, v{vB}, v{vE}")
        a.e("s_mov_b32 exec_hi, 0")
        a.e(f"buffer_store_dwordx2 v[108:109], v{R['I8']}, s[4:7], s22 offen sc1")
        a.e("s_mov_b32 exec_hi, -1")
        a.label(f"{n}_nox2")
        a.vmq = []
        lab = f"{n}_xa"
        a.e("s_waitcnt vmcnt(0)")
        self.ts(92)
        a.e("s_barrier")
        a.e(f"s_cmp_lg_u32 s{W}, 0\ns_cbranch_scc1 {lab}_skip")
        a.e("s_mov_b64 exec, 1\ns_mov_b32 s28, 0")
        a.label(f"{lab}_z")
        a.e(f"buffer_load_dword v{vA}, off, s[{DBGSRD}:{DBGSRD+3}], 0 sc1")
        a.e(f"s_add_u32 s28, s28, 1\ns_cmp_gt_u32 s28, 1000000\ns_cbranch_scc1 {lab}_zx")
        a.e(f"s_waitcnt vmcnt(0)\nv_readfirstlane_b32 s23, v{vA}\ns_cmp_eq_u32 s23, 0\ns_cbranch_scc1 {lab}_z")
        a.label(f"{lab}_zx")
        a.e(f"s_waitcnt vmcnt(0)\ns_cmp_ge_u32 s2, {NXB}\ns_cbranch_scc1 {lab}_skip0")
        a.e(f"s_lshr_b32 s20, s{SB_T}, 2\ns_lshl_b32 s20, s20, 7\ns_add_u32 s20, s20, {XFLAG}\nv_mov_b32 v{vA}, 1")
        a.e(f"buffer_atomic_add v{vA}, off, s[4:7], s20 sc1")
        a.label(f"{lab}_skip0")
        a.e("s_mov_b64 exec, -1")
        a.label(f"{lab}_skip")
        a.vmq = []
        self.ts(90)

    def bg_issue(self, R):
        a, n, W = self.a, self.n, R["W"]
        for lim, lab in ((D0, "bB"), (D0 + ND, "bD"), (C0, "bN"), (C1, "bC")):
            a.e(f"s_cmp_lt_u32 s2, {lim}\ns_cbranch_scc1 {n}_{lab}")
        a.e(f"s_branch {n}_bN")
        def stage(nins, va):
            a.e(f"s_lshl_b32 s22, s{W}, 13\ns_add_u32 s22, s22, {L_STG}")
            for i in range(nins):
                a.e("s_mov_b32 m0, s22\ns_nop 0")
                a.e(f"buffer_load_dwordx4 v{va}, s[8:11], s20 offen lds")
                if i != nins - 1: a.e("s_add_u32 s20, s20, s21\ns_add_u32 s22, s22, 1024")
        a.label(f"{n}_bB")
        a.e("s_and_b32 s21, s2, 7\ns_lshr_b32 s20, s2, 3\ns_and_b32 s22, s20, 1\ns_lshr_b32 s20, s20, 1")
        a.e("s_lshl_b32 s20, s20, 3\ns_add_u32 s20, s20, s21")
        a.e("s_and_b32 s21, s20, 1\ns_lshr_b32 s20, s20, 1\ns_lshl_b32 s20, s20, 1\ns_add_u32 s20, s20, s22")
        a.e(f"s_lshl_b32 s22, s20, 1\ns_add_u32 s22, s22, s21\ns_mul_i32 s{SB_DST}, s22, {28*KB}\ns_add_u32 s{SB_DST}, s{SB_DST}, {WGU}")
        a.e(f"s_cmp_eq_u32 s21, 0\ns_cselect_b32 s8, s{P_WG}, s{P_WU}\ns_cselect_b32 s9, s{P_WG+1}, s{P_WU+1}\ns_mov_b32 s10, {D*F*2}\ns_mov_b32 s11, 0x20000")
        a.e(f"s_lshl_b32 s20, s20, 6\nv_mul_u32_u24 v{vA}, 3584, v{vROW}\nv_add3_u32 v{vA}, v{vA}, v{vCH}, s20")
        a.e(f"s_mul_i32 s20, s{W}, {112*3584}\ns_mov_b32 s21, {16*3584}")
        stage(7, vA)
        a.e(f"s_mul_i32 s20, s{W}, {7*KB}\ns_add_u32 s{SB_DST}, s{SB_DST}, s20")
        a.e(f"s_branch {n}_bN")
        a.label(f"{n}_bD")
        self.src(P_WD, F * D * 2)
        a.e(f"s_sub_u32 s20, s2, {D0}\ns_mul_i32 s21, s20, 9363\ns_lshr_b32 s21, s21, 16")
        a.e(f"s_mul_i32 s22, s21, 7\ns_sub_u32 s22, s20, s22\ns_lshl_b32 s22, s22, 2\ns_add_u32 s22, s22, s{W}")
        a.e(f"s_mul_i32 s{SB_DST}, s21, 224\ns_lshl_b32 s20, s22, 2\ns_add_u32 s{SB_DST}, s{SB_DST}, s20\ns_lshl_b32 s{SB_DST}, s{SB_DST}, 10\ns_add_u32 s{SB_DST}, s{SB_DST}, {WD}")
        a.e(f"v_lshrrev_b32 v{vA}, 3, v{vLANE}\nv_mul_u32_u24 v{vA}, 896, v{vA}\nv_and_b32 v{vB}, 7, v{vLANE}\nv_lshlrev_b32 v{vB}, 4, v{vB}\ns_lshl_b32 s20, s21, 7\nv_add3_u32 v{vA}, v{vA}, v{vB}, s20")
        a.e(f"s_mul_i32 s20, s22, {64*896}\ns_mov_b32 s21, {8*896}")
        stage(8, vA)
        a.e(f"s_branch {n}_bN")
        a.label(f"{n}_bC")
        a.e(f"s_sub_u32 s20, s2, {C0}\ns_and_b32 s21, s20, 7\ns_lshr_b32 s20, s20, 3\ns_cmp_eq_u32 s21, 7\ns_cbranch_scc1 {n}_bN")
        self.src(P_WO, D * D * 2)
        a.e("s_lshl_b32 s21, s21, 1\ns_add_u32 s20, s20, s21")
        a.e(f"s_lshl_b32 s{SB_DST}, s20, 5\ns_lshl_b32 s21, s{W}, 3\ns_add_u32 s{SB_DST}, s{SB_DST}, s21\ns_lshl_b32 s{SB_DST}, s{SB_DST}, 10\ns_add_u32 s{SB_DST}, s{SB_DST}, {WO}")
        a.e(f"s_lshl_b32 s20, s20, 6\nv_mul_u32_u24 v{vA}, 896, v{vROW}\nv_add3_u32 v{vA}, v{vA}, v{vCH}, s20")
        a.e(f"s_mul_i32 s20, s{W}, {112*896}\ns_mov_b32 s21, {16*896}")
        stage(7, vA)
        a.label(f"{n}_bN")
        a.vmq = []

    def self_center(self, R):
        a, W = self.a, R["W"]
        ones = 23
        a.e(f"s_mov_b32 s{ones}, 0x3f803f80")
        for p in range(3):
            for s in range(7):
                self.trread(f"v[{FR+28*p+4*s}:{FR+28*p+4*s+1}]", vTRZ, p * 28 * KB + s * 1024)
                self.trread(f"v[{FR+28*p+4*s+2}:{FR+28*p+4*s+3}]", vTRZ, p * 28 * KB + s * 1024 + 512)
        a.e(f"v_lshl_add_u32 v{vA}, v{vG1}, 2, v{vC}\nv_min_u32 v{vA}, 6, v{vA}\nv_lshlrev_b32 v{vA}, 3, v{vA}")
        a.e(f"v_bfe_u32 v{vB}, v{vLANE}, 2, 2\nv_lshl_add_u32 v{vB}, v{vHH}, 2, v{vB}\nv_mul_u32_u24 v{vB}, 56, v{vB}\nv_add3_u32 v{vA}, v{vA}, v{vB}, {0}")
        a.e(f"v_add_u32 v{vA}, {L_PHI}, v{vA}\nv_mov_b32 v{vB}, {LOOB}\nv_cmp_eq_u32 vcc, 0, v{vHH}\nv_cndmask_b32 v{vB}, v{vB}, v{vA}, vcc")
        SM = 104
        for p in range(3): a.e(f"v_mov_b32 v{SM+p}, 0\nv_mov_b32 v{108+p}, 0")
        k = 0
        for p in range(3):
            for s in range(7):
                k += 2
                a.e(f"s_waitcnt lgkmcnt({min(15, 42 - k)})")
                for d in range(4):
                    acc = SM + p if d % 2 == 0 else 108 + p
                    a.e(f"v_dot2_f32_bf16 v{acc}, v{FR+28*p+4*s+d}, s{ones}, v{acc}")
        a.lgq = []
        AP = R["A_PHI"]
        for e in range(2):
            self.trread(f"a[{AP+4*e}:{AP+4*e+1}]", vA, 16 * e * 56)
            self.trread(f"a[{AP+4*e+2}:{AP+4*e+3}]", vB if e else vA, 16 * e * 56 + 8 * 56)
        for p in range(3): a.e(f"v_add_f32 v{SM+p}, v{SM+p}, v{108+p}")
        for p in range(3): a.e(f"v_mov_b32 v{108+p}, v{SM+p}")
        for p in range(3): a.e(f"v_permlane32_swap_b32 v{108+p}, v{SM+p}")
        for p in range(3): a.e(f"v_add_f32 v{SM+p}, v{SM+p}, v{108+p}")
        a.e(f"v_mov_b32 v{SM+3}, 0\ns_lshl_b32 s20, s{W}, 9\ns_add_u32 s20, s20, {L_SUM3}\nv_lshlrev_b32 v{vD}, 4, v{vI}\nv_add_u32 v{vE}, s20, v{vD}")
        a.e(f"ds_write_b128 v{vE}, v[{SM}:{SM+3}]")
        a.e(f"v_add_u32 v{vD}, {L_SUM3}, v{vD}")
        a.e("s_waitcnt lgkmcnt(0)\ns_barrier")
        for w in range(4): a.e(f"ds_read_b128 v[{112+4*w}:{115+4*w}], v{vD} offset:{w*512}")
        a.e(f"s_mul_i32 s20, s{W}, {7*KB}\nv_add_u32 v{vE}, s20, v{R['L16']}")
        a.e("s_waitcnt lgkmcnt(0)")
        for p in range(3):
            a.e(f"v_add_f32 v{112+p}, v{112+p}, v{116+p}\nv_add_f32 v{120+p}, v{120+p}, v{124+p}")
        for p in range(3): a.e(f"v_add_f32 v{112+p}, v{112+p}, v{120+p}")
        for p in range(3): a.e(f"v_mul_f32 v{112+p}, {hexf(-1.0/448)}, v{112+p}")
        SL, SH = R["SEL_LO"], R["SEL_HI"]
        for p in (1, 2, 0):
            for s in range(7):
                b = FR + 28*p + 4*s
                for d in range(4): a.e(f"v_dot2_f32_bf16 v{116+2*d}, v{b+d}, s{SL}, v{112+p}")
                for d in range(4): a.e(f"v_dot2_f32_bf16 v{117+2*d}, v{b+d}, s{SH}, v{112+p}")
                for d in range(4): a.e(f"v_cvt_pk_bf16_f32 v{b+d}, v{116+2*d}, v{117+2*d}")
                a.e(f"ds_write_b128 v{vE}, v[{b}:{b+3}] offset:{p*28*KB + s*1024}")

    def bg_finish(self, R, nyounger):
        a, n, W = self.a, self.n, R["W"]
        B = 128
        a.e(f"s_waitcnt vmcnt({nyounger})")
        for lim, lab in ((D0, "fB"), (D0 + ND, "fD"), (C0, "fN"), (C1, "fC")):
            a.e(f"s_cmp_lt_u32 s2, {lim}\ns_cbranch_scc1 {n}_{lab}")
        a.e(f"s_branch {n}_fN")
        def ship(nfr, jump=None):
            for fr in range(nfr):
                a.e(f"s_waitcnt lgkmcnt({min(15, 2*nfr - 2 - 2*fr)})")
                a.e(f"buffer_store_dwordx4 v[{B+4*fr}:{B+4*fr+3}], v{R['L16']}, s[4:7], s{SB_DST} offen sc1")
                a.e(f"s_add_u32 s{SB_DST}, s{SB_DST}, {jump if (jump and fr == 3) else 1024}")
        a.label(f"{n}_fB")
        for s in range(7):
            self.trread(f"v[{B+4*s}:{B+4*s+1}]", vTRS, s * 1024); self.trread(f"v[{B+4*s+2}:{B+4*s+3}]", vTRS, s * 1024 + 512)
        a.e(f"s_mov_b32 s23, 0x3f803f80\nv_mov_b32 v160, 0\nv_mov_b32 v161, 0")
        for s in range(7):
            a.e(f"s_waitcnt lgkmcnt({min(15, 12 - 2*s)})")
            for d in range(4): a.e(f"v_dot2_f32_bf16 v{160 + d % 2}, v{B+4*s+d}, s23, v{160 + d % 2}")
        a.e(f"v_add_f32 v160, v160, v161\nv_lshlrev_b32 v161, 2, v{vLANE}\ns_lshl_b32 s20, s{W}, 8\ns_add_u32 s20, s20, {L_SUMB}\nv_add_u32 v161, s20, v161")
        a.e("ds_write_b32 v161, v160")
        a.e(f"v_lshlrev_b32 v161, 2, v{vI}\nv_add_u32 v161, {L_SUMB}, v161")
        a.e("s_waitcnt lgkmcnt(0)\ns_barrier")
        for q in range(8): a.e(f"ds_read_b32 v{162+q}, v161 offset:{q*128}")
        a.e("s_waitcnt lgkmcnt(0)")
        a.e("v_add_f32 v162, v162, v163\nv_add_f32 v164, v164, v165\nv_add_f32 v166, v166, v167\nv_add_f32 v168, v168, v169")
        a.e("v_add_f32 v162, v162, v164\nv_add_f32 v166, v166, v168\nv_add_f32 v162, v162, v166")
        a.e(f"v_mul_f32 v162, {hexf(-1.0/448)}, v162")
        for s in range(7):
            b = B + 4*s
            for d in range(4): a.e(f"v_dot2_f32_bf16 v{164+2*d}, v{b+d}, s{R['SEL_LO']}, v162")
            for d in range(4): a.e(f"v_dot2_f32_bf16 v{165+2*d}, v{b+d}, s{R['SEL_HI']}, v162")
            for d in range(4): a.e(f"v_cvt_pk_bf16_f32 v{b+d}, v{164+2*d}, v{165+2*d}")
            a.e(f"buffer_store_dwordx4 v[{b}:{b+3}], v{R['L16']}, s[4:7], s{SB_DST} offen sc1\ns_add_u32 s{SB_DST}, s{SB_DST}, 1024")
        a.e(f"s_branch {n}_fN")
        a.label(f"{n}_fD")
        a.e(f"v_bfe_u32 v161, v{vLANE}, 2, 2\nv_lshl_add_u32 v161, v{vHH}, 2, v161\nv_lshl_add_u32 v161, v161, 7, v{vCOL}")
        a.e(f"s_lshl_b32 s20, s{W}, 13\ns_add_u32 s20, s20, {L_STG}\nv_add_u32 v161, s20, v161")
        for e in range(2):
            for s in range(4):
                fr = 4*e + s
                self.trread(f"v[{B+4*fr}:{B+4*fr+1}]", 161, s * 2048 + e * 64); self.trread(f"v[{B+4*fr+2}:{B+4*fr+3}]", 161, s * 2048 + e * 64 + 1024)
        ship(8, jump=(112 - 3) * 1024)
        a.e(f"s_branch {n}_fN")
        a.label(f"{n}_fC")
        a.e(f"s_sub_u32 s20, s2, {C0}\ns_and_b32 s20, s20, 7\ns_cmp_eq_u32 s20, 7\ns_cbranch_scc1 {n}_fN")
        a.e(f"v_mov_b32 v161, {LOOB}\nv_cmp_eq_u32 vcc, 0, v{vHH}\nv_cndmask_b32 v161, v161, v{vTRS}, vcc")
        for fr in range(8):
            q, e = fr // 2, fr % 2
            off = (28 * q + 16 * e) * 64
            self.trread(f"v[{B+4*fr}:{B+4*fr+1}]", vTRS, off); self.trread(f"v[{B+4*fr+2}:{B+4*fr+3}]", 161 if e else vTRS, off + 512)
        ship(8)
        a.label(f"{n}_fN")
```

```python
import sys, kd
import prep2, prep3
prep = prep2
import main3 as mainvk
import main6
from layout import *
KNAME = "interleave_layers__linear_kernel_hedgehog__geglu_ffn__prompt_kernel"
def build_single(opts):
    g = (main6.Gen if int(opts.get('v6', 0)) else mainvk.Gen)(KNAME, opts=opts)
    m = g.build()
    ref = open("interleave_layers__linear_kernel_hedgehog__geglu_ffn__prompt.s.ref").read().split("\n")
    keep = [l for l in ref if l.startswith(";") and "@launch" not in l and "Override launch" not in l and "grid=ceil" not in l]
    src = "\n".join(keep) + "\n" + f"; @launch grid=(256,1,1) block=(256,1,1) lds={mainvk.LDS_BYTES}\n"
    src += '.amdgcn_target "amdgcn-amd-amdhsa--gfx950"\n.text\n' + kd.head(KNAME) + m.text()
    src += '.section .rodata,"a"\n' + kd.kd(KNAME, 512, 256, 100)
    build.marks = getattr(g, "marks", [])
    return src, (0, 0, len(m.ins), m.nops_added)
def build(stop=None, opts=None, with_header=True):
    if opts and (int(opts.get("single", 0)) or int(opts.get("y", 0))): return build_single(opts)
    global prep
    prep = prep3 if (opts and int(opts.get("prep3", 0))) else prep2
    p = prep.gen_prep("prep_kernel", opts)
    g = (main6.Gen if (opts and int(opts.get("v6", 0))) else mainvk.Gen)("main_kernel", stop=stop, opts=opts)
    m = g.build()
    hdr = ""
    if with_header:
        ref = open("interleave_layers__linear_kernel_hedgehog__geglu_ffn__prompt.s.ref").read().split("\n")
        keep = [l for l in ref if l.startswith(";") and "@launch" not in l and "Override launch" not in l and "grid=ceil" not in l]
        hdr = "\n".join(keep) + "\n"
        hdr += f"; @launch kernel=prep_kernel grid=({prep.NPREP},1,1) block=(256,1,1) lds={prep.PREP_LDS}\n"
        hdr += f"; @launch kernel=main_kernel grid=(256,1,1) block=(256,1,1) lds={mainvk.LDS_BYTES}\n"
    src = hdr + '.amdgcn_target "amdgcn-amd-amdhsa--gfx950"\n.text\n'
    src += kd.head("prep_kernel") + p.text() + kd.head("main_kernel") + m.text()
    src += '.section .rodata,"a"\n' + kd.kd("prep_kernel", 128, 128) + kd.kd("main_kernel", 512, 256, 100)
    build.marks = getattr(g, "marks", [])
    return src, (len(p.ins), p.nops_added, len(m.ins), m.nops_added)
if __name__ == "__main__":
    stop = sys.argv[2] if len(sys.argv) > 2 and sys.argv[2] != "none" else None
    opts = dict(kv.split("=") for kv in sys.argv[3:])
    src, info = build(stop, opts)
    open(sys.argv[1], "w").write(src)
    if build.marks: open(sys.argv[1] + ".marks", "w").write("\n".join(build.marks))
    print("prep instrs/nops, main instrs/nops:", info, "bytes", len(src))
```

```python
from asmlib import Asm
from layout import *
import struct
def hexf(x): return "0x%08x" % struct.unpack("<I", struct.pack("<f", x))[0]

L_W1   = 0
L_XR   = 86016
XSLOT  = 29696
L_KVR  = 86016
L_KVA  = 118784
L_RED  = 86016
L_SCR3 = 145408
L_SCR  = 147456
LDS_BYTES = 163840

S_RB, S_J, S_W, S_L, S_TH, S_CB, S_TT, S_NT = 12, 13, 14, 15, 16, 17, 18, 19
S_T0, S_T1, S_T2, S_T3 = 20, 21, 22, 23
S_SEL_LO, S_SEL_HI = 24, 25
S_UP = 26
S_CNT, S_JS, S_Q, S_M = 28, 29, 30, 31
S_A, S_B, S_C, S_D = 32, 33, 34, 35
S_E, S_F = 38, 39
S_G = [40, 41, 42, 43, 44, 45, 46, 47]
S_FRB, S_FJ = 48, 49
S_TILE, S_N = 50, 51
S_XT = 52
F_S1, F_S2, F_S3, F_S4E, F_S4L, F_S5 = 0, 1, 2, 3, 5, 7

V_POLL, V_L16, V_L16H, V_STL, V_I8, V_ONE, V_C, V_MARK = 0, 1, 2, 3, 4, 5, 6, 7
V_T0, V_T1, V_T2, V_T3, V_T4, V_T5, V_T6, V_T7 = 8, 9, 10, 11, 12, 13, 14, 15
A_PHI, A_ID, A_RES = 232, 240, 248

def vr(b, n=4): return f"v[{b}:{b+n-1}]"
def ar(b, n=4): return f"a[{b}:{b+n-1}]"
MF = "v_mfma_f32_32x32x16_bf16"
def cost_of(t):
    if t.startswith(("v_exp", "v_rcp", "v_rsq")): return 8
    if t.startswith("v_mfma"): return 32
    if t.startswith("@"): return 2
    return 4

class Gen:
    def __init__(self, name, stop=None, opts=None):
        self.a = Asm(); self.name = name; self.stop = stop; self.o = opts or {}
        self.marks = []
    def opt(self, k, d): return int(self.o.get(k, d))

    def emit(self, t):
        a = self.a
        if t.startswith("@waitlg "): a.wait_lg(tuple(t.split()[1:]))
        elif t.startswith("@waitvm "): a.wait_vm(tuple(t.split()[1:]))
        elif "|" in t:
            txt, tag = t.split("|"); a.e(txt, tag=tag)
        else: a.e(t)
    def emits(self, L):
        for t in L: self.emit(t)
    def sa(self, dst, terms, const=0):
        L = []
        first = True
        for r, m in terms:
            tgt = dst if first else S_T3
            if m == 1:
                if first: L.append(f"s_mov_b32 s{dst}, s{r}")
                else: L.append(f"s_add_u32 s{dst}, s{dst}, s{r}")
                first = False
                continue
            if m & (m - 1) == 0: L.append(f"s_lshl_b32 s{tgt}, s{r}, {m.bit_length()-1}")
            else: L.append(f"s_mul_i32 s{tgt}, s{r}, {m}")
            if not first: L.append(f"s_add_u32 s{dst}, s{dst}, s{S_T3}")
            first = False
        if first: L.append(f"s_mov_b32 s{dst}, {const}")
        elif const: L.append(f"s_add_u32 s{dst}, s{dst}, {const}")
        return L
    def ld(self, dst, soff, imm, tag, sc1=True, n=4, vaddr=V_L16):
        op = {4: "buffer_load_dwordx4", 2: "buffer_load_dwordx2", 1: "buffer_load_dword"}[n]
        return f"{op} {dst}, v{vaddr}, s[4:7], s{soff} offen" + (f" offset:{imm}" if imm else "") + (" sc1" if sc1 else "") + f"|{tag}"
    def st(self, src, soff, imm, tag, n=4, vaddr=V_L16):
        op = {4: "buffer_store_dwordx4", 2: "buffer_store_dwordx2"}[n]
        return f"{op} {src}, v{vaddr}, s[4:7], s{soff} offen" + (f" offset:{imm}" if imm else "") + f" sc1|{tag}"
    def seq_items(self, n, dstf, cur, tagf, sc1):
        items = []
        for i in range(n):
            it = [self.ld(dstf(i), cur, (i % 4) * 1024, tagf(i), sc1)]
            if i % 4 == 3 and i != n - 1: it.append(f"s_add_u32 s{cur}, s{cur}, 4096")
            items.append(it)
        return items
    def dma_items(self, n, lds, cur, tag, sc1):
        items = []
        for i in range(n):
            it = []
            if i % 4 == 0: it += [f"s_mov_b32 m0, s{lds}", "s_nop 0"]
            it.append(f"buffer_load_dwordx4 v{V_L16}, s[4:7], s{cur} offen" + (f" offset:{(i%4)*1024}" if i % 4 else "") + (" sc1" if sc1 else "") + f" lds|{tag}")
            if i % 4 == 3 and i != n - 1: it += [f"s_add_u32 s{cur}, s{cur}, 4096", f"s_add_u32 s{lds}, s{lds}, 4096"]
            items.append(it)
        return items
    @staticmethod
    def zip2(x, y):
        out = []
        for i in range(max(len(x), len(y))):
            if i < len(x): out.append(x[i])
            if i < len(y): out.append(y[i])
        return out
    def take(self, bg, n):
        for _ in range(n):
            if bg: self.emits(bg.pop(0))
    def ldsaddr(self, off):
        if off < 65536: return V_L16, off
        assert off < 131072
        return V_L16H, off - 65536

    def weave(self, mains, fills, bg=None, bg_every=2, bg_start=0, caps=(24,), bg_phase=0):
        fi = 0
        nb = 0
        for k, m in enumerate(mains):
            m()
            cap = caps[k % len(caps)]
            c = 0
            if bg and k >= bg_start and (k - bg_start) % bg_every == bg_phase:
                it = bg.pop(0)
                self.emits(it); c += 12 if any(" lds" in t for t in it) else 8
            nv = 0
            while fi < len(fills):
                t = fills[fi]
                if t.startswith("s_") or t.startswith("@"):
                    self.emit(t); fi += 1; continue
                w = cost_of(t)
                if t.startswith("~"): w = 2
                if t.startswith("ds_read") or t.startswith("ds_write") or t.startswith("buffer_"): w = 8
                lim = cap if (w == 8 or nv * 4 != c) else min(cap, 20)
                if c + w > lim: break
                self.emit(t); fi += 1; c += w
                if w == 4: nv += 1
        while fi < len(fills):
            self.emit(fills[fi]); fi += 1
    def emits_bg(self, L, bg, n, first=0, every=10):
        k = 0
        for i, t in enumerate(L):
            if k < n and bg and i >= first and (i - first) % every == 0:
                self.emits(bg.pop(0)); k += 1
            self.emit(t)

    def mark(self, name):
        if not self.o.get("prof"): return
        if self.opt("prof", 0) == 3 and (name != "p1_start" or self.opt("single", 0) or self.opt("y", 0)): return
        a = self.a
        k = len(self.marks); self.marks.append(name)
        a.e(("s_memtime" if self.opt("prof", 0) == 2 else "s_memrealtime") + " s[36:37]\ns_waitcnt lgkmcnt(0)")
        a.lgq = []
        a.e(f"v_writelane_b32 v{V_MARK}, s36, {k}")
    def dump_marks(self):
        a = self.a
        lab = a.newlabel("dm")
        a.e("s_memrealtime s[36:37]\ns_waitcnt lgkmcnt(0)")
        a.e(f"v_writelane_b32 v{V_MARK}, s36, 63")
        a.e(f"s_cmp_lg_u32 s{S_W}, 0\ns_cbranch_scc1 {lab}")
        a.e(f"s_lshl_b32 s{S_T0}, s2, 9\ns_add_u32 s{S_T0}, s{S_T0}, {DBG}")
        a.e(f"v_lshrrev_b32 v{V_T0}, 2, v{V_L16}")
        a.e(f"v_accvgpr_read_b32 v{V_T1}, a224")
        a.e(f"buffer_store_dword v{V_T1}, v{V_T0}, s[4:7], s{S_T0} offen")
        a.e(f"buffer_store_dword v{V_MARK}, v{V_T0}, s[4:7], s{S_T0} offen offset:256")
        a.e("s_waitcnt vmcnt(0)")
        a.label(lab)

    def arrive(self, base, slot, tags, slot_sreg=None, barrier=True):
        a = self.a
        a.wait_vm(tags)
        if barrier: a.e("s_barrier")
        a.e(f"s_add_u32 s{S_T2}, s{base}, {slot*2048}")
        if slot_sreg is not None: a.e(f"s_lshl_b32 s{S_T3}, s{slot_sreg}, 11\ns_add_u32 s{S_T2}, s{S_T2}, s{S_T3}")
        a.e(f"v_mov_b32 v{V_T7}, 1\ns_cmp_eq_u32 s{S_W}, 0\ns_cselect_b64 exec, 1, 0")
        a.e_uncounted(f"buffer_atomic_add v{V_T7}, off, s[4:7], s{S_T2} sc1")
        a.e("s_mov_b64 exec, -1")
    def poll(self, base, slot, target, slot_sreg=None, extra=0):
        a = self.a
        lab, lp, lx = a.newlabel("pol"), a.newlabel("plp"), a.newlabel("plx")
        a.e(f"s_add_u32 s{S_T2}, s{base}, {slot*2048 + extra}")
        if slot_sreg is not None: a.e(f"s_lshl_b32 s{S_T3}, s{slot_sreg}, 11\ns_add_u32 s{S_T2}, s{S_T2}, s{S_T3}")
        a.e(f"s_cmp_lg_u32 s{S_W}, 0\ns_cbranch_scc1 {lab}")
        vq, lq = list(a.vmq), list(a.lgq)
        dep = self.opt("pdepth", 2)
        a.e(f"s_mov_b32 s{S_CNT}, 0")
        for k in range(dep):
            a.e(f"s_mov_b64 exec, {1 << k}\nbuffer_load_dword v{V_POLL}, off, s[4:7], s{S_T2} sc1")
            if k != dep - 1: a.e(f"s_sleep {self.opt('psleep', 2)}")
        a.label(lp)
        for k in range(dep):
            a.e(f"s_waitcnt vmcnt({dep-1})\nv_readlane_b32 s{S_T3}, v{V_POLL}, {k}")
            a.e(f"s_cmp_ge_u32 s{S_T3}, {target}\ns_cbranch_scc1 {lx}")
            a.e(f"s_mov_b64 exec, {1 << k}\nbuffer_load_dword v{V_POLL}, off, s[4:7], s{S_T2} sc1")
        a.e(f"s_add_u32 s{S_CNT}, s{S_CNT}, 1\ns_cmp_lt_u32 s{S_CNT}, 200000\ns_cbranch_scc1 {lp}")
        a.label(lx)
        a.e("s_mov_b64 exec, -1")
        a.vmq, a.lgq = vq, lq
        a.label(lab)
        a.e("s_barrier")

    def apoll_issue(self, base, slot, lane, slot_sreg, dst):
        a = self.a
        a.e(f"s_lshl_b32 s{dst}, s{slot_sreg}, 11\ns_add_u32 s{dst}, s{dst}, s{base}\ns_add_u32 s{dst}, s{dst}, {slot*2048}")
        a.e(f"s_mov_b64 exec, {1 << lane}")
        a.e(f"buffer_load_dword v{V_POLL}, off, s[4:7], s{dst} sc1", tag=f"ap{lane}")
        a.e("s_mov_b64 exec, -1")
    def apoll_check(self, lane, target, dst):
        a = self.a
        ok, lp = a.newlabel("apk"), a.newlabel("apl")
        a.wait_vm(f"ap{lane}")
        a.e(f"v_readlane_b32 s{S_T3}, v{V_POLL}, {lane}\ns_cmp_ge_u32 s{S_T3}, {target}\ns_cbranch_scc1 {ok}")
        vq, lq = list(a.vmq), list(a.lgq)
        a.e(f"s_mov_b32 s{S_CNT}, 0\ns_mov_b64 exec, {1 << lane}")
        a.label(lp)
        a.e(f"buffer_load_dword v{V_POLL}, off, s[4:7], s{dst} sc1")
        a.e(f"s_add_u32 s{S_CNT}, s{S_CNT}, 1\ns_cmp_gt_u32 s{S_CNT}, 200000\ns_cbranch_scc1 {lp}_x")
        a.e(f"s_waitcnt vmcnt(0)\nv_readlane_b32 s{S_T3}, v{V_POLL}, {lane}\ns_cmp_lt_u32 s{S_T3}, {target}\ns_cbranch_scc1 {lp}")
        a.label(f"{lp}_x")
        a.e("s_waitcnt vmcnt(0)\ns_mov_b64 exec, -1")
        a.vmq, a.lgq = vq, lq
        a.label(ok)

    @staticmethod
    def bc(r): return f"v[{r & ~1}:{(r & ~1) + 1}]", r & 1
    def pk_fma_bc(self, dst, src, rb, rc, neg_a=0, neg_c=0):
        (tb, sb), (tc, sc) = self.bc(rb), self.bc(rc)
        return (f"v_pk_fma_f32 v[{dst}:{dst+1}], v[{src}:{src+1}], {tb}, {tc} op_sel:[0,{sb},{sc}] op_sel_hi:[1,{sb},{sc}]"
                f" neg_lo:[{neg_a},0,{neg_c}] neg_hi:[{neg_a},0,{neg_c}]")
    def pk_mul_bc(self, dst, src, rb):
        tb, sb = self.bc(rb)
        return f"v_pk_mul_f32 v[{dst}:{dst+1}], v[{src}:{src+1}], {tb} op_sel:[0,{sb}] op_sel_hi:[1,{sb}]"
    @staticmethod
    def pk_add(dst, x, y): return f"v_pk_add_f32 v[{dst}:{dst+1}], v[{x}:{x+1}], v[{y}:{y+1}]"

    def stats_reduce(self, b, vV, vM, t0, t1):
        L = []
        for k in (0, 1):
            L += [f"v_add_f32 v{b+k}, v{b+k}, v{b+2+k}", f"v_add_f32 v{b+4+k}, v{b+4+k}, v{b+6+k}", f"v_add_f32 v{b+8+k}, v{b+8+k}, v{b+10+k}"]
        for k in (0, 1):
            L += [f"v_add_f32 v{b+k}, v{b+k}, v{b+4+k}", f"v_add_f32 v{b+8+k}, v{b+8+k}, v{b+12+k}"]
        for k in (0, 1): L += [f"v_add_f32 v{b+k}, v{b+k}, v{b+8+k}"]
        L += [f"v_mov_b32 v{t0}, v{b}", f"v_mov_b32 v{t1}, v{b+1}", "s_nop 0",
              f"v_permlane32_swap_b32 v{t0}, v{b}", f"v_permlane32_swap_b32 v{t1}, v{b+1}",
              f"v_add_f32 v{b}, v{b}, v{t0}", f"v_add_f32 v{b+1}, v{b+1}, v{t1}",
              f"v_mul_f32 v{vM}, {hexf(1.0/D)}, v{b}",
              f"v_mul_f32 v{t1}, {hexf(1.0/D)}, v{b+1}",
              f"v_mul_f32 v{t0}, v{vM}, v{vM}",
              f"v_sub_f32 v{vV}, v{t1}, v{t0}",
              f"v_max_f32 v{vV}, 0, v{vV}",
              f"v_add_f32 v{vV}, {hexf(1e-5)}, v{vV}"]
        return L

    def softmax(self, R, P, t):
        mx, mn, u, w, bp, bn, bpm, bnm = [t + k for k in range(8)]
        L = [f"v_max3_f32 v{mx}, v{R}, v{R+1}, v{R+2}", f"v_min3_f32 v{mn}, v{R}, v{R+1}, v{R+2}",
             f"v_max3_f32 v{u}, v{R+3}, v{R+4}, v{R+5}", f"v_min3_f32 v{w}, v{R+3}, v{R+4}, v{R+5}"]
        for k in (6, 10):
            L += [f"v_max3_f32 v{mx}, v{mx}, v{R+k}, v{R+k+1}", f"v_min3_f32 v{mn}, v{mn}, v{R+k}, v{R+k+1}",
                  f"v_max3_f32 v{u}, v{u}, v{R+k+2}, v{R+k+3}", f"v_min3_f32 v{w}, v{w}, v{R+k+2}, v{R+k+3}"]
        L += [f"v_max3_f32 v{mx}, v{mx}, v{R+14}, v{R+15}", f"v_min3_f32 v{mn}, v{mn}, v{R+14}, v{R+15}",
              f"v_max_f32 v{mx}, v{mx}, v{u}", f"v_min_f32 v{mn}, v{mn}, v{w}",
              f"v_mov_b32 v{u}, v{mx}", f"v_mov_b32 v{w}, v{mn}",
              f"v_mov_b32 v{bpm}, {hexf(1e30)}", f"v_mov_b32 v{bnm}, {hexf(-1e30)}",
              f"v_permlane32_swap_b32 v{u}, v{mx}", f"v_permlane32_swap_b32 v{w}, v{mn}",
              f"v_max_f32 v{mx}, v{mx}, v{u}", f"v_min_f32 v{mn}, v{mn}, v{w}",
              f"v_mul_f32 v{bp}, v{V_C}, v{mx}", f"v_mul_f32 v{bn}, v{V_C}, v{mn}",
              f"v_cndmask_b32 v{bpm}, v{bp}, v{bpm}, s[{S_UP}:{S_UP+1}]",
              f"v_cndmask_b32 v{bnm}, v{bn}, v{bnm}, s[{S_UP}:{S_UP+1}]"]
        for g in range(4):
            for k in (0, 2): L.append(self.pk_fma_bc(P + 4*g + k, R + 4*g + k, V_C, bpm if g == 3 else bp, 0, 1))
            for k in (0, 2): L.append(self.pk_fma_bc(R + 4*g + k, R + 4*g + k, V_C, bnm if g == 3 else bn, 1, 0))
        for g in range(4):
            for k in range(4): L.append(f"v_exp_f32 v{P+4*g+k}, v{P+4*g+k}")
            for k in range(4): L.append(f"v_exp_f32 v{R+4*g+k}, v{R+4*g+k}")
            if g == 1: L += [self.pk_add(mx, P, P + 2), self.pk_add(u, R, R + 2)]
            elif g >= 2:
                for k in (0, 2): L += [self.pk_add(mx, mx, P + 4*(g-1) + k), self.pk_add(u, u, R + 4*(g-1) + k)]
        for k in (0, 2): L += [self.pk_add(mx, mx, P + 12 + k), self.pk_add(u, u, R + 12 + k)]
        L += [f"v_add_f32 v{mx}, v{mx}, v{mn}", f"v_add_f32 v{u}, v{u}, v{w}",
              f"v_mov_b32 v{mn}, v{mx}", f"v_mov_b32 v{w}, v{u}", "s_nop 0",
              f"v_permlane32_swap_b32 v{mn}, v{mx}", f"v_permlane32_swap_b32 v{w}, v{u}",
              f"v_add_f32 v{mx}, v{mx}, v{mn}", f"v_add_f32 v{u}, v{u}, v{w}",
              f"v_rcp_f32 v{mx}, v{mx}", f"v_rcp_f32 v{u}, v{u}"]
        for k in range(0, 16, 2): L.append(self.pk_mul_bc(P + k, P + k, mx))
        for k in range(0, 16, 2): L.append(self.pk_mul_bc(R + k, R + k, u))
        for d in range(8): L.append(f"v_cvt_pk_bf16_f32 v{P+d}, v{P+2*d}, v{P+2*d+1}")
        for d in range(8): L.append(f"v_cvt_pk_bf16_f32 v{R+d}, v{R+2*d}, v{R+2*d+1}")
        return L

    def phi_apply(self, R, tb):
        L = [f"v_cvt_pk_bf16_f32 v{tb+d}, v{R+2*d}, v{R+2*d+1}" for d in range(8)]
        L.append(f"{MF} {vr(R,16)}, {ar(A_PHI)}, {vr(tb)}, 0")
        L.append(f"{MF} {vr(R,16)}, {ar(A_PHI+4)}, {vr(tb+4)}, {vr(R,16)}")
        return L

    def w3_stream(self):
        g0, g1 = S_G[0], S_G[1]
        pre = self.sa(g0, [(S_JS, 4 * 56 * KB), (S_W, 56 * KB)], WGU) + [f"s_add_u32 s{g1}, s{g0}, {28*KB}"]
        its = self.zip2(self.seq_items(28, lambda s: ar(8*s), g0, lambda s: f"w3_{s}", False),
                        self.seq_items(28, lambda s: ar(8*s+4), g1, lambda s: f"w3_{s}", False))
        self.emits(pre)
        return its
    def wo_stream(self):
        its = []
        for sl in range(2):
            c = S_G[2 + sl]
            pre = [f"s_xor_b32 s{c}, s{S_NT}, {sl}"] + [f"s_lshl_b32 s{c}, s{c}, 15"] + self.sa(S_T0, [(S_CB, 2 * 32 * KB), (S_W, 8 * KB)], WO) + [f"s_add_u32 s{c}, s{c}, s{S_T0}"]
            x = self.seq_items(8, lambda i: vr(16 + 32 * sl + 4 * i), c, lambda i: "wo", False)
            self.emits(pre)
            its.append(x)
        return self.zip2(its[0], its[1])
    W4A = 128
    def w4_reg(self, i, sl):
        return vr(self.W4A + 8*i + 4*sl) if i < 16 else ar(8*(i - 16) + 4*sl)
    def kseg(self, dst, late):
        if late: return self.sa(dst, [(S_TH, 56), (S_W, 14)], 0)
        return self.sa(dst, [(S_W, 14)], 56) + [f"s_mul_i32 s{S_T3}, s{S_TH}, 56", f"s_sub_u32 s{dst}, s{dst}, s{S_T3}"]
    def w4_stream(self):
        out = []
        for late in (0, 1):
            its = []
            for sl in range(2):
                c = S_G[2 * late + sl]
                pre = self.kseg(S_T0, late) + [f"s_xor_b32 s{c}, s{S_NT}, {sl}", f"s_mul_i32 s{c}, s{c}, 112", f"s_add_u32 s{c}, s{c}, s{S_T0}"]
                pre += [f"s_mul_i32 s{S_T0}, s{S_CB}, 224", f"s_add_u32 s{c}, s{c}, s{S_T0}", f"s_lshl_b32 s{c}, s{c}, 10", f"s_add_u32 s{c}, s{c}, {WD}"]
                x = self.seq_items(14, lambda i: self.w4_reg(14 * late + i, sl), c, lambda i: f"w4_{14*late+i}", False)
                self.emits(pre)
                its.append(x)
            out += self.zip2(its[0], its[1])
        return out
    def p1w_items(self, part):
        c, l = S_G[4], S_G[5]
        its = self.dma_items(7, l, c, "w1" + "qkv"[part], False)
        pre = self.sa(l, [(S_W, 7 * KB)], L_W1 + part * 28 * KB) + self.sa(c, [(S_J, 84 * KB), (S_W, 7 * KB)], WQKV + part * 28 * KB)
        its[0] = pre + its[0]
        return its

    def prologue(self):
        a, n = self.a, self.name
        a.label(n)
        a.e(f"s_cmp_lt_u32 s2, 256\ns_cbranch_scc1 {n}_go\ns_endpgm")
        a.label(f"{n}_go")
        Y = self.opt("y", 0)
        if Y:
            import start4
            self.st4 = start4.Start(self)
            a.e("s_load_dwordx16 s[64:79], s[0:1], 0\ns_load_dwordx4 s[80:83], s[0:1], 64\ns_load_dwordx2 s[4:5], s[0:1], 80")
            if self.o.get("prof"): a.e("s_memrealtime s[84:85]")
        elif self.opt("single", 0):
            import prep3
            a.e("s_load_dwordx16 s[64:79], s[0:1], 0\ns_load_dwordx4 s[80:83], s[0:1], 64\ns_load_dwordx2 s[4:5], s[0:1], 80")
            if self.o.get("prof"): a.e("s_memrealtime s[84:85]")
            prep3.emit_prep(a, n, self.o)
            a.e("s_mov_b32 s8, s80\ns_mov_b32 s9, s81")
        else:
            a.e("s_load_dwordx2 s[4:5], s[0:1], 80\ns_load_dwordx2 s[8:9], s[0:1], 64")
        if self.opt("pf_main", 0):
            nl = self.opt("pf_lines", 16)
            a.e("s_getpc_b64 s[60:61]")
            a.label(f"{n}_pc")
            a.e(f"s_sub_u32 s60, s60, {n}_pc-{n}\ns_subb_u32 s61, s61, 0")
            a.e(f"s_lshr_b32 s62, s2, 3\ns_and_b32 s62, s62, 31\ns_mul_i32 s62, s62, {nl*64}\ns_min_u32 s62, s62, {n}_end-{n}-{nl*64}\ns_add_u32 s60, s60, s62\ns_addc_u32 s61, s61, 0")
            for i in range(nl): a.e(f"s_load_dwordx16 s[64:79], s[60:61], {i*64}")
        a.e(f"s_mov_b32 s6, {WS_USED}\ns_mov_b32 s7, 0x20000\ns_mov_b32 s10, {S*D*2}\ns_mov_b32 s11, 0x20000")
        if self.opt("antimap", 0): a.e(f"s_lshr_b32 s{S_T0}, s2, 5\ns_and_b32 s{S_T1}, s2, 31")
        else: a.e(f"s_and_b32 s{S_T0}, s2, 7\ns_lshr_b32 s{S_T1}, s2, 3")
        a.e(f"s_and_b32 s{S_TH}, s{S_T0}, 1\ns_lshr_b32 s{S_T0}, s{S_T0}, 1\ns_lshl_b32 s{S_T0}, s{S_T0}, 2")
        a.e(f"s_and_b32 s{S_RB}, s{S_T1}, 3\ns_add_u32 s{S_RB}, s{S_RB}, s{S_T0}")
        a.e(f"s_lshr_b32 s{S_Q}, s{S_T1}, 2\ns_lshl_b32 s{S_J}, s{S_TH}, 3\ns_add_u32 s{S_J}, s{S_J}, s{S_Q}")
        a.e(f"s_min_u32 s{S_CB}, s{S_Q}, 6\ns_mul_i32 s{S_JS}, s{S_TH}, 7\ns_add_u32 s{S_JS}, s{S_JS}, s{S_CB}")
        a.e(f"s_lshl_b32 s{S_M}, s{S_TH}, 1\ns_sub_u32 s{S_M}, 2, s{S_M}")
        a.e(f"v_lshrrev_b32 v{V_T0}, 6, v0\nv_and_b32 v{V_T1}, 63, v0\nv_lshlrev_b32 v{V_L16}, 4, v{V_T1}")
        a.e(f"v_readfirstlane_b32 s{S_W}, v{V_T0}")
        a.e(f"v_add_u32 v{V_L16H}, 0x10000, v{V_L16}")
        a.e(f"v_and_b32 v{V_T2}, 31, v0\nv_bfe_u32 v{V_T3}, v0, 5, 1")
        a.e(f"v_lshlrev_b32 v{V_I8}, 3, v{V_T2}")
        a.e(f"v_mul_u32_u24 v{V_STL}, 1792, v{V_T3}\nv_add_u32 v{V_STL}, v{V_STL}, v{V_I8}")
        a.e(f"s_lshr_b32 s{S_TT}, s{S_W}, 1\ns_and_b32 s{S_NT}, s{S_W}, 1")
        a.e(f"s_mov_b32 s{S_SEL_LO}, 0x3f80\ns_mov_b32 s{S_SEL_HI}, 0x3f800000")
        a.e(f"s_mov_b32 s{S_UP}, 0\ns_mov_b32 s{S_UP+1}, -1")
        a.e(f"s_mov_b32 s{S_L}, 0")
        self.emits(self.sa(S_TILE, [(S_RB, 4), (S_TH, 2), (S_TT, 1)]))
        self.emits(self.sa(S_N, [(S_CB, 2), (S_NT, 1)]))
        self.emits(self.sa(S_XT, [(S_RB, 4), (S_W, 1)]))
        if self.o.get("prof"):
            a.e(f"v_mov_b32 v{V_MARK}, 0")
            if self.opt("single", 0) and not Y:
                k = len(self.marks); self.marks.append("start")
                a.e(f"v_writelane_b32 v{V_MARK}, s84, {k}")
                for nm, r in (("t_ldiss", 94), ("t_landed", 92), ("t_issued", 86), ("t_drained", 88), ("t_zeroseen", 90)):
                    k = len(self.marks); self.marks.append(nm)
                    a.e(f"v_writelane_b32 v{V_MARK}, s{r}, {k}")
                self.mark("prepdone")
        a.e("s_waitcnt lgkmcnt(0)")
        if Y:
            R = dict(W=S_W, J=S_J, L16=V_L16, I8=V_I8, A_PHI=A_PHI, SEL_LO=S_SEL_LO, SEL_HI=S_SEL_HI)
            self.R4 = R
            self.st4.lane_consts(S_W)
            self.st4.front(R)
        else:
            for it in self.p1w_items(1) + self.p1w_items(2): self.emits(it)
            self.emits(self.sa(S_T0, [(S_J, 2 * KB)], PHI))
            for it in self.seq_items(2, lambda i: ar(A_PHI + 4*i), S_T0, lambda i: "phi", False): self.emits(it)
            self.emits(self.sa(S_T0, [(S_TILE, 28 * KB), (S_N, 2 * KB)], X))
            for it in self.seq_items(2, lambda i: ar(A_RES + 4*i), S_T0, lambda i: "res", False): self.emits(it)
            for it in self.p1w_items(0): self.emits(it)
        a.e(f"v_cmp_eq_u32 vcc, 28, v{V_T2}\nv_mov_b32 v{V_T4}, 1.0\nv_mov_b32 v{V_ONE}, 0\nv_cndmask_b32 v{V_ONE}, v{V_ONE}, v{V_T4}, vcc")
        a.e(f"v_lshlrev_b32 v{V_T3}, 2, v{V_T3}\nv_sub_u32 v{V_T2}, v{V_T2}, v{V_T3}")
        a.e(f"v_mov_b32 v{V_T4}, 0x3f80\nv_mov_b32 v{V_T5}, 0x3f800000")
        for s in range(2):
            for d in range(4):
                j = 2 * d
                c = 16 * s + 8 * (j // 4) + (j % 4)
                a.e(f"v_mov_b32 v{V_T6}, 0")
                a.e(f"v_cmp_eq_u32 vcc, {c}, v{V_T2}\nv_cndmask_b32 v{V_T6}, v{V_T6}, v{V_T4}, vcc")
                a.e(f"v_cmp_eq_u32 vcc, {c+1}, v{V_T2}\nv_cndmask_b32 v{V_T6}, v{V_T6}, v{V_T5}, vcc")
                a.e(f"v_accvgpr_write_b32 a{A_ID+4*s+d}, v{V_T6}")
        if Y:
            self.st4.xblock(self.R4)
            self.st4.bg_issue(self.R4)
            a.e(f"s_mov_b32 s8, s80\ns_mov_b32 s9, s81\ns_mov_b32 s10, {S*D*2}\ns_mov_b32 s11, 0x20000")
            self.st4.self_center(self.R4)
            self.st4.ts(86)
            if self.o.get("prof"):
                for nm, r in (("start", 84), ("t_ldiss", 94), ("t_landed", 92), ("t_arr", 90), ("t_center", 86)):
                    k = len(self.marks); self.marks.append(nm)
                    a.e(f"v_writelane_b32 v{V_MARK}, s{r}, {k}")
            a.vmq = []; a.lgq = []

    def layer_setup(self):
        self.emits(self.sa(S_FRB, [(S_L, NSYNC * 2048), (S_RB, 128)], FLAGS))
        self.emits(self.sa(S_FJ, [(S_L, NSYNC * 2048), (S_J, 128)], FLAGS))

    def p1(self):
        a = self.a
        XF, RK, RV, RQ, RING, RA, RB, TB = 16, 128, 144, 160, 176, 208, 224, 240
        RS, KR, QRING = 160, 176, 192
        LA = self.opt("la1", 6)
        self.mark("p1_start")
        self.emits(self.sa(S_A, [(S_XT, 28 * KB), (S_L, 2 * XSZ)], X))
        xi = self.seq_items(28, lambda s: vr(XF + 4*s), S_A, lambda s: f"x{s}", True)
        self.take(xi, 2)
        self.emits(self.sa(S_B, [(S_XT, 3584), (S_L, 2 * STSZ)], ST))
        for k in range(7): self.emit(self.ld(vr(RA + 2*k, 2), S_B, k * 256, "st", n=2, vaddr=V_STL))
        self.take(xi, LA - 2)
        Y = self.opt("y", 0)
        if Y:
            lab = a.newlabel("l0only")
            a.e(f"s_cmp_lg_u32 s{S_L}, 0\ns_cbranch_scc1 {lab}")
            vq, lq, vt = list(a.vmq), list(a.lgq), a.vm_total
            self.st4.bg_finish(self.R4, len(a.vmq))
            self.emits(self.sa(S_T0, [(S_TILE, 28 * KB), (S_N, 2 * KB)], X))
            for it in self.seq_items(2, lambda i: ar(A_RES + 4*i), S_T0, lambda i: "res", True): self.emits(it)
            a.vmq, a.lgq, a.vm_total = vq, lq, vt
            a.label(lab)
            self.vm_mark = a.vm_total
            a.e("s_waitcnt lgkmcnt(0)")
        a.wait_vm(("w1k", "w1v", "phi", "res"))
        a.e("s_barrier")
        self.mark("p1_wready")
        def rdA(s):
            sl = RING + 8 * (s % 4)
            r, of = self.ldsaddr(L_W1 + (28 + s) * KB); a.e(f"ds_read_b128 {vr(sl)}, v{r} offset:{of}", tag=f"a{s}")
            r, of = self.ldsaddr(L_W1 + (56 + s) * KB); a.e(f"ds_read_b128 {vr(sl+4)}, v{r} offset:{of}", tag=f"a{s}")
        for s in range(3): rdA(s)
        def mk(s):
            def f():
                if s + 3 < 28: rdA(s + 3)
                self.take(xi, 1)
                if Y and s == self.opt("bgarr", 14):
                    a.e(f"s_waitcnt vmcnt({min(63, a.vm_total - self.vm_mark)})\ns_barrier")
                    a.e(f"s_and_b32 s{S_T2}, s2, 15\ns_lshl_b32 s{S_T2}, s{S_T2}, 7\ns_add_u32 s{S_T2}, s{S_T2}, {PFLAG + 2048}")
                    a.e(f"v_mov_b32 v{V_T7}, 1\ns_cmp_eq_u32 s{S_W}, 0\ns_cselect_b64 exec, 1, 0")
                    a.e_uncounted(f"buffer_atomic_add v{V_T7}, off, s[4:7], s{S_T2} sc1")
                    a.e("s_mov_b64 exec, -1")
                a.wait_both(f"x{s}", f"a{s}")
                sl = RING + 8 * (s % 4)
                a.e(f"{MF} {vr(RK,16)}, {vr(sl)}, {vr(XF+4*s)}, {vr(RK,16) if s else 0}")
            return f
        def mv(s):
            def f():
                sl = RING + 8 * (s % 4)
                a.e(f"{MF} {vr(RV,16)}, {vr(XF+4*s)}, {vr(sl+4)}, {vr(RV,16) if s else 0}")
            return f
        mains = []
        for s in range(28): mains += [mk(s), mv(s)]
        fills = ["@waitvm st"] + self.stats_reduce(RA, V_T0, V_T1, V_T2, V_T3)
        fills += [f"v_rsq_f32 v{V_T0}, v{V_T0}", f"v_lshrrev_b32 v{V_T1}, 1, v{V_I8}"]
        fills += self.sa(S_T0, [(S_W, 128)], L_SCR)
        fills += [f"v_add_u32 v{V_T1}, s{S_T0}, v{V_T1}", f"ds_write_b32 v{V_T1}, v{V_T0}|scw",
                  f"v_mul_f32 v{V_C}, {hexf(1.4426950408889634)}, v{V_T0}",
                  f"v_lshrrev_b32 v{V_T1}, 5, v{V_L16}", f"v_and_b32 v{V_T1}, 16, v{V_T1}",
                  f"v_add_u32 v{V_T1}, s{S_T0}, v{V_T1}", "@waitlg scw"]
        fills += [f"ds_read_b128 {vr(RS+4*g)}, v{V_T1} offset:{g*32}|rs" for g in range(4)]
        self.weave(mains, fills, caps=(20, 0))
        self.mark("p1_loopA")
        w3 = self.w3_stream()
        vch = ["@waitlg rs"] + [f"v_pk_fma_f32 v[{RV+r}:{RV+r+1}], v[{RV+r}:{RV+r+1}], v[{RS+r}:{RS+r+1}], v[4:5] op_sel:[0,0,1] op_sel_hi:[1,1,1]" for r in range(0, 16, 2)]
        vch += [f"v_cvt_pk_bf16_f32 v{RV+d}, v{RV+2*d}, v{RV+2*d+1}" for d in range(8)]
        nk = self.opt("bg_k", 8) if not Y else 0
        if Y:
            a.e(f"v_lshlrev_b32 v249, 3, v{V_L16}\ns_mov_b32 s{S_F}, {PFLAG + 2048}\ns_mov_b64 exec, 0xffff")
            a.e(f"buffer_load_dword v248, v249, s[4:7], s{S_F} offen sc1", tag="dq")
            a.e("s_mov_b64 exec, -1")
        self.take(w3, min(nk, self.opt("bg_k0", 4)))
        self.emits(self.phi_apply(RK, TB))
        self.emits(vch)
        self.emits_bg(self.softmax(RK, RA, V_T0), w3, nk - min(nk, self.opt("bg_k0", 4)), first=0, every=self.opt("bg_k_every", 6))
        self.mark("p1_kepi")
        a.e(f"{MF} {vr(RB,16)}, {vr(RA)}, {ar(A_ID)}, 0")
        a.e(f"{MF} {vr(RB,16)}, {vr(RA+4)}, {ar(A_ID+4)}, {vr(RB,16)}")
        a.e(f"{MF} {vr(RA,16)}, {vr(RK)}, {ar(A_ID)}, 0")
        a.e(f"{MF} {vr(RA,16)}, {vr(RK+4)}, {ar(A_ID+4)}, {vr(RA,16)}")
        self.emits(self.sa(S_T0, [(S_W, 2048)], L_KVR) + [f"v_add_u32 v{V_T0}, s{S_T0}, v{V_L16}"])
        self.emits(self.sa(S_T0, [(S_W, 8192)], L_KVR) + [f"v_add_u32 v{V_T1}, s{S_T0}, v{V_L16}"])
        self.emits(self.sa(S_C, [(S_J, 4 * 16 * KB), (S_W, 16 * KB), (S_L, SLABSZ)], SLAB))
        for d in range(8): a.e(f"v_cvt_pk_bf16_f32 v{RB+d}, v{RB+2*d}, v{RB+2*d+1}")
        a.e(f"{MF} {vr(RK,16)}, {vr(RB)}, {vr(RV)}, 0")
        a.e(f"{MF} {vr(RK,16)}, {vr(RB+4)}, {vr(RV+4)}, {vr(RK,16)}")
        for d in range(8): a.e(f"v_cvt_pk_bf16_f32 v{RA+d}, v{RA+2*d}, v{RA+2*d+1}")
        a.e(f"{MF} {vr(RB,16)}, {vr(RA)}, {vr(RV)}, 0")
        a.e(f"{MF} {vr(RB,16)}, {vr(RA+4)}, {vr(RV+4)}, {vr(RB,16)}")
        self.emits(self.sa(S_D, [(S_RB, KB), (S_C, 1)]))
        for t, R in ((0, RK), (1, RB)):
            for s in range(2):
                for g in range(2):
                    a.e(f"ds_write_b128 v{V_T0}, {vr(R+8*s+4*g)} offset:{(2*t+s)*8192+g*1024}", tag="kw")
        a.wait_vm("w1q")
        a.e("s_waitcnt lgkmcnt(0)\ns_barrier")
        for ws in range(4):
            for g in range(2):
                a.e(f"ds_read_b128 {vr(KR+8*ws+4*g)}, v{V_T1} offset:{(ws*2+g)*1024}", tag=f"kr{ws}")
        def rdB(s):
            sl = QRING + 4 * (s % 4) + 16
            r, of = self.ldsaddr(L_W1 + s * KB); a.e(f"ds_read_b128 {vr(sl)}, v{r} offset:{of}", tag=f"b{s}")
        a.wait_lg("kr1")
        for r in range(0, 8, 2): a.e(self.pk_add(KR + r, KR + r, KR + 8 + r))
        a.wait_lg("kr3")
        for r in range(0, 8, 2): a.e(self.pk_add(KR + 16 + r, KR + 16 + r, KR + 24 + r))
        for r in range(0, 8, 2): a.e(self.pk_add(KR + r, KR + r, KR + 16 + r))
        for d in range(4): a.e(f"v_cvt_pk_bf16_f32 v{KR+d}, v{KR+2*d}, v{KR+2*d+1}")
        self.emit(self.st(vr(KR), S_D, 0, "slab"))
        self.mark("p1_slab")
        if Y: self.done_check()
        for s in range(3): rdB(s)
        ARR = self.opt("arr1", 20)
        def mq(s):
            def f():
                if s == ARR: self.arrive(S_FJ, F_S1, "slab")
                if s + 3 < 28: rdB(s + 3)
                a.wait_lg(f"b{s}")
                sl = QRING + 4 * (s % 4) + 16
                a.e(f"{MF} {vr(RQ,16)}, {vr(sl)}, {vr(XF+4*s)}, {vr(RQ,16) if s else 0}")
            return f
        self.weave([mq(s) for s in range(28)], [], bg=w3, bg_every=self.opt("bg_q_every", 2))
        self.mark("p1_qpass")
        wo = self.wo_stream()
        qe = self.phi_apply(RQ, TB) + self.softmax(RQ, RA, V_T0)
        cut = self.opt("ap1", 70)
        self.emits_bg(qe[:cut], wo, self.opt("bg_qe", 6), first=0, every=11)
        if self.opt("async1", 1):
            a.e(f"s_mov_b32 s{S_E}, 0")
            self.apoll_issue(S_FJ, F_S1, 10, S_E, S_F)
        self.emits(qe[cut:])
        self.mark("p1_qepi")
        self.RA, self.RQ, self.w3, self.wo = RA, RQ, w3, wo

    def done_check(self):
        a = self.a
        ok, lp = a.newlabel("dok"), a.newlabel("dlp")
        a.wait_vm("dq")
        a.e(f"s_mov_b64 exec, 0xffff\nv_cmp_gt_u32 vcc, 16, v248\ns_cbranch_vccz {ok}")
        vq, lq, vt = list(a.vmq), list(a.lgq), a.vm_total
        a.e(f"s_mov_b32 s{S_CNT}, 0\ns_mov_b32 s{S_F}, {PFLAG + 2048}")
        a.label(lp)
        a.e(f"buffer_load_dword v248, v249, s[4:7], s{S_F} offen sc1")
        a.e(f"s_add_u32 s{S_CNT}, s{S_CNT}, 1\ns_cmp_gt_u32 s{S_CNT}, 200000\ns_cbranch_scc1 {lp}_x")
        a.e(f"s_waitcnt vmcnt(0)\nv_cmp_gt_u32 vcc, 16, v248\ns_cbranch_vccnz {lp}")
        a.label(f"{lp}_x")
        a.e("s_waitcnt vmcnt(0)")
        a.vmq, a.lgq, a.vm_total = vq, lq, vt
        a.label(ok)
        a.e("s_mov_b64 exec, -1")

    def p2a(self):
        a = self.a
        RA, RQ = self.RA, self.RQ
        SL, AC, KA, RB, TB = 80, 176, 188, 224, 240
        if self.opt("async1", 1): self.apoll_check(10, 16, S_F)
        else: self.poll(S_FJ, F_S1, 16)
        self.mark("S1_poll")
        for it in self.seq_items(16, lambda i: vr(SL + 4*i), S_C, lambda i: f"sl{i}", True): self.emits(it)
        nwo = min(len(self.wo), self.opt("wo_2a", 16))
        bg2 = [self.wo.pop(0) for _ in range(nwo)] + [self.w3.pop(0) for _ in range(min(len(self.w3), self.opt("bg_2a", 0)))]
        for i in range(16):
            if i >= self.opt("bg_2a_first", 4) and bg2: self.emits(bg2.pop(0))
            a.wait_vm(f"sl{i}")
            for d in range(4):
                a.e(f"v_dot2_f32_bf16 v{AC+2*d}, v{SL+4*i+d}, s{S_SEL_LO}, {'v%d' % (AC+2*d) if i else 0}")
                a.e(f"v_dot2_f32_bf16 v{AC+2*d+1}, v{SL+4*i+d}, s{S_SEL_HI}, {'v%d' % (AC+2*d+1) if i else 0}")
        self.take(bg2, len(bg2))
        self.emits(self.sa(S_T0, [(S_W, KB)], L_KVA) + [f"v_add_u32 v{V_T0}, s{S_T0}, v{V_L16}"])
        self.emits(self.sa(S_A, [(S_XT, 32 * KB), (S_J, 2 * KB), (S_L, OSZ)], O))
        for d in range(4): a.e(f"v_cvt_pk_bf16_f32 v{AC+8+d}, v{AC+2*d}, v{AC+2*d+1}")
        a.e(f"ds_write_b128 v{V_T0}, {vr(AC+8)}")
        a.e("s_waitcnt lgkmcnt(0)\ns_barrier")
        for p in range(4):
            r, of = self.ldsaddr(L_KVA + p * KB)
            a.e(f"ds_read_b128 {vr(KA+4*p)}, v{r} offset:{of}", tag=f"ka{p}")
        Bs = [RA, RA + 4, RQ, RQ + 4]
        for p in range(4):
            a.wait_lg(f"ka{p}")
            a.e(f"{MF} {vr(RB,16)}, {vr(KA+4*p)}, {vr(Bs[p])}, {vr(RB,16) if p else 0}")
        a.e(f"v_mov_b32 v{V_T0}, v{RB+12}\nv_mov_b32 v{V_T1}, v{RB+12}")
        a.e(f"v_permlane32_swap_b32 v{V_T0}, v{V_T1}")
        a.e(f"v_add_f32 v{V_T1}, {hexf(1e-6)}, v{V_T1}\nv_rcp_f32 v{V_T1}, v{V_T1}")
        for r in range(0, 16, 2): a.e(self.pk_mul_bc(RB + r, RB + r, V_T1))
        for d in range(8): a.e(f"v_cvt_pk_bf16_f32 v{TB+d}, v{RB+2*d}, v{RB+2*d+1}")
        self.emit(self.st(vr(TB), S_A, 0, "ost")); self.emit(self.st(vr(TB+4), S_A, 1024, "ost"))
        self.mark("p2a_ost")
        self.arrive(S_FRB, F_S2, "ost")
        self.take(self.wo, len(self.wo))
        self.take(self.w3, self.opt("bg_s2", 0))
        self.mark("S2_arr")

    def red_addr(self):
        L = []
        for u in range(1, 4):
            L += [f"s_xor_b32 s{S_T0}, s{S_W}, {u}", f"s_mul_i32 s{S_T0}, s{S_T0}, 12288", f"s_add_u32 s{S_T0}, s{S_T0}, {L_RED+(u-1)*4096}",
                  f"v_add_u32 v{V_T0+u}, s{S_T0}, v{V_L16}"]
        L += self.sa(S_T0, [(S_W, 12288)], L_RED) + [f"v_add_u32 v{V_T0}, s{S_T0}, v{V_L16}"]
        return L
    def red_write(self, ACC, u):
        return [f"ds_write_b128 v{V_T0+u}, {vr(ACC+16*u+4*g)} offset:{g*1024}|rw" for g in range(4)]
    def res_unpack(self, TR):
        L = [f"v_accvgpr_read_b32 v{TR+16+d}, a{A_RES+d}" for d in range(8)]
        for d in range(8):
            L += [f"v_lshlrev_b32 v{TR+2*d}, 16, v{TR+16+d}", f"v_and_b32 v{TR+2*d+1}, 0xffff0000, v{TR+16+d}"]
        return L
    def red_finish(self, ACC, TR):
        a = self.a
        for r in range(0, 16, 2): a.e(self.pk_add(ACC + r, ACC + r, TR + r))
        a.e("s_waitcnt lgkmcnt(0)\ns_barrier")
        RD = ACC + 16
        for u in range(3):
            for g in range(4):
                a.e(f"ds_read_b128 {vr(RD+16*u+4*g)}, v{V_T0} offset:{u*4096+g*1024}", tag=f"rr{u}")
        for u in range(3):
            a.wait_lg(f"rr{u}")
            for r in range(0, 16, 2): a.e(self.pk_add(ACC + r, ACC + r, RD + 16*u + r))
        for d in range(8): a.e(f"v_cvt_pk_bf16_f32 v{TR+d}, v{ACC+2*d}, v{ACC+2*d+1}")
        self.PK, self.ACC = TR, ACC
    def x_store_addr(self, xsel):
        return (self.sa(S_E, [(S_TILE, 28 * KB), (S_N, 2 * KB), (S_L, 2 * XSZ)], X + xsel * XSZ) +
                self.sa(S_F, [(S_TILE, 3584), (S_N, 256), (S_L, 2 * STSZ)], ST + xsel * STSZ))
    def store_x_and_stats(self):
        a = self.a
        PK, ACC = self.PK, self.ACC
        self.emit(self.st(vr(PK), S_E, 0, "xst")); self.emit(self.st(vr(PK+4), S_E, 1024, "xst"))
        t = PK + 8
        a.e(self.pk_add(t, ACC, ACC + 2))
        a.e(f"v_pk_mul_f32 v[{t+2}:{t+3}], v[{ACC}:{ACC+1}], v[{ACC}:{ACC+1}]")
        for r in range(2, 16, 2):
            if r > 2: a.e(self.pk_add(t, t, ACC + r))
            a.e(f"v_pk_fma_f32 v[{t+2}:{t+3}], v[{ACC+r}:{ACC+r+1}], v[{ACC+r}:{ACC+r+1}], v[{t+2}:{t+3}]")
        a.e(f"v_add_f32 v{t}, v{t}, v{t+1}\nv_add_f32 v{t+1}, v{t+2}, v{t+3}")
        a.e(f"v_mov_b32 v{t+2}, v{t}\nv_mov_b32 v{t+3}, v{t+1}")
        a.e(f"v_permlane32_swap_b32 v{t+2}, v{t}\nv_permlane32_swap_b32 v{t+3}, v{t+1}")
        a.e(self.pk_add(t, t, t + 2))
        a.e("s_mov_b32 exec_hi, 0")
        self.emit(self.st(f"v[{t}:{t+1}]", S_F, 0, "xst", n=2, vaddr=V_I8))
        a.e("s_mov_b32 exec_hi, -1")
        for d in range(8): a.e(f"v_accvgpr_write_b32 a{A_RES+d}, v{PK+d}")

    def p2b(self):
        a = self.a
        OB, ACC, TR = 80, 144, 208
        pre = []
        for b, c in ((0, S_A), (1, S_B)):
            pre += [f"s_xor_b32 s{c}, s{S_TILE}, {b}", f"s_lshl_b32 s{c}, s{c}, 15"] + self.sa(S_T0, [(S_W, 8 * KB), (S_L, OSZ)], O) + [f"s_add_u32 s{c}, s{c}, s{S_T0}"]
        self.emits(pre)
        self.poll(S_FRB, F_S2, 16)
        self.mark("S2_poll")
        ob = [self.seq_items(8, lambda i: vr(OB + 32*b + 4*i), (S_A, S_B)[b], lambda i: f"o{b}_{i}", True) for b in range(2)]
        for it in ob[1] + ob[0]: self.emits(it)
        nb = self.opt("bg_2b", 14)
        self.emits(self.red_addr() + self.x_store_addr(1))
        a.wait_vm("wo")
        def mf(u, i):
            b, sl = u >> 1, u & 1
            a.e(f"{MF} {vr(ACC+16*u,16)}, {vr(16+32*sl+4*i)}, {vr(OB+32*b+4*i)}, {vr(ACC+16*u,16) if i else 0}")
        for i in range(8):
            a.wait_vm(f"o1_{i}")
            mf(2, i); mf(3, i)
            if i < nb: self.take(self.w3, 1)
        resu = self.res_unpack(TR)
        wr = self.red_write(ACC, 2) + self.red_write(ACC, 3)
        for i in range(8):
            a.wait_vm(f"o0_{i}")
            mf(1, i)
            if i >= 2 and wr: self.emit(wr.pop(0))
            self.emits(resu[3*i:3*i+3])
            mf(0, i)
            if i >= 2 and wr: self.emit(wr.pop(0))
            if 8 + i < nb: self.take(self.w3, 1)
        self.emits(wr)
        self.mark("p2b_mfma")
        self.emits(self.red_write(ACC, 1))
        self.red_finish(ACC, TR)
        self.store_x_and_stats()
        self.mark("p2b_st")
        self.arrive(S_FRB, F_S3, "xst")
        self.take(self.w3, self.opt("bg_s3", 0))
        self.mark("S3_arr")

    def p3(self):
        a = self.a
        ACC0, ACC1, RING, CC, TT, HP, STB = 16, 48, 80, 96, 100, 116, 100
        V_X1, V_CA, V_CB = V_T5, V_T4, V_T6
        xds = []
        for p in range(4):
            gc, gl = 56 + 2 * p, 57 + 2 * p
            self.emits([f"s_xor_b32 s{S_T0}, s{S_M}, {p}"] + self.sa(gc, [(S_T0, 28 * KB), (S_RB, 4 * 28 * KB), (S_W, 7 * KB), (S_L, 2 * XSZ)], X + XSZ))
            self.emits(self.sa(gl, [(S_W, 7 * KB)], L_XR + (p & 1) * XSLOT))
            xds.append(self.dma_items(7, gl, gc, f"xt{p}", True))
        def xd(p): return xds[p]
        x0, x1 = xd(0), xd(1)
        self.poll(S_FRB, F_S3, 14)
        self.mark("S3_poll")
        self.take(x0, 7)
        self.emits(self.sa(S_T0, [(S_XT, 3584), (S_L, 2 * STSZ)], ST + STSZ))
        for k in range(7): self.emit(self.ld(vr(STB + 2*k, 2), S_T0, k * 256, "st", n=2, vaddr=V_STL))
        self.take(self.w3, len(self.w3))
        a.e(f"v_add_u32 v{V_X1}, {L_XR + XSLOT}, v{V_L16}")
        def hbase(p):
            return [f"s_xor_b32 s{S_T0}, s{S_M}, {p}"] + self.sa(S_C, [(S_T0, 112 * KB), (S_RB, 4 * 112 * KB), (S_JS, 8 * KB), (S_W, 2 * KB), (S_L, HSZ)], HB)
        c1 = -2.0 * 0.7978845608028654 * 1.4426950408889634
        c2 = c1 * 0.044715
        stf = ["@waitvm st"] + self.stats_reduce(STB, V_T0, V_T1, V_T2, V_T3)
        stf += [f"v_rsq_f32 v{V_T1}, v{V_T0}", f"v_lshrrev_b32 v{V_CA}, 1, v{V_I8}"] + self.sa(S_T0, [(S_W, 384)], L_SCR3)
        stf += [f"v_add_u32 v{V_CB}, s{S_T0}, v{V_CA}",
                f"v_mul_f32 v{V_T2}, v{V_T1}, v{V_T1}", f"v_mul_f32 v{V_T3}, {hexf(c1)}, v{V_T1}", f"v_mul_f32 v{V_T2}, v{V_T2}, v{V_T1}", f"v_mul_f32 v{V_T2}, {hexf(c2)}, v{V_T2}",
                f"ds_write_b32 v{V_CB}, v{V_T3}|cw", f"ds_write_b32 v{V_CB}, v{V_T2} offset:128|cw", f"ds_write_b32 v{V_CB}, v{V_T0} offset:256|cw"]
        stf += self.sa(S_T0, [(S_M, 384)], L_SCR3) + [f"s_mul_i32 s{S_T1}, s{S_M}, 384", f"s_sub_u32 s{S_T1}, {L_SCR3 + 768}, s{S_T1}",
                f"v_add_u32 v{V_CB}, s{S_T1}, v{V_CA}", f"v_add_u32 v{V_CA}, s{S_T0}, v{V_CA}"]

        def epi(p):
            A = ACC0 if p % 2 == 0 else ACC1
            G, U = A, A + 16
            va = V_CA if p < 2 else V_CB
            L = [f"ds_read_b32 v{CC+q}, v{va} offset:{(p&1)*384+q*128}|cc" for q in range(3)] + hbase(p)
            for g in range(4):
                rr = [4*g + k for k in range(4)]
                for k, r in enumerate(rr): L.append(f"v_mul_f32 v{TT+k}, v{G+r}, v{G+r}")
                for k, r in enumerate(rr): L.append(f"v_mul_f32 v{TT+4+k}, v{G+r}, v{U+r}")
                if g == 0: L.append("@waitlg cc")
                for k, r in enumerate(rr): L.append(f"v_fma_f32 v{TT+k}, v{TT+k}, v{CC+1}, v{CC}")
                for k, r in enumerate(rr): L.append(f"v_mul_f32 v{TT+k}, v{TT+k}, v{G+r}")
                for k, r in enumerate(rr): L.append(f"v_exp_f32 v{TT+k}, v{TT+k}")
                for k, r in enumerate(rr): L.append(f"v_fma_f32 v{TT+k}, v{TT+k}, v{CC+2}, v{CC+2}")
                for k, r in enumerate(rr): L.append(f"v_rcp_f32 v{TT+k}, v{TT+k}")
                for k in range(4): L.append(f"v_mul_f32 v{TT+4+k}, v{TT+4+k}, v{TT+k}")
                L.append(f"v_cvt_pk_bf16_f32 v{HP+2*g}, v{TT+4}, v{TT+5}")
                L.append(f"v_cvt_pk_bf16_f32 v{HP+2*g+1}, v{TT+6}, v{TT+7}")
                if g % 2 == 1 and not (self.opt("x_nost", 0) and p < 2): L.append(self.st(vr(HP + 4*(g//2)), S_C, 1024 * (g // 2), f"hst{p}"))
            if self.opt("x_noepi", 0) and p < 2: L = [t for t in L if t.startswith("buffer_") or t.startswith("s_")]
            return L

        w4 = None
        for p in range(4):
            A = ACC0 if p % 2 == 0 else ACC1
            a.wait_vm(f"xt{p}")
            a.e("s_waitcnt lgkmcnt(0)\ns_barrier")
            if p in (0, 1, 3): self.mark(f"p3_T{p}")
            def rd(s):
                if p & 1 == 0:
                    r, of = self.ldsaddr(L_XR + s * KB)
                else: r, of = V_X1, s * KB
                a.e(f"ds_read_b128 {vr(RING+4*(s%4))}, v{r} offset:{of}", tag=f"b{s}")
            for s in range(3): rd(s)
            def mg(s):
                def f():
                    if s + 3 < 28: rd(s + 3)
                    a.wait_both(f"w3_{s}" if p == 0 else None, f"b{s}")
                    a.e(f"{MF} {vr(A,16)}, {ar(8*s)}, {vr(RING+4*(s%4))}, {vr(A,16) if s else 0}")
                return f
            def mu(s):
                def f(): a.e(f"{MF} {vr(A+16,16)}, {ar(8*s+4)}, {vr(RING+4*(s%4))}, {vr(A+16,16) if s else 0}")
                return f
            mains = []
            for s in range(28): mains += [mg(s), mu(s)]
            if p == 0:
                w4 = self.w4_stream()
                bg = x1 + [w4.pop(0) for _ in range(self.opt("w4_p0", 12))]
                self.weave(mains, stf, bg=bg, bg_every=2, bg_phase=1, caps=(16, 8))
            elif p == 1:
                bg = xd(2) + [w4.pop(0) for _ in range(self.opt("w4_p1", 12))]
                if self.opt("x_nobg", 0): bg = xd(2)
                mains[0](); mains[1]()
                self.weave(mains[2:], epi(0), bg=bg, bg_every=2, bg_phase=1, caps=(self.opt('cap1', 24), self.opt('cap2', 8)))
            elif p == 2:
                na = 32 - self.opt("w4_p0", 12) - self.opt("w4_p1", 12)
                bg = xd(3) + [w4.pop(0) for _ in range(na)]
                if self.opt("x_nobg", 0): bg = xd(3)
                mains[0](); mains[1]()
                self.weave(mains[2:], epi(1), bg=bg, bg_every=2, bg_phase=1, caps=(self.opt('cap1', 24), self.opt('cap2', 8)))
            else:
                bg = w4
                mains[0](); mains[1]()
                a.e(f"s_xor_b32 s{S_E}, s{S_TH}, 1")
                AP = self.opt("ap4e", 46)
                orig = mains[AP]
                def with_poll():
                    self.apoll_issue(S_FRB, F_S4E, 8, S_E, S_F)
                    orig()
                mains[AP] = with_poll
                AE = self.opt("arr4e", 22)
                orig2 = mains[AE]
                def with_arr():
                    self.arrive(S_FRB, F_S4E, ("hst0", "hst1"), slot_sreg=S_TH)
                    orig2()
                mains[AE] = with_arr
                self.weave(mains[2:], epi(2), bg=bg, bg_every=2, bg_phase=1, caps=(self.opt('cap1', 24), self.opt('cap2', 8)))
            self.take(bg, len(bg))
        self.mark("p3_loop")
        self.p4_setup()
        self.apoll_check(8, 7, S_F)
        LA = self.opt("la4", 6)
        first = []
        for i in range(LA): first += [self.hi[(i, 0)], self.hi[(i, 1)]]
        self.emits_bg(epi(3), first, len(first), first=self.opt("e3first", 20), every=self.opt("e3every", 9))
        self.take(first, len(first))
        self.mark("p3_epi")

    def p4_setup(self):
        HR, NR = 96, 16
        cur = [S_G[4], S_G[5], S_G[6], S_G[7]]
        pre = []
        for late in (0, 1):
            for b in range(2):
                c = cur[2*late + b]
                pre += self.kseg(S_T0, late) + [f"s_xor_b32 s{c}, s{S_TILE}, {b}", f"s_mul_i32 s{c}, s{c}, 112", f"s_add_u32 s{c}, s{c}, s{S_T0}", f"s_lshl_b32 s{c}, s{c}, 10"]
                pre += self.sa(S_T0, [(S_L, HSZ)], HB) + [f"s_add_u32 s{c}, s{c}, s{S_T0}"]
        self.emits(pre)
        self.hi = {}
        for late in (0, 1):
            for b in range(2):
                x = self.seq_items(14, lambda i: ar(HR + 8*((14*late + i) % NR) + 4*b), cur[2*late + b], lambda i: f"h{14*late+i}_{b}", True)
                for i in range(14): self.hi[(14*late + i, b)] = x[i]

    def p4(self):
        a = self.a
        n = self.name
        ACC, HR, NR, TR = 16, 96, 16, 80
        LA = self.opt("la4", 6)
        hi = self.hi
        self.emits(self.red_addr())
        def mf(u, i):
            b, sl = u >> 1, u & 1
            a.e(f"{MF} {vr(ACC+16*u,16)}, {self.w4_reg(i, sl)}, {ar(HR+8*(i%NR)+4*b)}, {vr(ACC+16*u,16) if i else 0}")
        TAIL = self.opt("tail4", 6)
        PL = 14 - LA
        t0 = 28 - TAIL
        rest0 = [hi[(i, 0)] for i in range(t0, 28)]
        rest1 = [hi[(i, 1)] for i in range(t0, 28)]
        ARR4 = self.opt("arr4", 3)
        APL = self.opt("ap4l", PL - 2)
        for i in range(t0):
            if i == ARR4:
                self.arrive(S_FRB, F_S4L, ("hst2", "hst3"), slot_sreg=S_TH)
                self.mark("S4_arr")
            if i == APL: self.apoll_issue(S_FRB, F_S4L, 9, S_TH, S_F)
            if i == PL:
                self.apoll_check(9, 7, S_F)
                self.mark("S4L_poll")
            a.wait_vm((f"h{i}_0", f"h{i}_1", f"w4_{i}"))
            nxt = i + LA
            mf(0, i); mf(1, i)
            if nxt < t0: self.emits(hi[(nxt, 0)])
            elif rest1: self.emits(rest1.pop(0))
            mf(2, i); mf(3, i)
            if nxt < t0: self.emits(hi[(nxt, 1)])
            elif rest1: self.emits(rest1.pop(0))
            elif rest0: self.emits(rest0.pop(0))
        for it in rest1: self.emits(it)
        for i in range(t0, 28):
            a.wait_vm((f"h{i}_1", f"w4_{i}"))
            mf(2, i)
            if rest0: self.emits(rest0.pop(0))
            mf(3, i)
        resu = self.res_unpack(TR)
        wr = self.red_write(ACC, 2) + self.red_write(ACC, 3)
        k = 0
        for i in range(t0, 28):
            a.wait_vm(f"h{i}_0")
            mf(1, i)
            if i >= t0 + 1 and wr: self.emit(wr.pop(0))
            self.emits(resu[4*k:4*k+4]); k += 1
            mf(0, i)
            if i >= t0 + 1 and wr: self.emit(wr.pop(0))
        self.emits(resu[4*k:]); self.emits(wr)
        self.mark("p4_mfma")
        self.emits(self.red_write(ACC, 1))
        self.emits(self.x_store_addr(2))
        self.red_finish(ACC, TR)
        self.mark("p4_red")
        fin = a.newlabel("fin")
        a.e(f"s_cmp_lg_u32 s{S_L}, 0\ns_cbranch_scc1 {fin}")
        vq = list(a.vmq)
        self.store_x_and_stats()
        self.arrive(S_FRB, F_S5, "xst")
        a.e(f"s_branch {n}_next")
        a.vmq = vq
        a.label(fin)
        PK = self.PK
        self.emits(self.sa(S_T0, [(S_TILE, 32 * 896), (S_N, 64)]))
        a.e(f"v_mul_u32_u24 v{V_T0}, 112, v{V_I8}\nv_lshrrev_b32 v{V_T1}, 5, v{V_L16}\nv_and_b32 v{V_T1}, 16, v{V_T1}\nv_add_u32 v{V_T0}, v{V_T0}, v{V_T1}")
        a.e(f"v_permlane32_swap_b32 v{PK}, v{PK+2}\nv_permlane32_swap_b32 v{PK+1}, v{PK+3}")
        a.e(f"v_permlane32_swap_b32 v{PK+4}, v{PK+6}\nv_permlane32_swap_b32 v{PK+5}, v{PK+7}")
        osc = " sc1" if self.opt("out_sc1", 0) else ""
        a.e(f"buffer_store_dwordx4 {vr(PK)}, v{V_T0}, s[8:11], s{S_T0} offen" + osc)
        a.e(f"buffer_store_dwordx4 {vr(PK+4)}, v{V_T0}, s[8:11], s{S_T0} offen offset:32" + osc)
        a.e(f"s_branch {n}_done")

    def build(self):
        a, n = self.a, self.name
        self.prologue()
        head_q = list(a.vmq)
        a.label(f"{n}_layer")
        a.vmq = list(head_q); a.lgq = []
        self.layer_setup()
        if self.opt("y", 0):
            a.e(f"s_lshl_b32 s{S_T0}, s{S_RB}, 7\ns_add_u32 s{S_T0}, s{S_T0}, {PFLAG}\ns_add_u32 s{S_E}, s{S_FRB}, {F_S5*2048 - NSYNC*2048}")
            a.e(f"s_cmp_eq_u32 s{S_L}, 0\ns_cselect_b32 s{S_E}, s{S_T0}, s{S_E}")
            self.poll(S_E, 0, 14)
        else:
            lab = a.newlabel("nos5")
            a.e(f"s_cmp_eq_u32 s{S_L}, 0\ns_cbranch_scc1 {lab}")
            self.poll(S_FRB, F_S5, 14, extra=-NSYNC * 2048)
            a.label(lab)
        self.p1()
        self.p2a()
        a.e(f"s_cmp_lt_u32 s{S_Q}, 7\ns_cbranch_scc1 {n}_act")
        a.e(f"s_cmp_lg_u32 s{S_L}, 0\ns_cbranch_scc1 {n}_done")
        a.e(f"s_branch {n}_next")
        a.label(f"{n}_act")
        self.p2b()
        self.p3()
        self.p4()
        a.label(f"{n}_next")
        a.e("s_waitcnt vmcnt(0)")
        if self.o.get("prof"): a.e(f"v_accvgpr_write_b32 a224, v{V_MARK}\nv_mov_b32 v{V_MARK}, 0")
        a.e(f"s_add_u32 s{S_L}, s{S_L}, 1")
        a.e(f"s_branch {n}_layer")
        a.label(f"{n}_done")
        if self.o.get("prof"): self.dump_marks()
        a.e("s_endpgm")
        a.label(f"{n}_end")
        return a.finalize()
```

```python
from main3 import *
import main3
F_S4M = 8

class Gen(main3.Gen):
    def p3(self):
        a = self.a
        ACC0, ACC1, RING, CC, TT, HP, STB = 16, 48, 80, 96, 100, 116, 100
        V_X1, V_CA, V_CB = V_T5, V_T4, V_T6
        xds = []
        for p in range(4):
            gc, gl = 56 + 2 * p, 57 + 2 * p
            self.emits([f"s_xor_b32 s{S_T0}, s{S_M}, {p}"] + self.sa(gc, [(S_T0, 28 * KB), (S_RB, 4 * 28 * KB), (S_W, 7 * KB), (S_L, 2 * XSZ)], X + XSZ))
            self.emits(self.sa(gl, [(S_W, 7 * KB)], L_XR + (p & 1) * XSLOT))
            xds.append(self.dma_items(7, gl, gc, f"xt{p}", True))
        self.emits(self.sa(S_A, [(S_XT, 3584), (S_L, 2 * STSZ)], ST + STSZ))
        a.e(f"v_add_u32 v{V_X1}, {L_XR + XSLOT}, v{V_L16}")
        w4 = self.w4_stream()
        self.poll(S_FRB, F_S3, 14)
        self.mark("S3_poll")
        self.take(xds[0], 7)
        for k in range(7): self.emit(self.ld(vr(STB + 2*k, 2), S_A, k * 256, "st", n=2, vaddr=V_STL))
        self.take(self.w3, len(self.w3))
        def hbase(p):
            return [f"s_xor_b32 s{S_T0}, s{S_M}, {p}"] + self.sa(S_C, [(S_T0, 112 * KB), (S_RB, 4 * 112 * KB), (S_JS, 8 * KB), (S_W, 2 * KB), (S_L, HSZ)], HB)
        c1 = -2.0 * 0.7978845608028654 * 1.4426950408889634
        c2 = c1 * 0.044715
        stf = ["@waitvm st"] + self.stats_reduce(STB, V_T0, V_T1, V_T2, V_T3)
        stf += [f"v_rsq_f32 v{V_T1}, v{V_T0}", f"v_lshrrev_b32 v{V_CA}, 1, v{V_I8}"] + self.sa(S_T0, [(S_W, 384)], L_SCR3)
        stf += [f"v_add_u32 v{V_CB}, s{S_T0}, v{V_CA}",
                f"v_mul_f32 v{V_T2}, v{V_T1}, v{V_T1}", f"v_mul_f32 v{V_T3}, {hexf(c1)}, v{V_T1}", f"v_mul_f32 v{V_T2}, v{V_T2}, v{V_T1}", f"v_mul_f32 v{V_T2}, {hexf(c2)}, v{V_T2}",
                f"ds_write_b32 v{V_CB}, v{V_T3}|cw", f"ds_write_b32 v{V_CB}, v{V_T2} offset:128|cw", f"ds_write_b32 v{V_CB}, v{V_T0} offset:256|cw"]
        stf += self.sa(S_T0, [(S_M, 384)], L_SCR3) + [f"s_mul_i32 s{S_T1}, s{S_M}, 384", f"s_sub_u32 s{S_T1}, {L_SCR3 + 768}, s{S_T1}",
                f"v_add_u32 v{V_CB}, s{S_T1}, v{V_CA}", f"v_add_u32 v{V_CA}, s{S_T0}, v{V_CA}", "@flag cwdone"]

        def epi(p, packed=False):
            A = ACC0 if p % 2 == 0 else ACC1
            G, U = A, A + 16
            va = V_CA if p < 2 else V_CB
            L = [f"ds_read_b32 v{CC+q}, v{va} offset:{(p&1)*384+q*128}|cc" for q in range(3)] + hbase(p)
            for g in range(4):
                rr = [4*g + k for k in range(4)]
                if packed:
                    for k in (0, 2): L.append(f"v_pk_mul_f32 v[{TT+k}:{TT+k+1}], v[{G+4*g+k}:{G+4*g+k+1}], v[{G+4*g+k}:{G+4*g+k+1}]")
                    for k in (0, 2): L.append(f"v_pk_mul_f32 v[{TT+4+k}:{TT+5+k}], v[{G+4*g+k}:{G+4*g+k+1}], v[{U+4*g+k}:{U+4*g+k+1}]")
                    if g == 0: L.append("@waitlg cc")
                    for k in (0, 2): L.append(self.pk_fma_bc(TT + k, TT + k, CC + 1, CC))
                    for k in (0, 2): L.append(f"v_pk_mul_f32 v[{TT+k}:{TT+k+1}], v[{TT+k}:{TT+k+1}], v[{G+4*g+k}:{G+4*g+k+1}]")
                    for k in range(4): L.append(f"v_exp_f32 v{TT+k}, v{TT+k}")
                    for k in (0, 2): L.append(self.pk_fma_bc(TT + k, TT + k, CC + 2, CC + 2))
                    for k in range(4): L.append(f"v_rcp_f32 v{TT+k}, v{TT+k}")
                    for k in (0, 2): L.append(f"v_pk_mul_f32 v[{TT+4+k}:{TT+5+k}], v[{TT+4+k}:{TT+5+k}], v[{TT+k}:{TT+k+1}]")
                else:
                    for k, r in enumerate(rr): L.append(f"v_mul_f32 v{TT+k}, v{G+r}, v{G+r}")
                    for k, r in enumerate(rr): L.append(f"v_mul_f32 v{TT+4+k}, v{G+r}, v{U+r}")
                    if g == 0: L.append("@waitlg cc")
                    for k, r in enumerate(rr): L.append(f"v_fma_f32 v{TT+k}, v{TT+k}, v{CC+1}, v{CC}")
                    for k, r in enumerate(rr): L.append(f"v_mul_f32 v{TT+k}, v{TT+k}, v{G+r}")
                    for k, r in enumerate(rr): L.append(f"v_exp_f32 v{TT+k}, v{TT+k}")
                    for k, r in enumerate(rr): L.append(f"v_fma_f32 v{TT+k}, v{TT+k}, v{CC+2}, v{CC+2}")
                    for k, r in enumerate(rr): L.append(f"v_rcp_f32 v{TT+k}, v{TT+k}")
                    for k in range(4): L.append(f"v_mul_f32 v{TT+4+k}, v{TT+4+k}, v{TT+k}")
                L.append(f"v_cvt_pk_bf16_f32 v{HP+2*g}, v{TT+4}, v{TT+5}")
                L.append(f"v_cvt_pk_bf16_f32 v{HP+2*g+1}, v{TT+6}, v{TT+7}")
                if g % 2 == 1: L.append(self.st(vr(HP + 4*(g//2)), S_C, 1024 * (g // 2), f"hst{p}"))
            return L

        self.flags = set()
        def rd(p, s):
            if p & 1 == 0: r, of = self.ldsaddr(L_XR + s * KB)
            else: r, of = V_X1, s * KB
            a.e(f"ds_read_b128 {vr(RING+4*(s%4))}, v{r} offset:{of}", tag=f"b{p}_{s}")
        a.wait_vm("xt0")
        a.e("s_barrier")
        self.mark("p3_T0")
        for s in range(3): rd(0, s)
        B2 = self.opt("b2step", 24)
        for p in range(4):
            A = ACC0 if p % 2 == 0 else ACC1
            def mg(s):
                def f():
                    if p >= 1 and p <= 2 and s == 1: a.e("s_barrier")
                    if p <= 2 and s == B2:
                        if p == 0:
                            assert "cwdone" in self.flags
                            a.wait_lg("cw")
                        a.wait_vm(f"xt{p+1}")
                        a.e("s_barrier")
                    g = 28 * p + s + 3
                    if g < 112: rd(g // 28, g % 28)
                    a.wait_both(f"w3_{s}" if p == 0 else None, f"b{p}_{s}")
                    a.e(f"{MF} {vr(A,16)}, {ar(8*s)}, {vr(RING+4*(s%4))}, {vr(A,16) if s else 0}")
                return f
            def mu(s):
                def f(): a.e(f"{MF} {vr(A+16,16)}, {ar(8*s+4)}, {vr(RING+4*(s%4))}, {vr(A+16,16) if s else 0}")
                return f
            mains = []
            for s in range(28): mains += [mg(s), mu(s)]
            caps = (self.opt('cap1', 24), self.opt('cap2', 8))
            if p == 0:
                bg = xds[1] + [w4.pop(0) for _ in range(self.opt("w4_p0", 12))]
                self.weave(mains, stf, bg=bg, bg_every=2, bg_phase=1, caps=(16, 8))
            elif p == 1:
                bg = xds[2] + [w4.pop(0) for _ in range(self.opt("w4_p1", 12))]
                mains[0](); mains[1](); mains[2]()
                self.weave(mains[3:], epi(0), bg=bg, bg_every=2, bg_phase=0, caps=(caps[1], caps[0]))
            elif p == 2:
                na = 32 - self.opt("w4_p0", 12) - self.opt("w4_p1", 12)
                bg = xds[3] + [w4.pop(0) for _ in range(na)]
                mains[0](); mains[1](); mains[2]()
                self.weave(mains[3:], epi(1), bg=bg, bg_every=2, bg_phase=0, caps=(caps[1], caps[0]))
            else:
                bg = w4
                a.e(f"s_xor_b32 s{S_E}, s{S_TH}, 1")
                AP, AE = self.opt("ap4e", 46), self.opt("arr4e", 22)
                orig, orig2 = mains[AP], mains[AE]
                def with_poll():
                    self.apoll_issue(S_FRB, F_S4E, 8, S_E, S_F)
                    orig()
                def with_arr():
                    self.arrive(S_FRB, F_S4E, ("hst0", "hst1"), slot_sreg=S_TH)
                    orig2()
                mains[AP], mains[AE] = with_poll, with_arr
                mains[0](); mains[1]()
                self.weave(mains[2:], epi(2) + self.p4_setup_list(), bg=bg, bg_every=2, bg_phase=1, caps=caps)
            self.take(bg, len(bg))
            if p in (0, 2): self.mark(f"p3_e{p}")
        self.mark("p3_loop")
        self.p4_items()
        self.apoll_check(8, 7, S_F)
        LA = self.opt("la4", 12)
        first = [self.hq.pop(0) for _ in range(LA)]
        e3 = epi(3, packed=True)
        cut = self.opt("arr4m", 40)
        self.emits_bg(e3[:cut], first, len(first), first=self.opt("e3first", 4), every=self.opt("e3every", 8))
        self.arrive(S_FRB, F_S4M, "hst2", slot_sreg=S_TH)
        self.emits_bg(e3[cut:], first, len(first), first=0, every=self.opt("e3every", 8))
        self.take(first, len(first))
        self.mark("p3_epi")

    def emit(self, t):
        if t.startswith("@flag "): self.flags.add(t.split()[1])
        elif t.startswith("~"): super().emit(t[1:])
        else: super().emit(t)

    S_LIM, S_RT = 86, 87
    def rot_setup(self):
        return [f"s_lshl_b32 s{self.S_RT}, s{S_CB}, 1", f"s_sub_u32 s{self.S_LIM}, 14, s{self.S_RT}"]
    def rot_items(self, dstf, base, tagf, sc1):
        items = []
        t = self.S_RT
        for p in range(14):
            it = []
            if self.opt("rot4", 1):
                it += [f"s_cmp_gt_u32 s{self.S_LIM}, {p}", f"s_cselect_b32 s{t}, 0, {14*KB}", f"s_sub_u32 s{t}, s{base}, s{t}"]
                if p // 4: it.append(f"s_add_u32 s{t}, s{t}, {(p//4)*4096}")
                it.append(self.ld(dstf(p), t, (p % 4) * 1024, tagf(p), sc1))
            else:
                if p and p % 4 == 0: it.append(f"s_add_u32 s{base}, s{base}, 4096")
                it.append(self.ld(dstf(p), base, (p % 4) * 1024, tagf(p), sc1))
            items.append(it)
        return items
    def w4_stream(self):
        out = []
        if self.opt("rot4", 1): self.emits(self.rot_setup())
        for late in (0, 1):
            its = []
            for sl in range(2):
                c = 88 + 2 * late + sl
                pre = main3.Gen.kseg(self, S_T0, late) + [f"s_xor_b32 s{c}, s{S_NT}, {sl}", f"s_mul_i32 s{c}, s{c}, 112", f"s_add_u32 s{c}, s{c}, s{S_T0}"]
                pre += [f"s_mul_i32 s{S_T0}, s{S_CB}, 224", f"s_add_u32 s{c}, s{c}, s{S_T0}"]
                if self.opt("rot4", 1): pre += [f"s_lshl_b32 s{S_T0}, s{S_CB}, 1", f"s_add_u32 s{c}, s{c}, s{S_T0}"]
                pre += [f"s_lshl_b32 s{c}, s{c}, 10", f"s_add_u32 s{c}, s{c}, {WD}"]
                self.emits(pre)
                its.append(self.rot_items(lambda i: self.w4_reg(14 * late + i, sl), c, lambda i: f"w4_{14*late+i}", False))
            out += self.zip2(its[0], its[1])
        return out

    HCUR = [S_G[4], S_G[5], S_G[6], S_G[7]]
    def p4_setup_list(self):
        t, u = 53, 54
        pre = []
        for late in (0, 1):
            for b in range(2):
                c = self.HCUR[2*late + b]
                pre += [f"s_mul_i32 s{t}, s{S_TH}, 56"] + ([] if late else [f"s_sub_u32 s{t}, 56, s{t}"])
                pre += [f"s_mul_i32 s{u}, s{S_W}, 14", f"s_add_u32 s{t}, s{t}, s{u}"]
                pre += [f"s_andn2_b32 s{c}, s{S_TILE}, 1", f"s_add_u32 s{c}, s{c}, {b}", f"s_mul_i32 s{c}, s{c}, 112", f"s_add_u32 s{c}, s{c}, s{t}"]
                if self.opt("rot4", 1): pre += [f"s_lshl_b32 s{t}, s{S_CB}, 1", f"s_add_u32 s{c}, s{c}, s{t}"]
                pre += [f"s_lshl_b32 s{c}, s{c}, 10"]
                pre += [f"s_mul_i32 s{t}, s{S_L}, {HSZ}", f"s_add_u32 s{c}, s{c}, s{t}", f"s_add_u32 s{c}, s{c}, {HB}"]
        return ["~" + x for x in pre]
    def p4_items(self):
        HR = 96
        self.seq = [(i, b) for i in range(14) for b in range(2)] + [(i, 0) for i in range(14, 28)] + [(i, 1) for i in range(14, 28)]
        self.slot = {ib: HR + 4 * (n % 32) for n, ib in enumerate(self.seq)}
        it = {}
        for late in (0, 1):
            for b in range(2):
                x = self.rot_items(lambda i: ar(self.slot[(14*late + i, b)]), self.HCUR[2*late + b], lambda i: f"h{14*late+i}_{b}", True)
                for i in range(14): it[(14*late + i, b)] = x[i]
        self.hq = [it[ib] for ib in self.seq]

    def p4(self):
        a = self.a
        n = self.name
        ACC, TR, FIX = 16, 80, 104
        hq = self.hq
        LA = 56 - len(hq)
        issued = [LA]
        def mf(a_, b, i):
            u = 2*b + a_
            a.e(f"{MF} {vr(ACC+16*u,16)}, {self.w4_reg(i, a_)}, {ar(self.slot[(i, b)])}, {vr(ACC+16*u,16) if i else 0}")
        def more():
            if not hq: return
            nn = issued[0]
            X = self.opt("x_nochk", 0)
            if nn == 28:
                if not X: self.apoll_check(9, 7, S_F)
                self.mark("S4M_poll")
            if nn == 42:
                if not X: self.apoll_check(10, 7, S_F)
                self.mark("S4L_poll")
            self.emits(hq.pop(0)); issued[0] += 1
            if issued[0] == 28 - self.opt("apa", 3): self.apoll_issue(S_FRB, F_S4M, 9, S_TH, S_F)
            if issued[0] == 42 - self.opt("apa", 3): self.apoll_issue(S_FRB, F_S4L, 10, S_TH, S_F)
        self.emits(self.red_addr())
        ARR4 = self.opt("arr4", 4)
        for i in range(14):
            if i == ARR4:
                if self.opt("x_nochk", 0) < 2: self.arrive(S_FRB, F_S4L, "hst3", slot_sreg=S_TH)
                self.mark("S4_arr")
            a.wait_vm((f"h{i}_0", f"w4_{i}"))
            mf(0, 0, i); mf(1, 0, i); more()
            a.wait_vm(f"h{i}_1")
            mf(0, 1, i); mf(1, 1, i); more()
        for i in range(14, 28):
            a.wait_vm((f"h{i}_0", f"w4_{i}"))
            mf(0, 0, i); mf(1, 0, i); more()
        self.mark("p4_M")
        join, alt = a.newlabel("p4j"), a.newlabel("p4a")
        a.e(f"s_cmp_lg_u32 s{S_TT}, 0\ns_cbranch_scc1 {alt}")
        state = (list(a.vmq), list(a.lgq), a.vm_total, list(hq), issued[0])
        for tt in range(2):
            if tt:
                a.label(alt)
                a.vmq, a.lgq, a.vm_total = list(state[0]), list(state[1]), state[2]
                hq[:] = state[3]; issued[0] = state[4]
            reg = {0: ACC + 32*tt, 1: ACC + 32*tt + 16, 2: ACC + 32*(1-tt), 3: ACC + 32*(1-tt) + 16}
            def wr(d): return [f"ds_write_b128 v{V_T0+d}, {vr(reg[d]+4*g)} offset:{g*1024}|rw" for g in range(4)]
            early = wr(1) if tt == 0 else wr(2) + wr(3)
            late = wr(2) + wr(3) if tt == 0 else wr(1)
            resu = self.res_unpack(TR)
            k = 0
            for i in range(14, 28):
                a.wait_vm(f"h{i}_1")
                mf(0, 1, i)
                if i >= 15 and early: self.emit(early.pop(0))
                self.emits(resu[2*k:2*k+2]); k += 1
                mf(1, 1, i); more()
            self.emits(resu[2*k:]); self.emits(early)
            if tt == 0: self.mark("p4_mfma")
            elif self.o.get("prof") and self.opt("prof", 0) != 3:
                kk = self.marks.index("p4_mfma")
                a.e(("s_memtime" if self.opt("prof", 0) == 2 else "s_memrealtime") + f" s[36:37]\ns_waitcnt lgkmcnt(0)\nv_writelane_b32 v{V_MARK}, s36, {kk}")
                a.lgq = []
            self.emits(late)
            self.emits(self.x_store_addr(2))
            own = reg[0]
            for r in range(0, 16, 2): a.e(self.pk_add(own + r, own + r, TR + r))
            a.e("s_waitcnt lgkmcnt(0)\ns_barrier")
            for d in range(1, 4):
                for g in range(4):
                    a.e(f"ds_read_b128 {vr(reg[d]+4*g)}, v{V_T0} offset:{(d-1)*4096+g*1024}", tag=f"rr{d}")
            for d in range(1, 4):
                a.wait_lg(f"rr{d}")
                dst = own if d < 3 else FIX
                for r in range(0, 16, 2): a.e(self.pk_add(dst + r, own + r, reg[d] + r))
            if tt == 0: a.e(f"s_branch {join}")
        a.label(join)
        for d in range(8): a.e(f"v_cvt_pk_bf16_f32 v{TR+d}, v{FIX+2*d}, v{FIX+2*d+1}")
        self.PK, self.ACC = TR, FIX
        self.mark("p4_red")
        fin = a.newlabel("fin")
        a.e(f"s_cmp_lg_u32 s{S_L}, 0\ns_cbranch_scc1 {fin}")
        vq = list(a.vmq)
        self.store_x_and_stats()
        self.arrive(S_FRB, F_S5, "xst")
        a.e(f"s_branch {n}_next")
        a.vmq = vq
        a.label(fin)
        PK = self.PK
        self.emits(self.sa(S_T0, [(S_TILE, 32 * 896), (S_N, 64)]))
        a.e(f"v_mul_u32_u24 v{V_T0}, 112, v{V_I8}\nv_lshrrev_b32 v{V_T1}, 5, v{V_L16}\nv_and_b32 v{V_T1}, 16, v{V_T1}\nv_add_u32 v{V_T0}, v{V_T0}, v{V_T1}")
        a.e(f"v_permlane32_swap_b32 v{PK}, v{PK+2}\nv_permlane32_swap_b32 v{PK+1}, v{PK+3}")
        a.e(f"v_permlane32_swap_b32 v{PK+4}, v{PK+6}\nv_permlane32_swap_b32 v{PK+5}, v{PK+7}")
        a.e(f"buffer_store_dwordx4 {vr(PK)}, v{V_T0}, s[8:11], s{S_T0} offen")
        a.e(f"buffer_store_dwordx4 {vr(PK+4)}, v{V_T0}, s[8:11], s{S_T0} offen offset:32")
        a.e(f"s_branch {n}_done")
```

```python
from layout import *
import struct
def hexf(x): return "0x%08x" % struct.unpack("<I", struct.pack("<f", x))[0]
LOOB = 0x30000
NA, NB, ND, NC = 48, 112, 49, 14
B0 = NA; D0 = B0 + NB; C0 = D0 + ND + 7; E0 = C0 + 16; F0 = 255
NXB = 224
WREG = 8192
L_SUM = 4 * WREG
P_X, P_WQKV, P_WPHI, P_WO, P_WG, P_WU, P_WD, P_OUT, P_DBG = 64, 66, 68, 70, 74, 76, 78, 80, 82

def emit_prep(a, name, opts, standalone=False):
    SC = " sc1" if (not standalone or int(opts.get('prep_sc1', 0))) else ""
    mode = int(opts.get("prep_mode", 0))
    SC_AB = SC_CD = SC_X = SC
    if mode == 1: SC_AB = SC_CD = SC_X = " nt"
    if mode == 2: SC_CD = SC_X = " sc1"
    if mode == 3: SC_AB = " sc1"
    if mode == 4: SC_X = " sc1"
    def src(ptr, size): a.e(f"s_mov_b32 s8, s{ptr}\ns_mov_b32 s9, s{ptr+1}\ns_mov_b32 s10, {size}\ns_mov_b32 s11, 0x20000")
    a.e("v_and_b32 v7, 63, v0\nv_lshlrev_b32 v1, 4, v7")
    a.e("v_and_b32 v2, 31, v0\nv_bfe_u32 v3, v0, 5, 1")
    a.e("v_lshrrev_b32 v4, 6, v0\nv_readfirstlane_b32 s12, v4")
    a.e("v_bfe_u32 v8, v7, 2, 2\nv_and_b32 v9, 3, v7\nv_bfe_u32 v10, v7, 4, 1")
    a.e("v_lshl_add_u32 v8, v3, 2, v8\nv_lshlrev_b32 v8, 6, v8")
    a.e("v_lshlrev_b32 v11, 5, v10\nv_lshl_add_u32 v11, v9, 3, v11\nv_add_u32 v8, v8, v11")
    a.e(f"s_lshl_b32 s13, s12, 13\nv_add_u32 v8, s13, v8")
    a.e("v_lshrrev_b32 v12, 2, v7\nv_lshlrev_b32 v13, 4, v9")
    a.e("s_waitcnt lgkmcnt(0)")
    a.e(f"s_mov_b32 s6, {WS_USED}\ns_mov_b32 s7, 0x20000")
    a.e(f"s_cmp_ge_u32 s2, {NXB}\ns_cbranch_scc1 {name}_nox")
    a.e(f"s_mov_b32 s8, s{P_X}\ns_mov_b32 s9, s{P_X+1}\ns_mov_b32 s10, {S*D*2}\ns_mov_b32 s11, 0x20000")
    a.e("s_mul_i32 s13, s2, 9363\ns_lshr_b32 s13, s13, 16")
    a.e("s_mul_i32 s14, s13, 7\ns_sub_u32 s14, s2, s14")
    a.e("s_lshr_b32 s15, s12, 1\ns_lshl_b32 s13, s13, 1\ns_add_u32 s30, s13, s15")
    a.e("s_and_b32 s15, s12, 1\ns_lshl_b32 s14, s14, 1\ns_add_u32 s31, s14, s15")
    a.e("v_mul_u32_u24 v4, 896, v2\nv_lshlrev_b32 v5, 3, v3\nv_add_u32 v4, v4, v5")
    a.e("s_mul_i32 s20, s30, 28672\ns_lshl_b32 s15, s31, 6\ns_add_u32 s20, s20, s15")
    for g in range(4):
        a.e(f"buffer_load_dwordx2 v[{64+2*g}:{65+2*g}], v4, s[8:11], s20 offen offset:{g*16}")
    a.label(f"{name}_nox")
    for lim, lab in ((B0, "A"), (D0, "B"), (D0 + ND, "Dn"), (C0, "pdone0"), (E0, "C"), (F0, "pdone0")):
        a.e(f"s_cmp_lt_u32 s2, {lim}\ns_cbranch_scc1 {name}_{lab}")
    a.vmq = []

    def stage(nins):
        a.e("s_lshl_b32 s22, s12, 13")
        for i in range(nins):
            a.e("s_mov_b32 m0, s22\ns_nop 0")
            a.e("buffer_load_dwordx4 v4, s[8:11], s20 offen lds", tag="raw")
            if i != nins - 1: a.e("s_add_u32 s20, s20, s21\ns_add_u32 s22, s22, 1024")
    def lanes(rb, col): a.e(f"v_mul_lo_u32 v4, s{rb}, v12\nv_add3_u32 v4, v4, v13, s{col}")
    def trread(dst, va, off): a.e(f"ds_read_b64_tr_b16 v[{dst}:{dst+1}], v{va} offset:{off}", tag="tr")
    def reset(): a.vmq = []; a.lgq = []
    def ts0(r):
        if opts.get("prof"): a.e(f"s_memrealtime s[{r}:{r+1}]\ns_waitcnt lgkmcnt(0)")
    FR = 16
    def ship(n):
        for fr in range(n):
            a.e(f"s_waitcnt lgkmcnt({min(15, 2*n - 2 - 2*fr)})")
            a.e(f"buffer_store_dwordx4 v[{FR+4*fr}:{FR+4*fr+3}], v1, s[4:7], s24 offen" + SC_CD)
            a.e("s_add_u32 s24, s24, 1024")

    a.e("v_mov_b32 v16, 0\nv_mov_b32 v17, 0\nv_mov_b32 v18, 0\nv_mov_b32 v19, 0")
    a.e(f"v_lshlrev_b32 v5, 4, v0\ns_mov_b32 s20, {FLAGS}")
    for i in range(FLAGZ // 4096):
        a.e("buffer_store_dwordx4 v[16:19], v5, s[4:7], s20 offen" + SC)
        a.e("s_add_u32 s20, s20, 4096")
    src(P_WPHI, H * DH * DH * 2)
    a.e(f"v_mov_b32 v4, v1\ns_mul_i32 s20, s12, {4*1568}\ns_mov_b32 s21, 1024")
    stage(7)
    if not standalone:
        a.e("s_waitcnt vmcnt(7)\ns_barrier")
        a.e(f"s_mov_b32 s16, s{P_DBG}\ns_mov_b32 s17, s{P_DBG+1}\ns_mov_b32 s18, 256\ns_mov_b32 s19, 0x20000")
        a.e("v_mov_b32 v5, 1\ns_cmp_eq_u32 s12, 0\ns_cselect_b64 exec, 1, 0")
        a.e("buffer_store_dword v5, off, s[16:19], 0 sc1")
        a.e("s_mov_b64 exec, -1")
    a.e("v_and_b32 v9, 3, v7\nv_bfe_u32 v10, v7, 4, 1\nv_bfe_u32 v11, v7, 2, 2")
    a.e("v_lshl_add_u32 v14, v10, 2, v9\nv_min_u32 v14, 6, v14\nv_lshlrev_b32 v14, 3, v14")
    a.e("v_lshl_add_u32 v11, v3, 2, v11\nv_mul_u32_u24 v11, 56, v11\nv_add_u32 v8, v11, v14")
    a.e("s_lshl_b32 s13, s12, 13\nv_add_u32 v8, s13, v8")
    a.e(f"v_mov_b32 v14, {LOOB}\nv_cmp_eq_u32 vcc, 0, v3\nv_cndmask_b32 v9, v14, v8, vcc")
    a.e(f"s_lshl_b32 s24, s12, 13\ns_add_u32 s24, s24, {PHI}")
    ts0(94)
    a.e("s_waitcnt vmcnt(0)")
    ts0(92)
    reset()
    for fr in range(8):
        q, e = fr // 2, fr % 2
        off = q * 1568 + 16 * e * 56
        trread(FR + 4*fr, 8, off); trread(FR + 4*fr + 2, 9 if e else 8, off + 8 * 56)
    ship(8)
    a.e(f"s_branch {name}_pdone")

    reset()
    a.label(f"{name}_A")
    src(P_WQKV, D * 3 * D * 2)
    a.e("s_and_b32 s13, s2, 7\ns_lshr_b32 s14, s2, 3\ns_lshl_b32 s13, s13, 1\ns_and_b32 s15, s14, 1\ns_add_u32 s13, s13, s15\ns_lshr_b32 s14, s14, 1")
    a.e(f"s_mul_i32 s18, s13, 3\ns_add_u32 s18, s18, s14\ns_mul_i32 s18, s18, {28*KB}\ns_add_u32 s18, s18, {WQKV}")
    a.e("s_mul_i32 s14, s14, 896\ns_mul_i32 s13, s13, 56\ns_add_u32 s15, s13, s14")
    a.e("s_mov_b32 s16, 2688")
    a.e(f"v_and_b32 v11, v10, v9\nv_lshrrev_b32 v14, 1, v9\nv_and_b32 v11, v11, v14\nv_cmp_eq_u32 vcc, 1, v11\nv_mov_b32 v14, {LOOB}\nv_cndmask_b32 v8, v8, v14, vcc")
    a.e(f"s_branch {name}_AB")
    a.label(f"{name}_B")
    a.e(f"s_sub_u32 s13, s2, {B0}\ns_and_b32 s14, s13, 7\ns_lshr_b32 s13, s13, 3\ns_and_b32 s15, s13, 1\ns_lshr_b32 s13, s13, 1")
    a.e("s_lshl_b32 s13, s13, 3\ns_add_u32 s13, s13, s14")
    a.e("s_and_b32 s14, s13, 1\ns_lshr_b32 s13, s13, 1\ns_lshl_b32 s13, s13, 1\ns_add_u32 s13, s13, s15")
    a.e("s_lshl_b32 s13, s13, 1\ns_add_u32 s13, s13, s14")
    a.e("s_cmp_eq_u32 s14, 0")
    a.e(f"s_cselect_b32 s8, s{P_WG}, s{P_WU}\ns_cselect_b32 s9, s{P_WG+1}, s{P_WU+1}\ns_mov_b32 s10, {D*F*2}\ns_mov_b32 s11, 0x20000")
    a.e("s_lshr_b32 s15, s13, 1\ns_lshl_b32 s15, s15, 6")
    a.e("s_mov_b32 s16, 3584")
    a.e(f"s_mul_i32 s18, s13, {28*KB}\ns_add_u32 s18, s18, {WGU}")
    a.label(f"{name}_AB")
    lanes(16, 15)
    a.e("s_mul_i32 s20, s12, 112\ns_mul_i32 s20, s20, s16\ns_lshl_b32 s21, s16, 4")
    stage(7)
    a.e("s_mov_b32 s23, 0x3f803f80")
    a.e(f"s_mul_i32 s24, s12, {7*KB}\ns_add_u32 s24, s24, s18")
    ts0(94)
    a.e("s_waitcnt vmcnt(0)")
    ts0(92)
    reset()
    for s in range(7):
        trread(FR + 4*s, 8, s * 1024); trread(FR + 4*s + 2, 8, s * 1024 + 512)
    a.e("v_mov_b32 v48, 0\nv_mov_b32 v49, 0")
    for s in range(7):
        a.e(f"s_waitcnt lgkmcnt({min(15, 12 - 2*s)})")
        for d in range(4): a.e(f"v_dot2_f32_bf16 v{48 + d % 2}, v{FR+4*s+d}, s23, v{48 + d % 2}")
    a.lgq = []
    a.e(f"v_add_f32 v48, v48, v49\nv_lshlrev_b32 v9, 2, v0\nv_add_u32 v9, {L_SUM}, v9")
    a.e("ds_write_b32 v9, v48")
    a.e("s_waitcnt lgkmcnt(0)\ns_barrier")
    a.e(f"v_lshlrev_b32 v9, 2, v2\nv_add_u32 v9, {L_SUM}, v9")
    for q in range(8): a.e(f"ds_read_b32 v{50+q}, v9 offset:{q*128}")
    a.e("s_waitcnt lgkmcnt(0)")
    a.e("v_add_f32 v50, v50, v51\nv_add_f32 v52, v52, v53\nv_add_f32 v54, v54, v55\nv_add_f32 v56, v56, v57")
    a.e("v_add_f32 v50, v50, v52\nv_add_f32 v54, v54, v56\nv_add_f32 v50, v50, v54")
    a.e(f"v_mul_f32 v50, {hexf(-1.0/448)}, v50")
    for s in range(7):
        for d in range(4):
            r = FR + 4*s + d
            t = 52 + 2 * (d % 2)
            a.e(f"v_lshlrev_b32 v{t}, 16, v{r}\nv_and_b32 v{t+1}, 0xffff0000, v{r}")
            a.e(f"v_pk_add_f32 v[{t}:{t+1}], v[{t}:{t+1}], v[50:51] op_sel:[0,0] op_sel_hi:[1,0]")
            a.e(f"v_cvt_pk_bf16_f32 v{r}, v{t}, v{t+1}")
        a.e(f"buffer_store_dwordx4 v[{FR+4*s}:{FR+4*s+3}], v1, s[4:7], s24 offen" + SC_AB)
        a.e("s_add_u32 s24, s24, 1024")
    a.e(f"s_branch {name}_pdone")

    reset()
    a.label(f"{name}_C")
    src(P_WO, D * D * 2)
    a.e(f"s_sub_u32 s13, s2, {C0}\ns_and_b32 s14, s13, 7\ns_lshr_b32 s13, s13, 3")
    a.e(f"s_cmp_eq_u32 s14, 7\ns_cbranch_scc1 {name}_pdone0")
    a.e("s_lshl_b32 s14, s14, 1\ns_add_u32 s13, s13, s14\ns_lshl_b32 s15, s13, 6\ns_mov_b32 s16, 896")
    lanes(16, 15)
    a.e(f"s_mul_i32 s20, s12, {112*896}\ns_mov_b32 s21, {16*896}")
    stage(7)
    a.e(f"v_mov_b32 v14, {LOOB}\nv_cmp_eq_u32 vcc, 0, v3\nv_cndmask_b32 v9, v14, v8, vcc")
    a.e(f"s_lshl_b32 s24, s13, 5\ns_lshl_b32 s25, s12, 3\ns_add_u32 s24, s24, s25\ns_lshl_b32 s24, s24, 10\ns_add_u32 s24, s24, {WO}")
    ts0(94)
    a.e("s_waitcnt vmcnt(0)")
    ts0(92)
    reset()
    for fr in range(8):
        q, e = fr // 2, fr % 2
        off = (28 * q + 16 * e) * 64
        trread(FR + 4*fr, 8, off); trread(FR + 4*fr + 2, 9 if e else 8, off + 512)
    ship(8)
    a.e(f"s_branch {name}_pdone")

    reset()
    a.label(f"{name}_Dn")
    src(P_WD, F * D * 2)
    a.e(f"s_sub_u32 s13, s2, {D0}\ns_mul_i32 s14, s13, 9363\ns_lshr_b32 s14, s14, 16")
    a.e("s_mul_i32 s25, s14, 7\ns_sub_u32 s25, s13, s25\ns_lshl_b32 s25, s25, 2\ns_add_u32 s25, s25, s12")
    a.e("v_lshrrev_b32 v4, 3, v7\nv_mul_u32_u24 v4, 896, v4\nv_and_b32 v5, 7, v7\nv_lshlrev_b32 v5, 4, v5\ns_lshl_b32 s15, s14, 7\nv_add3_u32 v4, v4, v5, s15")
    a.e(f"s_mul_i32 s20, s25, {64*896}\ns_mov_b32 s21, {8*896}")
    stage(8)
    a.e("v_bfe_u32 v8, v7, 2, 2\nv_lshl_add_u32 v8, v3, 2, v8\nv_lshlrev_b32 v8, 7, v8\nv_add_u32 v8, v8, v11")
    a.e("s_lshl_b32 s13, s12, 13\nv_add_u32 v8, s13, v8")
    a.e(f"s_mul_i32 s24, s14, 224\ns_lshl_b32 s26, s25, 2\ns_add_u32 s24, s24, s26\ns_lshl_b32 s24, s24, 10\ns_add_u32 s24, s24, {WD}")
    ts0(94)
    a.e("s_waitcnt vmcnt(0)")
    ts0(92)
    reset()
    for e in range(2):
        for s in range(4):
            fr = 4 * e + s
            trread(FR + 4*fr, 8, s * 2048 + e * 64); trread(FR + 4*fr + 2, 8, s * 2048 + e * 64 + 1024)
    for fr in range(8):
        a.e(f"s_waitcnt lgkmcnt({min(15, 14 - 2*fr)})")
        a.e(f"buffer_store_dwordx4 v[{FR+4*fr}:{FR+4*fr+3}], v1, s[4:7], s24 offen" + SC_CD)
        a.e(f"s_add_u32 s24, s24, {1024 if fr != 3 else (112 - 3) * 1024}")
    a.e(f"s_branch {name}_pdone")

    reset()
    a.label(f"{name}_pdone0")
    a.e("s_waitcnt vmcnt(0)")
    if opts.get("prof"): a.e("s_memrealtime s[92:93]\ns_memrealtime s[94:95]\ns_waitcnt lgkmcnt(0)")
    a.label(f"{name}_pdone")
    a.e(f"s_cmp_ge_u32 s2, {NXB}\ns_cbranch_scc1 {name}_nox2")
    a.e(f"s_mul_i32 s21, s30, 28\ns_lshl_b32 s15, s31, 1\ns_add_u32 s21, s21, s15\ns_lshl_b32 s21, s21, 10\ns_add_u32 s21, s21, {X}")
    a.e(f"s_mul_i32 s22, s30, 3584\ns_lshl_b32 s15, s31, 8\ns_add_u32 s22, s22, s15\ns_add_u32 s22, s22, {ST}")
    a.e("s_mov_b32 s23, 0x3f803f80\nv_lshlrev_b32 v6, 3, v2\nv_mov_b32 v8, 0\nv_mov_b32 v9, 0")
    a.e("buffer_store_dwordx4 v[64:67], v1, s[4:7], s21 offen" + SC_X)
    a.e("buffer_store_dwordx4 v[68:71], v1, s[4:7], s21 offen offset:1024" + SC_X)
    for q in range(8):
        a.e(f"v_dot2_f32_bf16 v8, v{64+q}, s23, v8")
        a.e(f"v_dot2_f32_bf16 v9, v{64+q}, v{64+q}, v9")
    a.e("v_mov_b32 v10, v8\nv_mov_b32 v11, v9")
    a.e("v_permlane32_swap_b32 v10, v8\nv_permlane32_swap_b32 v11, v9")
    a.e("v_add_f32 v12, v8, v10\nv_add_f32 v13, v9, v11")
    a.e("s_mov_b32 exec_hi, 0")
    a.e("buffer_store_dwordx2 v[12:13], v6, s[4:7], s22 offen" + SC_X)
    a.e("s_mov_b32 exec_hi, -1")
    a.label(f"{name}_nox2")
    if standalone: return
    lab = f"{name}_pw"
    a.e(f"s_mov_b32 s16, s{P_DBG}\ns_mov_b32 s17, s{P_DBG+1}\ns_mov_b32 s18, 256\ns_mov_b32 s19, 0x20000")
    def ts(r):
        if opts.get("prof"): a.e(f"s_memrealtime s[{r}:{r+1}]\ns_waitcnt lgkmcnt(0)")
    ts(86)
    a.e("s_waitcnt vmcnt(0) lgkmcnt(0)\ns_barrier")
    ts(88)
    a.e(f"s_cmp_lg_u32 s12, 0\ns_cbranch_scc1 {lab}_skip")
    a.e("s_mov_b64 exec, 1\ns_mov_b32 s28, 0")
    a.label(f"{lab}_z")
    a.e("buffer_load_dword v5, off, s[16:19], 0 sc1")
    a.e(f"s_add_u32 s28, s28, 1\ns_cmp_gt_u32 s28, 200000\ns_cbranch_scc1 {lab}_zx")
    a.e(f"s_waitcnt vmcnt(0)\nv_readfirstlane_b32 s23, v5\ns_cmp_eq_u32 s23, 0\ns_cbranch_scc1 {lab}_z")
    a.label(f"{lab}_zx")
    ts(90)
    a.e(f"s_and_b32 s20, s2, 15\ns_lshl_b32 s20, s20, 7\ns_add_u32 s20, s20, {PFLAG}")
    a.e("v_mov_b32 v5, 1\ns_waitcnt vmcnt(0)")
    a.e("buffer_atomic_add v5, off, s[4:7], s20 sc1")
    a.e(f"s_mov_b64 exec, 0xffff\nv_and_b32 v6, 15, v0\nv_lshlrev_b32 v6, 7, v6\ns_mov_b32 s20, {PFLAG}\ns_mov_b32 s28, 0")
    a.label(f"{lab}_p")
    if int(opts.get("psl0", 0)): a.e(f"s_sleep {int(opts.get('psl0'))}")
    a.e("buffer_load_dword v5, v6, s[4:7], s20 offen sc1")
    a.e(f"s_add_u32 s28, s28, 1\ns_cmp_gt_u32 s28, 200000\ns_cbranch_scc1 {lab}_px")
    a.e(f"s_waitcnt vmcnt(0)\nv_cmp_gt_u32 vcc, 16, v5\ns_cbranch_vccnz {lab}_p")
    a.label(f"{lab}_px")
    a.e("s_waitcnt vmcnt(0)\ns_mov_b64 exec, -1")
    a.label(f"{lab}_skip")
    a.e("s_barrier")
    reset()


NPREP = 256
PREP_LDS = L_SUM + 1024
def gen_prep(name, opts=None):
    from asmlib import Asm
    opts = opts or {}
    a = Asm()
    a.label(name)
    if opts.get("prof"): a.e("s_memrealtime s[84:85]")
    a.e(f"s_cmp_lt_u32 s2, {NPREP}\ns_cbranch_scc1 {name}_go\ns_endpgm")
    a.label(f"{name}_go")
    a.e("s_load_dwordx16 s[64:79], s[0:1], 0\ns_load_dwordx2 s[4:5], s[0:1], 80")
    if str(opts.get("prof")) == "3":
        a.e("s_waitcnt lgkmcnt(0)")
        a.e(f"s_mov_b32 s6, {WS_USED}\ns_mov_b32 s7, 0x20000\ns_lshl_b32 s20, s2, 3\ns_add_u32 s20, s20, {DBG + 256*512}\nv_mov_b32 v16, s84\ns_mov_b64 exec, 1")
        a.e("buffer_store_dword v16, off, s[4:7], s20\ns_mov_b64 exec, -1")
        a.vmq = []
    emit_prep(a, name, dict(opts, prof=None), standalone=True)
    if opts.get("prof") and str(opts.get("prof")) != "3":
        a.e("s_waitcnt vmcnt(0)\ns_memrealtime s[86:87]\ns_waitcnt lgkmcnt(0)")
        a.e(f"s_lshl_b32 s20, s2, 3\ns_add_u32 s20, s20, {DBG + 256*512}\nv_mov_b32 v16, s84\nv_mov_b32 v17, s86\ns_mov_b64 exec, 1")
        a.e("buffer_store_dwordx2 v[16:17], off, s[4:7], s20")
    a.e("s_endpgm")
    return a.finalize()
```

```python
from asmlib import Asm
from layout import *
import struct
def hexf(x): return "0x%08x" % struct.unpack("<I", struct.pack("<f", x))[0]

L_W1   = 0
L_XR   = 86016
XSLOT  = 29696
L_KVR  = 86016
L_KVA  = 118784
L_RED  = 86016
L_SCR3 = 145408
L_SCR  = 147456
LDS_BYTES = 163840

S_RB, S_J, S_W, S_L, S_TH, S_CB, S_TT, S_NT = 12, 13, 14, 15, 16, 17, 18, 19
S_T0, S_T1, S_T2, S_T3 = 20, 21, 22, 23
S_SEL_LO, S_SEL_HI = 24, 25
S_UP = 26
S_CNT, S_JS, S_Q, S_M = 28, 29, 30, 31
S_A, S_B, S_C, S_D = 32, 33, 34, 35
S_E, S_F = 38, 39
S_G = [40, 41, 42, 43, 44, 45, 46, 47]
S_FRB, S_FJ = 48, 49
S_TILE, S_N = 50, 51
S_XT = 52
F_S1, F_S2, F_S3, F_S4E, F_S4L, F_S5 = 0, 1, 2, 3, 5, 7

V_POLL, V_L16, V_L16H, V_STL, V_I8, V_ONE, V_C, V_MARK = 0, 1, 2, 3, 4, 5, 6, 7
V_T0, V_T1, V_T2, V_T3, V_T4, V_T5, V_T6, V_T7 = 8, 9, 10, 11, 12, 13, 14, 15
A_PHI, A_ID, A_RES = 232, 240, 248

def vr(b, n=4): return f"v[{b}:{b+n-1}]"
def ar(b, n=4): return f"a[{b}:{b+n-1}]"
MF = "v_mfma_f32_32x32x16_bf16"
def cost_of(t):
    if t.startswith(("v_exp", "v_rcp", "v_rsq")): return 8
    if t.startswith("v_mfma"): return 32
    if t.startswith("@"): return 2
    return 4

class Gen:
    def __init__(self, name, stop=None, opts=None):
        self.a = Asm(); self.name = name; self.stop = stop; self.o = opts or {}
        self.marks = []
    def opt(self, k, d): return int(self.o.get(k, d))

    def emit(self, t):
        a = self.a
        if t.startswith("@waitlg "): a.wait_lg(tuple(t.split()[1:]))
        elif t.startswith("@waitvm "): a.wait_vm(tuple(t.split()[1:]))
        elif "|" in t:
            txt, tag = t.split("|"); a.e(txt, tag=tag)
        else: a.e(t)
    def emits(self, L):
        for t in L: self.emit(t)
    def sa(self, dst, terms, const=0):
        L = []
        first = True
        for r, m in terms:
            tgt = dst if first else S_T3
            if m == 1:
                if first: L.append(f"s_mov_b32 s{dst}, s{r}")
                else: L.append(f"s_add_u32 s{dst}, s{dst}, s{r}")
                first = False
                continue
            if m & (m - 1) == 0: L.append(f"s_lshl_b32 s{tgt}, s{r}, {m.bit_length()-1}")
            else: L.append(f"s_mul_i32 s{tgt}, s{r}, {m}")
            if not first: L.append(f"s_add_u32 s{dst}, s{dst}, s{S_T3}")
            first = False
        if first: L.append(f"s_mov_b32 s{dst}, {const}")
        elif const: L.append(f"s_add_u32 s{dst}, s{dst}, {const}")
        return L
    def ld(self, dst, soff, imm, tag, sc1=True, n=4, vaddr=V_L16):
        op = {4: "buffer_load_dwordx4", 2: "buffer_load_dwordx2", 1: "buffer_load_dword"}[n]
        return f"{op} {dst}, v{vaddr}, s[4:7], s{soff} offen" + (f" offset:{imm}" if imm else "") + (" sc1" if sc1 else "") + f"|{tag}"
    def st(self, src, soff, imm, tag, n=4, vaddr=V_L16):
        op = {4: "buffer_store_dwordx4", 2: "buffer_store_dwordx2"}[n]
        loc = self.opt("x_local", 0) >= 1 and tag != "slab"
        return f"{op} {src}, v{vaddr}, s[4:7], s{soff} offen" + (f" offset:{imm}" if imm else "") + ("" if loc else " sc1") + f"|{tag}"
    def seq_items(self, n, dstf, cur, tagf, sc1):
        items = []
        for i in range(n):
            it = [self.ld(dstf(i), cur, (i % 4) * 1024, tagf(i), sc1)]
            if i % 4 == 3 and i != n - 1: it.append(f"s_add_u32 s{cur}, s{cur}, 4096")
            items.append(it)
        return items
    def dma_items(self, n, lds, cur, tag, sc1):
        items = []
        for i in range(n):
            it = []
            if i % 4 == 0: it += [f"s_mov_b32 m0, s{lds}", "s_nop 0"]
            it.append(f"buffer_load_dwordx4 v{V_L16}, s[4:7], s{cur} offen" + (f" offset:{(i%4)*1024}" if i % 4 else "") + (" sc1" if sc1 else "") + f" lds|{tag}")
            if i % 4 == 3 and i != n - 1: it += [f"s_add_u32 s{cur}, s{cur}, 4096", f"s_add_u32 s{lds}, s{lds}, 4096"]
            items.append(it)
        return items
    @staticmethod
    def zip2(x, y):
        out = []
        for i in range(max(len(x), len(y))):
            if i < len(x): out.append(x[i])
            if i < len(y): out.append(y[i])
        return out
    def take(self, bg, n):
        for _ in range(n):
            if bg: self.emits(bg.pop(0))
    def ldsaddr(self, off):
        if off < 65536: return V_L16, off
        assert off < 131072
        return V_L16H, off - 65536

    def weave(self, mains, fills, bg=None, bg_every=2, bg_start=0, caps=(24,), bg_phase=0):
        fi = 0
        nb = 0
        for k, m in enumerate(mains):
            m()
            cap = caps[k % len(caps)]
            c = 0
            if bg and k >= bg_start and (k - bg_start) % bg_every == bg_phase:
                it = bg.pop(0)
                self.emits(it); c += 12 if any(" lds" in t for t in it) else 8
            nv = 0
            while fi < len(fills):
                t = fills[fi]
                if t.startswith("s_") or t.startswith("@"):
                    self.emit(t); fi += 1; continue
                w = cost_of(t)
                if t.startswith("~"): w = 2
                if t.startswith("ds_read") or t.startswith("ds_write") or t.startswith("buffer_"): w = 8
                lim = cap if (w == 8 or nv * 4 != c) else min(cap, 20)
                if c + w > lim: break
                self.emit(t); fi += 1; c += w
                if w == 4: nv += 1
        while fi < len(fills):
            self.emit(fills[fi]); fi += 1
    def emits_bg(self, L, bg, n, first=0, every=10):
        k = 0
        for i, t in enumerate(L):
            if k < n and bg and i >= first and (i - first) % every == 0:
                self.emits(bg.pop(0)); k += 1
            self.emit(t)

    def mark(self, name):
        if not self.o.get("prof"): return
        if self.opt("prof", 0) == 3 and (name != "p1_start" or self.opt("single", 0) or self.opt("y", 0)): return
        a = self.a
        k = len(self.marks); self.marks.append(name)
        a.e(("s_memtime" if self.opt("prof", 0) == 2 else "s_memrealtime") + " s[36:37]\ns_waitcnt lgkmcnt(0)")
        a.lgq = []
        a.e(f"v_writelane_b32 v{V_MARK}, s36, {k}")
    def dump_marks(self):
        a = self.a
        lab = a.newlabel("dm")
        a.e("s_memrealtime s[36:37]\ns_waitcnt lgkmcnt(0)")
        a.e(f"v_writelane_b32 v{V_MARK}, s36, 63")
        a.e(f"s_cmp_lg_u32 s{S_W}, 0\ns_cbranch_scc1 {lab}")
        a.e(f"s_lshl_b32 s{S_T0}, s2, 9\ns_add_u32 s{S_T0}, s{S_T0}, {DBG}")
        a.e(f"v_lshrrev_b32 v{V_T0}, 2, v{V_L16}")
        a.e(f"v_accvgpr_read_b32 v{V_T1}, a224")
        a.e(f"buffer_store_dword v{V_T1}, v{V_T0}, s[4:7], s{S_T0} offen")
        a.e(f"buffer_store_dword v{V_MARK}, v{V_T0}, s[4:7], s{S_T0} offen offset:256")
        a.e("s_waitcnt vmcnt(0)")
        a.label(lab)

    def arrive(self, base, slot, tags, slot_sreg=None, barrier=True):
        a = self.a
        a.wait_vm(tags)
        if barrier: a.e("s_barrier")
        a.e(f"s_add_u32 s{S_T2}, s{base}, {slot*2048}")
        if slot_sreg is not None: a.e(f"s_lshl_b32 s{S_T3}, s{slot_sreg}, 11\ns_add_u32 s{S_T2}, s{S_T2}, s{S_T3}")
        a.e(f"v_mov_b32 v{V_T7}, 1\ns_cmp_eq_u32 s{S_W}, 0\ns_cselect_b64 exec, 1, 0")
        loc = self.opt("x_local", 0) >= 2 and base == S_FRB
        a.e_uncounted(f"buffer_atomic_add v{V_T7}, off, s[4:7], s{S_T2}" + ("" if loc else " sc1"))
        a.e("s_mov_b64 exec, -1")
    def poll(self, base, slot, target, slot_sreg=None, extra=0):
        a = self.a
        lab, lp, lx = a.newlabel("pol"), a.newlabel("plp"), a.newlabel("plx")
        a.e(f"s_add_u32 s{S_T2}, s{base}, {slot*2048 + extra}")
        if slot_sreg is not None: a.e(f"s_lshl_b32 s{S_T3}, s{slot_sreg}, 11\ns_add_u32 s{S_T2}, s{S_T2}, s{S_T3}")
        a.e(f"s_cmp_lg_u32 s{S_W}, 0\ns_cbranch_scc1 {lab}")
        vq, lq = list(a.vmq), list(a.lgq)
        dep = self.opt("pdepth", 2)
        a.e(f"s_mov_b32 s{S_CNT}, 0")
        for k in range(dep):
            a.e(f"s_mov_b64 exec, {1 << k}\nbuffer_load_dword v{V_POLL}, off, s[4:7], s{S_T2} sc1")
            if k != dep - 1: a.e(f"s_sleep {self.opt('psleep', 2)}")
        a.label(lp)
        for k in range(dep):
            a.e(f"s_waitcnt vmcnt({dep-1})\nv_readlane_b32 s{S_T3}, v{V_POLL}, {k}")
            a.e(f"s_cmp_ge_u32 s{S_T3}, {target}\ns_cbranch_scc1 {lx}")
            a.e(f"s_mov_b64 exec, {1 << k}\nbuffer_load_dword v{V_POLL}, off, s[4:7], s{S_T2} sc1")
        a.e(f"s_add_u32 s{S_CNT}, s{S_CNT}, 1\ns_cmp_lt_u32 s{S_CNT}, 200000\ns_cbranch_scc1 {lp}")
        a.label(lx)
        a.e("s_mov_b64 exec, -1")
        a.vmq, a.lgq = vq, lq
        a.label(lab)
        a.e("s_barrier")

    def apoll_issue(self, base, slot, lane, slot_sreg, dst):
        a = self.a
        a.e(f"s_lshl_b32 s{dst}, s{slot_sreg}, 11\ns_add_u32 s{dst}, s{dst}, s{base}\ns_add_u32 s{dst}, s{dst}, {slot*2048}")
        a.e(f"s_mov_b64 exec, {1 << lane}")
        a.e(f"buffer_load_dword v{V_POLL}, off, s[4:7], s{dst} sc1", tag=f"ap{lane}")
        a.e("s_mov_b64 exec, -1")
    def apoll_check(self, lane, target, dst):
        a = self.a
        ok, lp = a.newlabel("apk"), a.newlabel("apl")
        a.wait_vm(f"ap{lane}")
        a.e(f"v_readlane_b32 s{S_T3}, v{V_POLL}, {lane}\ns_cmp_ge_u32 s{S_T3}, {target}\ns_cbranch_scc1 {ok}")
        vq, lq = list(a.vmq), list(a.lgq)
        a.e(f"s_mov_b32 s{S_CNT}, 0\ns_mov_b64 exec, {1 << lane}")
        a.label(lp)
        a.e(f"buffer_load_dword v{V_POLL}, off, s[4:7], s{dst} sc1")
        a.e(f"s_add_u32 s{S_CNT}, s{S_CNT}, 1\ns_cmp_gt_u32 s{S_CNT}, 200000\ns_cbranch_scc1 {lp}_x")
        a.e(f"s_waitcnt vmcnt(0)\nv_readlane_b32 s{S_T3}, v{V_POLL}, {lane}\ns_cmp_lt_u32 s{S_T3}, {target}\ns_cbranch_scc1 {lp}")
        a.label(f"{lp}_x")
        a.e("s_waitcnt vmcnt(0)\ns_mov_b64 exec, -1")
        a.vmq, a.lgq = vq, lq
        a.label(ok)

    @staticmethod
    def bc(r): return f"v[{r & ~1}:{(r & ~1) + 1}]", r & 1
    def pk_fma_bc(self, dst, src, rb, rc, neg_a=0, neg_c=0):
        (tb, sb), (tc, sc) = self.bc(rb), self.bc(rc)
        return (f"v_pk_fma_f32 v[{dst}:{dst+1}], v[{src}:{src+1}], {tb}, {tc} op_sel:[0,{sb},{sc}] op_sel_hi:[1,{sb},{sc}]"
                f" neg_lo:[{neg_a},0,{neg_c}] neg_hi:[{neg_a},0,{neg_c}]")
    def pk_mul_bc(self, dst, src, rb):
        tb, sb = self.bc(rb)
        return f"v_pk_mul_f32 v[{dst}:{dst+1}], v[{src}:{src+1}], {tb} op_sel:[0,{sb}] op_sel_hi:[1,{sb}]"
    @staticmethod
    def pk_add(dst, x, y): return f"v_pk_add_f32 v[{dst}:{dst+1}], v[{x}:{x+1}], v[{y}:{y+1}]"

    def stats_reduce(self, b, vV, vM, t0, t1):
        L = []
        for k in (0, 1):
            L += [f"v_add_f32 v{b+k}, v{b+k}, v{b+2+k}", f"v_add_f32 v{b+4+k}, v{b+4+k}, v{b+6+k}", f"v_add_f32 v{b+8+k}, v{b+8+k}, v{b+10+k}"]
        for k in (0, 1):
            L += [f"v_add_f32 v{b+k}, v{b+k}, v{b+4+k}", f"v_add_f32 v{b+8+k}, v{b+8+k}, v{b+12+k}"]
        for k in (0, 1): L += [f"v_add_f32 v{b+k}, v{b+k}, v{b+8+k}"]
        L += [f"v_mov_b32 v{t0}, v{b}", f"v_mov_b32 v{t1}, v{b+1}", "s_nop 0",
              f"v_permlane32_swap_b32 v{t0}, v{b}", f"v_permlane32_swap_b32 v{t1}, v{b+1}",
              f"v_add_f32 v{b}, v{b}, v{t0}", f"v_add_f32 v{b+1}, v{b+1}, v{t1}",
              f"v_mul_f32 v{vM}, {hexf(1.0/D)}, v{b}",
              f"v_mul_f32 v{t1}, {hexf(1.0/D)}, v{b+1}",
              f"v_mul_f32 v{t0}, v{vM}, v{vM}",
              f"v_sub_f32 v{vV}, v{t1}, v{t0}",
              f"v_max_f32 v{vV}, 0, v{vV}",
              f"v_add_f32 v{vV}, {hexf(1e-5)}, v{vV}"]
        return L

    def softmax(self, R, P, t):
        mx, mn, u, w, bp, bn, bpm, bnm = [t + k for k in range(8)]
        L = [f"v_max3_f32 v{mx}, v{R}, v{R+1}, v{R+2}", f"v_min3_f32 v{mn}, v{R}, v{R+1}, v{R+2}",
             f"v_max3_f32 v{u}, v{R+3}, v{R+4}, v{R+5}", f"v_min3_f32 v{w}, v{R+3}, v{R+4}, v{R+5}"]
        for k in (6, 10):
            L += [f"v_max3_f32 v{mx}, v{mx}, v{R+k}, v{R+k+1}", f"v_min3_f32 v{mn}, v{mn}, v{R+k}, v{R+k+1}",
                  f"v_max3_f32 v{u}, v{u}, v{R+k+2}, v{R+k+3}", f"v_min3_f32 v{w}, v{w}, v{R+k+2}, v{R+k+3}"]
        L += [f"v_max3_f32 v{mx}, v{mx}, v{R+14}, v{R+15}", f"v_min3_f32 v{mn}, v{mn}, v{R+14}, v{R+15}",
              f"v_max_f32 v{mx}, v{mx}, v{u}", f"v_min_f32 v{mn}, v{mn}, v{w}",
              f"v_mov_b32 v{u}, v{mx}", f"v_mov_b32 v{w}, v{mn}",
              f"v_mov_b32 v{bpm}, {hexf(1e30)}", f"v_mov_b32 v{bnm}, {hexf(-1e30)}",
              f"v_permlane32_swap_b32 v{u}, v{mx}", f"v_permlane32_swap_b32 v{w}, v{mn}",
              f"v_max_f32 v{mx}, v{mx}, v{u}", f"v_min_f32 v{mn}, v{mn}, v{w}",
              f"v_mul_f32 v{bp}, v{V_C}, v{mx}", f"v_mul_f32 v{bn}, v{V_C}, v{mn}",
              f"v_cndmask_b32 v{bpm}, v{bp}, v{bpm}, s[{S_UP}:{S_UP+1}]",
              f"v_cndmask_b32 v{bnm}, v{bn}, v{bnm}, s[{S_UP}:{S_UP+1}]"]
        for g in range(4):
            for k in (0, 2): L.append(self.pk_fma_bc(P + 4*g + k, R + 4*g + k, V_C, bpm if g == 3 else bp, 0, 1))
            for k in (0, 2): L.append(self.pk_fma_bc(R + 4*g + k, R + 4*g + k, V_C, bnm if g == 3 else bn, 1, 0))
        for g in range(4):
            for k in range(4): L.append(f"v_exp_f32 v{P+4*g+k}, v{P+4*g+k}")
            for k in range(4): L.append(f"v_exp_f32 v{R+4*g+k}, v{R+4*g+k}")
            if g == 1: L += [self.pk_add(mx, P, P + 2), self.pk_add(u, R, R + 2)]
            elif g >= 2:
                for k in (0, 2): L += [self.pk_add(mx, mx, P + 4*(g-1) + k), self.pk_add(u, u, R + 4*(g-1) + k)]
        for k in (0, 2): L += [self.pk_add(mx, mx, P + 12 + k), self.pk_add(u, u, R + 12 + k)]
        L += [f"v_add_f32 v{mx}, v{mx}, v{mn}", f"v_add_f32 v{u}, v{u}, v{w}",
              f"v_mov_b32 v{mn}, v{mx}", f"v_mov_b32 v{w}, v{u}", "s_nop 0",
              f"v_permlane32_swap_b32 v{mn}, v{mx}", f"v_permlane32_swap_b32 v{w}, v{u}",
              f"v_add_f32 v{mx}, v{mx}, v{mn}", f"v_add_f32 v{u}, v{u}, v{w}",
              f"v_rcp_f32 v{mx}, v{mx}", f"v_rcp_f32 v{u}, v{u}"]
        for k in range(0, 16, 2): L.append(self.pk_mul_bc(P + k, P + k, mx))
        for k in range(0, 16, 2): L.append(self.pk_mul_bc(R + k, R + k, u))
        for d in range(8): L.append(f"v_cvt_pk_bf16_f32 v{P+d}, v{P+2*d}, v{P+2*d+1}")
        for d in range(8): L.append(f"v_cvt_pk_bf16_f32 v{R+d}, v{R+2*d}, v{R+2*d+1}")
        return L

    def phi_apply(self, R, tb):
        L = [f"v_cvt_pk_bf16_f32 v{tb+d}, v{R+2*d}, v{R+2*d+1}" for d in range(8)]
        L.append(f"{MF} {vr(R,16)}, {ar(A_PHI)}, {vr(tb)}, 0")
        L.append(f"{MF} {vr(R,16)}, {ar(A_PHI+4)}, {vr(tb+4)}, {vr(R,16)}")
        return L

    def w3_stream(self):
        g0, g1 = S_G[0], S_G[1]
        pre = self.sa(g0, [(S_JS, 4 * 56 * KB), (S_W, 56 * KB)], WGU) + [f"s_add_u32 s{g1}, s{g0}, {28*KB}"]
        its = self.zip2(self.seq_items(28, lambda s: ar(8*s), g0, lambda s: f"w3_{s}", False),
                        self.seq_items(28, lambda s: ar(8*s+4), g1, lambda s: f"w3_{s}", False))
        self.emits(pre)
        return its
    def wo_stream(self):
        its = []
        for sl in range(2):
            c = S_G[2 + sl]
            pre = [f"s_xor_b32 s{c}, s{S_NT}, {sl}"] + [f"s_lshl_b32 s{c}, s{c}, 15"] + self.sa(S_T0, [(S_CB, 2 * 32 * KB), (S_W, 8 * KB)], WO) + [f"s_add_u32 s{c}, s{c}, s{S_T0}"]
            x = self.seq_items(8, lambda i: vr(16 + 32 * sl + 4 * i), c, lambda i: "wo", False)
            self.emits(pre)
            its.append(x)
        return self.zip2(its[0], its[1])
    W4A = 128
    def w4_reg(self, i, sl):
        return vr(self.W4A + 8*i + 4*sl) if i < 16 else ar(8*(i - 16) + 4*sl)
    def kseg(self, dst, late):
        if late: return self.sa(dst, [(S_TH, 56), (S_W, 14)], 0)
        return self.sa(dst, [(S_W, 14)], 56) + [f"s_mul_i32 s{S_T3}, s{S_TH}, 56", f"s_sub_u32 s{dst}, s{dst}, s{S_T3}"]
    def w4_stream(self):
        out = []
        for late in (0, 1):
            its = []
            for sl in range(2):
                c = S_G[2 * late + sl]
                pre = self.kseg(S_T0, late) + [f"s_xor_b32 s{c}, s{S_NT}, {sl}", f"s_mul_i32 s{c}, s{c}, 112", f"s_add_u32 s{c}, s{c}, s{S_T0}"]
                pre += [f"s_mul_i32 s{S_T0}, s{S_CB}, 224", f"s_add_u32 s{c}, s{c}, s{S_T0}", f"s_lshl_b32 s{c}, s{c}, 10", f"s_add_u32 s{c}, s{c}, {WD}"]
                x = self.seq_items(14, lambda i: self.w4_reg(14 * late + i, sl), c, lambda i: f"w4_{14*late+i}", False)
                self.emits(pre)
                its.append(x)
            out += self.zip2(its[0], its[1])
        return out
    def p1w_items(self, part):
        c, l = S_G[4], S_G[5]
        its = self.dma_items(7, l, c, "w1" + "qkv"[part], False)
        pre = self.sa(l, [(S_W, 7 * KB)], L_W1 + part * 28 * KB) + self.sa(c, [(S_J, 84 * KB), (S_W, 7 * KB)], WQKV + part * 28 * KB)
        its[0] = pre + its[0]
        return its

    def prologue(self):
        a, n = self.a, self.name
        a.label(n)
        a.e(f"s_cmp_lt_u32 s2, 256\ns_cbranch_scc1 {n}_go\ns_endpgm")
        a.label(f"{n}_go")
        Y = self.opt("y", 0)
        if Y:
            import start4
            self.st4 = start4.Start(self)
            a.e("s_load_dwordx16 s[64:79], s[0:1], 0\ns_load_dwordx4 s[80:83], s[0:1], 64\ns_load_dwordx2 s[4:5], s[0:1], 80")
            if self.o.get("prof"): a.e("s_memrealtime s[84:85]")
        elif self.opt("single", 0):
            import prep3
            a.e("s_load_dwordx16 s[64:79], s[0:1], 0\ns_load_dwordx4 s[80:83], s[0:1], 64\ns_load_dwordx2 s[4:5], s[0:1], 80")
            if self.o.get("prof"): a.e("s_memrealtime s[84:85]")
            prep3.emit_prep(a, n, self.o)
            a.e("s_mov_b32 s8, s80\ns_mov_b32 s9, s81")
        else:
            a.e("s_load_dwordx2 s[4:5], s[0:1], 80\ns_load_dwordx2 s[8:9], s[0:1], 64")
        if self.opt("pf_main", 0):
            nl = self.opt("pf_lines", 16)
            a.e("s_getpc_b64 s[60:61]")
            a.label(f"{n}_pc")
            a.e(f"s_sub_u32 s60, s60, {n}_pc-{n}\ns_subb_u32 s61, s61, 0")
            a.e(f"s_lshr_b32 s62, s2, 3\ns_and_b32 s62, s62, 31\ns_mul_i32 s62, s62, {nl*64}\ns_min_u32 s62, s62, {n}_end-{n}-{nl*64}\ns_add_u32 s60, s60, s62\ns_addc_u32 s61, s61, 0")
            for i in range(nl): a.e(f"s_load_dwordx16 s[64:79], s[60:61], {i*64}")
        a.e(f"s_mov_b32 s6, {WS_USED}\ns_mov_b32 s7, 0x20000\ns_mov_b32 s10, {S*D*2}\ns_mov_b32 s11, 0x20000")
        if self.opt("rbmap", 0):
            a.e(f"s_and_b32 s{S_T2}, s2, 15\ns_lshr_b32 s{S_T3}, s2, 4")
            a.e(f"s_lshr_b32 s{S_T0}, s{S_T2}, 2\ns_lshl_b32 s{S_T0}, s{S_T0}, 1\ns_lshr_b32 s{S_T1}, s{S_T3}, 3\ns_add_u32 s{S_T0}, s{S_T0}, s{S_T1}")
            a.e(f"s_and_b32 s{S_T1}, s{S_T3}, 7\ns_lshl_b32 s{S_T1}, s{S_T1}, 2\ns_and_b32 s{S_T2}, s{S_T2}, 3\ns_add_u32 s{S_T1}, s{S_T1}, s{S_T2}")
        elif self.opt("antimap", 0): a.e(f"s_lshr_b32 s{S_T0}, s2, 5\ns_and_b32 s{S_T1}, s2, 31")
        else: a.e(f"s_and_b32 s{S_T0}, s2, 7\ns_lshr_b32 s{S_T1}, s2, 3")
        if self.opt("map8", 0):
            a.e(f"s_and_b32 s{S_RB}, s{S_T1}, 15\ns_lshr_b32 s{S_T1}, s{S_T1}, 4\ns_lshl_b32 s{S_J}, s{S_T0}, 1\ns_add_u32 s{S_J}, s{S_J}, s{S_T1}")
            a.e(f"s_lshr_b32 s{S_TH}, s{S_J}, 3\ns_and_b32 s{S_Q}, s{S_J}, 7")
        elif self.opt("map4", 0):
            a.e(f"s_and_b32 s{S_T2}, s{S_T0}, 3\ns_lshr_b32 s{S_T0}, s{S_T0}, 2\ns_lshl_b32 s{S_T0}, s{S_T0}, 3")
            a.e(f"s_and_b32 s{S_RB}, s{S_T1}, 7\ns_add_u32 s{S_RB}, s{S_RB}, s{S_T0}\ns_lshr_b32 s{S_T1}, s{S_T1}, 3")
            a.e(f"s_lshr_b32 s{S_TH}, s{S_T2}, 1\ns_and_b32 s{S_T3}, s{S_T2}, 1\ns_lshl_b32 s{S_T3}, s{S_T3}, 2\ns_add_u32 s{S_Q}, s{S_T3}, s{S_T1}")
            a.e(f"s_lshl_b32 s{S_J}, s{S_TH}, 3\ns_add_u32 s{S_J}, s{S_J}, s{S_Q}")
        else:
            a.e(f"s_and_b32 s{S_TH}, s{S_T0}, 1\ns_lshr_b32 s{S_T0}, s{S_T0}, 1\ns_lshl_b32 s{S_T0}, s{S_T0}, 2")
            a.e(f"s_and_b32 s{S_RB}, s{S_T1}, 3\ns_add_u32 s{S_RB}, s{S_RB}, s{S_T0}")
            a.e(f"s_lshr_b32 s{S_Q}, s{S_T1}, 2\ns_lshl_b32 s{S_J}, s{S_TH}, 3\ns_add_u32 s{S_J}, s{S_J}, s{S_Q}")
        a.e(f"s_min_u32 s{S_CB}, s{S_Q}, 6\ns_mul_i32 s{S_JS}, s{S_TH}, 7\ns_add_u32 s{S_JS}, s{S_JS}, s{S_CB}")
        a.e(f"s_lshl_b32 s{S_M}, s{S_TH}, 1\ns_sub_u32 s{S_M}, 2, s{S_M}")
        a.e(f"v_lshrrev_b32 v{V_T0}, 6, v0\nv_and_b32 v{V_T1}, 63, v0\nv_lshlrev_b32 v{V_L16}, 4, v{V_T1}")
        a.e(f"v_readfirstlane_b32 s{S_W}, v{V_T0}")
        a.e(f"v_add_u32 v{V_L16H}, 0x10000, v{V_L16}")
        a.e(f"v_and_b32 v{V_T2}, 31, v0\nv_bfe_u32 v{V_T3}, v0, 5, 1")
        a.e(f"v_lshlrev_b32 v{V_I8}, 3, v{V_T2}")
        a.e(f"v_mul_u32_u24 v{V_STL}, 1792, v{V_T3}\nv_add_u32 v{V_STL}, v{V_STL}, v{V_I8}")
        a.e(f"s_lshr_b32 s{S_TT}, s{S_W}, 1\ns_and_b32 s{S_NT}, s{S_W}, 1")
        a.e(f"s_mov_b32 s{S_SEL_LO}, 0x3f80\ns_mov_b32 s{S_SEL_HI}, 0x3f800000")
        a.e(f"s_mov_b32 s{S_UP}, 0\ns_mov_b32 s{S_UP+1}, -1")
        a.e(f"s_mov_b32 s{S_L}, 0")
        self.emits(self.sa(S_TILE, [(S_RB, 4), (S_TH, 2), (S_TT, 1)]))
        self.emits(self.sa(S_N, [(S_CB, 2), (S_NT, 1)]))
        self.emits(self.sa(S_XT, [(S_RB, 4), (S_W, 1)]))
        if self.o.get("prof"):
            a.e(f"v_mov_b32 v{V_MARK}, 0")
            if self.opt("single", 0) and not Y:
                k = len(self.marks); self.marks.append("start")
                a.e(f"v_writelane_b32 v{V_MARK}, s84, {k}")
                for nm, r in (("t_ldiss", 94), ("t_landed", 92), ("t_issued", 86), ("t_drained", 88), ("t_zeroseen", 90)):
                    k = len(self.marks); self.marks.append(nm)
                    a.e(f"v_writelane_b32 v{V_MARK}, s{r}, {k}")
                self.mark("prepdone")
        a.e("s_waitcnt lgkmcnt(0)")
        if Y:
            R = dict(W=S_W, J=S_J, L16=V_L16, I8=V_I8, A_PHI=A_PHI, SEL_LO=S_SEL_LO, SEL_HI=S_SEL_HI)
            self.R4 = R
            self.st4.lane_consts(S_W)
            self.st4.front(R)
        else:
            for it in self.p1w_items(1) + self.p1w_items(2): self.emits(it)
            self.emits(self.sa(S_T0, [(S_J, 2 * KB)], PHI))
            for it in self.seq_items(2, lambda i: ar(A_PHI + 4*i), S_T0, lambda i: "phi", False): self.emits(it)
            if not self.opt("lateq", 0):
                self.emits(self.sa(S_T0, [(S_TILE, 28 * KB), (S_N, 2 * KB)], X))
                for it in self.seq_items(2, lambda i: ar(A_RES + 4*i), S_T0, lambda i: "res", False): self.emits(it)
                for it in self.p1w_items(0): self.emits(it)
        a.e(f"v_cmp_eq_u32 vcc, 28, v{V_T2}\nv_mov_b32 v{V_T4}, 1.0\nv_mov_b32 v{V_ONE}, 0\nv_cndmask_b32 v{V_ONE}, v{V_ONE}, v{V_T4}, vcc")
        a.e(f"v_lshlrev_b32 v{V_T3}, 2, v{V_T3}\nv_sub_u32 v{V_T2}, v{V_T2}, v{V_T3}")
        a.e(f"v_mov_b32 v{V_T4}, 0x3f80\nv_mov_b32 v{V_T5}, 0x3f800000")
        for s in range(2):
            for d in range(4):
                j = 2 * d
                c = 16 * s + 8 * (j // 4) + (j % 4)
                a.e(f"v_mov_b32 v{V_T6}, 0")
                a.e(f"v_cmp_eq_u32 vcc, {c}, v{V_T2}\nv_cndmask_b32 v{V_T6}, v{V_T6}, v{V_T4}, vcc")
                a.e(f"v_cmp_eq_u32 vcc, {c+1}, v{V_T2}\nv_cndmask_b32 v{V_T6}, v{V_T6}, v{V_T5}, vcc")
                a.e(f"v_accvgpr_write_b32 a{A_ID+4*s+d}, v{V_T6}")
        if Y:
            self.st4.xblock(self.R4)
            self.st4.bg_issue(self.R4)
            a.e(f"s_mov_b32 s8, s80\ns_mov_b32 s9, s81\ns_mov_b32 s10, {S*D*2}\ns_mov_b32 s11, 0x20000")
            self.st4.self_center(self.R4)
            self.st4.ts(86)
            if self.o.get("prof"):
                for nm, r in (("start", 84), ("t_ldiss", 94), ("t_landed", 92), ("t_arr", 90), ("t_center", 86)):
                    k = len(self.marks); self.marks.append(nm)
                    a.e(f"v_writelane_b32 v{V_MARK}, s{r}, {k}")
            a.vmq = []; a.lgq = []

    def layer_setup(self):
        self.emits(self.sa(S_FRB, [(S_L, NSYNC * 2048), (S_RB, 128)], FLAGS))
        self.emits(self.sa(S_FJ, [(S_L, NSYNC * 2048), (S_J, 128)], FLAGS))

    def p1(self):
        a = self.a
        XF, RK, RV, RQ, RING, RA, RB, TB = 16, 128, 144, 160, 176, 208, 224, 240
        RS, KR, QRING = 160, 176, 192
        LA = self.opt("la1", 6)
        self.mark("p1_start")
        self.emits(self.sa(S_A, [(S_XT, 28 * KB), (S_L, 2 * XSZ)], X))
        xi = self.seq_items(28, lambda s: vr(XF + 4*s), S_A, lambda s: f"x{s}", True)
        self.take(xi, 2)
        self.emits(self.sa(S_B, [(S_XT, 3584), (S_L, 2 * STSZ)], ST))
        for k in range(7): self.emit(self.ld(vr(RA + 2*k, 2), S_B, k * 256, "st", n=2, vaddr=V_STL))
        self.take(xi, LA - 2)
        Y = self.opt("y", 0)
        if Y:
            lab = a.newlabel("l0only")
            a.e(f"s_cmp_lg_u32 s{S_L}, 0\ns_cbranch_scc1 {lab}")
            vq, lq, vt = list(a.vmq), list(a.lgq), a.vm_total
            self.st4.bg_finish(self.R4, len(a.vmq))
            self.emits(self.sa(S_T0, [(S_TILE, 28 * KB), (S_N, 2 * KB)], X))
            for it in self.seq_items(2, lambda i: ar(A_RES + 4*i), S_T0, lambda i: "res", True): self.emits(it)
            a.vmq, a.lgq, a.vm_total = vq, lq, vt
            a.label(lab)
            self.vm_mark = a.vm_total
            a.e("s_waitcnt lgkmcnt(0)")
        a.wait_vm(("w1k", "w1v", "phi", "res"))
        a.e("s_barrier")
        self.mark("p1_wready")
        def rdA(s):
            sl = RING + 8 * (s % 4)
            r, of = self.ldsaddr(L_W1 + (28 + s) * KB); a.e(f"ds_read_b128 {vr(sl)}, v{r} offset:{of}", tag=f"a{s}")
            r, of = self.ldsaddr(L_W1 + (56 + s) * KB); a.e(f"ds_read_b128 {vr(sl+4)}, v{r} offset:{of}", tag=f"a{s}")
        for s in range(3): rdA(s)
        def mk(s):
            def f():
                if s + 3 < 28: rdA(s + 3)
                self.take(xi, 1)
                if Y and s == self.opt("bgarr", 14):
                    a.e(f"s_waitcnt vmcnt({min(63, a.vm_total - self.vm_mark)})\ns_barrier")
                    a.e(f"s_and_b32 s{S_T2}, s2, 15\ns_lshl_b32 s{S_T2}, s{S_T2}, 7\ns_add_u32 s{S_T2}, s{S_T2}, {PFLAG + 2048}")
                    a.e(f"v_mov_b32 v{V_T7}, 1\ns_cmp_eq_u32 s{S_W}, 0\ns_cselect_b64 exec, 1, 0")
                    a.e_uncounted(f"buffer_atomic_add v{V_T7}, off, s[4:7], s{S_T2} sc1")
                    a.e("s_mov_b64 exec, -1")
                a.wait_both(f"x{s}", f"a{s}")
                sl = RING + 8 * (s % 4)
                a.e(f"{MF} {vr(RK,16)}, {vr(sl)}, {vr(XF+4*s)}, {vr(RK,16) if s else 0}")
            return f
        def mv(s):
            def f():
                sl = RING + 8 * (s % 4)
                a.e(f"{MF} {vr(RV,16)}, {vr(XF+4*s)}, {vr(sl+4)}, {vr(RV,16) if s else 0}")
            return f
        mains = []
        for s in range(28): mains += [mk(s), mv(s)]
        fills = ["@waitvm st"] + self.stats_reduce(RA, V_T0, V_T1, V_T2, V_T3)
        fills += [f"v_rsq_f32 v{V_T0}, v{V_T0}", f"v_lshrrev_b32 v{V_T1}, 1, v{V_I8}"]
        fills += self.sa(S_T0, [(S_W, 128)], L_SCR)
        fills += [f"v_add_u32 v{V_T1}, s{S_T0}, v{V_T1}", f"ds_write_b32 v{V_T1}, v{V_T0}|scw",
                  f"v_mul_f32 v{V_C}, {hexf(1.4426950408889634)}, v{V_T0}",
                  f"v_lshrrev_b32 v{V_T1}, 5, v{V_L16}", f"v_and_b32 v{V_T1}, 16, v{V_T1}",
                  f"v_add_u32 v{V_T1}, s{S_T0}, v{V_T1}", "@waitlg scw"]
        fills += [f"ds_read_b128 {vr(RS+4*g)}, v{V_T1} offset:{g*32}|rs" for g in range(4)]
        self.weave(mains, fills, caps=(20, 0))
        self.mark("p1_loopA")
        if self.opt("lateq", 0):
            lab = a.newlabel("lq")
            a.e(f"s_cmp_lg_u32 s{S_L}, 0\ns_cbranch_scc1 {lab}")
            vq, lq, vt = list(a.vmq), list(a.lgq), a.vm_total
            for it in self.p1w_items(0): self.emits(it)
            self.emits(self.sa(S_T0, [(S_TILE, 28 * KB), (S_N, 2 * KB)], X))
            for it in self.seq_items(2, lambda i: ar(A_RES + 4*i), S_T0, lambda i: "res", False): self.emits(it)
            a.vmq, a.lgq, a.vm_total = vq, lq, vt
            a.label(lab)
            self.lq_mark = a.vm_total
        w3 = self.w3_stream()
        vch = ["@waitlg rs"] + [f"v_pk_fma_f32 v[{RV+r}:{RV+r+1}], v[{RV+r}:{RV+r+1}], v[{RS+r}:{RS+r+1}], v[4:5] op_sel:[0,0,1] op_sel_hi:[1,1,1]" for r in range(0, 16, 2)]
        vch += [f"v_cvt_pk_bf16_f32 v{RV+d}, v{RV+2*d}, v{RV+2*d+1}" for d in range(8)]
        nk = self.opt("bg_k", 8) if not Y else 0
        if Y:
            a.e(f"v_lshlrev_b32 v249, 3, v{V_L16}\ns_mov_b32 s{S_F}, {PFLAG + 2048}\ns_mov_b64 exec, 0xffff")
            a.e(f"buffer_load_dword v248, v249, s[4:7], s{S_F} offen sc1", tag="dq")
            a.e("s_mov_b64 exec, -1")
        self.take(w3, min(nk, self.opt("bg_k0", 4)))
        self.emits(self.phi_apply(RK, TB))
        self.emits(vch)
        self.emits_bg(self.softmax(RK, RA, V_T0), w3, nk - min(nk, self.opt("bg_k0", 4)), first=0, every=self.opt("bg_k_every", 6))
        self.mark("p1_kepi")
        a.e(f"{MF} {vr(RB,16)}, {vr(RA)}, {ar(A_ID)}, 0")
        a.e(f"{MF} {vr(RB,16)}, {vr(RA+4)}, {ar(A_ID+4)}, {vr(RB,16)}")
        a.e(f"{MF} {vr(RA,16)}, {vr(RK)}, {ar(A_ID)}, 0")
        a.e(f"{MF} {vr(RA,16)}, {vr(RK+4)}, {ar(A_ID+4)}, {vr(RA,16)}")
        self.emits(self.sa(S_T0, [(S_W, 2048)], L_KVR) + [f"v_add_u32 v{V_T0}, s{S_T0}, v{V_L16}"])
        self.emits(self.sa(S_T0, [(S_W, 8192)], L_KVR) + [f"v_add_u32 v{V_T1}, s{S_T0}, v{V_L16}"])
        self.emits(self.sa(S_C, [(S_J, 4 * 16 * KB), (S_W, 16 * KB), (S_L, SLABSZ)], SLAB))
        for d in range(8): a.e(f"v_cvt_pk_bf16_f32 v{RB+d}, v{RB+2*d}, v{RB+2*d+1}")
        a.e(f"{MF} {vr(RK,16)}, {vr(RB)}, {vr(RV)}, 0")
        a.e(f"{MF} {vr(RK,16)}, {vr(RB+4)}, {vr(RV+4)}, {vr(RK,16)}")
        for d in range(8): a.e(f"v_cvt_pk_bf16_f32 v{RA+d}, v{RA+2*d}, v{RA+2*d+1}")
        a.e(f"{MF} {vr(RB,16)}, {vr(RA)}, {vr(RV)}, 0")
        a.e(f"{MF} {vr(RB,16)}, {vr(RA+4)}, {vr(RV+4)}, {vr(RB,16)}")
        self.emits(self.sa(S_D, [(S_RB, KB), (S_C, 1)]))
        for t, R in ((0, RK), (1, RB)):
            for s in range(2):
                for g in range(2):
                    a.e(f"ds_write_b128 v{V_T0}, {vr(R+8*s+4*g)} offset:{(2*t+s)*8192+g*1024}", tag="kw")
        a.wait_vm("w1q")
        if self.opt("lateq", 0): a.e(f"s_waitcnt vmcnt({min(63, a.vm_total - self.lq_mark)})")
        a.e("s_waitcnt lgkmcnt(0)\ns_barrier")
        for ws in range(4):
            for g in range(2):
                a.e(f"ds_read_b128 {vr(KR+8*ws+4*g)}, v{V_T1} offset:{(ws*2+g)*1024}", tag=f"kr{ws}")
        def rdB(s):
            sl = QRING + 4 * (s % 4) + 16
            r, of = self.ldsaddr(L_W1 + s * KB); a.e(f"ds_read_b128 {vr(sl)}, v{r} offset:{of}", tag=f"b{s}")
        a.wait_lg("kr1")
        for r in range(0, 8, 2): a.e(self.pk_add(KR + r, KR + r, KR + 8 + r))
        a.wait_lg("kr3")
        for r in range(0, 8, 2): a.e(self.pk_add(KR + 16 + r, KR + 16 + r, KR + 24 + r))
        for r in range(0, 8, 2): a.e(self.pk_add(KR + r, KR + r, KR + 16 + r))
        for d in range(4): a.e(f"v_cvt_pk_bf16_f32 v{KR+d}, v{KR+2*d}, v{KR+2*d+1}")
        self.emit(self.st(vr(KR), S_D, 0, "slab"))
        self.mark("p1_slab")
        if Y: self.done_check()
        for s in range(3): rdB(s)
        ARR = self.opt("arr1", 20)
        def mq(s):
            def f():
                if s == ARR: self.arrive(S_FJ, F_S1, "slab")
                if s + 3 < 28: rdB(s + 3)
                a.wait_lg(f"b{s}")
                sl = QRING + 4 * (s % 4) + 16
                a.e(f"{MF} {vr(RQ,16)}, {vr(sl)}, {vr(XF+4*s)}, {vr(RQ,16) if s else 0}")
            return f
        self.weave([mq(s) for s in range(28)], [], bg=w3, bg_every=self.opt("bg_q_every", 2))
        self.mark("p1_qpass")
        wo = self.wo_stream()
        qe = self.phi_apply(RQ, TB) + self.softmax(RQ, RA, V_T0)
        self.slab_items = None
        if self.opt("early_slab", 0):
            c1 = self.opt("es_cut", 40)
            a.e(f"s_mov_b32 s{S_E}, 0")
            self.apoll_issue(S_FJ, F_S1, 10, S_E, S_F)
            self.emits_bg(qe[:c1], wo, self.opt("es_wo0", 3), first=2, every=12)
            self.apoll_check(10, 16, S_F)
            self.mark("S1_poll")
            sl = self.seq_items(16, lambda i: vr(80 + 4*i), S_C, lambda i: f"sl{i}", True)
            self.emits_bg(qe[c1:], sl, 16, first=0, every=self.opt("es_every", 5))
            self.take(sl, len(sl))
            self.slab_items = True
        else:
            cut = self.opt("ap1", 70)
            self.emits_bg(qe[:cut], wo, self.opt("bg_qe", 6), first=0, every=11)
            if self.opt("async1", 1):
                a.e(f"s_mov_b32 s{S_E}, 0")
                self.apoll_issue(S_FJ, F_S1, 10, S_E, S_F)
            self.emits(qe[cut:])
        self.mark("p1_qepi")
        self.RA, self.RQ, self.w3, self.wo = RA, RQ, w3, wo

    def done_check(self):
        a = self.a
        ok, lp = a.newlabel("dok"), a.newlabel("dlp")
        a.wait_vm("dq")
        a.e(f"s_mov_b64 exec, 0xffff\nv_cmp_gt_u32 vcc, 16, v248\ns_cbranch_vccz {ok}")
        vq, lq, vt = list(a.vmq), list(a.lgq), a.vm_total
        a.e(f"s_mov_b32 s{S_CNT}, 0\ns_mov_b32 s{S_F}, {PFLAG + 2048}")
        a.label(lp)
        a.e(f"buffer_load_dword v248, v249, s[4:7], s{S_F} offen sc1")
        a.e(f"s_add_u32 s{S_CNT}, s{S_CNT}, 1\ns_cmp_gt_u32 s{S_CNT}, 200000\ns_cbranch_scc1 {lp}_x")
        a.e(f"s_waitcnt vmcnt(0)\nv_cmp_gt_u32 vcc, 16, v248\ns_cbranch_vccnz {lp}")
        a.label(f"{lp}_x")
        a.e("s_waitcnt vmcnt(0)")
        a.vmq, a.lgq, a.vm_total = vq, lq, vt
        a.label(ok)
        a.e("s_mov_b64 exec, -1")

    def p2a(self):
        a = self.a
        RA, RQ = self.RA, self.RQ
        SL, AC, KA, RB, TB = 80, 176, 188, 224, 240
        if not self.slab_items:
            if self.opt("async1", 1): self.apoll_check(10, 16, S_F)
            else: self.poll(S_FJ, F_S1, 16)
            self.mark("S1_poll")
            for it in self.seq_items(16, lambda i: vr(SL + 4*i), S_C, lambda i: f"sl{i}", True): self.emits(it)
        nwo = min(len(self.wo), self.opt("wo_2a", 16))
        bg2 = [self.wo.pop(0) for _ in range(nwo)] + [self.w3.pop(0) for _ in range(min(len(self.w3), self.opt("bg_2a", 0)))]
        for i in range(16):
            if i >= self.opt("bg_2a_first", 4) and bg2: self.emits(bg2.pop(0))
            a.wait_vm(f"sl{i}")
            for d in range(4):
                a.e(f"v_dot2_f32_bf16 v{AC+2*d}, v{SL+4*i+d}, s{S_SEL_LO}, {'v%d' % (AC+2*d) if i else 0}")
                a.e(f"v_dot2_f32_bf16 v{AC+2*d+1}, v{SL+4*i+d}, s{S_SEL_HI}, {'v%d' % (AC+2*d+1) if i else 0}")
        self.take(bg2, len(bg2))
        self.emits(self.sa(S_T0, [(S_W, KB)], L_KVA) + [f"v_add_u32 v{V_T0}, s{S_T0}, v{V_L16}"])
        self.emits(self.sa(S_A, [(S_XT, 32 * KB), (S_J, 2 * KB), (S_L, OSZ)], O))
        for d in range(4): a.e(f"v_cvt_pk_bf16_f32 v{AC+8+d}, v{AC+2*d}, v{AC+2*d+1}")
        a.e(f"ds_write_b128 v{V_T0}, {vr(AC+8)}")
        a.e("s_waitcnt lgkmcnt(0)\ns_barrier")
        for p in range(4):
            r, of = self.ldsaddr(L_KVA + p * KB)
            a.e(f"ds_read_b128 {vr(KA+4*p)}, v{r} offset:{of}", tag=f"ka{p}")
        Bs = [RA, RA + 4, RQ, RQ + 4]
        for p in range(4):
            a.wait_lg(f"ka{p}")
            a.e(f"{MF} {vr(RB,16)}, {vr(KA+4*p)}, {vr(Bs[p])}, {vr(RB,16) if p else 0}")
        a.e(f"v_mov_b32 v{V_T0}, v{RB+12}\nv_mov_b32 v{V_T1}, v{RB+12}")
        a.e(f"v_permlane32_swap_b32 v{V_T0}, v{V_T1}")
        a.e(f"v_add_f32 v{V_T1}, {hexf(1e-6)}, v{V_T1}\nv_rcp_f32 v{V_T1}, v{V_T1}")
        for r in range(0, 16, 2): a.e(self.pk_mul_bc(RB + r, RB + r, V_T1))
        for d in range(8): a.e(f"v_cvt_pk_bf16_f32 v{TB+d}, v{RB+2*d}, v{RB+2*d+1}")
        self.emit(self.st(vr(TB), S_A, 0, "ost")); self.emit(self.st(vr(TB+4), S_A, 1024, "ost"))
        self.mark("p2a_ost")
        self.arrive(S_FRB, F_S2, "ost")
        self.take(self.wo, len(self.wo))
        self.take(self.w3, self.opt("bg_s2", 0))
        self.mark("S2_arr")

    def red_addr(self):
        L = []
        for u in range(1, 4):
            L += [f"s_xor_b32 s{S_T0}, s{S_W}, {u}", f"s_mul_i32 s{S_T0}, s{S_T0}, 12288", f"s_add_u32 s{S_T0}, s{S_T0}, {L_RED+(u-1)*4096}",
                  f"v_add_u32 v{V_T0+u}, s{S_T0}, v{V_L16}"]
        L += self.sa(S_T0, [(S_W, 12288)], L_RED) + [f"v_add_u32 v{V_T0}, s{S_T0}, v{V_L16}"]
        return L
    def red_write(self, ACC, u):
        return [f"ds_write_b128 v{V_T0+u}, {vr(ACC+16*u+4*g)} offset:{g*1024}|rw" for g in range(4)]
    def res_unpack(self, TR):
        L = [f"v_accvgpr_read_b32 v{TR+16+d}, a{A_RES+d}" for d in range(8)]
        for d in range(8):
            L += [f"v_lshlrev_b32 v{TR+2*d}, 16, v{TR+16+d}", f"v_and_b32 v{TR+2*d+1}, 0xffff0000, v{TR+16+d}"]
        return L
    def red_finish(self, ACC, TR):
        a = self.a
        for r in range(0, 16, 2): a.e(self.pk_add(ACC + r, ACC + r, TR + r))
        a.e("s_waitcnt lgkmcnt(0)\ns_barrier")
        RD = ACC + 16
        for u in range(3):
            for g in range(4):
                a.e(f"ds_read_b128 {vr(RD+16*u+4*g)}, v{V_T0} offset:{u*4096+g*1024}", tag=f"rr{u}")
        for u in range(3):
            a.wait_lg(f"rr{u}")
            for r in range(0, 16, 2): a.e(self.pk_add(ACC + r, ACC + r, RD + 16*u + r))
        for d in range(8): a.e(f"v_cvt_pk_bf16_f32 v{TR+d}, v{ACC+2*d}, v{ACC+2*d+1}")
        self.PK, self.ACC = TR, ACC
    def x_store_addr(self, xsel):
        return (self.sa(S_E, [(S_TILE, 28 * KB), (S_N, 2 * KB), (S_L, 2 * XSZ)], X + xsel * XSZ) +
                self.sa(S_F, [(S_TILE, 3584), (S_N, 256), (S_L, 2 * STSZ)], ST + xsel * STSZ))
    def store_x_and_stats(self):
        a = self.a
        PK, ACC = self.PK, self.ACC
        self.emit(self.st(vr(PK), S_E, 0, "xst")); self.emit(self.st(vr(PK+4), S_E, 1024, "xst"))
        t = PK + 8
        a.e(self.pk_add(t, ACC, ACC + 2))
        a.e(f"v_pk_mul_f32 v[{t+2}:{t+3}], v[{ACC}:{ACC+1}], v[{ACC}:{ACC+1}]")
        for r in range(2, 16, 2):
            if r > 2: a.e(self.pk_add(t, t, ACC + r))
            a.e(f"v_pk_fma_f32 v[{t+2}:{t+3}], v[{ACC+r}:{ACC+r+1}], v[{ACC+r}:{ACC+r+1}], v[{t+2}:{t+3}]")
        a.e(f"v_add_f32 v{t}, v{t}, v{t+1}\nv_add_f32 v{t+1}, v{t+2}, v{t+3}")
        a.e(f"v_mov_b32 v{t+2}, v{t}\nv_mov_b32 v{t+3}, v{t+1}")
        a.e(f"v_permlane32_swap_b32 v{t+2}, v{t}\nv_permlane32_swap_b32 v{t+3}, v{t+1}")
        a.e(self.pk_add(t, t, t + 2))
        a.e("s_mov_b32 exec_hi, 0")
        self.emit(self.st(f"v[{t}:{t+1}]", S_F, 0, "xst", n=2, vaddr=V_I8))
        a.e("s_mov_b32 exec_hi, -1")
        for d in range(8): a.e(f"v_accvgpr_write_b32 a{A_RES+d}, v{PK+d}")

    def p2b(self):
        a = self.a
        OB, ACC, TR = 80, 144, 208
        pre = []
        for b, c in ((0, S_A), (1, S_B)):
            pre += [f"s_xor_b32 s{c}, s{S_TILE}, {b}", f"s_lshl_b32 s{c}, s{c}, 15"] + self.sa(S_T0, [(S_W, 8 * KB), (S_L, OSZ)], O) + [f"s_add_u32 s{c}, s{c}, s{S_T0}"]
        self.emits(pre)
        self.poll(S_FRB, F_S2, 16)
        self.mark("S2_poll")
        ob = [self.seq_items(8, lambda i: vr(OB + 32*b + 4*i), (S_A, S_B)[b], lambda i: f"o{b}_{i}", True) for b in range(2)]
        for it in ob[1] + ob[0]: self.emits(it)
        nb = self.opt("bg_2b", 14)
        self.emits(self.red_addr() + self.x_store_addr(1))
        a.wait_vm("wo")
        def mf(u, i):
            b, sl = u >> 1, u & 1
            a.e(f"{MF} {vr(ACC+16*u,16)}, {vr(16+32*sl+4*i)}, {vr(OB+32*b+4*i)}, {vr(ACC+16*u,16) if i else 0}")
        for i in range(8):
            a.wait_vm(f"o1_{i}")
            mf(2, i); mf(3, i)
            if i < nb: self.take(self.w3, 1)
        resu = self.res_unpack(TR)
        wr = self.red_write(ACC, 2) + self.red_write(ACC, 3)
        for i in range(8):
            a.wait_vm(f"o0_{i}")
            mf(1, i)
            if i >= 2 and wr: self.emit(wr.pop(0))
            self.emits(resu[3*i:3*i+3])
            mf(0, i)
            if i >= 2 and wr: self.emit(wr.pop(0))
            if 8 + i < nb: self.take(self.w3, 1)
        self.emits(wr)
        self.mark("p2b_mfma")
        self.emits(self.red_write(ACC, 1))
        self.red_finish(ACC, TR)
        self.store_x_and_stats()
        self.mark("p2b_st")
        self.arrive(S_FRB, F_S3, "xst")
        self.take(self.w3, self.opt("bg_s3", 0))
        self.mark("S3_arr")

    def p3(self):
        a = self.a
        ACC0, ACC1, RING, CC, TT, HP, STB = 16, 48, 80, 96, 100, 116, 100
        V_X1, V_CA, V_CB = V_T5, V_T4, V_T6
        xds = []
        for p in range(4):
            gc, gl = 56 + 2 * p, 57 + 2 * p
            self.emits([f"s_xor_b32 s{S_T0}, s{S_M}, {p}"] + self.sa(gc, [(S_T0, 28 * KB), (S_RB, 4 * 28 * KB), (S_W, 7 * KB), (S_L, 2 * XSZ)], X + XSZ))
            self.emits(self.sa(gl, [(S_W, 7 * KB)], L_XR + (p & 1) * XSLOT))
            xds.append(self.dma_items(7, gl, gc, f"xt{p}", True))
        def xd(p): return xds[p]
        x0, x1 = xd(0), xd(1)
        self.poll(S_FRB, F_S3, 14)
        self.mark("S3_poll")
        self.take(x0, 7)
        self.emits(self.sa(S_T0, [(S_XT, 3584), (S_L, 2 * STSZ)], ST + STSZ))
        for k in range(7): self.emit(self.ld(vr(STB + 2*k, 2), S_T0, k * 256, "st", n=2, vaddr=V_STL))
        self.take(self.w3, len(self.w3))
        a.e(f"v_add_u32 v{V_X1}, {L_XR + XSLOT}, v{V_L16}")
        def hbase(p):
            return [f"s_xor_b32 s{S_T0}, s{S_M}, {p}"] + self.sa(S_C, [(S_T0, 112 * KB), (S_RB, 4 * 112 * KB), (S_JS, 8 * KB), (S_W, 2 * KB), (S_L, HSZ)], HB)
        c1 = -2.0 * 0.7978845608028654 * 1.4426950408889634
        c2 = c1 * 0.044715
        stf = ["@waitvm st"] + self.stats_reduce(STB, V_T0, V_T1, V_T2, V_T3)
        stf += [f"v_rsq_f32 v{V_T1}, v{V_T0}", f"v_lshrrev_b32 v{V_CA}, 1, v{V_I8}"] + self.sa(S_T0, [(S_W, 384)], L_SCR3)
        stf += [f"v_add_u32 v{V_CB}, s{S_T0}, v{V_CA}",
                f"v_mul_f32 v{V_T2}, v{V_T1}, v{V_T1}", f"v_mul_f32 v{V_T3}, {hexf(c1)}, v{V_T1}", f"v_mul_f32 v{V_T2}, v{V_T2}, v{V_T1}", f"v_mul_f32 v{V_T2}, {hexf(c2)}, v{V_T2}",
                f"ds_write_b32 v{V_CB}, v{V_T3}|cw", f"ds_write_b32 v{V_CB}, v{V_T2} offset:128|cw", f"ds_write_b32 v{V_CB}, v{V_T0} offset:256|cw"]
        stf += self.sa(S_T0, [(S_M, 384)], L_SCR3) + [f"s_mul_i32 s{S_T1}, s{S_M}, 384", f"s_sub_u32 s{S_T1}, {L_SCR3 + 768}, s{S_T1}",
                f"v_add_u32 v{V_CB}, s{S_T1}, v{V_CA}", f"v_add_u32 v{V_CA}, s{S_T0}, v{V_CA}"]

        def epi(p):
            A = ACC0 if p % 2 == 0 else ACC1
            G, U = A, A + 16
            va = V_CA if p < 2 else V_CB
            L = [f"ds_read_b32 v{CC+q}, v{va} offset:{(p&1)*384+q*128}|cc" for q in range(3)] + hbase(p)
            for g in range(4):
                rr = [4*g + k for k in range(4)]
                for k, r in enumerate(rr): L.append(f"v_mul_f32 v{TT+k}, v{G+r}, v{G+r}")
                for k, r in enumerate(rr): L.append(f"v_mul_f32 v{TT+4+k}, v{G+r}, v{U+r}")
                if g == 0: L.append("@waitlg cc")
                for k, r in enumerate(rr): L.append(f"v_fma_f32 v{TT+k}, v{TT+k}, v{CC+1}, v{CC}")
                for k, r in enumerate(rr): L.append(f"v_mul_f32 v{TT+k}, v{TT+k}, v{G+r}")
                for k, r in enumerate(rr): L.append(f"v_exp_f32 v{TT+k}, v{TT+k}")
                for k, r in enumerate(rr): L.append(f"v_fma_f32 v{TT+k}, v{TT+k}, v{CC+2}, v{CC+2}")
                for k, r in enumerate(rr): L.append(f"v_rcp_f32 v{TT+k}, v{TT+k}")
                for k in range(4): L.append(f"v_mul_f32 v{TT+4+k}, v{TT+4+k}, v{TT+k}")
                L.append(f"v_cvt_pk_bf16_f32 v{HP+2*g}, v{TT+4}, v{TT+5}")
                L.append(f"v_cvt_pk_bf16_f32 v{HP+2*g+1}, v{TT+6}, v{TT+7}")
                if g % 2 == 1 and not (self.opt("x_nost", 0) and p < 2): L.append(self.st(vr(HP + 4*(g//2)), S_C, 1024 * (g // 2), f"hst{p}"))
            if self.opt("x_noepi", 0) and p < 2: L = [t for t in L if t.startswith("buffer_") or t.startswith("s_")]
            return L

        w4 = None
        for p in range(4):
            A = ACC0 if p % 2 == 0 else ACC1
            a.wait_vm(f"xt{p}")
            a.e("s_waitcnt lgkmcnt(0)\ns_barrier")
            if p in (0, 1, 3): self.mark(f"p3_T{p}")
            def rd(s):
                if p & 1 == 0:
                    r, of = self.ldsaddr(L_XR + s * KB)
                else: r, of = V_X1, s * KB
                a.e(f"ds_read_b128 {vr(RING+4*(s%4))}, v{r} offset:{of}", tag=f"b{s}")
            for s in range(3): rd(s)
            def mg(s):
                def f():
                    if s + 3 < 28: rd(s + 3)
                    a.wait_both(f"w3_{s}" if p == 0 else None, f"b{s}")
                    a.e(f"{MF} {vr(A,16)}, {ar(8*s)}, {vr(RING+4*(s%4))}, {vr(A,16) if s else 0}")
                return f
            def mu(s):
                def f(): a.e(f"{MF} {vr(A+16,16)}, {ar(8*s+4)}, {vr(RING+4*(s%4))}, {vr(A+16,16) if s else 0}")
                return f
            mains = []
            for s in range(28): mains += [mg(s), mu(s)]
            if p == 0:
                w4 = self.w4_stream()
                bg = x1 + [w4.pop(0) for _ in range(self.opt("w4_p0", 12))]
                self.weave(mains, stf, bg=bg, bg_every=2, bg_phase=1, caps=(16, 8))
            elif p == 1:
                bg = xd(2) + [w4.pop(0) for _ in range(self.opt("w4_p1", 12))]
                if self.opt("x_nobg", 0): bg = xd(2)
                mains[0](); mains[1]()
                self.weave(mains[2:], epi(0), bg=bg, bg_every=2, bg_phase=1, caps=(self.opt('cap1', 24), self.opt('cap2', 8)))
            elif p == 2:
                na = 32 - self.opt("w4_p0", 12) - self.opt("w4_p1", 12)
                bg = xd(3) + [w4.pop(0) for _ in range(na)]
                if self.opt("x_nobg", 0): bg = xd(3)
                mains[0](); mains[1]()
                self.weave(mains[2:], epi(1), bg=bg, bg_every=2, bg_phase=1, caps=(self.opt('cap1', 24), self.opt('cap2', 8)))
            else:
                bg = w4
                mains[0](); mains[1]()
                a.e(f"s_xor_b32 s{S_E}, s{S_TH}, 1")
                AP = self.opt("ap4e", 46)
                orig = mains[AP]
                def with_poll():
                    self.apoll_issue(S_FRB, F_S4E, 8, S_E, S_F)
                    orig()
                mains[AP] = with_poll
                AE = self.opt("arr4e", 22)
                orig2 = mains[AE]
                def with_arr():
                    self.arrive(S_FRB, F_S4E, ("hst0", "hst1"), slot_sreg=S_TH)
                    orig2()
                mains[AE] = with_arr
                self.weave(mains[2:], epi(2), bg=bg, bg_every=2, bg_phase=1, caps=(self.opt('cap1', 24), self.opt('cap2', 8)))
            self.take(bg, len(bg))
        self.mark("p3_loop")
        self.p4_setup()
        self.apoll_check(8, 7, S_F)
        LA = self.opt("la4", 6)
        first = []
        for i in range(LA): first += [self.hi[(i, 0)], self.hi[(i, 1)]]
        self.emits_bg(epi(3), first, len(first), first=self.opt("e3first", 20), every=self.opt("e3every", 9))
        self.take(first, len(first))
        self.mark("p3_epi")

    def p4_setup(self):
        HR, NR = 96, 16
        cur = [S_G[4], S_G[5], S_G[6], S_G[7]]
        pre = []
        for late in (0, 1):
            for b in range(2):
                c = cur[2*late + b]
                pre += self.kseg(S_T0, late) + [f"s_xor_b32 s{c}, s{S_TILE}, {b}", f"s_mul_i32 s{c}, s{c}, 112", f"s_add_u32 s{c}, s{c}, s{S_T0}", f"s_lshl_b32 s{c}, s{c}, 10"]
                pre += self.sa(S_T0, [(S_L, HSZ)], HB) + [f"s_add_u32 s{c}, s{c}, s{S_T0}"]
        self.emits(pre)
        self.hi = {}
        for late in (0, 1):
            for b in range(2):
                x = self.seq_items(14, lambda i: ar(HR + 8*((14*late + i) % NR) + 4*b), cur[2*late + b], lambda i: f"h{14*late+i}_{b}", True)
                for i in range(14): self.hi[(14*late + i, b)] = x[i]

    def p4(self):
        a = self.a
        n = self.name
        ACC, HR, NR, TR = 16, 96, 16, 80
        LA = self.opt("la4", 6)
        hi = self.hi
        self.emits(self.red_addr())
        def mf(u, i):
            b, sl = u >> 1, u & 1
            a.e(f"{MF} {vr(ACC+16*u,16)}, {self.w4_reg(i, sl)}, {ar(HR+8*(i%NR)+4*b)}, {vr(ACC+16*u,16) if i else 0}")
        TAIL = self.opt("tail4", 6)
        PL = 14 - LA
        t0 = 28 - TAIL
        rest0 = [hi[(i, 0)] for i in range(t0, 28)]
        rest1 = [hi[(i, 1)] for i in range(t0, 28)]
        ARR4 = self.opt("arr4", 3)
        APL = self.opt("ap4l", PL - 2)
        for i in range(t0):
            if i == ARR4:
                self.arrive(S_FRB, F_S4L, ("hst2", "hst3"), slot_sreg=S_TH)
                self.mark("S4_arr")
            if i == APL: self.apoll_issue(S_FRB, F_S4L, 9, S_TH, S_F)
            if i == PL:
                self.apoll_check(9, 7, S_F)
                self.mark("S4L_poll")
            a.wait_vm((f"h{i}_0", f"h{i}_1", f"w4_{i}"))
            nxt = i + LA
            mf(0, i); mf(1, i)
            if nxt < t0: self.emits(hi[(nxt, 0)])
            elif rest1: self.emits(rest1.pop(0))
            mf(2, i); mf(3, i)
            if nxt < t0: self.emits(hi[(nxt, 1)])
            elif rest1: self.emits(rest1.pop(0))
            elif rest0: self.emits(rest0.pop(0))
        for it in rest1: self.emits(it)
        for i in range(t0, 28):
            a.wait_vm((f"h{i}_1", f"w4_{i}"))
            mf(2, i)
            if rest0: self.emits(rest0.pop(0))
            mf(3, i)
        resu = self.res_unpack(TR)
        wr = self.red_write(ACC, 2) + self.red_write(ACC, 3)
        k = 0
        for i in range(t0, 28):
            a.wait_vm(f"h{i}_0")
            mf(1, i)
            if i >= t0 + 1 and wr: self.emit(wr.pop(0))
            self.emits(resu[4*k:4*k+4]); k += 1
            mf(0, i)
            if i >= t0 + 1 and wr: self.emit(wr.pop(0))
        self.emits(resu[4*k:]); self.emits(wr)
        self.mark("p4_mfma")
        self.emits(self.red_write(ACC, 1))
        self.emits(self.x_store_addr(2))
        self.red_finish(ACC, TR)
        self.mark("p4_red")
        fin = a.newlabel("fin")
        a.e(f"s_cmp_lg_u32 s{S_L}, 0\ns_cbranch_scc1 {fin}")
        vq = list(a.vmq)
        self.store_x_and_stats()
        self.arrive(S_FRB, F_S5, "xst")
        a.e(f"s_branch {n}_next")
        a.vmq = vq
        a.label(fin)
        PK = self.PK
        self.emits(self.sa(S_T0, [(S_TILE, 32 * 896), (S_N, 64)]))
        a.e(f"v_mul_u32_u24 v{V_T0}, 112, v{V_I8}\nv_lshrrev_b32 v{V_T1}, 5, v{V_L16}\nv_and_b32 v{V_T1}, 16, v{V_T1}\nv_add_u32 v{V_T0}, v{V_T0}, v{V_T1}")
        a.e(f"v_permlane32_swap_b32 v{PK}, v{PK+2}\nv_permlane32_swap_b32 v{PK+1}, v{PK+3}")
        a.e(f"v_permlane32_swap_b32 v{PK+4}, v{PK+6}\nv_permlane32_swap_b32 v{PK+5}, v{PK+7}")
        osc = " sc1" if self.opt("out_sc1", 0) else ""
        a.e(f"buffer_store_dwordx4 {vr(PK)}, v{V_T0}, s[8:11], s{S_T0} offen" + osc)
        a.e(f"buffer_store_dwordx4 {vr(PK+4)}, v{V_T0}, s[8:11], s{S_T0} offen offset:32" + osc)
        a.e(f"s_branch {n}_done")

    def build(self):
        a, n = self.a, self.name
        self.prologue()
        head_q = list(a.vmq)
        a.label(f"{n}_layer")
        a.vmq = list(head_q); a.lgq = []
        self.layer_setup()
        if self.opt("y", 0):
            a.e(f"s_lshl_b32 s{S_T0}, s{S_RB}, 7\ns_add_u32 s{S_T0}, s{S_T0}, {PFLAG}\ns_add_u32 s{S_E}, s{S_FRB}, {F_S5*2048 - NSYNC*2048}")
            a.e(f"s_cmp_eq_u32 s{S_L}, 0\ns_cselect_b32 s{S_E}, s{S_T0}, s{S_E}")
            self.poll(S_E, 0, 14)
        else:
            lab = a.newlabel("nos5")
            a.e(f"s_cmp_eq_u32 s{S_L}, 0\ns_cbranch_scc1 {lab}")
            self.poll(S_FRB, F_S5, 14, extra=-NSYNC * 2048)
            a.label(lab)
        self.p1()
        self.p2a()
        a.e(f"s_cmp_lt_u32 s{S_Q}, 7\ns_cbranch_scc1 {n}_act")
        a.e(f"s_cmp_lg_u32 s{S_L}, 0\ns_cbranch_scc1 {n}_done")
        a.e(f"s_branch {n}_next")
        a.label(f"{n}_act")
        self.p2b()
        self.p3()
        self.p4()
        a.label(f"{n}_next")
        a.e("s_waitcnt vmcnt(0)")
        if self.o.get("prof"): a.e(f"v_accvgpr_write_b32 a224, v{V_MARK}\nv_mov_b32 v{V_MARK}, 0")
        a.e(f"s_add_u32 s{S_L}, s{S_L}, 1")
        a.e(f"s_branch {n}_layer")
        a.label(f"{n}_done")
        if self.o.get("prof"): self.dump_marks()
        a.e("s_endpgm")
        a.label(f"{n}_end")
        return a.finalize()
```

```python
from asmlib import Asm
from layout import *
import struct
def hexf(x): return "0x%08x" % struct.unpack("<I", struct.pack("<f", x))[0]

L_W1   = 0
L_XR   = 89088
XSLOT  = 28672
L_KVR  = 89088
L_KVA  = 121856
L_RED  = 89088
L_SCR3 = 146432
L_B29  = 148480
L_SCR  = 152576
L_MARK = 163328
LDS_BYTES = 163840

S_RB, S_J, S_W, S_L, S_TH, S_CB, S_TT, S_NT = 12, 13, 14, 15, 16, 17, 18, 19
S_T0, S_T1, S_T2, S_T3 = 20, 21, 22, 23
S_SEL_LO, S_SEL_HI = 24, 25
S_UP = 26
S_CNT, S_JS, S_Q, S_M = 28, 29, 30, 31
S_A, S_B, S_C, S_D = 32, 33, 34, 35
S_E, S_F = 38, 39
S_G = [40, 41, 42, 43, 44, 45, 46, 47]
S_FRB, S_FJ = 48, 49
S_TILE, S_N = 50, 51
S_XT = 52
F_S1, F_S2, F_S3, F_S4E, F_S4L, F_S5 = 0, 1, 2, 3, 5, 7

V_POLL, V_L16, V_L16H, V_STL, V_I8, V_ONE, V_C, V_MARK = 0, 1, 2, 3, 4, 5, 6, 7
V_T0, V_T1, V_T2, V_T3, V_T4, V_T5, V_T6, V_T7 = 8, 9, 10, 11, 12, 13, 14, 15
A_PHI, A_ID, A_RES = 232, 240, 248

def vr(b, n=4): return f"v[{b}:{b+n-1}]"
def ar(b, n=4): return f"a[{b}:{b+n-1}]"
MF = "v_mfma_f32_32x32x16_bf16"
def cost_of(t):
    if t.startswith(("v_exp", "v_rcp", "v_rsq")): return 8
    if t.startswith("v_mfma"): return 32
    if t.startswith("@"): return 2
    return 4

class Gen:
    def __init__(self, name, stop=None, opts=None):
        self.a = Asm(); self.name = name; self.stop = stop; self.o = opts or {}
        self.marks = []
    def opt(self, k, d): return int(self.o.get(k, d))

    def emit(self, t):
        a = self.a
        if t.startswith("@flag "): self.flags.add(t.split()[1])
        elif t.startswith("@waitlg "): a.wait_lg(tuple(t.split()[1:]))
        elif t.startswith("@waitvm "): a.wait_vm(tuple(t.split()[1:]))
        elif "|" in t:
            txt, tag = t.split("|"); a.e(txt, tag=tag)
        else: a.e(t)
    def emits(self, L):
        for t in L: self.emit(t)
    def sa(self, dst, terms, const=0):
        L = []
        first = True
        for r, m in terms:
            tgt = dst if first else S_T3
            if m == 1:
                if first: L.append(f"s_mov_b32 s{dst}, s{r}")
                else: L.append(f"s_add_u32 s{dst}, s{dst}, s{r}")
                first = False
                continue
            if m & (m - 1) == 0: L.append(f"s_lshl_b32 s{tgt}, s{r}, {m.bit_length()-1}")
            else: L.append(f"s_mul_i32 s{tgt}, s{r}, {m}")
            if not first: L.append(f"s_add_u32 s{dst}, s{dst}, s{S_T3}")
            first = False
        if first: L.append(f"s_mov_b32 s{dst}, {const}")
        elif const: L.append(f"s_add_u32 s{dst}, s{dst}, {const}")
        return L
    def ld(self, dst, soff, imm, tag, sc1=True, n=4, vaddr=V_L16):
        op = {4: "buffer_load_dwordx4", 2: "buffer_load_dwordx2", 1: "buffer_load_dword"}[n]
        return f"{op} {dst}, v{vaddr}, s[4:7], s{soff} offen" + (f" offset:{imm}" if imm else "") + (" sc1" if sc1 else "") + f"|{tag}"
    def st(self, src, soff, imm, tag, n=4, vaddr=V_L16):
        op = {4: "buffer_store_dwordx4", 2: "buffer_store_dwordx2"}[n]
        loc = self.opt("x_local", 0) >= 1 and tag != "slab"
        return f"{op} {src}, v{vaddr}, s[4:7], s{soff} offen" + (f" offset:{imm}" if imm else "") + ("" if loc else " sc1") + f"|{tag}"
    def seq_items(self, n, dstf, cur, tagf, sc1):
        items = []
        for i in range(n):
            it = [self.ld(dstf(i), cur, (i % 4) * 1024, tagf(i), sc1)]
            if i % 4 == 3 and i != n - 1: it.append(f"s_add_u32 s{cur}, s{cur}, 4096")
            items.append(it)
        return items
    def dma_items(self, n, lds, cur, tag, sc1):
        items = []
        for i in range(n):
            it = []
            if i % 4 == 0: it += [f"s_mov_b32 m0, s{lds}", "s_nop 0"]
            it.append(f"buffer_load_dwordx4 v{V_L16}, s[4:7], s{cur} offen" + (f" offset:{(i%4)*1024}" if i % 4 else "") + (" sc1" if sc1 else "") + f" lds|{tag}")
            if i % 4 == 3 and i != n - 1: it += [f"s_add_u32 s{cur}, s{cur}, 4096", f"s_add_u32 s{lds}, s{lds}, 4096"]
            items.append(it)
        return items
    @staticmethod
    def zip2(x, y):
        out = []
        for i in range(max(len(x), len(y))):
            if i < len(x): out.append(x[i])
            if i < len(y): out.append(y[i])
        return out
    def take(self, bg, n):
        for _ in range(n):
            if bg: self.emits(bg.pop(0))
    def ldsaddr(self, off):
        if off < 65536: return V_L16, off
        assert off < 131072
        return V_L16H, off - 65536

    def weave(self, mains, fills, bg=None, bg_every=2, bg_start=0, caps=(24,), bg_phase=0):
        fi = 0
        nb = 0
        for k, m in enumerate(mains):
            m()
            cap = caps[k % len(caps)]
            c = 0
            if bg and k >= bg_start and (k - bg_start) % bg_every == bg_phase:
                it = bg.pop(0)
                self.emits(it); c += 12 if any(" lds" in t for t in it) else 8
            nv = 0
            while fi < len(fills):
                t = fills[fi]
                if t.startswith("s_") or t.startswith("@"):
                    self.emit(t); fi += 1; continue
                w = cost_of(t)
                if t.startswith("~"): w = 2
                if t.startswith("ds_read") or t.startswith("ds_write") or t.startswith("buffer_"): w = 8
                lim = cap if (w == 8 or nv * 4 != c) else min(cap, 20)
                if c + w > lim: break
                self.emit(t); fi += 1; c += w
                if w == 4: nv += 1
        while fi < len(fills):
            self.emit(fills[fi]); fi += 1
    def emits_bg(self, L, bg, n, first=0, every=10):
        k = 0
        for i, t in enumerate(L):
            if k < n and bg and i >= first and (i - first) % every == 0:
                self.emits(bg.pop(0)); k += 1
            self.emit(t)

    def mark(self, name):
        if not self.o.get("prof"): return
        if self.opt("prof", 0) == 3 and (name != "p1_start" or self.opt("single", 0) or self.opt("y", 0)): return
        a = self.a
        k = len(self.marks); self.marks.append(name)
        a.e(("s_memtime" if self.opt("prof", 0) == 2 else "s_memrealtime") + " s[36:37]\ns_waitcnt lgkmcnt(0)")
        a.lgq = []
        a.e(f"v_writelane_b32 v{V_MARK}, s36, {k}")
    def dump_marks(self):
        a = self.a
        lab = a.newlabel("dm")
        a.e("s_memrealtime s[36:37]\ns_waitcnt lgkmcnt(0)")
        a.e(f"v_writelane_b32 v{V_MARK}, s36, 63")
        a.e(f"s_cmp_lg_u32 s{S_W}, 0\ns_cbranch_scc1 {lab}")
        a.e(f"s_lshl_b32 s{S_T0}, s2, 9\ns_add_u32 s{S_T0}, s{S_T0}, {DBG}")
        a.e(f"v_lshrrev_b32 v{V_T0}, 2, v{V_L16}")
        a.e(f"v_add_u32 v{V_T1}, {L_MARK}, v{V_T0}\nds_read_b32 v{V_T1}, v{V_T1}\ns_waitcnt lgkmcnt(0)")
        a.e(f"buffer_store_dword v{V_T1}, v{V_T0}, s[4:7], s{S_T0} offen")
        a.e(f"buffer_store_dword v{V_MARK}, v{V_T0}, s[4:7], s{S_T0} offen offset:256")
        a.e("s_waitcnt vmcnt(0)")
        a.label(lab)

    def arrive(self, base, slot, tags, slot_sreg=None, barrier=True):
        a = self.a
        a.wait_vm(tags)
        if barrier: a.e("s_barrier")
        a.e(f"s_add_u32 s{S_T2}, s{base}, {slot*2048}")
        if slot_sreg is not None: a.e(f"s_lshl_b32 s{S_T3}, s{slot_sreg}, 11\ns_add_u32 s{S_T2}, s{S_T2}, s{S_T3}")
        a.e(f"v_mov_b32 v{V_T7}, 1\ns_cmp_eq_u32 s{S_W}, 0\ns_cselect_b64 exec, 1, 0")
        loc = self.opt("x_local", 0) >= 2 and base == S_FRB
        a.e_uncounted(f"buffer_atomic_add v{V_T7}, off, s[4:7], s{S_T2}" + ("" if loc else " sc1"))
        a.e("s_mov_b64 exec, -1")
    def poll(self, base, slot, target, slot_sreg=None, extra=0):
        a = self.a
        lab, lp, lx = a.newlabel("pol"), a.newlabel("plp"), a.newlabel("plx")
        a.e(f"s_add_u32 s{S_T2}, s{base}, {slot*2048 + extra}")
        if slot_sreg is not None: a.e(f"s_lshl_b32 s{S_T3}, s{slot_sreg}, 11\ns_add_u32 s{S_T2}, s{S_T2}, s{S_T3}")
        a.e(f"s_cmp_lg_u32 s{S_W}, 0\ns_cbranch_scc1 {lab}")
        vq, lq = list(a.vmq), list(a.lgq)
        dep = self.opt("pdepth", 2)
        a.e(f"s_mov_b32 s{S_CNT}, 0")
        for k in range(dep):
            a.e(f"s_mov_b64 exec, {1 << k}\nbuffer_load_dword v{V_POLL}, off, s[4:7], s{S_T2} sc1")
            if k != dep - 1: a.e(f"s_sleep {self.opt('psleep', 2)}")
        a.label(lp)
        for k in range(dep):
            a.e(f"s_waitcnt vmcnt({dep-1})\nv_readlane_b32 s{S_T3}, v{V_POLL}, {k}")
            a.e(f"s_cmp_ge_u32 s{S_T3}, {target}\ns_cbranch_scc1 {lx}")
            a.e(f"s_mov_b64 exec, {1 << k}\nbuffer_load_dword v{V_POLL}, off, s[4:7], s{S_T2} sc1")
        a.e(f"s_add_u32 s{S_CNT}, s{S_CNT}, 1\ns_cmp_lt_u32 s{S_CNT}, 200000\ns_cbranch_scc1 {lp}")
        a.label(lx)
        a.e("s_mov_b64 exec, -1")
        a.vmq, a.lgq = vq, lq
        a.label(lab)
        a.e("s_barrier")

    def apoll_issue(self, base, slot, lane, slot_sreg, dst):
        a = self.a
        a.e(f"s_lshl_b32 s{dst}, s{slot_sreg}, 11\ns_add_u32 s{dst}, s{dst}, s{base}\ns_add_u32 s{dst}, s{dst}, {slot*2048}")
        a.e(f"s_mov_b64 exec, {1 << lane}")
        a.e(f"buffer_load_dword v{V_POLL}, off, s[4:7], s{dst} sc1", tag=f"ap{lane}")
        a.e("s_mov_b64 exec, -1")
    def apoll_check(self, lane, target, dst):
        a = self.a
        ok, lp = a.newlabel("apk"), a.newlabel("apl")
        a.wait_vm(f"ap{lane}")
        a.e(f"v_readlane_b32 s{S_T3}, v{V_POLL}, {lane}\ns_cmp_ge_u32 s{S_T3}, {target}\ns_cbranch_scc1 {ok}")
        vq, lq = list(a.vmq), list(a.lgq)
        a.e(f"s_mov_b32 s{S_CNT}, 0\ns_mov_b64 exec, {1 << lane}")
        a.label(lp)
        a.e(f"buffer_load_dword v{V_POLL}, off, s[4:7], s{dst} sc1")
        a.e(f"s_add_u32 s{S_CNT}, s{S_CNT}, 1\ns_cmp_gt_u32 s{S_CNT}, 200000\ns_cbranch_scc1 {lp}_x")
        a.e(f"s_waitcnt vmcnt(0)\nv_readlane_b32 s{S_T3}, v{V_POLL}, {lane}\ns_cmp_lt_u32 s{S_T3}, {target}\ns_cbranch_scc1 {lp}")
        a.label(f"{lp}_x")
        a.e("s_waitcnt vmcnt(0)\ns_mov_b64 exec, -1")
        a.vmq, a.lgq = vq, lq
        a.label(ok)

    @staticmethod
    def bc(r): return f"v[{r & ~1}:{(r & ~1) + 1}]", r & 1
    def pk_fma_bc(self, dst, src, rb, rc, neg_a=0, neg_c=0):
        (tb, sb), (tc, sc) = self.bc(rb), self.bc(rc)
        return (f"v_pk_fma_f32 v[{dst}:{dst+1}], v[{src}:{src+1}], {tb}, {tc} op_sel:[0,{sb},{sc}] op_sel_hi:[1,{sb},{sc}]"
                f" neg_lo:[{neg_a},0,{neg_c}] neg_hi:[{neg_a},0,{neg_c}]")
    def pk_mul_bc(self, dst, src, rb):
        tb, sb = self.bc(rb)
        return f"v_pk_mul_f32 v[{dst}:{dst+1}], v[{src}:{src+1}], {tb} op_sel:[0,{sb}] op_sel_hi:[1,{sb}]"
    @staticmethod
    def pk_add(dst, x, y): return f"v_pk_add_f32 v[{dst}:{dst+1}], v[{x}:{x+1}], v[{y}:{y+1}]"

    def stats_reduce(self, b, vV, vM, t0, t1):
        L = []
        for k in (0, 1):
            L += [f"v_add_f32 v{b+k}, v{b+k}, v{b+2+k}", f"v_add_f32 v{b+4+k}, v{b+4+k}, v{b+6+k}", f"v_add_f32 v{b+8+k}, v{b+8+k}, v{b+10+k}"]
        for k in (0, 1):
            L += [f"v_add_f32 v{b+k}, v{b+k}, v{b+4+k}", f"v_add_f32 v{b+8+k}, v{b+8+k}, v{b+12+k}"]
        for k in (0, 1): L += [f"v_add_f32 v{b+k}, v{b+k}, v{b+8+k}"]
        L += [f"v_mov_b32 v{t0}, v{b}", f"v_mov_b32 v{t1}, v{b+1}", "s_nop 0",
              f"v_permlane32_swap_b32 v{t0}, v{b}", f"v_permlane32_swap_b32 v{t1}, v{b+1}",
              f"v_add_f32 v{b}, v{b}, v{t0}", f"v_add_f32 v{b+1}, v{b+1}, v{t1}",
              f"v_mul_f32 v{vM}, {hexf(1.0/D)}, v{b}",
              f"v_mul_f32 v{t1}, {hexf(1.0/D)}, v{b+1}",
              f"v_mul_f32 v{t0}, v{vM}, v{vM}",
              f"v_sub_f32 v{vV}, v{t1}, v{t0}",
              f"v_max_f32 v{vV}, 0, v{vV}",
              f"v_add_f32 v{vV}, {hexf(1e-5)}, v{vV}"]
        return L

    def x29(self, dst, vM, t0):
        return [f"v_cvt_pk_bf16_f32 v{t0}, -v{vM}, -v{vM}",
                f"v_and_b32 v{dst+1}, 0xffff0000, v{t0}",
                f"v_add_f32 v{dst+1}, v{dst+1}, v{vM}",
                f"v_mov_b32 v{dst+2}, 0", f"v_mov_b32 v{dst+3}, 0",
                f"v_cvt_pk_bf16_f32 v{dst+1}, -v{dst+1}, -v{dst+1}",
                f"v_cndmask_b32 v{dst}, v{t0}, v{dst+2}, s[{S_UP}:{S_UP+1}]",
                f"v_cndmask_b32 v{dst+1}, v{dst+1}, v{dst+2}, s[{S_UP}:{S_UP+1}]"]

    def softmax(self, R, P, t):
        mx, mn, u, w, bp, bn, bpm, bnm = [t + k for k in range(8)]
        L = [f"v_max3_f32 v{mx}, v{R}, v{R+1}, v{R+2}", f"v_min3_f32 v{mn}, v{R}, v{R+1}, v{R+2}",
             f"v_max3_f32 v{u}, v{R+3}, v{R+4}, v{R+5}", f"v_min3_f32 v{w}, v{R+3}, v{R+4}, v{R+5}"]
        for k in (6, 10):
            L += [f"v_max3_f32 v{mx}, v{mx}, v{R+k}, v{R+k+1}", f"v_min3_f32 v{mn}, v{mn}, v{R+k}, v{R+k+1}",
                  f"v_max3_f32 v{u}, v{u}, v{R+k+2}, v{R+k+3}", f"v_min3_f32 v{w}, v{w}, v{R+k+2}, v{R+k+3}"]
        L += [f"v_max3_f32 v{mx}, v{mx}, v{R+14}, v{R+15}", f"v_min3_f32 v{mn}, v{mn}, v{R+14}, v{R+15}",
              f"v_max_f32 v{mx}, v{mx}, v{u}", f"v_min_f32 v{mn}, v{mn}, v{w}",
              f"v_mov_b32 v{u}, v{mx}", f"v_mov_b32 v{w}, v{mn}",
              f"v_mov_b32 v{bpm}, {hexf(1e30)}", f"v_mov_b32 v{bnm}, {hexf(-1e30)}",
              f"v_permlane32_swap_b32 v{u}, v{mx}", f"v_permlane32_swap_b32 v{w}, v{mn}",
              f"v_max_f32 v{mx}, v{mx}, v{u}", f"v_min_f32 v{mn}, v{mn}, v{w}",
              f"v_mul_f32 v{bp}, v{V_C}, v{mx}", f"v_mul_f32 v{bn}, v{V_C}, v{mn}",
              f"v_cndmask_b32 v{bpm}, v{bp}, v{bpm}, s[{S_UP}:{S_UP+1}]",
              f"v_cndmask_b32 v{bnm}, v{bn}, v{bnm}, s[{S_UP}:{S_UP+1}]"]
        for g in range(4):
            for k in (0, 2): L.append(self.pk_fma_bc(P + 4*g + k, R + 4*g + k, V_C, bpm if g == 3 else bp, 0, 1))
            for k in (0, 2): L.append(self.pk_fma_bc(R + 4*g + k, R + 4*g + k, V_C, bnm if g == 3 else bn, 1, 0))
        for g in range(4):
            for k in range(4): L.append(f"v_exp_f32 v{P+4*g+k}, v{P+4*g+k}")
            for k in range(4): L.append(f"v_exp_f32 v{R+4*g+k}, v{R+4*g+k}")
            if g == 1: L += [self.pk_add(mx, P, P + 2), self.pk_add(u, R, R + 2)]
            elif g >= 2:
                for k in (0, 2): L += [self.pk_add(mx, mx, P + 4*(g-1) + k), self.pk_add(u, u, R + 4*(g-1) + k)]
        for k in (0, 2): L += [self.pk_add(mx, mx, P + 12 + k), self.pk_add(u, u, R + 12 + k)]
        L += [f"v_add_f32 v{mx}, v{mx}, v{mn}", f"v_add_f32 v{u}, v{u}, v{w}",
              f"v_mov_b32 v{mn}, v{mx}", f"v_mov_b32 v{w}, v{u}", "s_nop 0",
              f"v_permlane32_swap_b32 v{mn}, v{mx}", f"v_permlane32_swap_b32 v{w}, v{u}",
              f"v_add_f32 v{mx}, v{mx}, v{mn}", f"v_add_f32 v{u}, v{u}, v{w}",
              f"v_rcp_f32 v{mx}, v{mx}", f"v_rcp_f32 v{u}, v{u}"]
        for k in range(0, 16, 2): L.append(self.pk_mul_bc(P + k, P + k, mx))
        for k in range(0, 16, 2): L.append(self.pk_mul_bc(R + k, R + k, u))
        for d in range(8): L.append(f"v_cvt_pk_bf16_f32 v{P+d}, v{P+2*d}, v{P+2*d+1}")
        for d in range(8): L.append(f"v_cvt_pk_bf16_f32 v{R+d}, v{R+2*d}, v{R+2*d+1}")
        return L

    def phi_apply(self, R, tb):
        L = [f"v_cvt_pk_bf16_f32 v{tb+d}, v{R+2*d}, v{R+2*d+1}" for d in range(8)]
        L.append(f"{MF} {vr(R,16)}, {ar(A_PHI)}, {vr(tb)}, 0")
        L.append(f"{MF} {vr(R,16)}, {ar(A_PHI+4)}, {vr(tb+4)}, {vr(R,16)}")
        return L

    def w3_stream(self):
        g0, g1 = S_G[0], S_G[1]
        pre = self.sa(g0, [(S_JS, 4 * 2 * KW * KB), (S_W, 2 * KW * KB)], WGU) + [f"s_add_u32 s{g1}, s{g0}, {KW*KB}"]
        its = self.zip2(self.seq_items(KW, lambda s: ar(8*s), g0, lambda s: f"w3_{s}", False),
                        self.seq_items(KW, lambda s: ar(8*s+4), g1, lambda s: f"w3_{s}", False))
        self.emits(pre)
        return its
    def wo_stream(self):
        its = []
        for sl in range(2):
            c = S_G[2 + sl]
            pre = [f"s_xor_b32 s{c}, s{S_NT}, {sl}"] + [f"s_lshl_b32 s{c}, s{c}, 15"] + self.sa(S_T0, [(S_CB, 2 * 32 * KB), (S_W, 8 * KB)], WO) + [f"s_add_u32 s{c}, s{c}, s{S_T0}"]
            x = self.seq_items(8, lambda i: vr(16 + 32 * sl + 4 * i), c, lambda i: "wo", False)
            self.emits(pre)
            its.append(x)
        return self.zip2(its[0], its[1])
    W4A = 128
    def w4_reg(self, i, sl):
        return vr(self.W4A + 8*i + 4*sl) if i < 16 else ar(8*(i - 16) + 4*sl)
    def kseg(self, dst, late):
        if late: return self.sa(dst, [(S_TH, 56), (S_W, 14)], 0)
        return self.sa(dst, [(S_W, 14)], 56) + [f"s_mul_i32 s{S_T3}, s{S_TH}, 56", f"s_sub_u32 s{dst}, s{dst}, s{S_T3}"]
    def w4_stream(self):
        out = []
        for late in (0, 1):
            its = []
            for sl in range(2):
                c = S_G[2 * late + sl]
                pre = self.kseg(S_T0, late) + [f"s_xor_b32 s{c}, s{S_NT}, {sl}", f"s_mul_i32 s{c}, s{c}, 112", f"s_add_u32 s{c}, s{c}, s{S_T0}"]
                pre += [f"s_mul_i32 s{S_T0}, s{S_CB}, 224", f"s_add_u32 s{c}, s{c}, s{S_T0}", f"s_lshl_b32 s{c}, s{c}, 10", f"s_add_u32 s{c}, s{c}, {WD}"]
                x = self.seq_items(14, lambda i: self.w4_reg(14 * late + i, sl), c, lambda i: f"w4_{14*late+i}", False)
                self.emits(pre)
                its.append(x)
            out += self.zip2(its[0], its[1])
        return out
    def p1w_items(self, part):
        c, l = S_G[4], S_G[5]
        its = self.dma_items(8, l, c, "w1" + "qkv"[part], False)
        pre = self.sa(l, [(S_W, 7 * KB)], L_W1 + part * KW * KB) + self.sa(c, [(S_J, 3 * KW * KB), (S_W, 7 * KB)], WQKV + part * KW * KB)
        its[0] = pre + its[0]
        return its

    def prologue(self):
        a, n = self.a, self.name
        a.label(n)
        a.e(f"s_cmp_lt_u32 s2, 256\ns_cbranch_scc1 {n}_go\ns_endpgm")
        a.label(f"{n}_go")
        Y = self.opt("y", 0)
        if Y:
            import start4
            self.st4 = start4.Start(self)
            a.e("s_load_dwordx16 s[64:79], s[0:1], 0\ns_load_dwordx4 s[80:83], s[0:1], 64\ns_load_dwordx2 s[4:5], s[0:1], 80")
            if self.o.get("prof"): a.e("s_memrealtime s[84:85]")
        elif self.opt("single", 0):
            import prep3
            a.e("s_load_dwordx16 s[64:79], s[0:1], 0\ns_load_dwordx4 s[80:83], s[0:1], 64\ns_load_dwordx2 s[4:5], s[0:1], 80")
            if self.o.get("prof"): a.e("s_memrealtime s[84:85]")
            prep3.emit_prep(a, n, self.o)
            a.e("s_mov_b32 s8, s80\ns_mov_b32 s9, s81")
        else:
            a.e("s_load_dwordx2 s[4:5], s[0:1], 80\ns_load_dwordx2 s[8:9], s[0:1], 64")
        if self.opt("pf_main", 0):
            nl = self.opt("pf_lines", 16)
            a.e("s_getpc_b64 s[60:61]")
            a.label(f"{n}_pc")
            a.e(f"s_sub_u32 s60, s60, {n}_pc-{n}\ns_subb_u32 s61, s61, 0")
            a.e(f"s_lshr_b32 s62, s2, 3\ns_and_b32 s62, s62, 31\ns_mul_i32 s62, s62, {nl*64}\ns_min_u32 s62, s62, {n}_end-{n}-{nl*64}\ns_add_u32 s60, s60, s62\ns_addc_u32 s61, s61, 0")
            for i in range(nl): a.e(f"s_load_dwordx16 s[64:79], s[60:61], {i*64}")
        a.e(f"s_mov_b32 s6, {WS_USED}\ns_mov_b32 s7, 0x20000\ns_mov_b32 s10, {S*D*2}\ns_mov_b32 s11, 0x20000")
        if self.opt("rbmap", 0):
            a.e(f"s_and_b32 s{S_T2}, s2, 15\ns_lshr_b32 s{S_T3}, s2, 4")
            a.e(f"s_lshr_b32 s{S_T0}, s{S_T2}, 2\ns_lshl_b32 s{S_T0}, s{S_T0}, 1\ns_lshr_b32 s{S_T1}, s{S_T3}, 3\ns_add_u32 s{S_T0}, s{S_T0}, s{S_T1}")
            a.e(f"s_and_b32 s{S_T1}, s{S_T3}, 7\ns_lshl_b32 s{S_T1}, s{S_T1}, 2\ns_and_b32 s{S_T2}, s{S_T2}, 3\ns_add_u32 s{S_T1}, s{S_T1}, s{S_T2}")
        elif self.opt("antimap", 0): a.e(f"s_lshr_b32 s{S_T0}, s2, 5\ns_and_b32 s{S_T1}, s2, 31")
        else: a.e(f"s_and_b32 s{S_T0}, s2, 7\ns_lshr_b32 s{S_T1}, s2, 3")
        if self.opt("map8", 0):
            a.e(f"s_and_b32 s{S_RB}, s{S_T1}, 15\ns_lshr_b32 s{S_T1}, s{S_T1}, 4\ns_lshl_b32 s{S_J}, s{S_T0}, 1\ns_add_u32 s{S_J}, s{S_J}, s{S_T1}")
            a.e(f"s_lshr_b32 s{S_TH}, s{S_J}, 3\ns_and_b32 s{S_Q}, s{S_J}, 7")
        elif self.opt("map4", 0):
            a.e(f"s_and_b32 s{S_T2}, s{S_T0}, 3\ns_lshr_b32 s{S_T0}, s{S_T0}, 2\ns_lshl_b32 s{S_T0}, s{S_T0}, 3")
            a.e(f"s_and_b32 s{S_RB}, s{S_T1}, 7\ns_add_u32 s{S_RB}, s{S_RB}, s{S_T0}\ns_lshr_b32 s{S_T1}, s{S_T1}, 3")
            a.e(f"s_lshr_b32 s{S_TH}, s{S_T2}, 1\ns_and_b32 s{S_T3}, s{S_T2}, 1\ns_lshl_b32 s{S_T3}, s{S_T3}, 2\ns_add_u32 s{S_Q}, s{S_T3}, s{S_T1}")
            a.e(f"s_lshl_b32 s{S_J}, s{S_TH}, 3\ns_add_u32 s{S_J}, s{S_J}, s{S_Q}")
        else:
            a.e(f"s_and_b32 s{S_TH}, s{S_T0}, 1\ns_lshr_b32 s{S_T0}, s{S_T0}, 1\ns_lshl_b32 s{S_T0}, s{S_T0}, 2")
            a.e(f"s_and_b32 s{S_RB}, s{S_T1}, 3\ns_add_u32 s{S_RB}, s{S_RB}, s{S_T0}")
            a.e(f"s_lshr_b32 s{S_Q}, s{S_T1}, 2\ns_lshl_b32 s{S_J}, s{S_TH}, 3\ns_add_u32 s{S_J}, s{S_J}, s{S_Q}")
        a.e(f"s_min_u32 s{S_CB}, s{S_Q}, 6\ns_mul_i32 s{S_JS}, s{S_TH}, 7\ns_add_u32 s{S_JS}, s{S_JS}, s{S_CB}")
        a.e(f"s_lshl_b32 s{S_M}, s{S_TH}, 1\ns_sub_u32 s{S_M}, 2, s{S_M}")
        a.e(f"v_lshrrev_b32 v{V_T0}, 6, v0\nv_and_b32 v{V_T1}, 63, v0\nv_lshlrev_b32 v{V_L16}, 4, v{V_T1}")
        a.e(f"v_readfirstlane_b32 s{S_W}, v{V_T0}")
        a.e(f"v_add_u32 v{V_L16H}, 0x10000, v{V_L16}")
        a.e(f"v_and_b32 v{V_T2}, 31, v0\nv_bfe_u32 v{V_T3}, v0, 5, 1")
        a.e(f"v_lshlrev_b32 v{V_I8}, 3, v{V_T2}")
        a.e(f"v_mul_u32_u24 v{V_STL}, 1792, v{V_T3}\nv_add_u32 v{V_STL}, v{V_STL}, v{V_I8}")
        a.e(f"s_lshr_b32 s{S_TT}, s{S_W}, 1\ns_and_b32 s{S_NT}, s{S_W}, 1")
        a.e(f"s_mov_b32 s{S_SEL_LO}, 0x3f80\ns_mov_b32 s{S_SEL_HI}, 0x3f800000")
        a.e(f"s_mov_b32 s{S_UP}, 0\ns_mov_b32 s{S_UP+1}, -1")
        a.e(f"s_mov_b32 s{S_L}, 0")
        self.emits(self.sa(S_TILE, [(S_RB, 4), (S_TH, 2), (S_TT, 1)]))
        self.emits(self.sa(S_N, [(S_CB, 2), (S_NT, 1)]))
        self.emits(self.sa(S_XT, [(S_RB, 4), (S_W, 1)]))
        if self.o.get("prof"):
            a.e(f"v_mov_b32 v{V_MARK}, 0")
            if self.opt("single", 0) and not Y:
                k = len(self.marks); self.marks.append("start")
                a.e(f"v_writelane_b32 v{V_MARK}, s84, {k}")
                for nm, r in (("t_ldiss", 94), ("t_landed", 92), ("t_issued", 86), ("t_drained", 88), ("t_zeroseen", 90)):
                    k = len(self.marks); self.marks.append(nm)
                    a.e(f"v_writelane_b32 v{V_MARK}, s{r}, {k}")
                self.mark("prepdone")
        a.e("s_waitcnt lgkmcnt(0)")
        if Y:
            R = dict(W=S_W, J=S_J, L16=V_L16, I8=V_I8, A_PHI=A_PHI, SEL_LO=S_SEL_LO, SEL_HI=S_SEL_HI)
            self.R4 = R
            self.st4.lane_consts(S_W)
            self.st4.front(R)
        else:
            for it in self.p1w_items(1) + self.p1w_items(2): self.emits(it)
            self.emits(self.sa(S_T0, [(S_J, 2 * KB)], PHI))
            for it in self.seq_items(2, lambda i: ar(A_PHI + 4*i), S_T0, lambda i: "phi", False): self.emits(it)
            if not self.opt("lateq", 0):
                self.emits(self.sa(S_T0, [(S_TILE, 28 * KB), (S_N, 2 * KB)], X))
                for it in self.seq_items(2, lambda i: ar(A_RES + 4*i), S_T0, lambda i: "res", False): self.emits(it)
                for it in self.p1w_items(0): self.emits(it)
        a.e(f"v_cmp_eq_u32 vcc, 28, v{V_T2}\nv_mov_b32 v{V_T4}, 1.0\nv_mov_b32 v{V_ONE}, 0\nv_cndmask_b32 v{V_ONE}, v{V_ONE}, v{V_T4}, vcc")
        a.e(f"v_lshlrev_b32 v{V_T3}, 2, v{V_T3}\nv_sub_u32 v{V_T2}, v{V_T2}, v{V_T3}")
        a.e(f"v_mov_b32 v{V_T4}, 0x3f80\nv_mov_b32 v{V_T5}, 0x3f800000")
        for s in range(2):
            for d in range(4):
                j = 2 * d
                c = 16 * s + 8 * (j // 4) + (j % 4)
                a.e(f"v_mov_b32 v{V_T6}, 0")
                a.e(f"v_cmp_eq_u32 vcc, {c}, v{V_T2}\nv_cndmask_b32 v{V_T6}, v{V_T6}, v{V_T4}, vcc")
                a.e(f"v_cmp_eq_u32 vcc, {c+1}, v{V_T2}\nv_cndmask_b32 v{V_T6}, v{V_T6}, v{V_T5}, vcc")
                a.e(f"v_accvgpr_write_b32 a{A_ID+4*s+d}, v{V_T6}")
        if Y:
            self.st4.xblock(self.R4)
            self.st4.bg_issue(self.R4)
            a.e(f"s_mov_b32 s8, s80\ns_mov_b32 s9, s81\ns_mov_b32 s10, {S*D*2}\ns_mov_b32 s11, 0x20000")
            self.st4.self_center(self.R4)
            self.st4.ts(86)
            if self.o.get("prof"):
                for nm, r in (("start", 84), ("t_ldiss", 94), ("t_landed", 92), ("t_arr", 90), ("t_center", 86)):
                    k = len(self.marks); self.marks.append(nm)
                    a.e(f"v_writelane_b32 v{V_MARK}, s{r}, {k}")
            a.vmq = []; a.lgq = []

    def layer_setup(self):
        self.emits(self.sa(S_FRB, [(S_L, NSYNC * 2048), (S_RB, 128)], FLAGS))
        self.emits(self.sa(S_FJ, [(S_L, NSYNC * 2048), (S_J, 128)], FLAGS))

    def p1(self):
        a = self.a
        XF, RK, RV, RQ, RING, RA, RB, TB = 16, 128, 144, 160, 176, 208, 224, 240
        RS, KR, QRING = 160, 176, 192
        LA = self.opt("la1", 6)
        self.mark("p1_start")
        self.emits(self.sa(S_A, [(S_XT, 28 * KB), (S_L, 2 * XSZ)], X))
        xi = self.seq_items(28, lambda s: vr(XF + 4*s), S_A, lambda s: f"x{s}", True)
        self.take(xi, 2)
        self.emits(self.sa(S_B, [(S_XT, 3584), (S_L, 2 * STSZ)], ST))
        for k in range(7): self.emit(self.ld(vr(RA + 2*k, 2), S_B, k * 256, "st", n=2, vaddr=V_STL))
        self.take(xi, LA - 2)
        Y = self.opt("y", 0)
        assert not Y
        if Y:
            lab = a.newlabel("l0only")
            a.e(f"s_cmp_lg_u32 s{S_L}, 0\ns_cbranch_scc1 {lab}")
            vq, lq, vt = list(a.vmq), list(a.lgq), a.vm_total
            self.st4.bg_finish(self.R4, len(a.vmq))
            self.emits(self.sa(S_T0, [(S_TILE, 28 * KB), (S_N, 2 * KB)], X))
            for it in self.seq_items(2, lambda i: ar(A_RES + 4*i), S_T0, lambda i: "res", True): self.emits(it)
            a.vmq, a.lgq, a.vm_total = vq, lq, vt
            a.label(lab)
            self.vm_mark = a.vm_total
            a.e("s_waitcnt lgkmcnt(0)")
        a.wait_vm(("w1k", "w1v", "phi", "res"))
        a.e("s_barrier")
        self.mark("p1_wready")
        X29 = 248
        self.flags = set()
        def xreg(s):
            if s == 28:
                assert "x29" in self.flags
                return X29
            return XF + 4 * s
        def rdA(s):
            sl = RING + 8 * (s % 4)
            r, of = self.ldsaddr(L_W1 + (KW + s) * KB); a.e(f"ds_read_b128 {vr(sl)}, v{r} offset:{of}", tag=f"a{s}")
            r, of = self.ldsaddr(L_W1 + (2 * KW + s) * KB); a.e(f"ds_read_b128 {vr(sl+4)}, v{r} offset:{of}", tag=f"a{s}")
        for s in range(3): rdA(s)
        def mk(s):
            def f():
                if s + 3 < KW: rdA(s + 3)
                self.take(xi, 1)
                if Y and s == self.opt("bgarr", 14):
                    a.e(f"s_waitcnt vmcnt({min(63, a.vm_total - self.vm_mark)})\ns_barrier")
                    a.e(f"s_and_b32 s{S_T2}, s2, 15\ns_lshl_b32 s{S_T2}, s{S_T2}, 7\ns_add_u32 s{S_T2}, s{S_T2}, {PFLAG + 2048}")
                    a.e(f"v_mov_b32 v{V_T7}, 1\ns_cmp_eq_u32 s{S_W}, 0\ns_cselect_b64 exec, 1, 0")
                    a.e_uncounted(f"buffer_atomic_add v{V_T7}, off, s[4:7], s{S_T2} sc1")
                    a.e("s_mov_b64 exec, -1")
                a.wait_both(f"x{s}", f"a{s}")
                sl = RING + 8 * (s % 4)
                a.e(f"{MF} {vr(RK,16)}, {vr(sl)}, {vr(xreg(s))}, {vr(RK,16) if s else 0}")
            return f
        def mv(s):
            def f():
                sl = RING + 8 * (s % 4)
                a.e(f"{MF} {vr(RV,16)}, {vr(xreg(s))}, {vr(sl+4)}, {vr(RV,16) if s else 0}")
            return f
        mains = []
        for s in range(KW): mains += [mk(s), mv(s)]
        fills = ["@waitvm st"] + self.stats_reduce(RA, V_T0, V_T1, V_T2, V_T3) + self.x29(X29, V_T1, V_T2) + ["@flag x29"]
        fills += [f"v_rsq_f32 v{V_T0}, v{V_T0}", f"v_lshrrev_b32 v{V_T1}, 1, v{V_I8}"]
        fills += self.sa(S_T0, [(S_W, 128)], L_SCR)
        fills += [f"v_add_u32 v{V_T1}, s{S_T0}, v{V_T1}", f"ds_write_b32 v{V_T1}, v{V_T0}|scw",
                  f"v_mul_f32 v{V_C}, {hexf(1.4426950408889634)}, v{V_T0}",
                  f"v_lshrrev_b32 v{V_T1}, 5, v{V_L16}", f"v_and_b32 v{V_T1}, 16, v{V_T1}",
                  f"v_add_u32 v{V_T1}, s{S_T0}, v{V_T1}", "@waitlg scw"]
        fills += [f"ds_read_b128 {vr(RS+4*g)}, v{V_T1} offset:{g*32}|rs" for g in range(4)]
        self.weave(mains, fills, caps=(20, 0))
        self.mark("p1_loopA")
        if self.opt("lateq", 0):
            lab = a.newlabel("lq")
            a.e(f"s_cmp_lg_u32 s{S_L}, 0\ns_cbranch_scc1 {lab}")
            vq, lq, vt = list(a.vmq), list(a.lgq), a.vm_total
            for it in self.p1w_items(0): self.emits(it)
            self.emits(self.sa(S_T0, [(S_TILE, 28 * KB), (S_N, 2 * KB)], X))
            for it in self.seq_items(2, lambda i: ar(A_RES + 4*i), S_T0, lambda i: "res", False): self.emits(it)
            a.vmq, a.lgq, a.vm_total = vq, lq, vt
            a.label(lab)
            self.lq_mark = a.vm_total
        w3 = self.w3_stream()
        vch = ["@waitlg rs"] + [f"v_pk_fma_f32 v[{RV+r}:{RV+r+1}], v[{RV+r}:{RV+r+1}], v[{RS+r}:{RS+r+1}], v[4:5] op_sel:[0,0,1] op_sel_hi:[1,1,1]" for r in range(0, 16, 2)]
        vch += [f"v_cvt_pk_bf16_f32 v{RV+d}, v{RV+2*d}, v{RV+2*d+1}" for d in range(8)]
        nk = self.opt("bg_k", 8) if not Y else 0
        if Y:
            a.e(f"v_lshlrev_b32 v249, 3, v{V_L16}\ns_mov_b32 s{S_F}, {PFLAG + 2048}\ns_mov_b64 exec, 0xffff")
            a.e(f"buffer_load_dword v248, v249, s[4:7], s{S_F} offen sc1", tag="dq")
            a.e("s_mov_b64 exec, -1")
        self.take(w3, min(nk, self.opt("bg_k0", 4)))
        self.emits(self.phi_apply(RK, TB))
        self.emits(vch)
        self.emits_bg(self.softmax(RK, RA, V_T0), w3, nk - min(nk, self.opt("bg_k0", 4)), first=0, every=self.opt("bg_k_every", 6))
        self.mark("p1_kepi")
        a.e(f"{MF} {vr(RB,16)}, {vr(RA)}, {ar(A_ID)}, 0")
        a.e(f"{MF} {vr(RB,16)}, {vr(RA+4)}, {ar(A_ID+4)}, {vr(RB,16)}")
        a.e(f"{MF} {vr(RA,16)}, {vr(RK)}, {ar(A_ID)}, 0")
        a.e(f"{MF} {vr(RA,16)}, {vr(RK+4)}, {ar(A_ID+4)}, {vr(RA,16)}")
        self.emits(self.sa(S_T0, [(S_W, 2048)], L_KVR) + [f"v_add_u32 v{V_T0}, s{S_T0}, v{V_L16}"])
        self.emits(self.sa(S_T0, [(S_W, 8192)], L_KVR) + [f"v_add_u32 v{V_T1}, s{S_T0}, v{V_L16}"])
        self.emits(self.sa(S_C, [(S_J, 4 * 16 * KB), (S_W, 16 * KB), (S_L, SLABSZ)], SLAB))
        for d in range(8): a.e(f"v_cvt_pk_bf16_f32 v{RB+d}, v{RB+2*d}, v{RB+2*d+1}")
        a.e(f"{MF} {vr(RK,16)}, {vr(RB)}, {vr(RV)}, 0")
        a.e(f"{MF} {vr(RK,16)}, {vr(RB+4)}, {vr(RV+4)}, {vr(RK,16)}")
        for d in range(8): a.e(f"v_cvt_pk_bf16_f32 v{RA+d}, v{RA+2*d}, v{RA+2*d+1}")
        a.e(f"{MF} {vr(RB,16)}, {vr(RA)}, {vr(RV)}, 0")
        a.e(f"{MF} {vr(RB,16)}, {vr(RA+4)}, {vr(RV+4)}, {vr(RB,16)}")
        self.emits(self.sa(S_D, [(S_RB, KB), (S_C, 1)]))
        for t, R in ((0, RK), (1, RB)):
            for s in range(2):
                for g in range(2):
                    a.e(f"ds_write_b128 v{V_T0}, {vr(R+8*s+4*g)} offset:{(2*t+s)*8192+g*1024}", tag="kw")
        a.wait_vm("w1q")
        if self.opt("lateq", 0): a.e(f"s_waitcnt vmcnt({min(63, a.vm_total - self.lq_mark)})")
        a.e("s_waitcnt lgkmcnt(0)\ns_barrier")
        for ws in range(4):
            for g in range(2):
                a.e(f"ds_read_b128 {vr(KR+8*ws+4*g)}, v{V_T1} offset:{(ws*2+g)*1024}", tag=f"kr{ws}")
        def rdB(s):
            sl = QRING + 4 * (s % 4) + 16
            r, of = self.ldsaddr(L_W1 + s * KB); a.e(f"ds_read_b128 {vr(sl)}, v{r} offset:{of}", tag=f"b{s}")
        a.wait_lg("kr1")
        for r in range(0, 8, 2): a.e(self.pk_add(KR + r, KR + r, KR + 8 + r))
        a.wait_lg("kr3")
        for r in range(0, 8, 2): a.e(self.pk_add(KR + 16 + r, KR + 16 + r, KR + 24 + r))
        for r in range(0, 8, 2): a.e(self.pk_add(KR + r, KR + r, KR + 16 + r))
        for d in range(4): a.e(f"v_cvt_pk_bf16_f32 v{KR+d}, v{KR+2*d}, v{KR+2*d+1}")
        self.emit(self.st(vr(KR), S_D, 0, "slab"))
        self.mark("p1_slab")
        if Y: self.done_check()
        for s in range(3): rdB(s)
        ARR = self.opt("arr1", 20)
        def mq(s):
            def f():
                if s == ARR: self.arrive(S_FJ, F_S1, "slab")
                if s + 3 < KW: rdB(s + 3)
                a.wait_lg(f"b{s}")
                sl = QRING + 4 * (s % 4) + 16
                a.e(f"{MF} {vr(RQ,16)}, {vr(sl)}, {vr(xreg(s))}, {vr(RQ,16) if s else 0}")
            return f
        self.weave([mq(s) for s in range(KW)], [], bg=w3, bg_every=self.opt("bg_q_every", 2))
        self.mark("p1_qpass")
        wo = self.wo_stream()
        qe = self.phi_apply(RQ, TB) + self.softmax(RQ, RA, V_T0)
        self.slab_items = None
        if self.opt("early_slab", 0):
            c1 = self.opt("es_cut", 40)
            a.e(f"s_mov_b32 s{S_E}, 0")
            self.apoll_issue(S_FJ, F_S1, 10, S_E, S_F)
            self.emits_bg(qe[:c1], wo, self.opt("es_wo0", 3), first=2, every=12)
            self.apoll_check(10, 16, S_F)
            self.mark("S1_poll")
            sl = self.seq_items(16, lambda i: vr(80 + 4*i), S_C, lambda i: f"sl{i}", True)
            self.emits_bg(qe[c1:], sl, 16, first=0, every=self.opt("es_every", 5))
            self.take(sl, len(sl))
            self.slab_items = True
        else:
            cut = self.opt("ap1", 70)
            self.emits_bg(qe[:cut], wo, self.opt("bg_qe", 6), first=0, every=11)
            if self.opt("async1", 1):
                a.e(f"s_mov_b32 s{S_E}, 0")
                self.apoll_issue(S_FJ, F_S1, 10, S_E, S_F)
            self.emits(qe[cut:])
        self.mark("p1_qepi")
        self.RA, self.RQ, self.w3, self.wo = RA, RQ, w3, wo

    def done_check(self):
        a = self.a
        ok, lp = a.newlabel("dok"), a.newlabel("dlp")
        a.wait_vm("dq")
        a.e(f"s_mov_b64 exec, 0xffff\nv_cmp_gt_u32 vcc, 16, v248\ns_cbranch_vccz {ok}")
        vq, lq, vt = list(a.vmq), list(a.lgq), a.vm_total
        a.e(f"s_mov_b32 s{S_CNT}, 0\ns_mov_b32 s{S_F}, {PFLAG + 2048}")
        a.label(lp)
        a.e(f"buffer_load_dword v248, v249, s[4:7], s{S_F} offen sc1")
        a.e(f"s_add_u32 s{S_CNT}, s{S_CNT}, 1\ns_cmp_gt_u32 s{S_CNT}, 200000\ns_cbranch_scc1 {lp}_x")
        a.e(f"s_waitcnt vmcnt(0)\nv_cmp_gt_u32 vcc, 16, v248\ns_cbranch_vccnz {lp}")
        a.label(f"{lp}_x")
        a.e("s_waitcnt vmcnt(0)")
        a.vmq, a.lgq, a.vm_total = vq, lq, vt
        a.label(ok)
        a.e("s_mov_b64 exec, -1")

    def p2a(self):
        a = self.a
        RA, RQ = self.RA, self.RQ
        SL, AC, KA, RB, TB = 80, 176, 188, 224, 240
        if not self.slab_items:
            if self.opt("async1", 1): self.apoll_check(10, 16, S_F)
            else: self.poll(S_FJ, F_S1, 16)
            self.mark("S1_poll")
            for it in self.seq_items(16, lambda i: vr(SL + 4*i), S_C, lambda i: f"sl{i}", True): self.emits(it)
        nwo = min(len(self.wo), self.opt("wo_2a", 16))
        bg2 = [self.wo.pop(0) for _ in range(nwo)] + [self.w3.pop(0) for _ in range(min(len(self.w3), self.opt("bg_2a", 0)))]
        for i in range(16):
            if i >= self.opt("bg_2a_first", 4) and bg2: self.emits(bg2.pop(0))
            a.wait_vm(f"sl{i}")
            for d in range(4):
                a.e(f"v_dot2_f32_bf16 v{AC+2*d}, v{SL+4*i+d}, s{S_SEL_LO}, {'v%d' % (AC+2*d) if i else 0}")
                a.e(f"v_dot2_f32_bf16 v{AC+2*d+1}, v{SL+4*i+d}, s{S_SEL_HI}, {'v%d' % (AC+2*d+1) if i else 0}")
        self.take(bg2, len(bg2))
        self.emits(self.sa(S_T0, [(S_W, KB)], L_KVA) + [f"v_add_u32 v{V_T0}, s{S_T0}, v{V_L16}"])
        self.emits(self.sa(S_A, [(S_XT, 32 * KB), (S_J, 2 * KB), (S_L, OSZ)], O))
        for d in range(4): a.e(f"v_cvt_pk_bf16_f32 v{AC+8+d}, v{AC+2*d}, v{AC+2*d+1}")
        a.e(f"ds_write_b128 v{V_T0}, {vr(AC+8)}")
        a.e("s_waitcnt lgkmcnt(0)\ns_barrier")
        for p in range(4):
            r, of = self.ldsaddr(L_KVA + p * KB)
            a.e(f"ds_read_b128 {vr(KA+4*p)}, v{r} offset:{of}", tag=f"ka{p}")
        Bs = [RA, RA + 4, RQ, RQ + 4]
        for p in range(4):
            a.wait_lg(f"ka{p}")
            a.e(f"{MF} {vr(RB,16)}, {vr(KA+4*p)}, {vr(Bs[p])}, {vr(RB,16) if p else 0}")
        a.e(f"v_mov_b32 v{V_T0}, v{RB+12}\nv_mov_b32 v{V_T1}, v{RB+12}")
        a.e(f"v_permlane32_swap_b32 v{V_T0}, v{V_T1}")
        a.e(f"v_add_f32 v{V_T1}, {hexf(1e-6)}, v{V_T1}\nv_rcp_f32 v{V_T1}, v{V_T1}")
        for r in range(0, 16, 2): a.e(self.pk_mul_bc(RB + r, RB + r, V_T1))
        for d in range(8): a.e(f"v_cvt_pk_bf16_f32 v{TB+d}, v{RB+2*d}, v{RB+2*d+1}")
        self.emit(self.st(vr(TB), S_A, 0, "ost")); self.emit(self.st(vr(TB+4), S_A, 1024, "ost"))
        self.mark("p2a_ost")
        self.arrive(S_FRB, F_S2, "ost")
        self.take(self.wo, len(self.wo))
        self.take(self.w3, self.opt("bg_s2", 0))
        self.mark("S2_arr")

    def red_addr(self):
        L = []
        for u in range(1, 4):
            L += [f"s_xor_b32 s{S_T0}, s{S_W}, {u}", f"s_mul_i32 s{S_T0}, s{S_T0}, 12288", f"s_add_u32 s{S_T0}, s{S_T0}, {L_RED+(u-1)*4096}",
                  f"v_add_u32 v{V_T0+u}, s{S_T0}, v{V_L16}"]
        L += self.sa(S_T0, [(S_W, 12288)], L_RED) + [f"v_add_u32 v{V_T0}, s{S_T0}, v{V_L16}"]
        return L
    def red_write(self, ACC, u):
        return [f"ds_write_b128 v{V_T0+u}, {vr(ACC+16*u+4*g)} offset:{g*1024}|rw" for g in range(4)]
    def res_unpack(self, TR):
        L = [f"v_accvgpr_read_b32 v{TR+16+d}, a{A_RES+d}" for d in range(8)]
        for d in range(8):
            L += [f"v_lshlrev_b32 v{TR+2*d}, 16, v{TR+16+d}", f"v_and_b32 v{TR+2*d+1}, 0xffff0000, v{TR+16+d}"]
        return L
    def red_finish(self, ACC, TR):
        a = self.a
        for r in range(0, 16, 2): a.e(self.pk_add(ACC + r, ACC + r, TR + r))
        a.e("s_waitcnt lgkmcnt(0)\ns_barrier")
        RD = ACC + 16
        for u in range(3):
            for g in range(4):
                a.e(f"ds_read_b128 {vr(RD+16*u+4*g)}, v{V_T0} offset:{u*4096+g*1024}", tag=f"rr{u}")
        for u in range(3):
            a.wait_lg(f"rr{u}")
            for r in range(0, 16, 2): a.e(self.pk_add(ACC + r, ACC + r, RD + 16*u + r))
        for d in range(8): a.e(f"v_cvt_pk_bf16_f32 v{TR+d}, v{ACC+2*d}, v{ACC+2*d+1}")
        self.PK, self.ACC = TR, ACC
    def x_store_addr(self, xsel):
        return (self.sa(S_E, [(S_TILE, 28 * KB), (S_N, 2 * KB), (S_L, 2 * XSZ)], X + xsel * XSZ) +
                self.sa(S_F, [(S_TILE, 3584), (S_N, 256), (S_L, 2 * STSZ)], ST + xsel * STSZ))
    def store_x_and_stats(self):
        a = self.a
        PK, ACC = self.PK, self.ACC
        self.emit(self.st(vr(PK), S_E, 0, "xst")); self.emit(self.st(vr(PK+4), S_E, 1024, "xst"))
        t = PK + 8
        a.e(self.pk_add(t, ACC, ACC + 2))
        a.e(f"v_pk_mul_f32 v[{t+2}:{t+3}], v[{ACC}:{ACC+1}], v[{ACC}:{ACC+1}]")
        for r in range(2, 16, 2):
            if r > 2: a.e(self.pk_add(t, t, ACC + r))
            a.e(f"v_pk_fma_f32 v[{t+2}:{t+3}], v[{ACC+r}:{ACC+r+1}], v[{ACC+r}:{ACC+r+1}], v[{t+2}:{t+3}]")
        a.e(f"v_add_f32 v{t}, v{t}, v{t+1}\nv_add_f32 v{t+1}, v{t+2}, v{t+3}")
        a.e(f"v_mov_b32 v{t+2}, v{t}\nv_mov_b32 v{t+3}, v{t+1}")
        a.e(f"v_permlane32_swap_b32 v{t+2}, v{t}\nv_permlane32_swap_b32 v{t+3}, v{t+1}")
        a.e(self.pk_add(t, t, t + 2))
        a.e("s_mov_b32 exec_hi, 0")
        self.emit(self.st(f"v[{t}:{t+1}]", S_F, 0, "xst", n=2, vaddr=V_I8))
        a.e("s_mov_b32 exec_hi, -1")
        for d in range(8): a.e(f"v_accvgpr_write_b32 a{A_RES+d}, v{PK+d}")

    def p2b(self):
        a = self.a
        OB, ACC, TR = 80, 144, 208
        pre = []
        for b, c in ((0, S_A), (1, S_B)):
            pre += [f"s_xor_b32 s{c}, s{S_TILE}, {b}", f"s_lshl_b32 s{c}, s{c}, 15"] + self.sa(S_T0, [(S_W, 8 * KB), (S_L, OSZ)], O) + [f"s_add_u32 s{c}, s{c}, s{S_T0}"]
        self.emits(pre)
        self.poll(S_FRB, F_S2, 16)
        self.mark("S2_poll")
        ob = [self.seq_items(8, lambda i: vr(OB + 32*b + 4*i), (S_A, S_B)[b], lambda i: f"o{b}_{i}", True) for b in range(2)]
        for it in ob[1] + ob[0]: self.emits(it)
        nb = self.opt("bg_2b", 14)
        self.emits(self.red_addr() + self.x_store_addr(1))
        a.wait_vm("wo")
        def mf(u, i):
            b, sl = u >> 1, u & 1
            a.e(f"{MF} {vr(ACC+16*u,16)}, {vr(16+32*sl+4*i)}, {vr(OB+32*b+4*i)}, {vr(ACC+16*u,16) if i else 0}")
        for i in range(8):
            a.wait_vm(f"o1_{i}")
            mf(2, i); mf(3, i)
            if i < nb: self.take(self.w3, 1)
        resu = self.res_unpack(TR)
        wr = self.red_write(ACC, 2) + self.red_write(ACC, 3)
        for i in range(8):
            a.wait_vm(f"o0_{i}")
            mf(1, i)
            if i >= 2 and wr: self.emit(wr.pop(0))
            self.emits(resu[3*i:3*i+3])
            mf(0, i)
            if i >= 2 and wr: self.emit(wr.pop(0))
            if 8 + i < nb: self.take(self.w3, 1)
        self.emits(wr)
        self.mark("p2b_mfma")
        self.emits(self.red_write(ACC, 1))
        self.red_finish(ACC, TR)
        self.store_x_and_stats()
        self.mark("p2b_st")
        self.arrive(S_FRB, F_S3, "xst")
        self.take(self.w3, self.opt("bg_s3", 0))
        self.mark("S3_arr")

    def p3(self):
        a = self.a
        ACC0, ACC1, RING, CC, TT, HP, STB = 16, 48, 80, 96, 100, 116, 100
        V_X1, V_CA, V_CB = V_T5, V_T4, V_T6
        xds = []
        for p in range(4):
            gc, gl = 56 + 2 * p, 57 + 2 * p
            self.emits([f"s_xor_b32 s{S_T0}, s{S_M}, {p}"] + self.sa(gc, [(S_T0, 28 * KB), (S_RB, 4 * 28 * KB), (S_W, 7 * KB), (S_L, 2 * XSZ)], X + XSZ))
            self.emits(self.sa(gl, [(S_W, 7 * KB)], L_XR + (p & 1) * XSLOT))
            xds.append(self.dma_items(7, gl, gc, f"xt{p}", True))
        def xd(p): return xds[p]
        x0, x1 = xd(0), xd(1)
        self.poll(S_FRB, F_S3, 14)
        self.mark("S3_poll")
        self.take(x0, 7)
        self.emits(self.sa(S_T0, [(S_XT, 3584), (S_L, 2 * STSZ)], ST + STSZ))
        for k in range(7): self.emit(self.ld(vr(STB + 2*k, 2), S_T0, k * 256, "st", n=2, vaddr=V_STL))
        self.take(self.w3, len(self.w3))
        a.e(f"v_add_u32 v{V_X1}, {L_XR + XSLOT}, v{V_L16}")
        def hbase(p):
            return [f"s_xor_b32 s{S_T0}, s{S_M}, {p}"] + self.sa(S_C, [(S_T0, 112 * KB), (S_RB, 4 * 112 * KB), (S_JS, 8 * KB), (S_W, 2 * KB), (S_L, HSZ)], HB)
        c1 = -2.0 * 0.7978845608028654 * 1.4426950408889634
        c2 = c1 * 0.044715
        stf = ["@waitvm st"] + self.stats_reduce(STB, V_T0, V_T1, V_T2, V_T3)
        stf += [f"v_rsq_f32 v{V_T1}, v{V_T0}", f"v_lshrrev_b32 v{V_CA}, 1, v{V_I8}"] + self.sa(S_T0, [(S_W, 384)], L_SCR3)
        stf += [f"v_add_u32 v{V_CB}, s{S_T0}, v{V_CA}",
                f"v_mul_f32 v{V_T2}, v{V_T1}, v{V_T1}", f"v_mul_f32 v{V_T3}, {hexf(c1)}, v{V_T1}", f"v_mul_f32 v{V_T2}, v{V_T2}, v{V_T1}", f"v_mul_f32 v{V_T2}, {hexf(c2)}, v{V_T2}",
                f"ds_write_b32 v{V_CB}, v{V_T3}|cw", f"ds_write_b32 v{V_CB}, v{V_T2} offset:128|cw", f"ds_write_b32 v{V_CB}, v{V_T0} offset:256|cw"]
        stf += self.sa(S_T0, [(S_M, 384)], L_SCR3) + [f"s_mul_i32 s{S_T1}, s{S_M}, 384", f"s_sub_u32 s{S_T1}, {L_SCR3 + 768}, s{S_T1}",
                f"v_add_u32 v{V_CB}, s{S_T1}, v{V_CA}", f"v_add_u32 v{V_CA}, s{S_T0}, v{V_CA}"]

        def epi(p):
            A = ACC0 if p % 2 == 0 else ACC1
            G, U = A, A + 16
            va = V_CA if p < 2 else V_CB
            L = [f"ds_read_b32 v{CC+q}, v{va} offset:{(p&1)*384+q*128}|cc" for q in range(3)] + hbase(p)
            for g in range(4):
                rr = [4*g + k for k in range(4)]
                for k, r in enumerate(rr): L.append(f"v_mul_f32 v{TT+k}, v{G+r}, v{G+r}")
                for k, r in enumerate(rr): L.append(f"v_mul_f32 v{TT+4+k}, v{G+r}, v{U+r}")
                if g == 0: L.append("@waitlg cc")
                for k, r in enumerate(rr): L.append(f"v_fma_f32 v{TT+k}, v{TT+k}, v{CC+1}, v{CC}")
                for k, r in enumerate(rr): L.append(f"v_mul_f32 v{TT+k}, v{TT+k}, v{G+r}")
                for k, r in enumerate(rr): L.append(f"v_exp_f32 v{TT+k}, v{TT+k}")
                for k, r in enumerate(rr): L.append(f"v_fma_f32 v{TT+k}, v{TT+k}, v{CC+2}, v{CC+2}")
                for k, r in enumerate(rr): L.append(f"v_rcp_f32 v{TT+k}, v{TT+k}")
                for k in range(4): L.append(f"v_mul_f32 v{TT+4+k}, v{TT+4+k}, v{TT+k}")
                L.append(f"v_cvt_pk_bf16_f32 v{HP+2*g}, v{TT+4}, v{TT+5}")
                L.append(f"v_cvt_pk_bf16_f32 v{HP+2*g+1}, v{TT+6}, v{TT+7}")
                if g % 2 == 1 and not (self.opt("x_nost", 0) and p < 2): L.append(self.st(vr(HP + 4*(g//2)), S_C, 1024 * (g // 2), f"hst{p}"))
            if self.opt("x_noepi", 0) and p < 2: L = [t for t in L if t.startswith("buffer_") or t.startswith("s_")]
            return L

        w4 = None
        for p in range(4):
            A = ACC0 if p % 2 == 0 else ACC1
            a.wait_vm(f"xt{p}")
            a.e("s_waitcnt lgkmcnt(0)\ns_barrier")
            if p in (0, 1, 3): self.mark(f"p3_T{p}")
            def rd(s):
                if p & 1 == 0:
                    r, of = self.ldsaddr(L_XR + s * KB)
                else: r, of = V_X1, s * KB
                a.e(f"ds_read_b128 {vr(RING+4*(s%4))}, v{r} offset:{of}", tag=f"b{s}")
            for s in range(3): rd(s)
            def mg(s):
                def f():
                    if s + 3 < 28: rd(s + 3)
                    a.wait_both(f"w3_{s}" if p == 0 else None, f"b{s}")
                    a.e(f"{MF} {vr(A,16)}, {ar(8*s)}, {vr(RING+4*(s%4))}, {vr(A,16) if s else 0}")
                return f
            def mu(s):
                def f(): a.e(f"{MF} {vr(A+16,16)}, {ar(8*s+4)}, {vr(RING+4*(s%4))}, {vr(A+16,16) if s else 0}")
                return f
            mains = []
            for s in range(28): mains += [mg(s), mu(s)]
            if p == 0:
                w4 = self.w4_stream()
                bg = x1 + [w4.pop(0) for _ in range(self.opt("w4_p0", 12))]
                self.weave(mains, stf, bg=bg, bg_every=2, bg_phase=1, caps=(16, 8))
            elif p == 1:
                bg = xd(2) + [w4.pop(0) for _ in range(self.opt("w4_p1", 12))]
                if self.opt("x_nobg", 0): bg = xd(2)
                mains[0](); mains[1]()
                self.weave(mains[2:], epi(0), bg=bg, bg_every=2, bg_phase=1, caps=(self.opt('cap1', 24), self.opt('cap2', 8)))
            elif p == 2:
                na = 32 - self.opt("w4_p0", 12) - self.opt("w4_p1", 12)
                bg = xd(3) + [w4.pop(0) for _ in range(na)]
                if self.opt("x_nobg", 0): bg = xd(3)
                mains[0](); mains[1]()
                self.weave(mains[2:], epi(1), bg=bg, bg_every=2, bg_phase=1, caps=(self.opt('cap1', 24), self.opt('cap2', 8)))
            else:
                bg = w4
                mains[0](); mains[1]()
                a.e(f"s_xor_b32 s{S_E}, s{S_TH}, 1")
                AP = self.opt("ap4e", 46)
                orig = mains[AP]
                def with_poll():
                    self.apoll_issue(S_FRB, F_S4E, 8, S_E, S_F)
                    orig()
                mains[AP] = with_poll
                AE = self.opt("arr4e", 22)
                orig2 = mains[AE]
                def with_arr():
                    self.arrive(S_FRB, F_S4E, ("hst0", "hst1"), slot_sreg=S_TH)
                    orig2()
                mains[AE] = with_arr
                self.weave(mains[2:], epi(2), bg=bg, bg_every=2, bg_phase=1, caps=(self.opt('cap1', 24), self.opt('cap2', 8)))
            self.take(bg, len(bg))
        self.mark("p3_loop")
        self.p4_setup()
        self.apoll_check(8, 7, S_F)
        LA = self.opt("la4", 6)
        first = []
        for i in range(LA): first += [self.hi[(i, 0)], self.hi[(i, 1)]]
        self.emits_bg(epi(3), first, len(first), first=self.opt("e3first", 20), every=self.opt("e3every", 9))
        self.take(first, len(first))
        self.mark("p3_epi")

    def p4_setup(self):
        HR, NR = 96, 16
        cur = [S_G[4], S_G[5], S_G[6], S_G[7]]
        pre = []
        for late in (0, 1):
            for b in range(2):
                c = cur[2*late + b]
                pre += self.kseg(S_T0, late) + [f"s_xor_b32 s{c}, s{S_TILE}, {b}", f"s_mul_i32 s{c}, s{c}, 112", f"s_add_u32 s{c}, s{c}, s{S_T0}", f"s_lshl_b32 s{c}, s{c}, 10"]
                pre += self.sa(S_T0, [(S_L, HSZ)], HB) + [f"s_add_u32 s{c}, s{c}, s{S_T0}"]
        self.emits(pre)
        self.hi = {}
        for late in (0, 1):
            for b in range(2):
                x = self.seq_items(14, lambda i: ar(HR + 8*((14*late + i) % NR) + 4*b), cur[2*late + b], lambda i: f"h{14*late+i}_{b}", True)
                for i in range(14): self.hi[(14*late + i, b)] = x[i]

    def p4(self):
        a = self.a
        n = self.name
        ACC, HR, NR, TR = 16, 96, 16, 80
        LA = self.opt("la4", 6)
        hi = self.hi
        self.emits(self.red_addr())
        def mf(u, i):
            b, sl = u >> 1, u & 1
            a.e(f"{MF} {vr(ACC+16*u,16)}, {self.w4_reg(i, sl)}, {ar(HR+8*(i%NR)+4*b)}, {vr(ACC+16*u,16) if i else 0}")
        TAIL = self.opt("tail4", 6)
        PL = 14 - LA
        t0 = 28 - TAIL
        rest0 = [hi[(i, 0)] for i in range(t0, 28)]
        rest1 = [hi[(i, 1)] for i in range(t0, 28)]
        ARR4 = self.opt("arr4", 3)
        APL = self.opt("ap4l", PL - 2)
        for i in range(t0):
            if i == ARR4:
                self.arrive(S_FRB, F_S4L, ("hst2", "hst3"), slot_sreg=S_TH)
                self.mark("S4_arr")
            if i == APL: self.apoll_issue(S_FRB, F_S4L, 9, S_TH, S_F)
            if i == PL:
                self.apoll_check(9, 7, S_F)
                self.mark("S4L_poll")
            a.wait_vm((f"h{i}_0", f"h{i}_1", f"w4_{i}"))
            nxt = i + LA
            mf(0, i); mf(1, i)
            if nxt < t0: self.emits(hi[(nxt, 0)])
            elif rest1: self.emits(rest1.pop(0))
            mf(2, i); mf(3, i)
            if nxt < t0: self.emits(hi[(nxt, 1)])
            elif rest1: self.emits(rest1.pop(0))
            elif rest0: self.emits(rest0.pop(0))
        for it in rest1: self.emits(it)
        for i in range(t0, 28):
            a.wait_vm((f"h{i}_1", f"w4_{i}"))
            mf(2, i)
            if rest0: self.emits(rest0.pop(0))
            mf(3, i)
        resu = self.res_unpack(TR)
        wr = self.red_write(ACC, 2) + self.red_write(ACC, 3)
        k = 0
        for i in range(t0, 28):
            a.wait_vm(f"h{i}_0")
            mf(1, i)
            if i >= t0 + 1 and wr: self.emit(wr.pop(0))
            self.emits(resu[4*k:4*k+4]); k += 1
            mf(0, i)
            if i >= t0 + 1 and wr: self.emit(wr.pop(0))
        self.emits(resu[4*k:]); self.emits(wr)
        self.mark("p4_mfma")
        self.emits(self.red_write(ACC, 1))
        self.emits(self.x_store_addr(2))
        self.red_finish(ACC, TR)
        self.mark("p4_red")
        fin = a.newlabel("fin")
        a.e(f"s_cmp_lg_u32 s{S_L}, 0\ns_cbranch_scc1 {fin}")
        vq = list(a.vmq)
        self.store_x_and_stats()
        self.arrive(S_FRB, F_S5, "xst")
        a.e(f"s_branch {n}_next")
        a.vmq = vq
        a.label(fin)
        PK = self.PK
        self.emits(self.sa(S_T0, [(S_TILE, 32 * 896), (S_N, 64)]))
        a.e(f"v_mul_u32_u24 v{V_T0}, 112, v{V_I8}\nv_lshrrev_b32 v{V_T1}, 5, v{V_L16}\nv_and_b32 v{V_T1}, 16, v{V_T1}\nv_add_u32 v{V_T0}, v{V_T0}, v{V_T1}")
        a.e(f"v_permlane32_swap_b32 v{PK}, v{PK+2}\nv_permlane32_swap_b32 v{PK+1}, v{PK+3}")
        a.e(f"v_permlane32_swap_b32 v{PK+4}, v{PK+6}\nv_permlane32_swap_b32 v{PK+5}, v{PK+7}")
        osc = " sc1" if self.opt("out_sc1", 0) else ""
        a.e(f"buffer_store_dwordx4 {vr(PK)}, v{V_T0}, s[8:11], s{S_T0} offen" + osc)
        a.e(f"buffer_store_dwordx4 {vr(PK+4)}, v{V_T0}, s[8:11], s{S_T0} offen offset:32" + osc)
        a.e(f"s_branch {n}_done")

    def build(self):
        a, n = self.a, self.name
        self.prologue()
        head_q = list(a.vmq)
        a.label(f"{n}_layer")
        a.vmq = list(head_q); a.lgq = []
        self.layer_setup()
        if self.opt("y", 0):
            a.e(f"s_lshl_b32 s{S_T0}, s{S_RB}, 7\ns_add_u32 s{S_T0}, s{S_T0}, {PFLAG}\ns_add_u32 s{S_E}, s{S_FRB}, {F_S5*2048 - NSYNC*2048}")
            a.e(f"s_cmp_eq_u32 s{S_L}, 0\ns_cselect_b32 s{S_E}, s{S_T0}, s{S_E}")
            self.poll(S_E, 0, 14)
        else:
            lab = a.newlabel("nos5")
            a.e(f"s_cmp_eq_u32 s{S_L}, 0\ns_cbranch_scc1 {lab}")
            self.poll(S_FRB, F_S5, 14, extra=-NSYNC * 2048)
            a.label(lab)
        self.p1()
        self.p2a()
        a.e(f"s_cmp_lt_u32 s{S_Q}, 7\ns_cbranch_scc1 {n}_act")
        a.e(f"s_cmp_lg_u32 s{S_L}, 0\ns_cbranch_scc1 {n}_done")
        a.e("s_waitcnt vmcnt(0)")
        a.e(f"s_branch {n}_next")
        a.label(f"{n}_act")
        self.p2b()
        self.p3()
        self.p4()
        a.label(f"{n}_next")
        if not self.opt("nonextwait", 0): a.e("s_waitcnt vmcnt(0)")
        if self.o.get("prof"): a.e(f"v_lshrrev_b32 v{V_T0}, 2, v{V_L16}\nv_add_u32 v{V_T0}, {L_MARK}, v{V_T0}\ns_cmp_eq_u32 s{S_W}, 0\ns_cselect_b64 exec, -1, 0\nds_write_b32 v{V_T0}, v{V_MARK}\ns_mov_b64 exec, -1\ns_waitcnt lgkmcnt(0)\nv_mov_b32 v{V_MARK}, 0")
        a.e(f"s_add_u32 s{S_L}, s{S_L}, 1")
        a.e(f"s_branch {n}_layer")
        a.label(f"{n}_done")
        if self.o.get("prof"): self.dump_marks()
        a.e("s_endpgm")
        a.label(f"{n}_end")
        return a.finalize()
```

```python
from main3 import *
import main3
F_S4M = 8

class Gen(main3.Gen):
    def p3(self):
        a = self.a
        ACC0, ACC1, RING, CC, TT, HP, STB = 16, 48, 80, 96, 100, 116, 100
        V_X1, V_CA, V_CB = V_T5, V_T4, V_T6
        xds = []
        for p in range(4):
            gc, gl = 56 + 2 * p, 57 + 2 * p
            self.emits([f"s_xor_b32 s{S_T0}, s{S_M}, {p}"] + self.sa(gc, [(S_T0, 28 * KB), (S_RB, 4 * 28 * KB), (S_W, 7 * KB), (S_L, 2 * XSZ)], X + XSZ))
            self.emits(self.sa(gl, [(S_W, 7 * KB)], L_XR + (p & 1) * XSLOT))
            xds.append(self.dma_items(7, gl, gc, f"xt{p}", True))
        self.emits(self.sa(S_A, [(S_XT, 3584), (S_L, 2 * STSZ)], ST + STSZ))
        a.e(f"v_add_u32 v{V_X1}, {L_XR + XSLOT}, v{V_L16}")
        w4 = self.w4_stream()
        self.poll(S_FRB, F_S3, 14)
        self.mark("S3_poll")
        self.take(xds[0], 7)
        for k in range(7): self.emit(self.ld(vr(STB + 2*k, 2), S_A, k * 256, "st", n=2, vaddr=V_STL))
        self.take(self.w3, len(self.w3))
        def hbase(p):
            return [f"s_xor_b32 s{S_T0}, s{S_M}, {p}"] + self.sa(S_C, [(S_T0, 112 * KB), (S_RB, 4 * 112 * KB), (S_JS, 8 * KB), (S_W, 2 * KB), (S_L, HSZ)], HB)
        c1 = -2.0 * 0.7978845608028654 * 1.4426950408889634
        c2 = c1 * 0.044715
        V_M = 99
        stf = ["@waitvm st"] + self.stats_reduce(STB, V_T0, V_M, V_T2, V_T3)
        stf += [f"v_rsq_f32 v{V_T1}, v{V_T0}", f"v_lshrrev_b32 v{V_CA}, 1, v{V_I8}"] + self.sa(S_T0, [(S_W, 384)], L_SCR3)
        stf += [f"v_add_u32 v{V_CB}, s{S_T0}, v{V_CA}",
                f"v_mul_f32 v{V_T2}, v{V_T1}, v{V_T1}", f"v_mul_f32 v{V_T3}, {hexf(c1)}, v{V_T1}", f"v_mul_f32 v{V_T2}, v{V_T2}, v{V_T1}", f"v_mul_f32 v{V_T2}, {hexf(c2)}, v{V_T2}",
                f"ds_write_b32 v{V_CB}, v{V_T3}|cw", f"ds_write_b32 v{V_CB}, v{V_T2} offset:128|cw", f"ds_write_b32 v{V_CB}, v{V_T0} offset:256|cw"]
        stf += self.sa(S_T0, [(S_M, 384)], L_SCR3) + [f"s_mul_i32 s{S_T1}, s{S_M}, 384", f"s_sub_u32 s{S_T1}, {L_SCR3 + 768}, s{S_T1}",
                f"v_add_u32 v{V_CB}, s{S_T1}, v{V_CA}", f"v_add_u32 v{V_CA}, s{S_T0}, v{V_CA}"]
        B29, V_B0, V_B1 = 124, 114, 115
        stf += self.x29(B29, V_M, V_T2) + self.sa(S_T0, [(S_W, KB)], L_B29) + [f"v_add_u32 v{V_T3}, s{S_T0}, v{V_L16}", f"ds_write_b128 v{V_T3}, {vr(B29)}|cw"]
        stf += self.sa(S_T0, [(S_M, KB)], L_B29) + [f"v_add_u32 v{V_B0}, s{S_T0}, v{V_L16}", f"s_lshl_b32 s{S_T1}, s{S_M}, 10", f"s_sub_u32 s{S_T1}, {L_B29 + 2*KB}, s{S_T1}",
                f"v_add_u32 v{V_B1}, s{S_T1}, v{V_L16}", "@flag cwdone"]

        def epi(p, packed=False):
            A = ACC0 if p % 2 == 0 else ACC1
            G, U = A, A + 16
            va = V_CA if p < 2 else V_CB
            L = [f"ds_read_b32 v{CC+q}, v{va} offset:{(p&1)*384+q*128}|cc" for q in range(3)] + hbase(p)
            for g in range(4):
                rr = [4*g + k for k in range(4)]
                if packed:
                    for k in (0, 2): L.append(f"v_pk_mul_f32 v[{TT+k}:{TT+k+1}], v[{G+4*g+k}:{G+4*g+k+1}], v[{G+4*g+k}:{G+4*g+k+1}]")
                    for k in (0, 2): L.append(f"v_pk_mul_f32 v[{TT+4+k}:{TT+5+k}], v[{G+4*g+k}:{G+4*g+k+1}], v[{U+4*g+k}:{U+4*g+k+1}]")
                    if g == 0: L.append("@waitlg cc")
                    for k in (0, 2): L.append(self.pk_fma_bc(TT + k, TT + k, CC + 1, CC))
                    for k in (0, 2): L.append(f"v_pk_mul_f32 v[{TT+k}:{TT+k+1}], v[{TT+k}:{TT+k+1}], v[{G+4*g+k}:{G+4*g+k+1}]")
                    for k in range(4): L.append(f"v_exp_f32 v{TT+k}, v{TT+k}")
                    for k in (0, 2): L.append(self.pk_fma_bc(TT + k, TT + k, CC + 2, CC + 2))
                    for k in range(4): L.append(f"v_rcp_f32 v{TT+k}, v{TT+k}")
                    for k in (0, 2): L.append(f"v_pk_mul_f32 v[{TT+4+k}:{TT+5+k}], v[{TT+4+k}:{TT+5+k}], v[{TT+k}:{TT+k+1}]")
                else:
                    for k, r in enumerate(rr): L.append(f"v_mul_f32 v{TT+k}, v{G+r}, v{G+r}")
                    for k, r in enumerate(rr): L.append(f"v_mul_f32 v{TT+4+k}, v{G+r}, v{U+r}")
                    if g == 0: L.append("@waitlg cc")
                    for k, r in enumerate(rr): L.append(f"v_fma_f32 v{TT+k}, v{TT+k}, v{CC+1}, v{CC}")
                    for k, r in enumerate(rr): L.append(f"v_mul_f32 v{TT+k}, v{TT+k}, v{G+r}")
                    for k, r in enumerate(rr): L.append(f"v_exp_f32 v{TT+k}, v{TT+k}")
                    for k, r in enumerate(rr): L.append(f"v_fma_f32 v{TT+k}, v{TT+k}, v{CC+2}, v{CC+2}")
                    for k, r in enumerate(rr): L.append(f"v_rcp_f32 v{TT+k}, v{TT+k}")
                    for k in range(4): L.append(f"v_mul_f32 v{TT+4+k}, v{TT+4+k}, v{TT+k}")
                L.append(f"v_cvt_pk_bf16_f32 v{HP+2*g}, v{TT+4}, v{TT+5}")
                L.append(f"v_cvt_pk_bf16_f32 v{HP+2*g+1}, v{TT+6}, v{TT+7}")
                if g % 2 == 1: L.append(self.st(vr(HP + 4*(g//2)), S_C, 1024 * (g // 2), f"hst{p}"))
            return L

        self.flags = set()
        def slot(p, s): return RING + 4 * ((KW * p + s) % 4)
        def rd(p, s):
            if s == 28:
                assert "cwdone" in self.flags
                r, of = (V_B0 if p < 2 else V_B1), (p & 1) * KB
            elif p & 1 == 0: r, of = self.ldsaddr(L_XR + s * KB)
            else: r, of = V_X1, s * KB
            a.e(f"ds_read_b128 {vr(slot(p, s))}, v{r} offset:{of}", tag=f"b{p}_{s}")
        a.wait_vm("xt0")
        a.e("s_barrier")
        self.mark("p3_T0")
        for s in range(3): rd(0, s)
        B2 = self.opt("b2step", 24)
        for p in range(4):
            A = ACC0 if p % 2 == 0 else ACC1
            def mg(s):
                def f():
                    if p >= 1 and p <= 2 and s == 1: a.e("s_barrier")
                    if p <= 2 and s == B2:
                        if p == 0:
                            assert "cwdone" in self.flags
                            a.wait_lg("cw")
                        a.wait_vm(f"xt{p+1}")
                        a.e("s_barrier")
                    g = KW * p + s + 3
                    if g < 4 * KW: rd(g // KW, g % KW)
                    a.wait_both(f"w3_{s}" if p == 0 else None, f"b{p}_{s}")
                    a.e(f"{MF} {vr(A,16)}, {ar(8*s)}, {vr(slot(p, s))}, {vr(A,16) if s else 0}")
                return f
            def mu(s):
                def f(): a.e(f"{MF} {vr(A+16,16)}, {ar(8*s+4)}, {vr(slot(p, s))}, {vr(A+16,16) if s else 0}")
                return f
            mains = []
            for s in range(KW): mains += [mg(s), mu(s)]
            caps = (self.opt('cap1', 24), self.opt('cap2', 8))
            if p == 0:
                bg = xds[1] + [w4.pop(0) for _ in range(self.opt("w4_p0", 12))]
                self.weave(mains, stf, bg=bg, bg_every=2, bg_phase=1, caps=(16, 8))
            elif p == 1:
                bg = xds[2] + [w4.pop(0) for _ in range(self.opt("w4_p1", 12))]
                mains[0](); mains[1](); mains[2]()
                self.weave(mains[3:], epi(0), bg=bg, bg_every=2, bg_phase=0, caps=(caps[1], caps[0]))
            elif p == 2:
                na = 32 - self.opt("w4_p0", 12) - self.opt("w4_p1", 12)
                bg = xds[3] + [w4.pop(0) for _ in range(na)]
                mains[0](); mains[1](); mains[2]()
                self.weave(mains[3:], epi(1), bg=bg, bg_every=2, bg_phase=0, caps=(caps[1], caps[0]))
            else:
                bg = w4
                a.e(f"s_xor_b32 s{S_E}, s{S_TH}, 1")
                AP, AE = self.opt("ap4e", 46), self.opt("arr4e", 22)
                orig, orig2 = mains[AP], mains[AE]
                def with_poll():
                    self.apoll_issue(S_FRB, F_S4E, 8, S_E, S_F)
                    orig()
                def with_arr():
                    self.arrive(S_FRB, F_S4E, ("hst0", "hst1"), slot_sreg=S_TH)
                    orig2()
                mains[AP], mains[AE] = with_poll, with_arr
                mains[0](); mains[1]()
                self.weave(mains[2:], epi(2) + self.p4_setup_list(), bg=bg, bg_every=2, bg_phase=1, caps=caps)
            self.take(bg, len(bg))
            if p in (0, 2): self.mark(f"p3_e{p}")
        self.mark("p3_loop")
        self.p4_items()
        self.apoll_check(8, 7, S_F)
        LA = self.opt("la4", 12)
        first = [self.hq.pop(0) for _ in range(LA)]
        e3 = epi(3, packed=True)
        cut = self.opt("arr4m", 40)
        self.emits_bg(e3[:cut], first, len(first), first=self.opt("e3first", 4), every=self.opt("e3every", 8))
        self.arrive(S_FRB, F_S4M, "hst2", slot_sreg=S_TH)
        self.emits_bg(e3[cut:], first, len(first), first=0, every=self.opt("e3every", 8))
        self.take(first, len(first))
        self.mark("p3_epi")

    def emit(self, t):
        if t.startswith("@flag "): self.flags.add(t.split()[1])
        elif t.startswith("~"): super().emit(t[1:])
        else: super().emit(t)

    S_LIM, S_RT = 86, 87
    def rot_setup(self):
        return [f"s_lshl_b32 s{self.S_RT}, s{S_CB}, 1", f"s_sub_u32 s{self.S_LIM}, 14, s{self.S_RT}"]
    def rot_items(self, dstf, base, tagf, sc1):
        items = []
        t = self.S_RT
        for p in range(14):
            it = []
            if self.opt("rot4", 1):
                it += [f"s_cmp_gt_u32 s{self.S_LIM}, {p}", f"s_cselect_b32 s{t}, 0, {14*KB}", f"s_sub_u32 s{t}, s{base}, s{t}"]
                if p // 4: it.append(f"s_add_u32 s{t}, s{t}, {(p//4)*4096}")
                it.append(self.ld(dstf(p), t, (p % 4) * 1024, tagf(p), sc1))
            else:
                if p and p % 4 == 0: it.append(f"s_add_u32 s{base}, s{base}, 4096")
                it.append(self.ld(dstf(p), base, (p % 4) * 1024, tagf(p), sc1))
            items.append(it)
        return items
    def w4_stream(self):
        out = []
        if self.opt("rot4", 1): self.emits(self.rot_setup())
        for late in (0, 1):
            its = []
            for sl in range(2):
                c = 88 + 2 * late + sl
                pre = main3.Gen.kseg(self, S_T0, late) + [f"s_xor_b32 s{c}, s{S_NT}, {sl}", f"s_mul_i32 s{c}, s{c}, 112", f"s_add_u32 s{c}, s{c}, s{S_T0}"]
                pre += [f"s_mul_i32 s{S_T0}, s{S_CB}, 224", f"s_add_u32 s{c}, s{c}, s{S_T0}"]
                if self.opt("rot4", 1): pre += [f"s_lshl_b32 s{S_T0}, s{S_CB}, 1", f"s_add_u32 s{c}, s{c}, s{S_T0}"]
                pre += [f"s_lshl_b32 s{c}, s{c}, 10", f"s_add_u32 s{c}, s{c}, {WD}"]
                self.emits(pre)
                its.append(self.rot_items(lambda i: self.w4_reg(14 * late + i, sl), c, lambda i: f"w4_{14*late+i}", False))
            out += self.zip2(its[0], its[1])
        return out

    HCUR = [S_G[4], S_G[5], S_G[6], S_G[7]]
    def p4_setup_list(self):
        t, u = 53, 54
        pre = []
        for late in (0, 1):
            for b in range(2):
                c = self.HCUR[2*late + b]
                pre += [f"s_mul_i32 s{t}, s{S_TH}, 56"] + ([] if late else [f"s_sub_u32 s{t}, 56, s{t}"])
                pre += [f"s_mul_i32 s{u}, s{S_W}, 14", f"s_add_u32 s{t}, s{t}, s{u}"]
                pre += [f"s_andn2_b32 s{c}, s{S_TILE}, 1", f"s_add_u32 s{c}, s{c}, {b}", f"s_mul_i32 s{c}, s{c}, 112", f"s_add_u32 s{c}, s{c}, s{t}"]
                if self.opt("rot4", 1): pre += [f"s_lshl_b32 s{t}, s{S_CB}, 1", f"s_add_u32 s{c}, s{c}, s{t}"]
                pre += [f"s_lshl_b32 s{c}, s{c}, 10"]
                pre += [f"s_mul_i32 s{t}, s{S_L}, {HSZ}", f"s_add_u32 s{c}, s{c}, s{t}", f"s_add_u32 s{c}, s{c}, {HB}"]
        return ["~" + x for x in pre]
    def p4_items(self):
        HR = 96
        self.seq = [(i, b) for i in range(14) for b in range(2)] + [(i, 0) for i in range(14, 28)] + [(i, 1) for i in range(14, 28)]
        self.slot = {ib: HR + 4 * (n % 32) for n, ib in enumerate(self.seq)}
        it = {}
        for late in (0, 1):
            for b in range(2):
                x = self.rot_items(lambda i: ar(self.slot[(14*late + i, b)]), self.HCUR[2*late + b], lambda i: f"h{14*late+i}_{b}", True)
                for i in range(14): it[(14*late + i, b)] = x[i]
        self.hq = [it[ib] for ib in self.seq]

    def p4(self):
        a = self.a
        n = self.name
        ACC, TR, FIX = 16, 80, 104
        hq = self.hq
        LA = 56 - len(hq)
        issued = [LA]
        def mf(a_, b, i):
            u = 2*b + a_
            a.e(f"{MF} {vr(ACC+16*u,16)}, {self.w4_reg(i, a_)}, {ar(self.slot[(i, b)])}, {vr(ACC+16*u,16) if i else 0}")
        def more():
            if not hq: return
            nn = issued[0]
            X = self.opt("x_nochk", 0)
            if nn == 28:
                if not X: self.apoll_check(9, 7, S_F)
                self.mark("S4M_poll")
            if nn == 42:
                if not X: self.apoll_check(10, 7, S_F)
                self.mark("S4L_poll")
            self.emits(hq.pop(0)); issued[0] += 1
            if issued[0] == 28 - self.opt("apa", 3): self.apoll_issue(S_FRB, F_S4M, 9, S_TH, S_F)
            if issued[0] == 42 - self.opt("apa", 3): self.apoll_issue(S_FRB, F_S4L, 10, S_TH, S_F)
        self.emits(self.red_addr())
        ARR4 = self.opt("arr4", 4)
        for i in range(14):
            if i == ARR4:
                if self.opt("x_nochk", 0) < 2: self.arrive(S_FRB, F_S4L, "hst3", slot_sreg=S_TH)
                self.mark("S4_arr")
            a.wait_vm((f"h{i}_0", f"w4_{i}"))
            mf(0, 0, i); mf(1, 0, i); more()
            a.wait_vm(f"h{i}_1")
            mf(0, 1, i); mf(1, 1, i); more()
        for i in range(14, 28):
            a.wait_vm((f"h{i}_0", f"w4_{i}"))
            mf(0, 0, i); mf(1, 0, i); more()
        self.mark("p4_M")
        join, alt = a.newlabel("p4j"), a.newlabel("p4a")
        a.e(f"s_cmp_lg_u32 s{S_TT}, 0\ns_cbranch_scc1 {alt}")
        state = (list(a.vmq), list(a.lgq), a.vm_total, list(hq), issued[0])
        for tt in range(2):
            if tt:
                a.label(alt)
                a.vmq, a.lgq, a.vm_total = list(state[0]), list(state[1]), state[2]
                hq[:] = state[3]; issued[0] = state[4]
            reg = {0: ACC + 32*tt, 1: ACC + 32*tt + 16, 2: ACC + 32*(1-tt), 3: ACC + 32*(1-tt) + 16}
            def wr(d): return [f"ds_write_b128 v{V_T0+d}, {vr(reg[d]+4*g)} offset:{g*1024}|rw" for g in range(4)]
            early = wr(1) if tt == 0 else wr(2) + wr(3)
            late = wr(2) + wr(3) if tt == 0 else wr(1)
            resu = self.res_unpack(TR)
            k = 0
            for i in range(14, 28):
                a.wait_vm(f"h{i}_1")
                mf(0, 1, i)
                if i >= 15 and early: self.emit(early.pop(0))
                self.emits(resu[2*k:2*k+2]); k += 1
                mf(1, 1, i); more()
            self.emits(resu[2*k:]); self.emits(early)
            if tt == 0: self.mark("p4_mfma")
            elif self.o.get("prof") and self.opt("prof", 0) != 3:
                kk = self.marks.index("p4_mfma")
                a.e(("s_memtime" if self.opt("prof", 0) == 2 else "s_memrealtime") + f" s[36:37]\ns_waitcnt lgkmcnt(0)\nv_writelane_b32 v{V_MARK}, s36, {kk}")
                a.lgq = []
            self.emits(late)
            self.emits(self.x_store_addr(2))
            own = reg[0]
            for r in range(0, 16, 2): a.e(self.pk_add(own + r, own + r, TR + r))
            a.e("s_waitcnt lgkmcnt(0)\ns_barrier")
            for d in range(1, 4):
                for g in range(4):
                    a.e(f"ds_read_b128 {vr(reg[d]+4*g)}, v{V_T0} offset:{(d-1)*4096+g*1024}", tag=f"rr{d}")
            for d in range(1, 4):
                a.wait_lg(f"rr{d}")
                dst = own if d < 3 else FIX
                for r in range(0, 16, 2): a.e(self.pk_add(dst + r, own + r, reg[d] + r))
            if tt == 0: a.e(f"s_branch {join}")
        a.label(join)
        for d in range(8): a.e(f"v_cvt_pk_bf16_f32 v{TR+d}, v{FIX+2*d}, v{FIX+2*d+1}")
        self.PK, self.ACC = TR, FIX
        self.mark("p4_red")
        fin = a.newlabel("fin")
        a.e(f"s_cmp_lg_u32 s{S_L}, 0\ns_cbranch_scc1 {fin}")
        vq = list(a.vmq)
        self.store_x_and_stats()
        self.arrive(S_FRB, F_S5, "xst")
        a.e(f"s_branch {n}_next")
        a.vmq = vq
        a.label(fin)
        PK = self.PK
        self.emits(self.sa(S_T0, [(S_TILE, 32 * 896), (S_N, 64)]))
        a.e(f"v_mul_u32_u24 v{V_T0}, 112, v{V_I8}\nv_lshrrev_b32 v{V_T1}, 5, v{V_L16}\nv_and_b32 v{V_T1}, 16, v{V_T1}\nv_add_u32 v{V_T0}, v{V_T0}, v{V_T1}")
        a.e(f"v_permlane32_swap_b32 v{PK}, v{PK+2}\nv_permlane32_swap_b32 v{PK+1}, v{PK+3}")
        a.e(f"v_permlane32_swap_b32 v{PK+4}, v{PK+6}\nv_permlane32_swap_b32 v{PK+5}, v{PK+7}")
        a.e(f"buffer_store_dwordx4 {vr(PK)}, v{V_T0}, s[8:11], s{S_T0} offen")
        a.e(f"buffer_store_dwordx4 {vr(PK+4)}, v{V_T0}, s[8:11], s{S_T0} offen offset:32")
        a.e(f"s_branch {n}_done")
```

```python
from layout import *
import struct
def hexf(x): return "0x%08x" % struct.unpack("<I", struct.pack("<f", x))[0]
LOOB = 0x30000
NA, NB, ND, NC = 48, 112, 49, 14
B0 = NA; D0 = B0 + NB; C0 = D0 + ND + 7; E0 = C0 + 16; F0 = 255
NXB = 224
WREG = 8192
L_SUM = 4 * WREG
P_X, P_WQKV, P_WPHI, P_WO, P_WG, P_WU, P_WD, P_OUT, P_DBG = 64, 66, 68, 70, 74, 76, 78, 80, 82

def emit_prep(a, name, opts, standalone=False):
    SC = " sc1" if (not standalone or int(opts.get('prep_sc1', 0))) else ""
    mode = int(opts.get("prep_mode", 0))
    SC_AB = SC_CD = SC_X = SC
    if mode == 1: SC_AB = SC_CD = SC_X = " nt"
    if mode == 2: SC_CD = SC_X = " sc1"
    if mode == 3: SC_AB = " sc1"
    if mode == 4: SC_X = " sc1"
    def src(ptr, size): a.e(f"s_mov_b32 s8, s{ptr}\ns_mov_b32 s9, s{ptr+1}\ns_mov_b32 s10, {size}\ns_mov_b32 s11, 0x20000")
    a.e("v_and_b32 v7, 63, v0\nv_lshlrev_b32 v1, 4, v7")
    a.e("v_and_b32 v2, 31, v0\nv_bfe_u32 v3, v0, 5, 1")
    a.e("v_lshrrev_b32 v4, 6, v0\nv_readfirstlane_b32 s12, v4")
    a.e("v_bfe_u32 v8, v7, 2, 2\nv_and_b32 v9, 3, v7\nv_bfe_u32 v10, v7, 4, 1")
    a.e("v_lshl_add_u32 v8, v3, 2, v8\nv_lshlrev_b32 v8, 6, v8")
    a.e("v_lshlrev_b32 v11, 5, v10\nv_lshl_add_u32 v11, v9, 3, v11\nv_add_u32 v8, v8, v11")
    a.e(f"s_lshl_b32 s13, s12, 13\nv_add_u32 v8, s13, v8")
    a.e("v_lshrrev_b32 v12, 2, v7\nv_lshlrev_b32 v13, 4, v9")
    a.e("s_waitcnt lgkmcnt(0)")
    a.e(f"s_mov_b32 s6, {WS_USED}\ns_mov_b32 s7, 0x20000")
    a.e(f"s_cmp_ge_u32 s2, {NXB}\ns_cbranch_scc1 {name}_nox")
    a.e(f"s_mov_b32 s8, s{P_X}\ns_mov_b32 s9, s{P_X+1}\ns_mov_b32 s10, {S*D*2}\ns_mov_b32 s11, 0x20000")
    a.e("s_mul_i32 s13, s2, 9363\ns_lshr_b32 s13, s13, 16")
    a.e("s_mul_i32 s14, s13, 7\ns_sub_u32 s14, s2, s14")
    a.e("s_lshr_b32 s15, s12, 1\ns_lshl_b32 s13, s13, 1\ns_add_u32 s30, s13, s15")
    a.e("s_and_b32 s15, s12, 1\ns_lshl_b32 s14, s14, 1\ns_add_u32 s31, s14, s15")
    a.e("v_mul_u32_u24 v4, 896, v2\nv_lshlrev_b32 v5, 3, v3\nv_add_u32 v4, v4, v5")
    a.e("s_mul_i32 s20, s30, 28672\ns_lshl_b32 s15, s31, 6\ns_add_u32 s20, s20, s15")
    for g in range(4):
        a.e(f"buffer_load_dwordx2 v[{64+2*g}:{65+2*g}], v4, s[8:11], s20 offen offset:{g*16}")
    a.label(f"{name}_nox")
    for lim, lab in ((B0, "A"), (D0, "B"), (D0 + ND, "Dn"), (C0, "pdone0"), (E0, "C"), (F0, "pdone0")):
        a.e(f"s_cmp_lt_u32 s2, {lim}\ns_cbranch_scc1 {name}_{lab}")
    a.vmq = []

    def stage(nins):
        a.e("s_lshl_b32 s22, s12, 13")
        for i in range(nins):
            a.e("s_mov_b32 m0, s22\ns_nop 0")
            a.e("buffer_load_dwordx4 v4, s[8:11], s20 offen lds", tag="raw")
            if i != nins - 1: a.e("s_add_u32 s20, s20, s21\ns_add_u32 s22, s22, 1024")
    def lanes(rb, col): a.e(f"v_mul_lo_u32 v4, s{rb}, v12\nv_add3_u32 v4, v4, v13, s{col}")
    def trread(dst, va, off): a.e(f"ds_read_b64_tr_b16 v[{dst}:{dst+1}], v{va} offset:{off}", tag="tr")
    def reset(): a.vmq = []; a.lgq = []
    def ts0(r):
        if opts.get("prof"): a.e(f"s_memrealtime s[{r}:{r+1}]\ns_waitcnt lgkmcnt(0)")
    FR = 16
    def ship(n):
        for fr in range(n):
            a.e(f"s_waitcnt lgkmcnt({min(15, 2*n - 2 - 2*fr)})")
            a.e(f"buffer_store_dwordx4 v[{FR+4*fr}:{FR+4*fr+3}], v1, s[4:7], s24 offen" + SC_CD)
            a.e("s_add_u32 s24, s24, 1024")

    a.e("v_mov_b32 v16, 0\nv_mov_b32 v17, 0\nv_mov_b32 v18, 0\nv_mov_b32 v19, 0")
    a.e(f"v_lshlrev_b32 v5, 4, v0\ns_mov_b32 s20, {FLAGS}")
    for i in range(FLAGZ // 4096):
        a.e("buffer_store_dwordx4 v[16:19], v5, s[4:7], s20 offen" + SC)
        a.e("s_add_u32 s20, s20, 4096")
    src(P_WPHI, H * DH * DH * 2)
    a.e(f"v_mov_b32 v4, v1\ns_mul_i32 s20, s12, {4*1568}\ns_mov_b32 s21, 1024")
    stage(7)
    if not standalone:
        a.e("s_waitcnt vmcnt(7)\ns_barrier")
        a.e(f"s_mov_b32 s16, s{P_DBG}\ns_mov_b32 s17, s{P_DBG+1}\ns_mov_b32 s18, 256\ns_mov_b32 s19, 0x20000")
        a.e("v_mov_b32 v5, 1\ns_cmp_eq_u32 s12, 0\ns_cselect_b64 exec, 1, 0")
        a.e("buffer_store_dword v5, off, s[16:19], 0 sc1")
        a.e("s_mov_b64 exec, -1")
    a.e("v_and_b32 v9, 3, v7\nv_bfe_u32 v10, v7, 4, 1\nv_bfe_u32 v11, v7, 2, 2")
    a.e("v_lshl_add_u32 v14, v10, 2, v9\nv_min_u32 v14, 6, v14\nv_lshlrev_b32 v14, 3, v14")
    a.e("v_lshl_add_u32 v11, v3, 2, v11\nv_mul_u32_u24 v11, 56, v11\nv_add_u32 v8, v11, v14")
    a.e("s_lshl_b32 s13, s12, 13\nv_add_u32 v8, s13, v8")
    a.e(f"v_mov_b32 v14, {LOOB}\nv_cmp_eq_u32 vcc, 0, v3\nv_cndmask_b32 v9, v14, v8, vcc")
    a.e(f"s_lshl_b32 s24, s12, 13\ns_add_u32 s24, s24, {PHI}")
    ts0(94)
    a.e("s_waitcnt vmcnt(0)")
    ts0(92)
    reset()
    for fr in range(8):
        q, e = fr // 2, fr % 2
        off = q * 1568 + 16 * e * 56
        trread(FR + 4*fr, 8, off); trread(FR + 4*fr + 2, 9 if e else 8, off + 8 * 56)
    ship(8)
    a.e(f"s_branch {name}_pdone")

    reset()
    a.label(f"{name}_A")
    src(P_WQKV, D * 3 * D * 2)
    a.e("s_and_b32 s13, s2, 7\ns_lshr_b32 s14, s2, 3\ns_lshl_b32 s13, s13, 1\ns_and_b32 s15, s14, 1\ns_add_u32 s13, s13, s15\ns_lshr_b32 s14, s14, 1")
    a.e(f"s_mul_i32 s18, s13, 3\ns_add_u32 s18, s18, s14\ns_mul_i32 s18, s18, {KW*KB}\ns_add_u32 s18, s18, {WQKV}")
    a.e("s_mul_i32 s14, s14, 896\ns_mul_i32 s13, s13, 56\ns_add_u32 s15, s13, s14")
    a.e("s_mov_b32 s16, 2688")
    a.e(f"v_and_b32 v11, v10, v9\nv_lshrrev_b32 v14, 1, v9\nv_and_b32 v11, v11, v14\nv_cmp_eq_u32 vcc, 1, v11\nv_mov_b32 v14, {LOOB}\nv_cndmask_b32 v8, v8, v14, vcc")
    a.e(f"s_branch {name}_AB")
    a.label(f"{name}_B")
    a.e(f"s_sub_u32 s13, s2, {B0}\ns_and_b32 s14, s13, 7\ns_lshr_b32 s13, s13, 3\ns_and_b32 s15, s13, 1\ns_lshr_b32 s13, s13, 1")
    a.e("s_lshl_b32 s13, s13, 3\ns_add_u32 s13, s13, s14")
    a.e("s_and_b32 s14, s13, 1\ns_lshr_b32 s13, s13, 1\ns_lshl_b32 s13, s13, 1\ns_add_u32 s13, s13, s15")
    a.e("s_lshl_b32 s13, s13, 1\ns_add_u32 s13, s13, s14")
    a.e("s_cmp_eq_u32 s14, 0")
    a.e(f"s_cselect_b32 s8, s{P_WG}, s{P_WU}\ns_cselect_b32 s9, s{P_WG+1}, s{P_WU+1}\ns_mov_b32 s10, {D*F*2}\ns_mov_b32 s11, 0x20000")
    a.e("s_lshr_b32 s15, s13, 1\ns_lshl_b32 s15, s15, 6")
    a.e("s_mov_b32 s16, 3584")
    a.e(f"s_mul_i32 s18, s13, {KW*KB}\ns_add_u32 s18, s18, {WGU}")
    a.label(f"{name}_AB")
    lanes(16, 15)
    a.e("s_mul_i32 s20, s12, 112\ns_mul_i32 s20, s20, s16\ns_lshl_b32 s21, s16, 4")
    stage(7)
    a.e("s_mov_b32 s23, 0x3f803f80")
    a.e(f"s_mul_i32 s24, s12, {7*KB}\ns_add_u32 s24, s24, s18")
    ts0(94)
    a.e("s_waitcnt vmcnt(0)")
    ts0(92)
    reset()
    for s in range(7):
        trread(FR + 4*s, 8, s * 1024); trread(FR + 4*s + 2, 8, s * 1024 + 512)
    a.e("v_mov_b32 v48, 0\nv_mov_b32 v49, 0")
    for s in range(7):
        a.e(f"s_waitcnt lgkmcnt({min(15, 12 - 2*s)})")
        a.e(f"buffer_store_dwordx4 v[{FR+4*s}:{FR+4*s+3}], v1, s[4:7], s24 offen" + SC_AB)
        a.e("s_add_u32 s24, s24, 1024")
        for d in range(4): a.e(f"v_dot2_f32_bf16 v{48 + d % 2}, v{FR+4*s+d}, s23, v{48 + d % 2}")
    a.lgq = []
    a.e(f"v_add_f32 v48, v48, v49\nv_lshlrev_b32 v9, 2, v0\nv_add_u32 v9, {L_SUM}, v9")
    a.e("ds_write_b32 v9, v48")
    a.e("s_waitcnt lgkmcnt(0)\ns_barrier")
    a.e(f"s_cmp_lg_u32 s12, 0\ns_cbranch_scc1 {name}_pdone")
    a.e(f"v_lshlrev_b32 v9, 2, v2\nv_add_u32 v9, {L_SUM}, v9")
    for q in range(8): a.e(f"ds_read_b32 v{50+q}, v9 offset:{q*128}")
    a.e("s_waitcnt lgkmcnt(0)")
    a.e("v_add_f32 v50, v50, v51\nv_add_f32 v52, v52, v53\nv_add_f32 v54, v54, v55\nv_add_f32 v56, v56, v57")
    a.e("v_add_f32 v50, v50, v52\nv_add_f32 v54, v54, v56\nv_add_f32 v50, v50, v54")
    a.e("v_cvt_pk_bf16_f32 v51, v50, v50\nv_lshlrev_b32 v51, 16, v51\nv_sub_f32 v52, v50, v51\nv_cvt_pk_bf16_f32 v52, v51, v52")
    a.e("v_cmp_eq_u32 vcc, 0, v3\nv_mov_b32 v54, 0\nv_mov_b32 v55, 0\nv_cndmask_b32 v52, v54, v52, vcc\nv_mov_b32 v53, v52")
    a.e(f"s_add_u32 s24, s18, {28*KB}")
    a.e("buffer_store_dwordx4 v[52:55], v1, s[4:7], s24 offen" + SC_AB)
    a.e(f"s_branch {name}_pdone")

    reset()
    a.label(f"{name}_C")
    src(P_WO, D * D * 2)
    a.e(f"s_sub_u32 s13, s2, {C0}\ns_and_b32 s14, s13, 7\ns_lshr_b32 s13, s13, 3")
    a.e(f"s_cmp_eq_u32 s14, 7\ns_cbranch_scc1 {name}_pdone0")
    a.e("s_lshl_b32 s14, s14, 1\ns_add_u32 s13, s13, s14\ns_lshl_b32 s15, s13, 6\ns_mov_b32 s16, 896")
    lanes(16, 15)
    a.e(f"s_mul_i32 s20, s12, {112*896}\ns_mov_b32 s21, {16*896}")
    stage(7)
    a.e(f"v_mov_b32 v14, {LOOB}\nv_cmp_eq_u32 vcc, 0, v3\nv_cndmask_b32 v9, v14, v8, vcc")
    a.e(f"s_lshl_b32 s24, s13, 5\ns_lshl_b32 s25, s12, 3\ns_add_u32 s24, s24, s25\ns_lshl_b32 s24, s24, 10\ns_add_u32 s24, s24, {WO}")
    ts0(94)
    a.e("s_waitcnt vmcnt(0)")
    ts0(92)
    reset()
    for fr in range(8):
        q, e = fr // 2, fr % 2
        off = (28 * q + 16 * e) * 64
        trread(FR + 4*fr, 8, off); trread(FR + 4*fr + 2, 9 if e else 8, off + 512)
    ship(8)
    a.e(f"s_branch {name}_pdone")

    reset()
    a.label(f"{name}_Dn")
    src(P_WD, F * D * 2)
    a.e(f"s_sub_u32 s13, s2, {D0}\ns_mul_i32 s14, s13, 9363\ns_lshr_b32 s14, s14, 16")
    a.e("s_mul_i32 s25, s14, 7\ns_sub_u32 s25, s13, s25\ns_lshl_b32 s25, s25, 2\ns_add_u32 s25, s25, s12")
    a.e("v_lshrrev_b32 v4, 3, v7\nv_mul_u32_u24 v4, 896, v4\nv_and_b32 v5, 7, v7\nv_lshlrev_b32 v5, 4, v5\ns_lshl_b32 s15, s14, 7\nv_add3_u32 v4, v4, v5, s15")
    a.e(f"s_mul_i32 s20, s25, {64*896}\ns_mov_b32 s21, {8*896}")
    stage(8)
    a.e("v_bfe_u32 v8, v7, 2, 2\nv_lshl_add_u32 v8, v3, 2, v8\nv_lshlrev_b32 v8, 7, v8\nv_add_u32 v8, v8, v11")
    a.e("s_lshl_b32 s13, s12, 13\nv_add_u32 v8, s13, v8")
    a.e(f"s_mul_i32 s24, s14, 224\ns_lshl_b32 s26, s25, 2\ns_add_u32 s24, s24, s26\ns_lshl_b32 s24, s24, 10\ns_add_u32 s24, s24, {WD}")
    ts0(94)
    a.e("s_waitcnt vmcnt(0)")
    ts0(92)
    reset()
    for e in range(2):
        for s in range(4):
            fr = 4 * e + s
            trread(FR + 4*fr, 8, s * 2048 + e * 64); trread(FR + 4*fr + 2, 8, s * 2048 + e * 64 + 1024)
    for fr in range(8):
        a.e(f"s_waitcnt lgkmcnt({min(15, 14 - 2*fr)})")
        a.e(f"buffer_store_dwordx4 v[{FR+4*fr}:{FR+4*fr+3}], v1, s[4:7], s24 offen" + SC_CD)
        a.e(f"s_add_u32 s24, s24, {1024 if fr != 3 else (112 - 3) * 1024}")
    a.e(f"s_branch {name}_pdone")

    reset()
    a.label(f"{name}_pdone0")
    a.e("s_waitcnt vmcnt(0)")
    if opts.get("prof"): a.e("s_memrealtime s[92:93]\ns_memrealtime s[94:95]\ns_waitcnt lgkmcnt(0)")
    a.label(f"{name}_pdone")
    a.e(f"s_cmp_ge_u32 s2, {NXB}\ns_cbranch_scc1 {name}_nox2")
    a.e(f"s_mul_i32 s21, s30, 28\ns_lshl_b32 s15, s31, 1\ns_add_u32 s21, s21, s15\ns_lshl_b32 s21, s21, 10\ns_add_u32 s21, s21, {X}")
    a.e(f"s_mul_i32 s22, s30, 3584\ns_lshl_b32 s15, s31, 8\ns_add_u32 s22, s22, s15\ns_add_u32 s22, s22, {ST}")
    a.e("s_mov_b32 s23, 0x3f803f80\nv_lshlrev_b32 v6, 3, v2\nv_mov_b32 v8, 0\nv_mov_b32 v9, 0")
    a.e("buffer_store_dwordx4 v[64:67], v1, s[4:7], s21 offen" + SC_X)
    a.e("buffer_store_dwordx4 v[68:71], v1, s[4:7], s21 offen offset:1024" + SC_X)
    for q in range(8):
        a.e(f"v_dot2_f32_bf16 v8, v{64+q}, s23, v8")
        a.e(f"v_dot2_f32_bf16 v9, v{64+q}, v{64+q}, v9")
    a.e("v_mov_b32 v10, v8\nv_mov_b32 v11, v9")
    a.e("v_permlane32_swap_b32 v10, v8\nv_permlane32_swap_b32 v11, v9")
    a.e("v_add_f32 v12, v8, v10\nv_add_f32 v13, v9, v11")
    a.e("s_mov_b32 exec_hi, 0")
    a.e("buffer_store_dwordx2 v[12:13], v6, s[4:7], s22 offen" + SC_X)
    a.e("s_mov_b32 exec_hi, -1")
    a.label(f"{name}_nox2")
    if standalone: return
    lab = f"{name}_pw"
    a.e(f"s_mov_b32 s16, s{P_DBG}\ns_mov_b32 s17, s{P_DBG+1}\ns_mov_b32 s18, 256\ns_mov_b32 s19, 0x20000")
    def ts(r):
        if opts.get("prof"): a.e(f"s_memrealtime s[{r}:{r+1}]\ns_waitcnt lgkmcnt(0)")
    ts(86)
    a.e("s_waitcnt vmcnt(0) lgkmcnt(0)\ns_barrier")
    ts(88)
    a.e(f"s_cmp_lg_u32 s12, 0\ns_cbranch_scc1 {lab}_skip")
    a.e("s_mov_b64 exec, 1\ns_mov_b32 s28, 0")
    a.label(f"{lab}_z")
    a.e("buffer_load_dword v5, off, s[16:19], 0 sc1")
    a.e(f"s_add_u32 s28, s28, 1\ns_cmp_gt_u32 s28, 200000\ns_cbranch_scc1 {lab}_zx")
    a.e(f"s_waitcnt vmcnt(0)\nv_readfirstlane_b32 s23, v5\ns_cmp_eq_u32 s23, 0\ns_cbranch_scc1 {lab}_z")
    a.label(f"{lab}_zx")
    ts(90)
    a.e(f"s_and_b32 s20, s2, 15\ns_lshl_b32 s20, s20, 7\ns_add_u32 s20, s20, {PFLAG}")
    a.e("v_mov_b32 v5, 1\ns_waitcnt vmcnt(0)")
    a.e("buffer_atomic_add v5, off, s[4:7], s20 sc1")
    a.e(f"s_mov_b64 exec, 0xffff\nv_and_b32 v6, 15, v0\nv_lshlrev_b32 v6, 7, v6\ns_mov_b32 s20, {PFLAG}\ns_mov_b32 s28, 0")
    a.label(f"{lab}_p")
    if int(opts.get("psl0", 0)): a.e(f"s_sleep {int(opts.get('psl0'))}")
    a.e("buffer_load_dword v5, v6, s[4:7], s20 offen sc1")
    a.e(f"s_add_u32 s28, s28, 1\ns_cmp_gt_u32 s28, 200000\ns_cbranch_scc1 {lab}_px")
    a.e(f"s_waitcnt vmcnt(0)\nv_cmp_gt_u32 vcc, 16, v5\ns_cbranch_vccnz {lab}_p")
    a.label(f"{lab}_px")
    a.e("s_waitcnt vmcnt(0)\ns_mov_b64 exec, -1")
    a.label(f"{lab}_skip")
    a.e("s_barrier")
    reset()


NPREP = 256
PREP_LDS = L_SUM + 1024
def gen_prep(name, opts=None):
    from asmlib import Asm
    opts = opts or {}
    a = Asm()
    a.label(name)
    if opts.get("prof"): a.e("s_memrealtime s[84:85]")
    a.e(f"s_cmp_lt_u32 s2, {NPREP}\ns_cbranch_scc1 {name}_go\ns_endpgm")
    a.label(f"{name}_go")
    a.e("s_load_dwordx16 s[64:79], s[0:1], 0\ns_load_dwordx2 s[4:5], s[0:1], 80")
    if str(opts.get("prof")) == "3":
        a.e("s_waitcnt lgkmcnt(0)")
        a.e(f"s_mov_b32 s6, {WS_USED}\ns_mov_b32 s7, 0x20000\ns_lshl_b32 s20, s2, 3\ns_add_u32 s20, s20, {DBG + 256*512}\nv_mov_b32 v16, s84\ns_mov_b64 exec, 1")
        a.e("buffer_store_dword v16, off, s[4:7], s20\ns_mov_b64 exec, -1")
        a.vmq = []
    emit_prep(a, name, dict(opts, prof=None), standalone=True)
    if opts.get("prof") and str(opts.get("prof")) != "3":
        a.e("s_waitcnt vmcnt(0)\ns_memrealtime s[86:87]\ns_waitcnt lgkmcnt(0)")
        a.e(f"s_lshl_b32 s20, s2, 3\ns_add_u32 s20, s20, {DBG + 256*512}\nv_mov_b32 v16, s84\nv_mov_b32 v17, s86\ns_mov_b64 exec, 1")
        a.e("buffer_store_dwordx2 v[16:17], off, s[4:7], s20")
    a.e("s_endpgm")
    return a.finalize()
```

```python
from asmlib import Asm
from layout import *
import struct
def hexf(x): return "0x%08x" % struct.unpack("<I", struct.pack("<f", x))[0]

L_W1   = 0
L_XR   = 89088
XSLOT  = 28672
L_KVR  = 89088
L_KVA  = 121856
L_RED  = 89088
L_SCR3 = 146432
L_B29  = 148480
L_SCR  = 152576
L_MARK = 163328
LDS_BYTES = 163840

S_RB, S_J, S_W, S_L, S_TH, S_CB, S_TT, S_NT = 12, 13, 14, 15, 16, 17, 18, 19
S_T0, S_T1, S_T2, S_T3 = 20, 21, 22, 23
S_SEL_LO, S_SEL_HI = 24, 25
S_UP = 26
S_CNT, S_JS, S_Q, S_M = 28, 29, 30, 31
S_A, S_B, S_C, S_D = 32, 33, 34, 35
S_E, S_F = 38, 39
S_G = [40, 41, 42, 43, 44, 45, 46, 47]
S_FRB, S_FJ = 48, 49
S_TILE, S_N = 50, 51
S_XT = 52
F_S1, F_S2, F_S3, F_S4E, F_S4L, F_S5 = 0, 1, 2, 3, 5, 7

V_POLL, V_L16, V_L16H, V_STL, V_I8, V_ONE, V_C, V_MARK = 0, 1, 2, 3, 4, 5, 6, 7
V_T0, V_T1, V_T2, V_T3, V_T4, V_T5, V_T6, V_T7 = 8, 9, 10, 11, 12, 13, 14, 15
A_PHI, A_ID, A_RES = 232, 240, 248

def vr(b, n=4): return f"v[{b}:{b+n-1}]"
def ar(b, n=4): return f"a[{b}:{b+n-1}]"
MF = "v_mfma_f32_32x32x16_bf16"
def cost_of(t):
    if t.startswith(("v_exp", "v_rcp", "v_rsq")): return 8
    if t.startswith("v_mfma"): return 32
    if t.startswith("@"): return 2
    return 4

class Gen:
    def __init__(self, name, stop=None, opts=None):
        self.a = Asm(); self.name = name; self.stop = stop; self.o = opts or {}
        self.marks = []
    def opt(self, k, d): return int(self.o.get(k, d))

    def emit(self, t):
        a = self.a
        if t.startswith("@flag "): self.flags.add(t.split()[1])
        elif t.startswith("@waitlg "): a.wait_lg(tuple(t.split()[1:]))
        elif t.startswith("@waitvm "): a.wait_vm(tuple(t.split()[1:]))
        elif "|" in t:
            txt, tag = t.split("|"); a.e(txt, tag=tag)
        else: a.e(t)
    def emits(self, L):
        for t in L: self.emit(t)
    def sa(self, dst, terms, const=0):
        L = []
        first = True
        for r, m in terms:
            tgt = dst if first else S_T3
            if m == 1:
                if first: L.append(f"s_mov_b32 s{dst}, s{r}")
                else: L.append(f"s_add_u32 s{dst}, s{dst}, s{r}")
                first = False
                continue
            if m & (m - 1) == 0: L.append(f"s_lshl_b32 s{tgt}, s{r}, {m.bit_length()-1}")
            else: L.append(f"s_mul_i32 s{tgt}, s{r}, {m}")
            if not first: L.append(f"s_add_u32 s{dst}, s{dst}, s{S_T3}")
            first = False
        if first: L.append(f"s_mov_b32 s{dst}, {const}")
        elif const: L.append(f"s_add_u32 s{dst}, s{dst}, {const}")
        return L
    def ld(self, dst, soff, imm, tag, sc1=True, n=4, vaddr=V_L16):
        op = {4: "buffer_load_dwordx4", 2: "buffer_load_dwordx2", 1: "buffer_load_dword"}[n]
        return f"{op} {dst}, v{vaddr}, s[4:7], s{soff} offen" + (f" offset:{imm}" if imm else "") + (" sc1" if sc1 else "") + f"|{tag}"
    def st(self, src, soff, imm, tag, n=4, vaddr=V_L16):
        op = {4: "buffer_store_dwordx4", 2: "buffer_store_dwordx2"}[n]
        loc = self.opt("x_local", 0) >= 1 and tag != "slab"
        return f"{op} {src}, v{vaddr}, s[4:7], s{soff} offen" + (f" offset:{imm}" if imm else "") + ("" if loc else " sc1") + f"|{tag}"
    def seq_items(self, n, dstf, cur, tagf, sc1):
        items = []
        for i in range(n):
            it = [self.ld(dstf(i), cur, (i % 4) * 1024, tagf(i), sc1)]
            if i % 4 == 3 and i != n - 1: it.append(f"s_add_u32 s{cur}, s{cur}, 4096")
            items.append(it)
        return items
    def dma_items(self, n, lds, cur, tag, sc1):
        items = []
        for i in range(n):
            it = []
            if i % 4 == 0: it += [f"s_mov_b32 m0, s{lds}", "s_nop 0"]
            it.append(f"buffer_load_dwordx4 v{V_L16}, s[4:7], s{cur} offen" + (f" offset:{(i%4)*1024}" if i % 4 else "") + (" sc1" if sc1 else "") + f" lds|{tag}")
            if i % 4 == 3 and i != n - 1: it += [f"s_add_u32 s{cur}, s{cur}, 4096", f"s_add_u32 s{lds}, s{lds}, 4096"]
            items.append(it)
        return items
    @staticmethod
    def zip2(x, y):
        out = []
        for i in range(max(len(x), len(y))):
            if i < len(x): out.append(x[i])
            if i < len(y): out.append(y[i])
        return out
    def take(self, bg, n):
        for _ in range(n):
            if bg: self.emits(bg.pop(0))
    def ldsaddr(self, off):
        if off < 65536: return V_L16, off
        assert off < 131072
        return V_L16H, off - 65536

    def weave(self, mains, fills, bg=None, bg_every=2, bg_start=0, caps=(24,), bg_phase=0):
        fi = 0
        nb = 0
        for k, m in enumerate(mains):
            m()
            cap = caps[k % len(caps)]
            c = 0
            if bg and k >= bg_start and (k - bg_start) % bg_every == bg_phase:
                it = bg.pop(0)
                self.emits(it); c += 12 if any(" lds" in t for t in it) else 8
            nv = 0
            while fi < len(fills):
                t = fills[fi]
                if t.startswith("s_") or t.startswith("@"):
                    self.emit(t); fi += 1; continue
                w = cost_of(t)
                if t.startswith("~"): w = 2
                if t.startswith("ds_read") or t.startswith("ds_write") or t.startswith("buffer_"): w = 8
                lim = cap if (w == 8 or nv * 4 != c) else min(cap, 20)
                if c + w > lim: break
                self.emit(t); fi += 1; c += w
                if w == 4: nv += 1
        while fi < len(fills):
            self.emit(fills[fi]); fi += 1
    def emits_bg(self, L, bg, n, first=0, every=10):
        k = 0
        for i, t in enumerate(L):
            if k < n and bg and i >= first and (i - first) % every == 0:
                self.emits(bg.pop(0)); k += 1
            self.emit(t)

    def mark(self, name):
        if not self.o.get("prof"): return
        if self.opt("prof", 0) == 3 and (name != "p1_start" or self.opt("single", 0) or self.opt("y", 0)): return
        a = self.a
        k = len(self.marks); self.marks.append(name)
        a.e(("s_memtime" if self.opt("prof", 0) == 2 else "s_memrealtime") + " s[36:37]\ns_waitcnt lgkmcnt(0)")
        a.lgq = []
        a.e(f"v_writelane_b32 v{V_MARK}, s36, {k}")
    def dump_marks(self):
        a = self.a
        lab = a.newlabel("dm")
        a.e("s_memrealtime s[36:37]\ns_waitcnt lgkmcnt(0)")
        a.e(f"v_writelane_b32 v{V_MARK}, s36, 63")
        a.e(f"s_cmp_lg_u32 s{S_W}, 0\ns_cbranch_scc1 {lab}")
        a.e(f"s_lshl_b32 s{S_T0}, s2, 9\ns_add_u32 s{S_T0}, s{S_T0}, {DBG}")
        a.e(f"v_lshrrev_b32 v{V_T0}, 2, v{V_L16}")
        a.e(f"v_add_u32 v{V_T1}, {L_MARK}, v{V_T0}\nds_read_b32 v{V_T1}, v{V_T1}\ns_waitcnt lgkmcnt(0)")
        a.e(f"buffer_store_dword v{V_T1}, v{V_T0}, s[4:7], s{S_T0} offen")
        a.e(f"buffer_store_dword v{V_MARK}, v{V_T0}, s[4:7], s{S_T0} offen offset:256")
        a.e("s_waitcnt vmcnt(0)")
        a.label(lab)

    def arrive(self, base, slot, tags, slot_sreg=None, barrier=True):
        a = self.a
        a.wait_vm(tags)
        if barrier: a.e("s_barrier")
        a.e(f"s_add_u32 s{S_T2}, s{base}, {slot*2048}")
        if slot_sreg is not None: a.e(f"s_lshl_b32 s{S_T3}, s{slot_sreg}, 11\ns_add_u32 s{S_T2}, s{S_T2}, s{S_T3}")
        a.e(f"v_mov_b32 v{V_T7}, 1\ns_cmp_eq_u32 s{S_W}, 0\ns_cselect_b64 exec, 1, 0")
        loc = self.opt("x_local", 0) >= 2 and base == S_FRB
        a.e_uncounted(f"buffer_atomic_add v{V_T7}, off, s[4:7], s{S_T2}" + ("" if loc else " sc1"))
        a.e("s_mov_b64 exec, -1")
    def poll(self, base, slot, target, slot_sreg=None, extra=0):
        a = self.a
        lab, lp, lx = a.newlabel("pol"), a.newlabel("plp"), a.newlabel("plx")
        a.e(f"s_add_u32 s{S_T2}, s{base}, {slot*2048 + extra}")
        if slot_sreg is not None: a.e(f"s_lshl_b32 s{S_T3}, s{slot_sreg}, 11\ns_add_u32 s{S_T2}, s{S_T2}, s{S_T3}")
        a.e(f"s_cmp_lg_u32 s{S_W}, 0\ns_cbranch_scc1 {lab}")
        vq, lq = list(a.vmq), list(a.lgq)
        dep = self.opt("pdepth", 2)
        a.e(f"s_mov_b32 s{S_CNT}, 0")
        for k in range(dep):
            a.e(f"s_mov_b64 exec, {1 << k}\nbuffer_load_dword v{V_POLL}, off, s[4:7], s{S_T2} sc1")
            if k != dep - 1: a.e(f"s_sleep {self.opt('psleep', 2)}")
        a.label(lp)
        for k in range(dep):
            a.e(f"s_waitcnt vmcnt({dep-1})\nv_readlane_b32 s{S_T3}, v{V_POLL}, {k}")
            a.e(f"s_cmp_ge_u32 s{S_T3}, {target}\ns_cbranch_scc1 {lx}")
            a.e(f"s_mov_b64 exec, {1 << k}\nbuffer_load_dword v{V_POLL}, off, s[4:7], s{S_T2} sc1")
        a.e(f"s_add_u32 s{S_CNT}, s{S_CNT}, 1\ns_cmp_lt_u32 s{S_CNT}, 200000\ns_cbranch_scc1 {lp}")
        a.label(lx)
        a.e("s_mov_b64 exec, -1")
        a.vmq, a.lgq = vq, lq
        a.label(lab)
        a.e("s_barrier")

    def apoll_issue(self, base, slot, lane, slot_sreg, dst):
        a = self.a
        a.e(f"s_lshl_b32 s{dst}, s{slot_sreg}, 11\ns_add_u32 s{dst}, s{dst}, s{base}\ns_add_u32 s{dst}, s{dst}, {slot*2048}")
        a.e(f"s_mov_b64 exec, {1 << lane}")
        a.e(f"buffer_load_dword v{V_POLL}, off, s[4:7], s{dst} sc1", tag=f"ap{lane}")
        a.e("s_mov_b64 exec, -1")
    def apoll_check(self, lane, target, dst):
        a = self.a
        ok, lp = a.newlabel("apk"), a.newlabel("apl")
        a.wait_vm(f"ap{lane}")
        a.e(f"v_readlane_b32 s{S_T3}, v{V_POLL}, {lane}\ns_cmp_ge_u32 s{S_T3}, {target}\ns_cbranch_scc1 {ok}")
        vq, lq = list(a.vmq), list(a.lgq)
        a.e(f"s_mov_b32 s{S_CNT}, 0\ns_mov_b64 exec, {1 << lane}")
        a.label(lp)
        a.e(f"buffer_load_dword v{V_POLL}, off, s[4:7], s{dst} sc1")
        a.e(f"s_add_u32 s{S_CNT}, s{S_CNT}, 1\ns_cmp_gt_u32 s{S_CNT}, 200000\ns_cbranch_scc1 {lp}_x")
        a.e(f"s_waitcnt vmcnt(0)\nv_readlane_b32 s{S_T3}, v{V_POLL}, {lane}\ns_cmp_lt_u32 s{S_T3}, {target}\ns_cbranch_scc1 {lp}")
        a.label(f"{lp}_x")
        a.e("s_waitcnt vmcnt(0)\ns_mov_b64 exec, -1")
        a.vmq, a.lgq = vq, lq
        a.label(ok)

    @staticmethod
    def bc(r): return f"v[{r & ~1}:{(r & ~1) + 1}]", r & 1
    def pk_fma_bc(self, dst, src, rb, rc, neg_a=0, neg_c=0):
        (tb, sb), (tc, sc) = self.bc(rb), self.bc(rc)
        return (f"v_pk_fma_f32 v[{dst}:{dst+1}], v[{src}:{src+1}], {tb}, {tc} op_sel:[0,{sb},{sc}] op_sel_hi:[1,{sb},{sc}]"
                f" neg_lo:[{neg_a},0,{neg_c}] neg_hi:[{neg_a},0,{neg_c}]")
    def pk_mul_bc(self, dst, src, rb):
        tb, sb = self.bc(rb)
        return f"v_pk_mul_f32 v[{dst}:{dst+1}], v[{src}:{src+1}], {tb} op_sel:[0,{sb}] op_sel_hi:[1,{sb}]"
    @staticmethod
    def pk_add(dst, x, y): return f"v_pk_add_f32 v[{dst}:{dst+1}], v[{x}:{x+1}], v[{y}:{y+1}]"

    def stats_reduce(self, b, vV, vM, t0, t1):
        L = []
        for k in (0, 1):
            L += [f"v_add_f32 v{b+k}, v{b+k}, v{b+2+k}", f"v_add_f32 v{b+4+k}, v{b+4+k}, v{b+6+k}", f"v_add_f32 v{b+8+k}, v{b+8+k}, v{b+10+k}"]
        for k in (0, 1):
            L += [f"v_add_f32 v{b+k}, v{b+k}, v{b+4+k}", f"v_add_f32 v{b+8+k}, v{b+8+k}, v{b+12+k}"]
        for k in (0, 1): L += [f"v_add_f32 v{b+k}, v{b+k}, v{b+8+k}"]
        L += [f"v_mov_b32 v{t0}, v{b}", f"v_mov_b32 v{t1}, v{b+1}", "s_nop 0",
              f"v_permlane32_swap_b32 v{t0}, v{b}", f"v_permlane32_swap_b32 v{t1}, v{b+1}",
              f"v_add_f32 v{b}, v{b}, v{t0}", f"v_add_f32 v{b+1}, v{b+1}, v{t1}",
              f"v_mul_f32 v{vM}, {hexf(1.0/D)}, v{b}",
              f"v_mul_f32 v{t1}, {hexf(1.0/D)}, v{b+1}",
              f"v_mul_f32 v{t0}, v{vM}, v{vM}",
              f"v_sub_f32 v{vV}, v{t1}, v{t0}",
              f"v_max_f32 v{vV}, 0, v{vV}",
              f"v_add_f32 v{vV}, {hexf(1e-5)}, v{vV}"]
        return L

    def x29(self, dst, vM, t0):
        return [f"v_cvt_pk_bf16_f32 v{t0}, -v{vM}, -v{vM}",
                f"v_and_b32 v{dst+1}, 0xffff0000, v{t0}",
                f"v_add_f32 v{dst+1}, v{dst+1}, v{vM}",
                f"v_mov_b32 v{dst+2}, 0", f"v_mov_b32 v{dst+3}, 0",
                f"v_cvt_pk_bf16_f32 v{dst+1}, -v{dst+1}, -v{dst+1}",
                f"v_cndmask_b32 v{dst}, v{t0}, v{dst+2}, s[{S_UP}:{S_UP+1}]",
                f"v_cndmask_b32 v{dst+1}, v{dst+1}, v{dst+2}, s[{S_UP}:{S_UP+1}]"]

    def softmax(self, R, P, t):
        mx, mn, u, w, bp, bn, bpm, bnm = [t + k for k in range(8)]
        L = [f"v_max3_f32 v{mx}, v{R}, v{R+1}, v{R+2}", f"v_min3_f32 v{mn}, v{R}, v{R+1}, v{R+2}",
             f"v_max3_f32 v{u}, v{R+3}, v{R+4}, v{R+5}", f"v_min3_f32 v{w}, v{R+3}, v{R+4}, v{R+5}"]
        for k in (6, 10):
            L += [f"v_max3_f32 v{mx}, v{mx}, v{R+k}, v{R+k+1}", f"v_min3_f32 v{mn}, v{mn}, v{R+k}, v{R+k+1}",
                  f"v_max3_f32 v{u}, v{u}, v{R+k+2}, v{R+k+3}", f"v_min3_f32 v{w}, v{w}, v{R+k+2}, v{R+k+3}"]
        L += [f"v_max3_f32 v{mx}, v{mx}, v{R+14}, v{R+15}", f"v_min3_f32 v{mn}, v{mn}, v{R+14}, v{R+15}",
              f"v_max_f32 v{mx}, v{mx}, v{u}", f"v_min_f32 v{mn}, v{mn}, v{w}",
              f"v_mov_b32 v{u}, v{mx}", f"v_mov_b32 v{w}, v{mn}",
              f"v_mov_b32 v{bpm}, {hexf(1e30)}", f"v_mov_b32 v{bnm}, {hexf(-1e30)}",
              f"v_permlane32_swap_b32 v{u}, v{mx}", f"v_permlane32_swap_b32 v{w}, v{mn}",
              f"v_max_f32 v{mx}, v{mx}, v{u}", f"v_min_f32 v{mn}, v{mn}, v{w}",
              f"v_mul_f32 v{bp}, v{V_C}, v{mx}", f"v_mul_f32 v{bn}, v{V_C}, v{mn}",
              f"v_cndmask_b32 v{bpm}, v{bp}, v{bpm}, s[{S_UP}:{S_UP+1}]",
              f"v_cndmask_b32 v{bnm}, v{bn}, v{bnm}, s[{S_UP}:{S_UP+1}]"]
        for g in range(4):
            for k in (0, 2): L.append(self.pk_fma_bc(P + 4*g + k, R + 4*g + k, V_C, bpm if g == 3 else bp, 0, 1))
            for k in (0, 2): L.append(self.pk_fma_bc(R + 4*g + k, R + 4*g + k, V_C, bnm if g == 3 else bn, 1, 0))
        for g in range(4):
            for k in range(4): L.append(f"v_exp_f32 v{P+4*g+k}, v{P+4*g+k}")
            for k in range(4): L.append(f"v_exp_f32 v{R+4*g+k}, v{R+4*g+k}")
            if g == 1: L += [self.pk_add(mx, P, P + 2), self.pk_add(u, R, R + 2)]
            elif g >= 2:
                for k in (0, 2): L += [self.pk_add(mx, mx, P + 4*(g-1) + k), self.pk_add(u, u, R + 4*(g-1) + k)]
        for k in (0, 2): L += [self.pk_add(mx, mx, P + 12 + k), self.pk_add(u, u, R + 12 + k)]
        L += [f"v_add_f32 v{mx}, v{mx}, v{mn}", f"v_add_f32 v{u}, v{u}, v{w}",
              f"v_mov_b32 v{mn}, v{mx}", f"v_mov_b32 v{w}, v{u}", "s_nop 0",
              f"v_permlane32_swap_b32 v{mn}, v{mx}", f"v_permlane32_swap_b32 v{w}, v{u}",
              f"v_add_f32 v{mx}, v{mx}, v{mn}", f"v_add_f32 v{u}, v{u}, v{w}",
              f"v_rcp_f32 v{mx}, v{mx}", f"v_rcp_f32 v{u}, v{u}"]
        for k in range(0, 16, 2): L.append(self.pk_mul_bc(P + k, P + k, mx))
        for k in range(0, 16, 2): L.append(self.pk_mul_bc(R + k, R + k, u))
        for d in range(8): L.append(f"v_cvt_pk_bf16_f32 v{P+d}, v{P+2*d}, v{P+2*d+1}")
        for d in range(8): L.append(f"v_cvt_pk_bf16_f32 v{R+d}, v{R+2*d}, v{R+2*d+1}")
        return L

    def phi_apply(self, R, tb):
        L = [f"v_cvt_pk_bf16_f32 v{tb+d}, v{R+2*d}, v{R+2*d+1}" for d in range(8)]
        L.append(f"{MF} {vr(R,16)}, {ar(A_PHI)}, {vr(tb)}, 0")
        L.append(f"{MF} {vr(R,16)}, {ar(A_PHI+4)}, {vr(tb+4)}, {vr(R,16)}")
        return L

    def w3_stream(self):
        g0, g1 = S_G[0], S_G[1]
        pre = self.sa(g0, [(S_JS, 4 * 2 * KW * KB), (S_W, 2 * KW * KB)], WGU) + [f"s_add_u32 s{g1}, s{g0}, {KW*KB}"]
        its = self.zip2(self.seq_items(KW, lambda s: ar(8*s), g0, lambda s: f"w3_{s}", False),
                        self.seq_items(KW, lambda s: ar(8*s+4), g1, lambda s: f"w3_{s}", False))
        self.emits(pre)
        return its
    def wo_stream(self):
        its = []
        for sl in range(2):
            c = S_G[2 + sl]
            pre = [f"s_xor_b32 s{c}, s{S_NT}, {sl}"] + [f"s_lshl_b32 s{c}, s{c}, 15"] + self.sa(S_T0, [(S_CB, 2 * 32 * KB), (S_W, 8 * KB)], WO) + [f"s_add_u32 s{c}, s{c}, s{S_T0}"]
            x = self.seq_items(8, lambda i: vr(16 + 32 * sl + 4 * i), c, lambda i: "wo", False)
            self.emits(pre)
            its.append(x)
        return self.zip2(its[0], its[1])
    W4A = 128
    def w4_reg(self, i, sl):
        return vr(self.W4A + 8*i + 4*sl) if i < 16 else ar(8*(i - 16) + 4*sl)
    def kseg(self, dst, late):
        if late: return self.sa(dst, [(S_TH, 56), (S_W, 14)], 0)
        return self.sa(dst, [(S_W, 14)], 56) + [f"s_mul_i32 s{S_T3}, s{S_TH}, 56", f"s_sub_u32 s{dst}, s{dst}, s{S_T3}"]
    def w4_stream(self):
        out = []
        for late in (0, 1):
            its = []
            for sl in range(2):
                c = S_G[2 * late + sl]
                pre = self.kseg(S_T0, late) + [f"s_xor_b32 s{c}, s{S_NT}, {sl}", f"s_mul_i32 s{c}, s{c}, 112", f"s_add_u32 s{c}, s{c}, s{S_T0}"]
                pre += [f"s_mul_i32 s{S_T0}, s{S_CB}, 224", f"s_add_u32 s{c}, s{c}, s{S_T0}", f"s_lshl_b32 s{c}, s{c}, 10", f"s_add_u32 s{c}, s{c}, {WD}"]
                x = self.seq_items(14, lambda i: self.w4_reg(14 * late + i, sl), c, lambda i: f"w4_{14*late+i}", False)
                self.emits(pre)
                its.append(x)
            out += self.zip2(its[0], its[1])
        return out
    def p1w_items(self, part):
        c, l = S_G[4], S_G[5]
        its = self.dma_items(8, l, c, "w1" + "qkv"[part], False)
        pre = self.sa(l, [(S_W, 7 * KB)], L_W1 + part * KW * KB) + self.sa(c, [(S_J, 3 * KW * KB), (S_W, 7 * KB)], WQKV + part * KW * KB)
        its[0] = pre + its[0]
        return its

    def prologue(self):
        a, n = self.a, self.name
        a.label(n)
        a.e(f"s_cmp_lt_u32 s2, 256\ns_cbranch_scc1 {n}_go\ns_endpgm")
        a.label(f"{n}_go")
        Y = self.opt("y", 0)
        if Y:
            import start4
            self.st4 = start4.Start(self)
            a.e("s_load_dwordx16 s[64:79], s[0:1], 0\ns_load_dwordx4 s[80:83], s[0:1], 64\ns_load_dwordx2 s[4:5], s[0:1], 80")
            if self.o.get("prof"): a.e("s_memrealtime s[84:85]")
        elif self.opt("single", 0):
            import prep3
            a.e("s_load_dwordx16 s[64:79], s[0:1], 0\ns_load_dwordx4 s[80:83], s[0:1], 64\ns_load_dwordx2 s[4:5], s[0:1], 80")
            if self.o.get("prof"): a.e("s_memrealtime s[84:85]")
            prep3.emit_prep(a, n, self.o)
            a.e("s_mov_b32 s8, s80\ns_mov_b32 s9, s81")
        else:
            a.e("s_load_dwordx2 s[4:5], s[0:1], 80\ns_load_dwordx2 s[8:9], s[0:1], 64")
        if self.opt("pf_main", 0):
            nl = self.opt("pf_lines", 16)
            a.e("s_getpc_b64 s[60:61]")
            a.label(f"{n}_pc")
            a.e(f"s_sub_u32 s60, s60, {n}_pc-{n}\ns_subb_u32 s61, s61, 0")
            a.e(f"s_lshr_b32 s62, s2, 3\ns_and_b32 s62, s62, 31\ns_mul_i32 s62, s62, {nl*64}\ns_min_u32 s62, s62, {n}_end-{n}-{nl*64}\ns_add_u32 s60, s60, s62\ns_addc_u32 s61, s61, 0")
            for i in range(nl): a.e(f"s_load_dwordx16 s[64:79], s[60:61], {i*64}")
        a.e(f"s_mov_b32 s6, {WS_USED}\ns_mov_b32 s7, 0x20000\ns_mov_b32 s10, {S*D*2}\ns_mov_b32 s11, 0x20000")
        if self.opt("rbmap", 0):
            a.e(f"s_and_b32 s{S_T2}, s2, 15\ns_lshr_b32 s{S_T3}, s2, 4")
            a.e(f"s_lshr_b32 s{S_T0}, s{S_T2}, 2\ns_lshl_b32 s{S_T0}, s{S_T0}, 1\ns_lshr_b32 s{S_T1}, s{S_T3}, 3\ns_add_u32 s{S_T0}, s{S_T0}, s{S_T1}")
            a.e(f"s_and_b32 s{S_T1}, s{S_T3}, 7\ns_lshl_b32 s{S_T1}, s{S_T1}, 2\ns_and_b32 s{S_T2}, s{S_T2}, 3\ns_add_u32 s{S_T1}, s{S_T1}, s{S_T2}")
        elif self.opt("antimap", 0): a.e(f"s_lshr_b32 s{S_T0}, s2, 5\ns_and_b32 s{S_T1}, s2, 31")
        else: a.e(f"s_and_b32 s{S_T0}, s2, 7\ns_lshr_b32 s{S_T1}, s2, 3")
        if self.opt("map8", 0):
            a.e(f"s_and_b32 s{S_RB}, s{S_T1}, 15\ns_lshr_b32 s{S_T1}, s{S_T1}, 4\ns_lshl_b32 s{S_J}, s{S_T0}, 1\ns_add_u32 s{S_J}, s{S_J}, s{S_T1}")
            a.e(f"s_lshr_b32 s{S_TH}, s{S_J}, 3\ns_and_b32 s{S_Q}, s{S_J}, 7")
        elif self.opt("map4", 0):
            a.e(f"s_and_b32 s{S_T2}, s{S_T0}, 3\ns_lshr_b32 s{S_T0}, s{S_T0}, 2\ns_lshl_b32 s{S_T0}, s{S_T0}, 3")
            a.e(f"s_and_b32 s{S_RB}, s{S_T1}, 7\ns_add_u32 s{S_RB}, s{S_RB}, s{S_T0}\ns_lshr_b32 s{S_T1}, s{S_T1}, 3")
            a.e(f"s_lshr_b32 s{S_TH}, s{S_T2}, 1\ns_and_b32 s{S_T3}, s{S_T2}, 1\ns_lshl_b32 s{S_T3}, s{S_T3}, 2\ns_add_u32 s{S_Q}, s{S_T3}, s{S_T1}")
            a.e(f"s_lshl_b32 s{S_J}, s{S_TH}, 3\ns_add_u32 s{S_J}, s{S_J}, s{S_Q}")
        else:
            a.e(f"s_and_b32 s{S_TH}, s{S_T0}, 1\ns_lshr_b32 s{S_T0}, s{S_T0}, 1\ns_lshl_b32 s{S_T0}, s{S_T0}, 2")
            a.e(f"s_and_b32 s{S_RB}, s{S_T1}, 3\ns_add_u32 s{S_RB}, s{S_RB}, s{S_T0}")
            a.e(f"s_lshr_b32 s{S_Q}, s{S_T1}, 2\ns_lshl_b32 s{S_J}, s{S_TH}, 3\ns_add_u32 s{S_J}, s{S_J}, s{S_Q}")
        a.e(f"s_min_u32 s{S_CB}, s{S_Q}, 6\ns_mul_i32 s{S_JS}, s{S_TH}, 7\ns_add_u32 s{S_JS}, s{S_JS}, s{S_CB}")
        a.e(f"s_lshl_b32 s{S_M}, s{S_TH}, 1\ns_sub_u32 s{S_M}, 2, s{S_M}")
        a.e(f"v_lshrrev_b32 v{V_T0}, 6, v0\nv_and_b32 v{V_T1}, 63, v0\nv_lshlrev_b32 v{V_L16}, 4, v{V_T1}")
        a.e(f"v_readfirstlane_b32 s{S_W}, v{V_T0}")
        a.e(f"v_add_u32 v{V_L16H}, 0x10000, v{V_L16}")
        a.e(f"v_and_b32 v{V_T2}, 31, v0\nv_bfe_u32 v{V_T3}, v0, 5, 1")
        a.e(f"v_lshlrev_b32 v{V_I8}, 3, v{V_T2}")
        a.e(f"v_mul_u32_u24 v{V_STL}, 1792, v{V_T3}\nv_add_u32 v{V_STL}, v{V_STL}, v{V_I8}")
        a.e(f"s_lshr_b32 s{S_TT}, s{S_W}, 1\ns_and_b32 s{S_NT}, s{S_W}, 1")
        a.e(f"s_mov_b32 s{S_SEL_LO}, 0x3f80\ns_mov_b32 s{S_SEL_HI}, 0x3f800000")
        a.e(f"s_mov_b32 s{S_UP}, 0\ns_mov_b32 s{S_UP+1}, -1")
        a.e(f"s_mov_b32 s{S_L}, 0")
        self.emits(self.sa(S_TILE, [(S_RB, 4), (S_TH, 2), (S_TT, 1)]))
        self.emits(self.sa(S_N, [(S_CB, 2), (S_NT, 1)]))
        self.emits(self.sa(S_XT, [(S_RB, 4), (S_W, 1)]))
        if self.o.get("prof"):
            a.e(f"v_mov_b32 v{V_MARK}, 0")
            if self.opt("single", 0) and not Y:
                k = len(self.marks); self.marks.append("start")
                a.e(f"v_writelane_b32 v{V_MARK}, s84, {k}")
                for nm, r in (("t_ldiss", 94), ("t_landed", 92), ("t_issued", 86), ("t_drained", 88), ("t_zeroseen", 90)):
                    k = len(self.marks); self.marks.append(nm)
                    a.e(f"v_writelane_b32 v{V_MARK}, s{r}, {k}")
                self.mark("prepdone")
        a.e("s_waitcnt lgkmcnt(0)")
        if Y:
            R = dict(W=S_W, J=S_J, L16=V_L16, I8=V_I8, A_PHI=A_PHI, SEL_LO=S_SEL_LO, SEL_HI=S_SEL_HI)
            self.R4 = R
            self.st4.lane_consts(S_W)
            self.st4.front(R)
        else:
            for it in self.p1w_items(1) + self.p1w_items(2): self.emits(it)
            self.emits(self.sa(S_T0, [(S_J, 2 * KB)], PHI))
            for it in self.seq_items(2, lambda i: ar(A_PHI + 4*i), S_T0, lambda i: "phi", False): self.emits(it)
            if self.opt("lateq", 0) != 1:
                self.emits(self.sa(S_T0, [(S_TILE, 28 * KB), (S_N, 2 * KB)], X))
                for it in self.seq_items(2, lambda i: ar(A_RES + 4*i), S_T0, lambda i: "res", False): self.emits(it)
            if not self.opt("lateq", 0):
                for it in self.p1w_items(0): self.emits(it)
        a.e(f"v_cmp_eq_u32 vcc, 28, v{V_T2}\nv_mov_b32 v{V_T4}, 1.0\nv_mov_b32 v{V_ONE}, 0\nv_cndmask_b32 v{V_ONE}, v{V_ONE}, v{V_T4}, vcc")
        a.e(f"v_lshlrev_b32 v{V_T3}, 2, v{V_T3}\nv_sub_u32 v{V_T2}, v{V_T2}, v{V_T3}")
        a.e(f"v_mov_b32 v{V_T4}, 0x3f80\nv_mov_b32 v{V_T5}, 0x3f800000")
        for s in range(2):
            for d in range(4):
                j = 2 * d
                c = 16 * s + 8 * (j // 4) + (j % 4)
                a.e(f"v_mov_b32 v{V_T6}, 0")
                a.e(f"v_cmp_eq_u32 vcc, {c}, v{V_T2}\nv_cndmask_b32 v{V_T6}, v{V_T6}, v{V_T4}, vcc")
                a.e(f"v_cmp_eq_u32 vcc, {c+1}, v{V_T2}\nv_cndmask_b32 v{V_T6}, v{V_T6}, v{V_T5}, vcc")
                a.e(f"v_accvgpr_write_b32 a{A_ID+4*s+d}, v{V_T6}")
        if Y:
            self.st4.xblock(self.R4)
            self.st4.bg_issue(self.R4)
            a.e(f"s_mov_b32 s8, s80\ns_mov_b32 s9, s81\ns_mov_b32 s10, {S*D*2}\ns_mov_b32 s11, 0x20000")
            self.st4.self_center(self.R4)
            self.st4.ts(86)
            if self.o.get("prof"):
                for nm, r in (("start", 84), ("t_ldiss", 94), ("t_landed", 92), ("t_arr", 90), ("t_center", 86)):
                    k = len(self.marks); self.marks.append(nm)
                    a.e(f"v_writelane_b32 v{V_MARK}, s{r}, {k}")
            a.vmq = []; a.lgq = []

    def layer_setup(self):
        self.emits(self.sa(S_FRB, [(S_L, NSYNC * 2048), (S_RB, 128)], FLAGS))
        self.emits(self.sa(S_FJ, [(S_L, NSYNC * 2048), (S_J, 128)], FLAGS))

    def p1(self):
        a = self.a
        XF, RK, RV, RQ, RING, RA, RB, TB = 16, 128, 144, 160, 176, 208, 224, 240
        RS, KR, QRING = 160, 176, 192
        LA = self.opt("la1", 6)
        self.mark("p1_start")
        self.emits(self.sa(S_A, [(S_XT, 28 * KB), (S_L, 2 * XSZ)], X))
        xi = self.seq_items(28, lambda s: vr(XF + 4*s), S_A, lambda s: f"x{s}", True)
        self.take(xi, 2)
        self.emits(self.sa(S_B, [(S_XT, 3584), (S_L, 2 * STSZ)], ST))
        for k in range(7): self.emit(self.ld(vr(RA + 2*k, 2), S_B, k * 256, "st", n=2, vaddr=V_STL))
        self.take(xi, LA - 2)
        Y = self.opt("y", 0)
        assert not Y
        if Y:
            lab = a.newlabel("l0only")
            a.e(f"s_cmp_lg_u32 s{S_L}, 0\ns_cbranch_scc1 {lab}")
            vq, lq, vt = list(a.vmq), list(a.lgq), a.vm_total
            self.st4.bg_finish(self.R4, len(a.vmq))
            self.emits(self.sa(S_T0, [(S_TILE, 28 * KB), (S_N, 2 * KB)], X))
            for it in self.seq_items(2, lambda i: ar(A_RES + 4*i), S_T0, lambda i: "res", True): self.emits(it)
            a.vmq, a.lgq, a.vm_total = vq, lq, vt
            a.label(lab)
            self.vm_mark = a.vm_total
            a.e("s_waitcnt lgkmcnt(0)")
        a.wait_vm(("w1k", "w1v", "phi", "res"))
        a.e("s_barrier")
        self.mark("p1_wready")
        wq = []
        if self.opt("lateq", 0) == 2:
            wq = self.p1w_items(0)
            self.emits(wq[0][:-3] if False else [])
        X29 = 248
        self.flags = set()
        def xreg(s):
            if s == 28:
                assert "x29" in self.flags
                return X29
            return XF + 4 * s
        def rdA(s):
            sl = RING + 8 * (s % 4)
            r, of = self.ldsaddr(L_W1 + (KW + s) * KB); a.e(f"ds_read_b128 {vr(sl)}, v{r} offset:{of}", tag=f"a{s}")
            r, of = self.ldsaddr(L_W1 + (2 * KW + s) * KB); a.e(f"ds_read_b128 {vr(sl+4)}, v{r} offset:{of}", tag=f"a{s}")
        for s in range(3): rdA(s)
        def mk(s):
            def f():
                if s + 3 < KW: rdA(s + 3)
                if xi: self.take(xi, 1)
                else: self.take(wq, 1)
                if Y and s == self.opt("bgarr", 14):
                    a.e(f"s_waitcnt vmcnt({min(63, a.vm_total - self.vm_mark)})\ns_barrier")
                    a.e(f"s_and_b32 s{S_T2}, s2, 15\ns_lshl_b32 s{S_T2}, s{S_T2}, 7\ns_add_u32 s{S_T2}, s{S_T2}, {PFLAG + 2048}")
                    a.e(f"v_mov_b32 v{V_T7}, 1\ns_cmp_eq_u32 s{S_W}, 0\ns_cselect_b64 exec, 1, 0")
                    a.e_uncounted(f"buffer_atomic_add v{V_T7}, off, s[4:7], s{S_T2} sc1")
                    a.e("s_mov_b64 exec, -1")
                a.wait_both(f"x{s}", f"a{s}")
                sl = RING + 8 * (s % 4)
                a.e(f"{MF} {vr(RK,16)}, {vr(sl)}, {vr(xreg(s))}, {vr(RK,16) if s else 0}")
            return f
        def mv(s):
            def f():
                sl = RING + 8 * (s % 4)
                a.e(f"{MF} {vr(RV,16)}, {vr(xreg(s))}, {vr(sl+4)}, {vr(RV,16) if s else 0}")
            return f
        mains = []
        for s in range(KW): mains += [mk(s), mv(s)]
        fills = ["@waitvm st"] + self.stats_reduce(RA, V_T0, V_T1, V_T2, V_T3) + self.x29(X29, V_T1, V_T2) + ["@flag x29"]
        fills += [f"v_rsq_f32 v{V_T0}, v{V_T0}", f"v_lshrrev_b32 v{V_T1}, 1, v{V_I8}"]
        fills += self.sa(S_T0, [(S_W, 128)], L_SCR)
        fills += [f"v_add_u32 v{V_T1}, s{S_T0}, v{V_T1}", f"ds_write_b32 v{V_T1}, v{V_T0}|scw",
                  f"v_mul_f32 v{V_C}, {hexf(1.4426950408889634)}, v{V_T0}",
                  f"v_lshrrev_b32 v{V_T1}, 5, v{V_L16}", f"v_and_b32 v{V_T1}, 16, v{V_T1}",
                  f"v_add_u32 v{V_T1}, s{S_T0}, v{V_T1}", "@waitlg scw"]
        fills += [f"ds_read_b128 {vr(RS+4*g)}, v{V_T1} offset:{g*32}|rs" for g in range(4)]
        self.weave(mains, fills, caps=(20, 0))
        self.take(wq, len(wq))
        self.mark("p1_loopA")
        if self.opt("lateq", 0) == 1:
            lab = a.newlabel("lq")
            a.e(f"s_cmp_lg_u32 s{S_L}, 0\ns_cbranch_scc1 {lab}")
            vq, lq, vt = list(a.vmq), list(a.lgq), a.vm_total
            for it in self.p1w_items(0): self.emits(it)
            self.emits(self.sa(S_T0, [(S_TILE, 28 * KB), (S_N, 2 * KB)], X))
            for it in self.seq_items(2, lambda i: ar(A_RES + 4*i), S_T0, lambda i: "res", False): self.emits(it)
            a.vmq, a.lgq, a.vm_total = vq, lq, vt
            a.label(lab)
            self.lq_mark = a.vm_total
        w3 = self.w3_stream()
        vch = ["@waitlg rs"] + [f"v_pk_fma_f32 v[{RV+r}:{RV+r+1}], v[{RV+r}:{RV+r+1}], v[{RS+r}:{RS+r+1}], v[4:5] op_sel:[0,0,1] op_sel_hi:[1,1,1]" for r in range(0, 16, 2)]
        vch += [f"v_cvt_pk_bf16_f32 v{RV+d}, v{RV+2*d}, v{RV+2*d+1}" for d in range(8)]
        nk = self.opt("bg_k", 8) if not Y else 0
        if Y:
            a.e(f"v_lshlrev_b32 v249, 3, v{V_L16}\ns_mov_b32 s{S_F}, {PFLAG + 2048}\ns_mov_b64 exec, 0xffff")
            a.e(f"buffer_load_dword v248, v249, s[4:7], s{S_F} offen sc1", tag="dq")
            a.e("s_mov_b64 exec, -1")
        self.take(w3, min(nk, self.opt("bg_k0", 4)))
        self.emits(self.phi_apply(RK, TB))
        self.emits(vch)
        self.emits_bg(self.softmax(RK, RA, V_T0), w3, nk - min(nk, self.opt("bg_k0", 4)), first=0, every=self.opt("bg_k_every", 6))
        self.mark("p1_kepi")
        a.e(f"{MF} {vr(RB,16)}, {vr(RA)}, {ar(A_ID)}, 0")
        a.e(f"{MF} {vr(RB,16)}, {vr(RA+4)}, {ar(A_ID+4)}, {vr(RB,16)}")
        a.e(f"{MF} {vr(RA,16)}, {vr(RK)}, {ar(A_ID)}, 0")
        a.e(f"{MF} {vr(RA,16)}, {vr(RK+4)}, {ar(A_ID+4)}, {vr(RA,16)}")
        self.emits(self.sa(S_T0, [(S_W, 2048)], L_KVR) + [f"v_add_u32 v{V_T0}, s{S_T0}, v{V_L16}"])
        self.emits(self.sa(S_T0, [(S_W, 8192)], L_KVR) + [f"v_add_u32 v{V_T1}, s{S_T0}, v{V_L16}"])
        self.emits(self.sa(S_C, [(S_J, 4 * 16 * KB), (S_W, 16 * KB), (S_L, SLABSZ)], SLAB))
        for d in range(8): a.e(f"v_cvt_pk_bf16_f32 v{RB+d}, v{RB+2*d}, v{RB+2*d+1}")
        a.e(f"{MF} {vr(RK,16)}, {vr(RB)}, {vr(RV)}, 0")
        a.e(f"{MF} {vr(RK,16)}, {vr(RB+4)}, {vr(RV+4)}, {vr(RK,16)}")
        for d in range(8): a.e(f"v_cvt_pk_bf16_f32 v{RA+d}, v{RA+2*d}, v{RA+2*d+1}")
        a.e(f"{MF} {vr(RB,16)}, {vr(RA)}, {vr(RV)}, 0")
        a.e(f"{MF} {vr(RB,16)}, {vr(RA+4)}, {vr(RV+4)}, {vr(RB,16)}")
        self.emits(self.sa(S_D, [(S_RB, KB), (S_C, 1)]))
        for t, R in ((0, RK), (1, RB)):
            for s in range(2):
                for g in range(2):
                    a.e(f"ds_write_b128 v{V_T0}, {vr(R+8*s+4*g)} offset:{(2*t+s)*8192+g*1024}", tag="kw")
        a.wait_vm("w1q")
        if self.opt("lateq", 0) == 1: a.e(f"s_waitcnt vmcnt({min(63, a.vm_total - self.lq_mark)})")
        a.e("s_waitcnt lgkmcnt(0)\ns_barrier")
        for ws in range(4):
            for g in range(2):
                a.e(f"ds_read_b128 {vr(KR+8*ws+4*g)}, v{V_T1} offset:{(ws*2+g)*1024}", tag=f"kr{ws}")
        def rdB(s):
            sl = QRING + 4 * (s % 4) + 16
            r, of = self.ldsaddr(L_W1 + s * KB); a.e(f"ds_read_b128 {vr(sl)}, v{r} offset:{of}", tag=f"b{s}")
        a.wait_lg("kr1")
        for r in range(0, 8, 2): a.e(self.pk_add(KR + r, KR + r, KR + 8 + r))
        a.wait_lg("kr3")
        for r in range(0, 8, 2): a.e(self.pk_add(KR + 16 + r, KR + 16 + r, KR + 24 + r))
        for r in range(0, 8, 2): a.e(self.pk_add(KR + r, KR + r, KR + 16 + r))
        for d in range(4): a.e(f"v_cvt_pk_bf16_f32 v{KR+d}, v{KR+2*d}, v{KR+2*d+1}")
        self.emit(self.st(vr(KR), S_D, 0, "slab"))
        self.mark("p1_slab")
        if Y: self.done_check()
        for s in range(3): rdB(s)
        ARR = self.opt("arr1", 20)
        def mq(s):
            def f():
                if s == ARR: self.arrive(S_FJ, F_S1, "slab")
                if s + 3 < KW: rdB(s + 3)
                a.wait_lg(f"b{s}")
                sl = QRING + 4 * (s % 4) + 16
                a.e(f"{MF} {vr(RQ,16)}, {vr(sl)}, {vr(xreg(s))}, {vr(RQ,16) if s else 0}")
            return f
        self.weave([mq(s) for s in range(KW)], [], bg=w3, bg_every=self.opt("bg_q_every", 2))
        self.mark("p1_qpass")
        wo = self.wo_stream()
        qe = self.phi_apply(RQ, TB) + self.softmax(RQ, RA, V_T0)
        self.slab_items = None
        if self.opt("early_slab", 0):
            c1 = self.opt("es_cut", 40)
            a.e(f"s_mov_b32 s{S_E}, 0")
            self.apoll_issue(S_FJ, F_S1, 10, S_E, S_F)
            self.emits_bg(qe[:c1], wo, self.opt("es_wo0", 3), first=2, every=12)
            self.apoll_check(10, 16, S_F)
            self.mark("S1_poll")
            sl = self.seq_items(16, lambda i: vr(80 + 4*i), S_C, lambda i: f"sl{i}", True)
            self.emits_bg(qe[c1:], sl, 16, first=0, every=self.opt("es_every", 5))
            self.take(sl, len(sl))
            self.slab_items = True
        else:
            cut = self.opt("ap1", 70)
            self.emits_bg(qe[:cut], wo, self.opt("bg_qe", 6), first=0, every=11)
            if self.opt("async1", 1):
                a.e(f"s_mov_b32 s{S_E}, 0")
                self.apoll_issue(S_FJ, F_S1, 10, S_E, S_F)
            self.emits(qe[cut:])
        self.mark("p1_qepi")
        self.RA, self.RQ, self.w3, self.wo = RA, RQ, w3, wo

    def done_check(self):
        a = self.a
        ok, lp = a.newlabel("dok"), a.newlabel("dlp")
        a.wait_vm("dq")
        a.e(f"s_mov_b64 exec, 0xffff\nv_cmp_gt_u32 vcc, 16, v248\ns_cbranch_vccz {ok}")
        vq, lq, vt = list(a.vmq), list(a.lgq), a.vm_total
        a.e(f"s_mov_b32 s{S_CNT}, 0\ns_mov_b32 s{S_F}, {PFLAG + 2048}")
        a.label(lp)
        a.e(f"buffer_load_dword v248, v249, s[4:7], s{S_F} offen sc1")
        a.e(f"s_add_u32 s{S_CNT}, s{S_CNT}, 1\ns_cmp_gt_u32 s{S_CNT}, 200000\ns_cbranch_scc1 {lp}_x")
        a.e(f"s_waitcnt vmcnt(0)\nv_cmp_gt_u32 vcc, 16, v248\ns_cbranch_vccnz {lp}")
        a.label(f"{lp}_x")
        a.e("s_waitcnt vmcnt(0)")
        a.vmq, a.lgq, a.vm_total = vq, lq, vt
        a.label(ok)
        a.e("s_mov_b64 exec, -1")

    def p2a(self):
        a = self.a
        RA, RQ = self.RA, self.RQ
        SL, AC, KA, RB, TB = 80, 176, 188, 224, 240
        if not self.slab_items:
            if self.opt("async1", 1): self.apoll_check(10, 16, S_F)
            else: self.poll(S_FJ, F_S1, 16)
            self.mark("S1_poll")
            for it in self.seq_items(16, lambda i: vr(SL + 4*i), S_C, lambda i: f"sl{i}", True): self.emits(it)
        nwo = min(len(self.wo), self.opt("wo_2a", 16))
        bg2 = [self.wo.pop(0) for _ in range(nwo)] + [self.w3.pop(0) for _ in range(min(len(self.w3), self.opt("bg_2a", 0)))]
        for i in range(16):
            if i >= self.opt("bg_2a_first", 4) and bg2: self.emits(bg2.pop(0))
            a.wait_vm(f"sl{i}")
            for d in range(4):
                a.e(f"v_dot2_f32_bf16 v{AC+2*d}, v{SL+4*i+d}, s{S_SEL_LO}, {'v%d' % (AC+2*d) if i else 0}")
                a.e(f"v_dot2_f32_bf16 v{AC+2*d+1}, v{SL+4*i+d}, s{S_SEL_HI}, {'v%d' % (AC+2*d+1) if i else 0}")
        self.take(bg2, len(bg2))
        self.emits(self.sa(S_T0, [(S_W, KB)], L_KVA) + [f"v_add_u32 v{V_T0}, s{S_T0}, v{V_L16}"])
        self.emits(self.sa(S_A, [(S_XT, 32 * KB), (S_J, 2 * KB), (S_L, OSZ)], O))
        for d in range(4): a.e(f"v_cvt_pk_bf16_f32 v{AC+8+d}, v{AC+2*d}, v{AC+2*d+1}")
        a.e(f"ds_write_b128 v{V_T0}, {vr(AC+8)}")
        a.e("s_waitcnt lgkmcnt(0)\ns_barrier")
        for p in range(4):
            r, of = self.ldsaddr(L_KVA + p * KB)
            a.e(f"ds_read_b128 {vr(KA+4*p)}, v{r} offset:{of}", tag=f"ka{p}")
        Bs = [RA, RA + 4, RQ, RQ + 4]
        for p in range(4):
            a.wait_lg(f"ka{p}")
            a.e(f"{MF} {vr(RB,16)}, {vr(KA+4*p)}, {vr(Bs[p])}, {vr(RB,16) if p else 0}")
        a.e(f"v_mov_b32 v{V_T0}, v{RB+12}\nv_mov_b32 v{V_T1}, v{RB+12}")
        a.e(f"v_permlane32_swap_b32 v{V_T0}, v{V_T1}")
        a.e(f"v_add_f32 v{V_T1}, {hexf(1e-6)}, v{V_T1}\nv_rcp_f32 v{V_T1}, v{V_T1}")
        for r in range(0, 16, 2): a.e(self.pk_mul_bc(RB + r, RB + r, V_T1))
        for d in range(8): a.e(f"v_cvt_pk_bf16_f32 v{TB+d}, v{RB+2*d}, v{RB+2*d+1}")
        self.emit(self.st(vr(TB), S_A, 0, "ost")); self.emit(self.st(vr(TB+4), S_A, 1024, "ost"))
        self.mark("p2a_ost")
        self.arrive(S_FRB, F_S2, "ost")
        self.take(self.wo, len(self.wo))
        self.take(self.w3, self.opt("bg_s2", 0))
        self.mark("S2_arr")

    def red_addr(self):
        L = []
        for u in range(1, 4):
            L += [f"s_xor_b32 s{S_T0}, s{S_W}, {u}", f"s_mul_i32 s{S_T0}, s{S_T0}, 12288", f"s_add_u32 s{S_T0}, s{S_T0}, {L_RED+(u-1)*4096}",
                  f"v_add_u32 v{V_T0+u}, s{S_T0}, v{V_L16}"]
        L += self.sa(S_T0, [(S_W, 12288)], L_RED) + [f"v_add_u32 v{V_T0}, s{S_T0}, v{V_L16}"]
        return L
    def red_write(self, ACC, u):
        return [f"ds_write_b128 v{V_T0+u}, {vr(ACC+16*u+4*g)} offset:{g*1024}|rw" for g in range(4)]
    def res_unpack(self, TR):
        L = [f"v_accvgpr_read_b32 v{TR+16+d}, a{A_RES+d}" for d in range(8)]
        for d in range(8):
            L += [f"v_lshlrev_b32 v{TR+2*d}, 16, v{TR+16+d}", f"v_and_b32 v{TR+2*d+1}, 0xffff0000, v{TR+16+d}"]
        return L
    def red_finish(self, ACC, TR):
        a = self.a
        for r in range(0, 16, 2): a.e(self.pk_add(ACC + r, ACC + r, TR + r))
        a.e("s_waitcnt lgkmcnt(0)\ns_barrier")
        RD = ACC + 16
        for u in range(3):
            for g in range(4):
                a.e(f"ds_read_b128 {vr(RD+16*u+4*g)}, v{V_T0} offset:{u*4096+g*1024}", tag=f"rr{u}")
        for u in range(3):
            a.wait_lg(f"rr{u}")
            for r in range(0, 16, 2): a.e(self.pk_add(ACC + r, ACC + r, RD + 16*u + r))
        for d in range(8): a.e(f"v_cvt_pk_bf16_f32 v{TR+d}, v{ACC+2*d}, v{ACC+2*d+1}")
        self.PK, self.ACC = TR, ACC
    def x_store_addr(self, xsel):
        return (self.sa(S_E, [(S_TILE, 28 * KB), (S_N, 2 * KB), (S_L, 2 * XSZ)], X + xsel * XSZ) +
                self.sa(S_F, [(S_TILE, 3584), (S_N, 256), (S_L, 2 * STSZ)], ST + xsel * STSZ))
    def store_x_and_stats(self):
        a = self.a
        PK, ACC = self.PK, self.ACC
        self.emit(self.st(vr(PK), S_E, 0, "xst")); self.emit(self.st(vr(PK+4), S_E, 1024, "xst"))
        t = PK + 8
        a.e(self.pk_add(t, ACC, ACC + 2))
        a.e(f"v_pk_mul_f32 v[{t+2}:{t+3}], v[{ACC}:{ACC+1}], v[{ACC}:{ACC+1}]")
        for r in range(2, 16, 2):
            if r > 2: a.e(self.pk_add(t, t, ACC + r))
            a.e(f"v_pk_fma_f32 v[{t+2}:{t+3}], v[{ACC+r}:{ACC+r+1}], v[{ACC+r}:{ACC+r+1}], v[{t+2}:{t+3}]")
        a.e(f"v_add_f32 v{t}, v{t}, v{t+1}\nv_add_f32 v{t+1}, v{t+2}, v{t+3}")
        a.e(f"v_mov_b32 v{t+2}, v{t}\nv_mov_b32 v{t+3}, v{t+1}")
        a.e(f"v_permlane32_swap_b32 v{t+2}, v{t}\nv_permlane32_swap_b32 v{t+3}, v{t+1}")
        a.e(self.pk_add(t, t, t + 2))
        a.e("s_mov_b32 exec_hi, 0")
        self.emit(self.st(f"v[{t}:{t+1}]", S_F, 0, "xst", n=2, vaddr=V_I8))
        a.e("s_mov_b32 exec_hi, -1")
        for d in range(8): a.e(f"v_accvgpr_write_b32 a{A_RES+d}, v{PK+d}")

    def p2b(self):
        a = self.a
        OB, ACC, TR = 80, 144, 208
        pre = []
        for b, c in ((0, S_A), (1, S_B)):
            pre += [f"s_xor_b32 s{c}, s{S_TILE}, {b}", f"s_lshl_b32 s{c}, s{c}, 15"] + self.sa(S_T0, [(S_W, 8 * KB), (S_L, OSZ)], O) + [f"s_add_u32 s{c}, s{c}, s{S_T0}"]
        self.emits(pre)
        self.poll(S_FRB, F_S2, 16)
        self.mark("S2_poll")
        ob = [self.seq_items(8, lambda i: vr(OB + 32*b + 4*i), (S_A, S_B)[b], lambda i: f"o{b}_{i}", True) for b in range(2)]
        for it in ob[1] + ob[0]: self.emits(it)
        nb = self.opt("bg_2b", 14)
        self.emits(self.red_addr() + self.x_store_addr(1))
        a.wait_vm("wo")
        def mf(u, i):
            b, sl = u >> 1, u & 1
            a.e(f"{MF} {vr(ACC+16*u,16)}, {vr(16+32*sl+4*i)}, {vr(OB+32*b+4*i)}, {vr(ACC+16*u,16) if i else 0}")
        for i in range(8):
            a.wait_vm(f"o1_{i}")
            mf(2, i); mf(3, i)
            if i < nb: self.take(self.w3, 1)
        resu = self.res_unpack(TR)
        wr = self.red_write(ACC, 2) + self.red_write(ACC, 3)
        for i in range(8):
            a.wait_vm(f"o0_{i}")
            mf(1, i)
            if i >= 2 and wr: self.emit(wr.pop(0))
            self.emits(resu[3*i:3*i+3])
            mf(0, i)
            if i >= 2 and wr: self.emit(wr.pop(0))
            if 8 + i < nb: self.take(self.w3, 1)
        self.emits(wr)
        self.mark("p2b_mfma")
        self.emits(self.red_write(ACC, 1))
        self.red_finish(ACC, TR)
        self.store_x_and_stats()
        self.mark("p2b_st")
        self.arrive(S_FRB, F_S3, "xst")
        self.take(self.w3, self.opt("bg_s3", 0))
        self.mark("S3_arr")

    def p3(self):
        a = self.a
        ACC0, ACC1, RING, CC, TT, HP, STB = 16, 48, 80, 96, 100, 116, 100
        V_X1, V_CA, V_CB = V_T5, V_T4, V_T6
        xds = []
        for p in range(4):
            gc, gl = 56 + 2 * p, 57 + 2 * p
            self.emits([f"s_xor_b32 s{S_T0}, s{S_M}, {p}"] + self.sa(gc, [(S_T0, 28 * KB), (S_RB, 4 * 28 * KB), (S_W, 7 * KB), (S_L, 2 * XSZ)], X + XSZ))
            self.emits(self.sa(gl, [(S_W, 7 * KB)], L_XR + (p & 1) * XSLOT))
            xds.append(self.dma_items(7, gl, gc, f"xt{p}", True))
        def xd(p): return xds[p]
        x0, x1 = xd(0), xd(1)
        self.poll(S_FRB, F_S3, 14)
        self.mark("S3_poll")
        self.take(x0, 7)
        self.emits(self.sa(S_T0, [(S_XT, 3584), (S_L, 2 * STSZ)], ST + STSZ))
        for k in range(7): self.emit(self.ld(vr(STB + 2*k, 2), S_T0, k * 256, "st", n=2, vaddr=V_STL))
        self.take(self.w3, len(self.w3))
        a.e(f"v_add_u32 v{V_X1}, {L_XR + XSLOT}, v{V_L16}")
        def hbase(p):
            return [f"s_xor_b32 s{S_T0}, s{S_M}, {p}"] + self.sa(S_C, [(S_T0, 112 * KB), (S_RB, 4 * 112 * KB), (S_JS, 8 * KB), (S_W, 2 * KB), (S_L, HSZ)], HB)
        c1 = -2.0 * 0.7978845608028654 * 1.4426950408889634
        c2 = c1 * 0.044715
        stf = ["@waitvm st"] + self.stats_reduce(STB, V_T0, V_T1, V_T2, V_T3)
        stf += [f"v_rsq_f32 v{V_T1}, v{V_T0}", f"v_lshrrev_b32 v{V_CA}, 1, v{V_I8}"] + self.sa(S_T0, [(S_W, 384)], L_SCR3)
        stf += [f"v_add_u32 v{V_CB}, s{S_T0}, v{V_CA}",
                f"v_mul_f32 v{V_T2}, v{V_T1}, v{V_T1}", f"v_mul_f32 v{V_T3}, {hexf(c1)}, v{V_T1}", f"v_mul_f32 v{V_T2}, v{V_T2}, v{V_T1}", f"v_mul_f32 v{V_T2}, {hexf(c2)}, v{V_T2}",
                f"ds_write_b32 v{V_CB}, v{V_T3}|cw", f"ds_write_b32 v{V_CB}, v{V_T2} offset:128|cw", f"ds_write_b32 v{V_CB}, v{V_T0} offset:256|cw"]
        stf += self.sa(S_T0, [(S_M, 384)], L_SCR3) + [f"s_mul_i32 s{S_T1}, s{S_M}, 384", f"s_sub_u32 s{S_T1}, {L_SCR3 + 768}, s{S_T1}",
                f"v_add_u32 v{V_CB}, s{S_T1}, v{V_CA}", f"v_add_u32 v{V_CA}, s{S_T0}, v{V_CA}"]

        def epi(p):
            A = ACC0 if p % 2 == 0 else ACC1
            G, U = A, A + 16
            va = V_CA if p < 2 else V_CB
            L = [f"ds_read_b32 v{CC+q}, v{va} offset:{(p&1)*384+q*128}|cc" for q in range(3)] + hbase(p)
            for g in range(4):
                rr = [4*g + k for k in range(4)]
                for k, r in enumerate(rr): L.append(f"v_mul_f32 v{TT+k}, v{G+r}, v{G+r}")
                for k, r in enumerate(rr): L.append(f"v_mul_f32 v{TT+4+k}, v{G+r}, v{U+r}")
                if g == 0: L.append("@waitlg cc")
                for k, r in enumerate(rr): L.append(f"v_fma_f32 v{TT+k}, v{TT+k}, v{CC+1}, v{CC}")
                for k, r in enumerate(rr): L.append(f"v_mul_f32 v{TT+k}, v{TT+k}, v{G+r}")
                for k, r in enumerate(rr): L.append(f"v_exp_f32 v{TT+k}, v{TT+k}")
                for k, r in enumerate(rr): L.append(f"v_fma_f32 v{TT+k}, v{TT+k}, v{CC+2}, v{CC+2}")
                for k, r in enumerate(rr): L.append(f"v_rcp_f32 v{TT+k}, v{TT+k}")
                for k in range(4): L.append(f"v_mul_f32 v{TT+4+k}, v{TT+4+k}, v{TT+k}")
                L.append(f"v_cvt_pk_bf16_f32 v{HP+2*g}, v{TT+4}, v{TT+5}")
                L.append(f"v_cvt_pk_bf16_f32 v{HP+2*g+1}, v{TT+6}, v{TT+7}")
                if g % 2 == 1 and not (self.opt("x_nost", 0) and p < 2): L.append(self.st(vr(HP + 4*(g//2)), S_C, 1024 * (g // 2), f"hst{p}"))
            if self.opt("x_noepi", 0) and p < 2: L = [t for t in L if t.startswith("buffer_") or t.startswith("s_")]
            return L

        w4 = None
        for p in range(4):
            A = ACC0 if p % 2 == 0 else ACC1
            a.wait_vm(f"xt{p}")
            a.e("s_waitcnt lgkmcnt(0)\ns_barrier")
            if p in (0, 1, 3): self.mark(f"p3_T{p}")
            def rd(s):
                if p & 1 == 0:
                    r, of = self.ldsaddr(L_XR + s * KB)
                else: r, of = V_X1, s * KB
                a.e(f"ds_read_b128 {vr(RING+4*(s%4))}, v{r} offset:{of}", tag=f"b{s}")
            for s in range(3): rd(s)
            def mg(s):
                def f():
                    if s + 3 < 28: rd(s + 3)
                    a.wait_both(f"w3_{s}" if p == 0 else None, f"b{s}")
                    a.e(f"{MF} {vr(A,16)}, {ar(8*s)}, {vr(RING+4*(s%4))}, {vr(A,16) if s else 0}")
                return f
            def mu(s):
                def f(): a.e(f"{MF} {vr(A+16,16)}, {ar(8*s+4)}, {vr(RING+4*(s%4))}, {vr(A+16,16) if s else 0}")
                return f
            mains = []
            for s in range(28): mains += [mg(s), mu(s)]
            if p == 0:
                w4 = self.w4_stream()
                bg = x1 + [w4.pop(0) for _ in range(self.opt("w4_p0", 12))]
                self.weave(mains, stf, bg=bg, bg_every=2, bg_phase=1, caps=(16, 8))
            elif p == 1:
                bg = xd(2) + [w4.pop(0) for _ in range(self.opt("w4_p1", 12))]
                if self.opt("x_nobg", 0): bg = xd(2)
                mains[0](); mains[1]()
                self.weave(mains[2:], epi(0), bg=bg, bg_every=2, bg_phase=1, caps=(self.opt('cap1', 24), self.opt('cap2', 8)))
            elif p == 2:
                na = 32 - self.opt("w4_p0", 12) - self.opt("w4_p1", 12)
                bg = xd(3) + [w4.pop(0) for _ in range(na)]
                if self.opt("x_nobg", 0): bg = xd(3)
                mains[0](); mains[1]()
                self.weave(mains[2:], epi(1), bg=bg, bg_every=2, bg_phase=1, caps=(self.opt('cap1', 24), self.opt('cap2', 8)))
            else:
                bg = w4
                mains[0](); mains[1]()
                a.e(f"s_xor_b32 s{S_E}, s{S_TH}, 1")
                AP = self.opt("ap4e", 46)
                orig = mains[AP]
                def with_poll():
                    self.apoll_issue(S_FRB, F_S4E, 8, S_E, S_F)
                    orig()
                mains[AP] = with_poll
                AE = self.opt("arr4e", 22)
                orig2 = mains[AE]
                def with_arr():
                    self.arrive(S_FRB, F_S4E, ("hst0", "hst1"), slot_sreg=S_TH)
                    orig2()
                mains[AE] = with_arr
                self.weave(mains[2:], epi(2), bg=bg, bg_every=2, bg_phase=1, caps=(self.opt('cap1', 24), self.opt('cap2', 8)))
            self.take(bg, len(bg))
        self.mark("p3_loop")
        self.p4_setup()
        self.apoll_check(8, 7, S_F)
        LA = self.opt("la4", 6)
        first = []
        for i in range(LA): first += [self.hi[(i, 0)], self.hi[(i, 1)]]
        self.emits_bg(epi(3), first, len(first), first=self.opt("e3first", 20), every=self.opt("e3every", 9))
        self.take(first, len(first))
        self.mark("p3_epi")

    def p4_setup(self):
        HR, NR = 96, 16
        cur = [S_G[4], S_G[5], S_G[6], S_G[7]]
        pre = []
        for late in (0, 1):
            for b in range(2):
                c = cur[2*late + b]
                pre += self.kseg(S_T0, late) + [f"s_xor_b32 s{c}, s{S_TILE}, {b}", f"s_mul_i32 s{c}, s{c}, 112", f"s_add_u32 s{c}, s{c}, s{S_T0}", f"s_lshl_b32 s{c}, s{c}, 10"]
                pre += self.sa(S_T0, [(S_L, HSZ)], HB) + [f"s_add_u32 s{c}, s{c}, s{S_T0}"]
        self.emits(pre)
        self.hi = {}
        for late in (0, 1):
            for b in range(2):
                x = self.seq_items(14, lambda i: ar(HR + 8*((14*late + i) % NR) + 4*b), cur[2*late + b], lambda i: f"h{14*late+i}_{b}", True)
                for i in range(14): self.hi[(14*late + i, b)] = x[i]

    def p4(self):
        a = self.a
        n = self.name
        ACC, HR, NR, TR = 16, 96, 16, 80
        LA = self.opt("la4", 6)
        hi = self.hi
        self.emits(self.red_addr())
        def mf(u, i):
            b, sl = u >> 1, u & 1
            a.e(f"{MF} {vr(ACC+16*u,16)}, {self.w4_reg(i, sl)}, {ar(HR+8*(i%NR)+4*b)}, {vr(ACC+16*u,16) if i else 0}")
        TAIL = self.opt("tail4", 6)
        PL = 14 - LA
        t0 = 28 - TAIL
        rest0 = [hi[(i, 0)] for i in range(t0, 28)]
        rest1 = [hi[(i, 1)] for i in range(t0, 28)]
        ARR4 = self.opt("arr4", 3)
        APL = self.opt("ap4l", PL - 2)
        for i in range(t0):
            if i == ARR4:
                self.arrive(S_FRB, F_S4L, ("hst2", "hst3"), slot_sreg=S_TH)
                self.mark("S4_arr")
            if i == APL: self.apoll_issue(S_FRB, F_S4L, 9, S_TH, S_F)
            if i == PL:
                self.apoll_check(9, 7, S_F)
                self.mark("S4L_poll")
            a.wait_vm((f"h{i}_0", f"h{i}_1", f"w4_{i}"))
            nxt = i + LA
            mf(0, i); mf(1, i)
            if nxt < t0: self.emits(hi[(nxt, 0)])
            elif rest1: self.emits(rest1.pop(0))
            mf(2, i); mf(3, i)
            if nxt < t0: self.emits(hi[(nxt, 1)])
            elif rest1: self.emits(rest1.pop(0))
            elif rest0: self.emits(rest0.pop(0))
        for it in rest1: self.emits(it)
        for i in range(t0, 28):
            a.wait_vm((f"h{i}_1", f"w4_{i}"))
            mf(2, i)
            if rest0: self.emits(rest0.pop(0))
            mf(3, i)
        resu = self.res_unpack(TR)
        wr = self.red_write(ACC, 2) + self.red_write(ACC, 3)
        k = 0
        for i in range(t0, 28):
            a.wait_vm(f"h{i}_0")
            mf(1, i)
            if i >= t0 + 1 and wr: self.emit(wr.pop(0))
            self.emits(resu[4*k:4*k+4]); k += 1
            mf(0, i)
            if i >= t0 + 1 and wr: self.emit(wr.pop(0))
        self.emits(resu[4*k:]); self.emits(wr)
        self.mark("p4_mfma")
        self.emits(self.red_write(ACC, 1))
        self.emits(self.x_store_addr(2))
        self.red_finish(ACC, TR)
        self.mark("p4_red")
        fin = a.newlabel("fin")
        a.e(f"s_cmp_lg_u32 s{S_L}, 0\ns_cbranch_scc1 {fin}")
        vq = list(a.vmq)
        self.store_x_and_stats()
        self.arrive(S_FRB, F_S5, "xst")
        a.e(f"s_branch {n}_next")
        a.vmq = vq
        a.label(fin)
        PK = self.PK
        self.emits(self.sa(S_T0, [(S_TILE, 32 * 896), (S_N, 64)]))
        a.e(f"v_mul_u32_u24 v{V_T0}, 112, v{V_I8}\nv_lshrrev_b32 v{V_T1}, 5, v{V_L16}\nv_and_b32 v{V_T1}, 16, v{V_T1}\nv_add_u32 v{V_T0}, v{V_T0}, v{V_T1}")
        a.e(f"v_permlane32_swap_b32 v{PK}, v{PK+2}\nv_permlane32_swap_b32 v{PK+1}, v{PK+3}")
        a.e(f"v_permlane32_swap_b32 v{PK+4}, v{PK+6}\nv_permlane32_swap_b32 v{PK+5}, v{PK+7}")
        osc = " sc1" if self.opt("out_sc1", 0) else ""
        a.e(f"buffer_store_dwordx4 {vr(PK)}, v{V_T0}, s[8:11], s{S_T0} offen" + osc)
        a.e(f"buffer_store_dwordx4 {vr(PK+4)}, v{V_T0}, s[8:11], s{S_T0} offen offset:32" + osc)
        a.e(f"s_branch {n}_done")

    def build(self):
        a, n = self.a, self.name
        self.prologue()
        head_q = list(a.vmq)
        a.label(f"{n}_layer")
        a.vmq = list(head_q); a.lgq = []
        self.layer_setup()
        if self.opt("y", 0):
            a.e(f"s_lshl_b32 s{S_T0}, s{S_RB}, 7\ns_add_u32 s{S_T0}, s{S_T0}, {PFLAG}\ns_add_u32 s{S_E}, s{S_FRB}, {F_S5*2048 - NSYNC*2048}")
            a.e(f"s_cmp_eq_u32 s{S_L}, 0\ns_cselect_b32 s{S_E}, s{S_T0}, s{S_E}")
            self.poll(S_E, 0, 14)
        else:
            lab = a.newlabel("nos5")
            a.e(f"s_cmp_eq_u32 s{S_L}, 0\ns_cbranch_scc1 {lab}")
            self.poll(S_FRB, F_S5, 14, extra=-NSYNC * 2048)
            a.label(lab)
        self.p1()
        self.p2a()
        a.e(f"s_cmp_lt_u32 s{S_Q}, 7\ns_cbranch_scc1 {n}_act")
        a.e(f"s_cmp_lg_u32 s{S_L}, 0\ns_cbranch_scc1 {n}_done")
        a.e("s_waitcnt vmcnt(0)")
        a.e(f"s_branch {n}_next")
        a.label(f"{n}_act")
        self.p2b()
        self.p3()
        self.p4()
        a.label(f"{n}_next")
        if not self.opt("nonextwait", 0): a.e("s_waitcnt vmcnt(0)")
        if self.o.get("prof"): a.e(f"v_lshrrev_b32 v{V_T0}, 2, v{V_L16}\nv_add_u32 v{V_T0}, {L_MARK}, v{V_T0}\ns_cmp_eq_u32 s{S_W}, 0\ns_cselect_b64 exec, -1, 0\nds_write_b32 v{V_T0}, v{V_MARK}\ns_mov_b64 exec, -1\ns_waitcnt lgkmcnt(0)\nv_mov_b32 v{V_MARK}, 0")
        a.e(f"s_add_u32 s{S_L}, s{S_L}, 1")
        a.e(f"s_branch {n}_layer")
        a.label(f"{n}_done")
        if self.o.get("prof"): self.dump_marks()
        a.e("s_endpgm")
        a.label(f"{n}_end")
        return a.finalize()
```

```python
from asmlib import Asm
from layout import *
import struct
def hexf(x): return "0x%08x" % struct.unpack("<I", struct.pack("<f", x))[0]

L_W1   = 0
L_XR   = 89088
XSLOT  = 28672
L_KVR  = 89088
L_KVA  = 121856
L_RED  = 89088
L_SCR3 = 146432
L_B29  = 148480
L_SCR  = 152576
L_MARK = 163328
LDS_BYTES = 163840

S_RB, S_J, S_W, S_L, S_TH, S_CB, S_TT, S_NT = 12, 13, 14, 15, 16, 17, 18, 19
S_T0, S_T1, S_T2, S_T3 = 20, 21, 22, 23
S_SEL_LO, S_SEL_HI = 24, 25
S_UP = 26
S_CNT, S_JS, S_Q, S_M = 28, 29, 30, 31
S_A, S_B, S_C, S_D = 32, 33, 34, 35
S_E, S_F = 38, 39
S_G = [40, 41, 42, 43, 44, 45, 46, 47]
S_FRB, S_FJ = 48, 49
S_TILE, S_N = 50, 51
S_XT = 52
F_S1, F_S2, F_S3, F_S4E, F_S4L, F_S5 = 0, 1, 2, 3, 5, 7

V_POLL, V_L16, V_L16H, V_STL, V_I8, V_ONE, V_C, V_MARK = 0, 1, 2, 3, 4, 5, 6, 7
V_T0, V_T1, V_T2, V_T3, V_T4, V_T5, V_T6, V_T7 = 8, 9, 10, 11, 12, 13, 14, 15
A_PHI, A_ID, A_RES = 232, 240, 248

def vr(b, n=4): return f"v[{b}:{b+n-1}]"
def ar(b, n=4): return f"a[{b}:{b+n-1}]"
MF = "v_mfma_f32_32x32x16_bf16"
def cost_of(t):
    if t.startswith(("v_exp", "v_rcp", "v_rsq")): return 8
    if t.startswith("v_mfma"): return 32
    if t.startswith("@"): return 2
    return 4

class Gen:
    def __init__(self, name, stop=None, opts=None):
        self.a = Asm(); self.name = name; self.stop = stop; self.o = opts or {}
        self.marks = []
    def opt(self, k, d): return int(self.o.get(k, d))

    def emit(self, t):
        a = self.a
        if t.startswith("@flag "): self.flags.add(t.split()[1])
        elif t.startswith("@waitlg "): a.wait_lg(tuple(t.split()[1:]))
        elif t.startswith("@waitvm "): a.wait_vm(tuple(t.split()[1:]))
        elif "|" in t:
            txt, tag = t.split("|"); a.e(txt, tag=tag)
        else: a.e(t)
    def emits(self, L):
        for t in L: self.emit(t)
    def sa(self, dst, terms, const=0):
        L = []
        first = True
        for r, m in terms:
            tgt = dst if first else S_T3
            if m == 1:
                if first: L.append(f"s_mov_b32 s{dst}, s{r}")
                else: L.append(f"s_add_u32 s{dst}, s{dst}, s{r}")
                first = False
                continue
            if m & (m - 1) == 0: L.append(f"s_lshl_b32 s{tgt}, s{r}, {m.bit_length()-1}")
            else: L.append(f"s_mul_i32 s{tgt}, s{r}, {m}")
            if not first: L.append(f"s_add_u32 s{dst}, s{dst}, s{S_T3}")
            first = False
        if first: L.append(f"s_mov_b32 s{dst}, {const}")
        elif const: L.append(f"s_add_u32 s{dst}, s{dst}, {const}")
        return L
    def ld(self, dst, soff, imm, tag, sc1=True, n=4, vaddr=V_L16):
        op = {4: "buffer_load_dwordx4", 2: "buffer_load_dwordx2", 1: "buffer_load_dword"}[n]
        return f"{op} {dst}, v{vaddr}, s[4:7], s{soff} offen" + (f" offset:{imm}" if imm else "") + (" sc1" if sc1 else "") + f"|{tag}"
    def st(self, src, soff, imm, tag, n=4, vaddr=V_L16):
        op = {4: "buffer_store_dwordx4", 2: "buffer_store_dwordx2"}[n]
        loc = self.opt("x_local", 0) >= 1 and tag != "slab"
        return f"{op} {src}, v{vaddr}, s[4:7], s{soff} offen" + (f" offset:{imm}" if imm else "") + ("" if loc else " sc1") + f"|{tag}"
    def seq_items(self, n, dstf, cur, tagf, sc1):
        items = []
        for i in range(n):
            it = [self.ld(dstf(i), cur, (i % 4) * 1024, tagf(i), sc1)]
            if i % 4 == 3 and i != n - 1: it.append(f"s_add_u32 s{cur}, s{cur}, 4096")
            items.append(it)
        return items
    def dma_items(self, n, lds, cur, tag, sc1):
        items = []
        for i in range(n):
            it = []
            if i % 4 == 0: it += [f"s_mov_b32 m0, s{lds}", "s_nop 0"]
            it.append(f"buffer_load_dwordx4 v{V_L16}, s[4:7], s{cur} offen" + (f" offset:{(i%4)*1024}" if i % 4 else "") + (" sc1" if sc1 else "") + f" lds|{tag}")
            if i % 4 == 3 and i != n - 1: it += [f"s_add_u32 s{cur}, s{cur}, 4096", f"s_add_u32 s{lds}, s{lds}, 4096"]
            items.append(it)
        return items
    @staticmethod
    def zip2(x, y):
        out = []
        for i in range(max(len(x), len(y))):
            if i < len(x): out.append(x[i])
            if i < len(y): out.append(y[i])
        return out
    def take(self, bg, n):
        for _ in range(n):
            if bg: self.emits(bg.pop(0))
    def ldsaddr(self, off):
        if off < 65536: return V_L16, off
        assert off < 131072
        return V_L16H, off - 65536

    def weave(self, mains, fills, bg=None, bg_every=2, bg_start=0, caps=(24,), bg_phase=0):
        fi = 0
        nb = 0
        for k, m in enumerate(mains):
            m()
            cap = caps[k % len(caps)]
            c = 0
            if bg and k >= bg_start and (k - bg_start) % bg_every == bg_phase:
                it = bg.pop(0)
                self.emits(it); c += 12 if any(" lds" in t for t in it) else 8
            nv = 0
            while fi < len(fills):
                t = fills[fi]
                if t.startswith("s_") or t.startswith("@"):
                    self.emit(t); fi += 1; continue
                w = cost_of(t)
                if t.startswith("~"): w = 2
                if t.startswith("ds_read") or t.startswith("ds_write") or t.startswith("buffer_"): w = 8
                lim = cap if (w == 8 or nv * 4 != c) else min(cap, 20)
                if c + w > lim: break
                self.emit(t); fi += 1; c += w
                if w == 4: nv += 1
        while fi < len(fills):
            self.emit(fills[fi]); fi += 1
    def emits_bg(self, L, bg, n, first=0, every=10):
        k = 0
        for i, t in enumerate(L):
            if k < n and bg and i >= first and (i - first) % every == 0:
                self.emits(bg.pop(0)); k += 1
            self.emit(t)

    def mark(self, name):
        if not self.o.get("prof"): return
        if self.opt("prof", 0) == 3 and (name != "p1_start" or self.opt("single", 0) or self.opt("y", 0)): return
        a = self.a
        k = len(self.marks); self.marks.append(name)
        a.e(("s_memtime" if self.opt("prof", 0) == 2 else "s_memrealtime") + " s[36:37]\ns_waitcnt lgkmcnt(0)")
        a.lgq = []
        a.e(f"v_writelane_b32 v{V_MARK}, s36, {k}")
    def dump_marks(self):
        a = self.a
        lab = a.newlabel("dm")
        a.e("s_memrealtime s[36:37]\ns_waitcnt lgkmcnt(0)")
        a.e(f"v_writelane_b32 v{V_MARK}, s36, 63")
        a.e(f"s_cmp_lg_u32 s{S_W}, 0\ns_cbranch_scc1 {lab}")
        a.e(f"s_lshl_b32 s{S_T0}, s2, 9\ns_add_u32 s{S_T0}, s{S_T0}, {DBG}")
        a.e(f"v_lshrrev_b32 v{V_T0}, 2, v{V_L16}")
        a.e(f"v_add_u32 v{V_T1}, {L_MARK}, v{V_T0}\nds_read_b32 v{V_T1}, v{V_T1}\ns_waitcnt lgkmcnt(0)")
        a.e(f"buffer_store_dword v{V_T1}, v{V_T0}, s[4:7], s{S_T0} offen")
        a.e(f"buffer_store_dword v{V_MARK}, v{V_T0}, s[4:7], s{S_T0} offen offset:256")
        a.e("s_waitcnt vmcnt(0)")
        a.label(lab)

    def arrive(self, base, slot, tags, slot_sreg=None, barrier=True):
        a = self.a
        a.wait_vm(tags)
        if barrier: a.e("s_barrier")
        a.e(f"s_add_u32 s{S_T2}, s{base}, {slot*2048}")
        if slot_sreg is not None: a.e(f"s_lshl_b32 s{S_T3}, s{slot_sreg}, 11\ns_add_u32 s{S_T2}, s{S_T2}, s{S_T3}")
        a.e(f"v_mov_b32 v{V_T7}, 1\ns_cmp_eq_u32 s{S_W}, 0\ns_cselect_b64 exec, 1, 0")
        loc = self.opt("x_local", 0) >= 2 and base == S_FRB
        a.e_uncounted(f"buffer_atomic_add v{V_T7}, off, s[4:7], s{S_T2}" + ("" if loc else " sc1"))
        a.e("s_mov_b64 exec, -1")
    def poll(self, base, slot, target, slot_sreg=None, extra=0):
        a = self.a
        lab, lp, lx = a.newlabel("pol"), a.newlabel("plp"), a.newlabel("plx")
        a.e(f"s_add_u32 s{S_T2}, s{base}, {slot*2048 + extra}")
        if slot_sreg is not None: a.e(f"s_lshl_b32 s{S_T3}, s{slot_sreg}, 11\ns_add_u32 s{S_T2}, s{S_T2}, s{S_T3}")
        a.e(f"s_cmp_lg_u32 s{S_W}, 0\ns_cbranch_scc1 {lab}")
        vq, lq = list(a.vmq), list(a.lgq)
        dep = self.opt("pdepth", 2)
        a.e(f"s_mov_b32 s{S_CNT}, 0")
        for k in range(dep):
            a.e(f"s_mov_b64 exec, {1 << k}\nbuffer_load_dword v{V_POLL}, off, s[4:7], s{S_T2} sc1")
            if k != dep - 1: a.e(f"s_sleep {self.opt('psleep', 2)}")
        a.label(lp)
        for k in range(dep):
            a.e(f"s_waitcnt vmcnt({dep-1})\nv_readlane_b32 s{S_T3}, v{V_POLL}, {k}")
            a.e(f"s_cmp_ge_u32 s{S_T3}, {target}\ns_cbranch_scc1 {lx}")
            a.e(f"s_mov_b64 exec, {1 << k}\nbuffer_load_dword v{V_POLL}, off, s[4:7], s{S_T2} sc1")
        a.e(f"s_add_u32 s{S_CNT}, s{S_CNT}, 1\ns_cmp_lt_u32 s{S_CNT}, 200000\ns_cbranch_scc1 {lp}")
        a.label(lx)
        a.e("s_mov_b64 exec, -1")
        a.vmq, a.lgq = vq, lq
        a.label(lab)
        a.e("s_barrier")

    def apoll_issue(self, base, slot, lane, slot_sreg, dst):
        a = self.a
        a.e(f"s_lshl_b32 s{dst}, s{slot_sreg}, 11\ns_add_u32 s{dst}, s{dst}, s{base}\ns_add_u32 s{dst}, s{dst}, {slot*2048}")
        a.e(f"s_mov_b64 exec, {1 << lane}")
        a.e(f"buffer_load_dword v{V_POLL}, off, s[4:7], s{dst} sc1", tag=f"ap{lane}")
        a.e("s_mov_b64 exec, -1")
    def apoll_check(self, lane, target, dst):
        a = self.a
        ok, lp = a.newlabel("apk"), a.newlabel("apl")
        a.wait_vm(f"ap{lane}")
        a.e(f"v_readlane_b32 s{S_T3}, v{V_POLL}, {lane}\ns_cmp_ge_u32 s{S_T3}, {target}\ns_cbranch_scc1 {ok}")
        vq, lq = list(a.vmq), list(a.lgq)
        a.e(f"s_mov_b32 s{S_CNT}, 0\ns_mov_b64 exec, {1 << lane}")
        a.label(lp)
        a.e(f"buffer_load_dword v{V_POLL}, off, s[4:7], s{dst} sc1")
        a.e(f"s_add_u32 s{S_CNT}, s{S_CNT}, 1\ns_cmp_gt_u32 s{S_CNT}, 200000\ns_cbranch_scc1 {lp}_x")
        a.e(f"s_waitcnt vmcnt(0)\nv_readlane_b32 s{S_T3}, v{V_POLL}, {lane}\ns_cmp_lt_u32 s{S_T3}, {target}\ns_cbranch_scc1 {lp}")
        a.label(f"{lp}_x")
        a.e("s_waitcnt vmcnt(0)\ns_mov_b64 exec, -1")
        a.vmq, a.lgq = vq, lq
        a.label(ok)

    @staticmethod
    def bc(r): return f"v[{r & ~1}:{(r & ~1) + 1}]", r & 1
    def pk_fma_bc(self, dst, src, rb, rc, neg_a=0, neg_c=0):
        (tb, sb), (tc, sc) = self.bc(rb), self.bc(rc)
        return (f"v_pk_fma_f32 v[{dst}:{dst+1}], v[{src}:{src+1}], {tb}, {tc} op_sel:[0,{sb},{sc}] op_sel_hi:[1,{sb},{sc}]"
                f" neg_lo:[{neg_a},0,{neg_c}] neg_hi:[{neg_a},0,{neg_c}]")
    def pk_mul_bc(self, dst, src, rb):
        tb, sb = self.bc(rb)
        return f"v_pk_mul_f32 v[{dst}:{dst+1}], v[{src}:{src+1}], {tb} op_sel:[0,{sb}] op_sel_hi:[1,{sb}]"
    @staticmethod
    def pk_add(dst, x, y): return f"v_pk_add_f32 v[{dst}:{dst+1}], v[{x}:{x+1}], v[{y}:{y+1}]"

    def stats_loads(self, b, soff):
        if not self.opt("st4", 0):
            return [self.ld(vr(b + 2*k, 2), soff, k * 256, "st", n=2, vaddr=V_STL) for k in range(7)]
        L = [f"v_mov_b32 v{b+12+k}, 0" for k in range(4)]
        L += [self.ld(vr(b + 4*k), soff, k * 512, "st", vaddr=V_STL) for k in range(3)]
        L += ["s_mov_b32 exec_hi, 0", self.ld(vr(b + 12), soff, 3 * 512, "st", vaddr=V_STL), "s_mov_b32 exec_hi, -1"]
        return L
    def stats_reduce(self, b, vV, vM, t0, t1):
        L = []
        for k in (0, 1):
            L += [f"v_add_f32 v{b+k}, v{b+k}, v{b+2+k}", f"v_add_f32 v{b+4+k}, v{b+4+k}, v{b+6+k}",
                  f"v_add_f32 v{b+8+k}, v{b+8+k}, v{b+10+k}"]
            if self.opt("st4", 0): L += [f"v_add_f32 v{b+12+k}, v{b+12+k}, v{b+14+k}"]
        for k in (0, 1):
            L += [f"v_add_f32 v{b+k}, v{b+k}, v{b+4+k}", f"v_add_f32 v{b+8+k}, v{b+8+k}, v{b+12+k}"]
        for k in (0, 1): L += [f"v_add_f32 v{b+k}, v{b+k}, v{b+8+k}"]
        L += [f"v_mov_b32 v{t0}, v{b}", f"v_mov_b32 v{t1}, v{b+1}", "s_nop 0",
              f"v_permlane32_swap_b32 v{t0}, v{b}", f"v_permlane32_swap_b32 v{t1}, v{b+1}",
              f"v_add_f32 v{b}, v{b}, v{t0}", f"v_add_f32 v{b+1}, v{b+1}, v{t1}",
              f"v_mul_f32 v{vM}, {hexf(1.0/D)}, v{b}",
              f"v_mul_f32 v{t1}, {hexf(1.0/D)}, v{b+1}",
              f"v_mul_f32 v{t0}, v{vM}, v{vM}",
              f"v_sub_f32 v{vV}, v{t1}, v{t0}",
              f"v_max_f32 v{vV}, 0, v{vV}",
              f"v_add_f32 v{vV}, {hexf(1e-5)}, v{vV}"]
        return L

    def x29(self, dst, vM, t0):
        return [f"v_cvt_pk_bf16_f32 v{t0}, -v{vM}, -v{vM}",
                f"v_and_b32 v{dst+1}, 0xffff0000, v{t0}",
                f"v_add_f32 v{dst+1}, v{dst+1}, v{vM}",
                f"v_mov_b32 v{dst+2}, 0", f"v_mov_b32 v{dst+3}, 0",
                f"v_cvt_pk_bf16_f32 v{dst+1}, -v{dst+1}, -v{dst+1}",
                f"v_cndmask_b32 v{dst}, v{t0}, v{dst+2}, s[{S_UP}:{S_UP+1}]",
                f"v_cndmask_b32 v{dst+1}, v{dst+1}, v{dst+2}, s[{S_UP}:{S_UP+1}]"]

    def softmax(self, R, P, t):
        mx, mn, u, w, bp, bn, bpm, bnm = [t + k for k in range(8)]
        L = [f"v_max3_f32 v{mx}, v{R}, v{R+1}, v{R+2}", f"v_min3_f32 v{mn}, v{R}, v{R+1}, v{R+2}",
             f"v_max3_f32 v{u}, v{R+3}, v{R+4}, v{R+5}", f"v_min3_f32 v{w}, v{R+3}, v{R+4}, v{R+5}"]
        for k in (6, 10):
            L += [f"v_max3_f32 v{mx}, v{mx}, v{R+k}, v{R+k+1}", f"v_min3_f32 v{mn}, v{mn}, v{R+k}, v{R+k+1}",
                  f"v_max3_f32 v{u}, v{u}, v{R+k+2}, v{R+k+3}", f"v_min3_f32 v{w}, v{w}, v{R+k+2}, v{R+k+3}"]
        L += [f"v_max3_f32 v{mx}, v{mx}, v{R+14}, v{R+15}", f"v_min3_f32 v{mn}, v{mn}, v{R+14}, v{R+15}",
              f"v_max_f32 v{mx}, v{mx}, v{u}", f"v_min_f32 v{mn}, v{mn}, v{w}",
              f"v_mov_b32 v{u}, v{mx}", f"v_mov_b32 v{w}, v{mn}",
              f"v_mov_b32 v{bpm}, {hexf(1e30)}", f"v_mov_b32 v{bnm}, {hexf(-1e30)}",
              f"v_permlane32_swap_b32 v{u}, v{mx}", f"v_permlane32_swap_b32 v{w}, v{mn}",
              f"v_max_f32 v{mx}, v{mx}, v{u}", f"v_min_f32 v{mn}, v{mn}, v{w}",
              f"v_mul_f32 v{bp}, v{V_C}, v{mx}", f"v_mul_f32 v{bn}, v{V_C}, v{mn}",
              f"v_cndmask_b32 v{bpm}, v{bp}, v{bpm}, s[{S_UP}:{S_UP+1}]",
              f"v_cndmask_b32 v{bnm}, v{bn}, v{bnm}, s[{S_UP}:{S_UP+1}]"]
        for g in range(4):
            for k in (0, 2): L.append(self.pk_fma_bc(P + 4*g + k, R + 4*g + k, V_C, bpm if g == 3 else bp, 0, 1))
            for k in (0, 2): L.append(self.pk_fma_bc(R + 4*g + k, R + 4*g + k, V_C, bnm if g == 3 else bn, 1, 0))
        for g in range(4):
            for k in range(4): L.append(f"v_exp_f32 v{P+4*g+k}, v{P+4*g+k}")
            for k in range(4): L.append(f"v_exp_f32 v{R+4*g+k}, v{R+4*g+k}")
            if g == 1: L += [self.pk_add(mx, P, P + 2), self.pk_add(u, R, R + 2)]
            elif g >= 2:
                for k in (0, 2): L += [self.pk_add(mx, mx, P + 4*(g-1) + k), self.pk_add(u, u, R + 4*(g-1) + k)]
        for k in (0, 2): L += [self.pk_add(mx, mx, P + 12 + k), self.pk_add(u, u, R + 12 + k)]
        L += [f"v_add_f32 v{mx}, v{mx}, v{mn}", f"v_add_f32 v{u}, v{u}, v{w}",
              f"v_mov_b32 v{mn}, v{mx}", f"v_mov_b32 v{w}, v{u}", "s_nop 0",
              f"v_permlane32_swap_b32 v{mn}, v{mx}", f"v_permlane32_swap_b32 v{w}, v{u}",
              f"v_add_f32 v{mx}, v{mx}, v{mn}", f"v_add_f32 v{u}, v{u}, v{w}",
              f"v_rcp_f32 v{mx}, v{mx}", f"v_rcp_f32 v{u}, v{u}"]
        for k in range(0, 16, 2): L.append(self.pk_mul_bc(P + k, P + k, mx))
        for k in range(0, 16, 2): L.append(self.pk_mul_bc(R + k, R + k, u))
        for d in range(8): L.append(f"v_cvt_pk_bf16_f32 v{P+d}, v{P+2*d}, v{P+2*d+1}")
        for d in range(8): L.append(f"v_cvt_pk_bf16_f32 v{R+d}, v{R+2*d}, v{R+2*d+1}")
        return L

    def phi_apply(self, R, tb):
        L = [f"v_cvt_pk_bf16_f32 v{tb+d}, v{R+2*d}, v{R+2*d+1}" for d in range(8)]
        L.append(f"{MF} {vr(R,16)}, {ar(A_PHI)}, {vr(tb)}, 0")
        L.append(f"{MF} {vr(R,16)}, {ar(A_PHI+4)}, {vr(tb+4)}, {vr(R,16)}")
        return L

    def w3_stream(self):
        g0, g1 = S_G[0], S_G[1]
        pre = self.sa(g0, [(S_JS, 4 * 2 * KW * KB), (S_W, 2 * KW * KB)], WGU) + [f"s_add_u32 s{g1}, s{g0}, {KW*KB}"]
        its = self.zip2(self.seq_items(KW, lambda s: ar(8*s), g0, lambda s: f"w3_{s}", False),
                        self.seq_items(KW, lambda s: ar(8*s+4), g1, lambda s: f"w3_{s}", False))
        self.emits(pre)
        return its
    def wo_stream(self):
        its = []
        for sl in range(2):
            c = S_G[2 + sl]
            pre = [f"s_xor_b32 s{c}, s{S_NT}, {sl}"] + [f"s_lshl_b32 s{c}, s{c}, 15"] + self.sa(S_T0, [(S_CB, 2 * 32 * KB), (S_W, 8 * KB)], WO) + [f"s_add_u32 s{c}, s{c}, s{S_T0}"]
            x = self.seq_items(8, lambda i: vr(16 + 32 * sl + 4 * i), c, lambda i: "wo", False)
            self.emits(pre)
            its.append(x)
        return self.zip2(its[0], its[1])
    W4A = 128
    def w4_reg(self, i, sl):
        return vr(self.W4A + 8*i + 4*sl) if i < 16 else ar(8*(i - 16) + 4*sl)
    def kseg(self, dst, late):
        if late: return self.sa(dst, [(S_TH, 56), (S_W, 14)], 0)
        return self.sa(dst, [(S_W, 14)], 56) + [f"s_mul_i32 s{S_T3}, s{S_TH}, 56", f"s_sub_u32 s{dst}, s{dst}, s{S_T3}"]
    def w4_stream(self):
        out = []
        for late in (0, 1):
            its = []
            for sl in range(2):
                c = S_G[2 * late + sl]
                pre = self.kseg(S_T0, late) + [f"s_xor_b32 s{c}, s{S_NT}, {sl}", f"s_mul_i32 s{c}, s{c}, 112", f"s_add_u32 s{c}, s{c}, s{S_T0}"]
                pre += [f"s_mul_i32 s{S_T0}, s{S_CB}, 224", f"s_add_u32 s{c}, s{c}, s{S_T0}", f"s_lshl_b32 s{c}, s{c}, 10", f"s_add_u32 s{c}, s{c}, {WD}"]
                x = self.seq_items(14, lambda i: self.w4_reg(14 * late + i, sl), c, lambda i: f"w4_{14*late+i}", False)
                self.emits(pre)
                its.append(x)
            out += self.zip2(its[0], its[1])
        return out
    def p1w_items(self, part):
        c, l = S_G[4], S_G[5]
        its = self.dma_items(8, l, c, "w1" + "qkv"[part], False)
        pre = self.sa(l, [(S_W, 7 * KB)], L_W1 + part * KW * KB) + self.sa(c, [(S_J, 3 * KW * KB), (S_W, 7 * KB)], WQKV + part * KW * KB)
        its[0] = pre + its[0]
        return its

    def prologue(self):
        a, n = self.a, self.name
        a.label(n)
        a.e(f"s_cmp_lt_u32 s2, 256\ns_cbranch_scc1 {n}_go\ns_endpgm")
        a.label(f"{n}_go")
        Y = self.opt("y", 0)
        if Y:
            import start4
            self.st4 = start4.Start(self)
            a.e("s_load_dwordx16 s[64:79], s[0:1], 0\ns_load_dwordx4 s[80:83], s[0:1], 64\ns_load_dwordx2 s[4:5], s[0:1], 80")
            if self.o.get("prof"): a.e("s_memrealtime s[84:85]")
        elif self.opt("single", 0):
            import prep3
            a.e("s_load_dwordx16 s[64:79], s[0:1], 0\ns_load_dwordx4 s[80:83], s[0:1], 64\ns_load_dwordx2 s[4:5], s[0:1], 80")
            if self.o.get("prof"): a.e("s_memrealtime s[84:85]")
            prep3.emit_prep(a, n, self.o)
            a.e("s_mov_b32 s8, s80\ns_mov_b32 s9, s81")
        else:
            a.e("s_load_dwordx2 s[4:5], s[0:1], 80\ns_load_dwordx2 s[8:9], s[0:1], 64")
        if self.opt("pf_main", 0):
            nl = self.opt("pf_lines", 16)
            a.e("s_getpc_b64 s[60:61]")
            a.label(f"{n}_pc")
            a.e(f"s_sub_u32 s60, s60, {n}_pc-{n}\ns_subb_u32 s61, s61, 0")
            a.e(f"s_lshr_b32 s62, s2, 3\ns_and_b32 s62, s62, 31\ns_mul_i32 s62, s62, {nl*64}\ns_min_u32 s62, s62, {n}_end-{n}-{nl*64}\ns_add_u32 s60, s60, s62\ns_addc_u32 s61, s61, 0")
            for i in range(nl): a.e(f"s_load_dwordx16 s[64:79], s[60:61], {i*64}")
        if self.opt("wsoff", 0):
            a.e(f"s_waitcnt lgkmcnt(0)\ns_add_u32 s4, s4, {self.opt('wsoff', 0) << 20}\ns_addc_u32 s5, s5, 0")
        a.e(f"s_mov_b32 s6, {WS_USED}\ns_mov_b32 s7, 0x20000\ns_mov_b32 s10, {S*D*2}\ns_mov_b32 s11, 0x20000")
        if self.opt("rbmap", 0):
            a.e(f"s_and_b32 s{S_T2}, s2, 15\ns_lshr_b32 s{S_T3}, s2, 4")
            a.e(f"s_lshr_b32 s{S_T0}, s{S_T2}, 2\ns_lshl_b32 s{S_T0}, s{S_T0}, 1\ns_lshr_b32 s{S_T1}, s{S_T3}, 3\ns_add_u32 s{S_T0}, s{S_T0}, s{S_T1}")
            a.e(f"s_and_b32 s{S_T1}, s{S_T3}, 7\ns_lshl_b32 s{S_T1}, s{S_T1}, 2\ns_and_b32 s{S_T2}, s{S_T2}, 3\ns_add_u32 s{S_T1}, s{S_T1}, s{S_T2}")
        elif self.opt("antimap", 0): a.e(f"s_lshr_b32 s{S_T0}, s2, 5\ns_and_b32 s{S_T1}, s2, 31")
        else: a.e(f"s_and_b32 s{S_T0}, s2, 7\ns_lshr_b32 s{S_T1}, s2, 3")
        if self.opt("map8", 0):
            a.e(f"s_and_b32 s{S_RB}, s{S_T1}, 15\ns_lshr_b32 s{S_T1}, s{S_T1}, 4\ns_lshl_b32 s{S_J}, s{S_T0}, 1\ns_add_u32 s{S_J}, s{S_J}, s{S_T1}")
            a.e(f"s_lshr_b32 s{S_TH}, s{S_J}, 3\ns_and_b32 s{S_Q}, s{S_J}, 7")
        elif self.opt("map4", 0):
            a.e(f"s_and_b32 s{S_T2}, s{S_T0}, 3\ns_lshr_b32 s{S_T0}, s{S_T0}, 2\ns_lshl_b32 s{S_T0}, s{S_T0}, 3")
            a.e(f"s_and_b32 s{S_RB}, s{S_T1}, 7\ns_add_u32 s{S_RB}, s{S_RB}, s{S_T0}\ns_lshr_b32 s{S_T1}, s{S_T1}, 3")
            a.e(f"s_lshr_b32 s{S_TH}, s{S_T2}, 1\ns_and_b32 s{S_T3}, s{S_T2}, 1\ns_lshl_b32 s{S_T3}, s{S_T3}, 2\ns_add_u32 s{S_Q}, s{S_T3}, s{S_T1}")
            a.e(f"s_lshl_b32 s{S_J}, s{S_TH}, 3\ns_add_u32 s{S_J}, s{S_J}, s{S_Q}")
        else:
            a.e(f"s_and_b32 s{S_TH}, s{S_T0}, 1\ns_lshr_b32 s{S_T0}, s{S_T0}, 1\ns_lshl_b32 s{S_T0}, s{S_T0}, 2")
            a.e(f"s_and_b32 s{S_RB}, s{S_T1}, 3\ns_add_u32 s{S_RB}, s{S_RB}, s{S_T0}")
            a.e(f"s_lshr_b32 s{S_Q}, s{S_T1}, 2\ns_lshl_b32 s{S_J}, s{S_TH}, 3\ns_add_u32 s{S_J}, s{S_J}, s{S_Q}")
        a.e(f"s_min_u32 s{S_CB}, s{S_Q}, 6\ns_mul_i32 s{S_JS}, s{S_TH}, 7\ns_add_u32 s{S_JS}, s{S_JS}, s{S_CB}")
        a.e(f"s_lshl_b32 s{S_M}, s{S_TH}, 1\ns_sub_u32 s{S_M}, 2, s{S_M}")
        a.e(f"v_lshrrev_b32 v{V_T0}, 6, v0\nv_and_b32 v{V_T1}, 63, v0\nv_lshlrev_b32 v{V_L16}, 4, v{V_T1}")
        a.e(f"v_readfirstlane_b32 s{S_W}, v{V_T0}")
        a.e(f"v_add_u32 v{V_L16H}, 0x10000, v{V_L16}")
        a.e(f"v_and_b32 v{V_T2}, 31, v0\nv_bfe_u32 v{V_T3}, v0, 5, 1")
        a.e(f"v_lshlrev_b32 v{V_I8}, 3, v{V_T2}")
        if self.opt("st4", 0): a.e(f"v_lshlrev_b32 v{V_STL}, 11, v{V_T3}\nv_lshl_add_u32 v{V_STL}, v{V_I8}, 1, v{V_STL}")
        else: a.e(f"v_mul_u32_u24 v{V_STL}, 1792, v{V_T3}\nv_add_u32 v{V_STL}, v{V_STL}, v{V_I8}")
        a.e(f"s_lshr_b32 s{S_TT}, s{S_W}, 1\ns_and_b32 s{S_NT}, s{S_W}, 1")
        a.e(f"s_mov_b32 s{S_SEL_LO}, 0x3f80\ns_mov_b32 s{S_SEL_HI}, 0x3f800000")
        a.e(f"s_mov_b32 s{S_UP}, 0\ns_mov_b32 s{S_UP+1}, -1")
        a.e(f"s_mov_b32 s{S_L}, 0")
        self.emits(self.sa(S_TILE, [(S_RB, 4), (S_TH, 2), (S_TT, 1)]))
        self.emits(self.sa(S_N, [(S_CB, 2), (S_NT, 1)]))
        self.emits(self.sa(S_XT, [(S_RB, 4), (S_W, 1)]))
        if self.o.get("prof"):
            a.e(f"v_mov_b32 v{V_MARK}, 0")
            if self.opt("single", 0) and not Y:
                k = len(self.marks); self.marks.append("start")
                a.e(f"v_writelane_b32 v{V_MARK}, s84, {k}")
                for nm, r in (("t_ldiss", 94), ("t_landed", 92), ("t_issued", 86), ("t_drained", 88), ("t_zeroseen", 90)):
                    k = len(self.marks); self.marks.append(nm)
                    a.e(f"v_writelane_b32 v{V_MARK}, s{r}, {k}")
                self.mark("prepdone")
        a.e("s_waitcnt lgkmcnt(0)")
        if Y:
            R = dict(W=S_W, J=S_J, L16=V_L16, I8=V_I8, A_PHI=A_PHI, SEL_LO=S_SEL_LO, SEL_HI=S_SEL_HI)
            self.R4 = R
            self.st4.lane_consts(S_W)
            self.st4.front(R)
        else:
            for it in self.p1w_items(1) + self.p1w_items(2): self.emits(it)
            self.emits(self.sa(S_T0, [(S_J, 2 * KB)], PHI))
            for it in self.seq_items(2, lambda i: ar(A_PHI + 4*i), S_T0, lambda i: "phi", False): self.emits(it)
            if self.opt("lateq", 0) != 1:
                self.emits(self.sa(S_T0, [(S_TILE, 28 * KB), (S_N, 2 * KB)], X))
                for it in self.seq_items(2, lambda i: ar(A_RES + 4*i), S_T0, lambda i: "res", False): self.emits(it)
            if not self.opt("lateq", 0):
                for it in self.p1w_items(0): self.emits(it)
        a.e(f"v_cmp_eq_u32 vcc, 28, v{V_T2}\nv_mov_b32 v{V_T4}, 1.0\nv_mov_b32 v{V_ONE}, 0\nv_cndmask_b32 v{V_ONE}, v{V_ONE}, v{V_T4}, vcc")
        a.e(f"v_lshlrev_b32 v{V_T3}, 2, v{V_T3}\nv_sub_u32 v{V_T2}, v{V_T2}, v{V_T3}")
        a.e(f"v_mov_b32 v{V_T4}, 0x3f80\nv_mov_b32 v{V_T5}, 0x3f800000")
        for s in range(2):
            for d in range(4):
                j = 2 * d
                c = 16 * s + 8 * (j // 4) + (j % 4)
                a.e(f"v_mov_b32 v{V_T6}, 0")
                a.e(f"v_cmp_eq_u32 vcc, {c}, v{V_T2}\nv_cndmask_b32 v{V_T6}, v{V_T6}, v{V_T4}, vcc")
                a.e(f"v_cmp_eq_u32 vcc, {c+1}, v{V_T2}\nv_cndmask_b32 v{V_T6}, v{V_T6}, v{V_T5}, vcc")
                a.e(f"v_accvgpr_write_b32 a{A_ID+4*s+d}, v{V_T6}")
        if Y:
            self.st4.xblock(self.R4)
            self.st4.bg_issue(self.R4)
            a.e(f"s_mov_b32 s8, s80\ns_mov_b32 s9, s81\ns_mov_b32 s10, {S*D*2}\ns_mov_b32 s11, 0x20000")
            self.st4.self_center(self.R4)
            self.st4.ts(86)
            if self.o.get("prof"):
                for nm, r in (("start", 84), ("t_ldiss", 94), ("t_landed", 92), ("t_arr", 90), ("t_center", 86)):
                    k = len(self.marks); self.marks.append(nm)
                    a.e(f"v_writelane_b32 v{V_MARK}, s{r}, {k}")
            a.vmq = []; a.lgq = []

    def layer_setup(self):
        self.emits(self.sa(S_FRB, [(S_L, NSYNC * 2048), (S_RB, 128)], FLAGS))
        self.emits(self.sa(S_FJ, [(S_L, NSYNC * 2048), (S_J, 128)], FLAGS))

    def p1(self):
        a = self.a
        XF, RK, RV, RQ, RING, RA, RB, TB = 16, 128, 144, 160, 176, 208, 224, 240
        RS, KR, QRING = 160, 176, 192
        LA = self.opt("la1", 6)
        self.mark("p1_start")
        self.emits(self.sa(S_A, [(S_XT, 28 * KB), (S_L, 2 * XSZ)], X))
        xi = self.seq_items(28, lambda s: vr(XF + 4*s), S_A, lambda s: f"x{s}", True)
        self.take(xi, 2)
        self.emits(self.sa(S_B, [(S_XT, 3584), (S_L, 2 * STSZ)], ST))
        self.emits(self.stats_loads(RA, S_B))
        self.take(xi, LA - 2)
        Y = self.opt("y", 0)
        assert not Y
        if Y:
            lab = a.newlabel("l0only")
            a.e(f"s_cmp_lg_u32 s{S_L}, 0\ns_cbranch_scc1 {lab}")
            vq, lq, vt = list(a.vmq), list(a.lgq), a.vm_total
            self.st4.bg_finish(self.R4, len(a.vmq))
            self.emits(self.sa(S_T0, [(S_TILE, 28 * KB), (S_N, 2 * KB)], X))
            for it in self.seq_items(2, lambda i: ar(A_RES + 4*i), S_T0, lambda i: "res", True): self.emits(it)
            a.vmq, a.lgq, a.vm_total = vq, lq, vt
            a.label(lab)
            self.vm_mark = a.vm_total
            a.e("s_waitcnt lgkmcnt(0)")
        a.wait_vm(("w1k", "w1v", "phi", "res"))
        a.e("s_barrier")
        self.mark("p1_wready")
        wq = []
        if self.opt("lateq", 0) == 2:
            wq = self.p1w_items(0)
            self.emits(wq[0][:-3] if False else [])
        X29 = 248
        self.flags = set()
        def xreg(s):
            if s == 28:
                assert "x29" in self.flags
                return X29
            return XF + 4 * s
        def rdA(s):
            sl = RING + 8 * (s % 4)
            r, of = self.ldsaddr(L_W1 + (KW + s) * KB); a.e(f"ds_read_b128 {vr(sl)}, v{r} offset:{of}", tag=f"a{s}")
            r, of = self.ldsaddr(L_W1 + (2 * KW + s) * KB); a.e(f"ds_read_b128 {vr(sl+4)}, v{r} offset:{of}", tag=f"a{s}")
        for s in range(3): rdA(s)
        def mk(s):
            def f():
                if s + 3 < KW: rdA(s + 3)
                if xi: self.take(xi, 1)
                else: self.take(wq, 1)
                if Y and s == self.opt("bgarr", 14):
                    a.e(f"s_waitcnt vmcnt({min(63, a.vm_total - self.vm_mark)})\ns_barrier")
                    a.e(f"s_and_b32 s{S_T2}, s2, 15\ns_lshl_b32 s{S_T2}, s{S_T2}, 7\ns_add_u32 s{S_T2}, s{S_T2}, {PFLAG + 2048}")
                    a.e(f"v_mov_b32 v{V_T7}, 1\ns_cmp_eq_u32 s{S_W}, 0\ns_cselect_b64 exec, 1, 0")
                    a.e_uncounted(f"buffer_atomic_add v{V_T7}, off, s[4:7], s{S_T2} sc1")
                    a.e("s_mov_b64 exec, -1")
                a.wait_both(f"x{s}", f"a{s}")
                sl = RING + 8 * (s % 4)
                a.e(f"{MF} {vr(RK,16)}, {vr(sl)}, {vr(xreg(s))}, {vr(RK,16) if s else 0}")
            return f
        def mv(s):
            def f():
                sl = RING + 8 * (s % 4)
                a.e(f"{MF} {vr(RV,16)}, {vr(xreg(s))}, {vr(sl+4)}, {vr(RV,16) if s else 0}")
            return f
        mains = []
        for s in range(KW): mains += [mk(s), mv(s)]
        fills = ["@waitvm st"] + self.stats_reduce(RA, V_T0, V_T1, V_T2, V_T3) + self.x29(X29, V_T1, V_T2) + ["@flag x29"]
        fills += [f"v_rsq_f32 v{V_T0}, v{V_T0}", f"v_lshrrev_b32 v{V_T1}, 1, v{V_I8}"]
        fills += self.sa(S_T0, [(S_W, 128)], L_SCR)
        fills += [f"v_add_u32 v{V_T1}, s{S_T0}, v{V_T1}", f"ds_write_b32 v{V_T1}, v{V_T0}|scw",
                  f"v_mul_f32 v{V_C}, {hexf(1.4426950408889634)}, v{V_T0}",
                  f"v_lshrrev_b32 v{V_T1}, 5, v{V_L16}", f"v_and_b32 v{V_T1}, 16, v{V_T1}",
                  f"v_add_u32 v{V_T1}, s{S_T0}, v{V_T1}", "@waitlg scw"]
        fills += [f"ds_read_b128 {vr(RS+4*g)}, v{V_T1} offset:{g*32}|rs" for g in range(4)]
        self.weave(mains, fills, caps=(20, 0))
        self.take(wq, len(wq))
        self.mark("p1_loopA")
        if self.opt("lateq", 0) == 1:
            lab = a.newlabel("lq")
            a.e(f"s_cmp_lg_u32 s{S_L}, 0\ns_cbranch_scc1 {lab}")
            vq, lq, vt = list(a.vmq), list(a.lgq), a.vm_total
            for it in self.p1w_items(0): self.emits(it)
            self.emits(self.sa(S_T0, [(S_TILE, 28 * KB), (S_N, 2 * KB)], X))
            for it in self.seq_items(2, lambda i: ar(A_RES + 4*i), S_T0, lambda i: "res", False): self.emits(it)
            a.vmq, a.lgq, a.vm_total = vq, lq, vt
            a.label(lab)
            self.lq_mark = a.vm_total
        w3 = self.w3_stream()
        vch = ["@waitlg rs"] + [f"v_pk_fma_f32 v[{RV+r}:{RV+r+1}], v[{RV+r}:{RV+r+1}], v[{RS+r}:{RS+r+1}], v[4:5] op_sel:[0,0,1] op_sel_hi:[1,1,1]" for r in range(0, 16, 2)]
        vch += [f"v_cvt_pk_bf16_f32 v{RV+d}, v{RV+2*d}, v{RV+2*d+1}" for d in range(8)]
        nk = self.opt("bg_k", 8) if not Y else 0
        if Y:
            a.e(f"v_lshlrev_b32 v249, 3, v{V_L16}\ns_mov_b32 s{S_F}, {PFLAG + 2048}\ns_mov_b64 exec, 0xffff")
            a.e(f"buffer_load_dword v248, v249, s[4:7], s{S_F} offen sc1", tag="dq")
            a.e("s_mov_b64 exec, -1")
        self.take(w3, min(nk, self.opt("bg_k0", 4)))
        self.emits(self.phi_apply(RK, TB))
        self.emits(vch)
        self.emits_bg(self.softmax(RK, RA, V_T0), w3, nk - min(nk, self.opt("bg_k0", 4)), first=0, every=self.opt("bg_k_every", 6))
        self.mark("p1_kepi")
        a.e(f"{MF} {vr(RB,16)}, {vr(RA)}, {ar(A_ID)}, 0")
        a.e(f"{MF} {vr(RB,16)}, {vr(RA+4)}, {ar(A_ID+4)}, {vr(RB,16)}")
        a.e(f"{MF} {vr(RA,16)}, {vr(RK)}, {ar(A_ID)}, 0")
        a.e(f"{MF} {vr(RA,16)}, {vr(RK+4)}, {ar(A_ID+4)}, {vr(RA,16)}")
        self.emits(self.sa(S_T0, [(S_W, 2048)], L_KVR) + [f"v_add_u32 v{V_T0}, s{S_T0}, v{V_L16}"])
        self.emits(self.sa(S_T0, [(S_W, 8192)], L_KVR) + [f"v_add_u32 v{V_T1}, s{S_T0}, v{V_L16}"])
        self.emits(self.sa(S_C, [(S_J, 4 * 16 * KB), (S_W, 16 * KB), (S_L, SLABSZ)], SLAB))
        for d in range(8): a.e(f"v_cvt_pk_bf16_f32 v{RB+d}, v{RB+2*d}, v{RB+2*d+1}")
        a.e(f"{MF} {vr(RK,16)}, {vr(RB)}, {vr(RV)}, 0")
        a.e(f"{MF} {vr(RK,16)}, {vr(RB+4)}, {vr(RV+4)}, {vr(RK,16)}")
        for d in range(8): a.e(f"v_cvt_pk_bf16_f32 v{RA+d}, v{RA+2*d}, v{RA+2*d+1}")
        a.e(f"{MF} {vr(RB,16)}, {vr(RA)}, {vr(RV)}, 0")
        a.e(f"{MF} {vr(RB,16)}, {vr(RA+4)}, {vr(RV+4)}, {vr(RB,16)}")
        self.emits(self.sa(S_D, [(S_RB, KB), (S_C, 1)]))
        for t, R in ((0, RK), (1, RB)):
            for s in range(2):
                for g in range(2):
                    a.e(f"ds_write_b128 v{V_T0}, {vr(R+8*s+4*g)} offset:{(2*t+s)*8192+g*1024}", tag="kw")
        a.wait_vm("w1q")
        if self.opt("lateq", 0) == 1: a.e(f"s_waitcnt vmcnt({min(63, a.vm_total - self.lq_mark)})")
        a.e("s_waitcnt lgkmcnt(0)\ns_barrier")
        for ws in range(4):
            for g in range(2):
                a.e(f"ds_read_b128 {vr(KR+8*ws+4*g)}, v{V_T1} offset:{(ws*2+g)*1024}", tag=f"kr{ws}")
        def rdB(s):
            sl = QRING + 4 * (s % 4) + 16
            r, of = self.ldsaddr(L_W1 + s * KB); a.e(f"ds_read_b128 {vr(sl)}, v{r} offset:{of}", tag=f"b{s}")
        a.wait_lg("kr1")
        for r in range(0, 8, 2): a.e(self.pk_add(KR + r, KR + r, KR + 8 + r))
        a.wait_lg("kr3")
        for r in range(0, 8, 2): a.e(self.pk_add(KR + 16 + r, KR + 16 + r, KR + 24 + r))
        for r in range(0, 8, 2): a.e(self.pk_add(KR + r, KR + r, KR + 16 + r))
        for d in range(4): a.e(f"v_cvt_pk_bf16_f32 v{KR+d}, v{KR+2*d}, v{KR+2*d+1}")
        self.emit(self.st(vr(KR), S_D, 0, "slab"))
        self.mark("p1_slab")
        if Y: self.done_check()
        for s in range(3): rdB(s)
        ARR = self.opt("arr1", 20)
        def mq(s):
            def f():
                if s == ARR: self.arrive(S_FJ, F_S1, "slab")
                if s + 3 < KW: rdB(s + 3)
                a.wait_lg(f"b{s}")
                sl = QRING + 4 * (s % 4) + 16
                a.e(f"{MF} {vr(RQ,16)}, {vr(sl)}, {vr(xreg(s))}, {vr(RQ,16) if s else 0}")
            return f
        self.weave([mq(s) for s in range(KW)], [], bg=w3, bg_every=self.opt("bg_q_every", 2))
        self.mark("p1_qpass")
        wo = self.wo_stream()
        qe = self.phi_apply(RQ, TB) + self.softmax(RQ, RA, V_T0)
        self.slab_items = None
        if self.opt("early_slab", 0):
            c1 = self.opt("es_cut", 40)
            a.e(f"s_mov_b32 s{S_E}, 0")
            self.apoll_issue(S_FJ, F_S1, 10, S_E, S_F)
            self.emits_bg(qe[:c1], wo, self.opt("es_wo0", 3), first=2, every=12)
            self.apoll_check(10, 16, S_F)
            self.mark("S1_poll")
            sl = self.seq_items(16, lambda i: vr(80 + 4*i), S_C, lambda i: f"sl{i}", True)
            self.emits_bg(qe[c1:], sl, 16, first=0, every=self.opt("es_every", 5))
            self.take(sl, len(sl))
            self.slab_items = True
        else:
            cut = self.opt("ap1", 70)
            self.emits_bg(qe[:cut], wo, self.opt("bg_qe", 6), first=0, every=11)
            if self.opt("async1", 1):
                a.e(f"s_mov_b32 s{S_E}, 0")
                self.apoll_issue(S_FJ, F_S1, 10, S_E, S_F)
            self.emits(qe[cut:])
        self.mark("p1_qepi")
        self.RA, self.RQ, self.w3, self.wo = RA, RQ, w3, wo

    def done_check(self):
        a = self.a
        ok, lp = a.newlabel("dok"), a.newlabel("dlp")
        a.wait_vm("dq")
        a.e(f"s_mov_b64 exec, 0xffff\nv_cmp_gt_u32 vcc, 16, v248\ns_cbranch_vccz {ok}")
        vq, lq, vt = list(a.vmq), list(a.lgq), a.vm_total
        a.e(f"s_mov_b32 s{S_CNT}, 0\ns_mov_b32 s{S_F}, {PFLAG + 2048}")
        a.label(lp)
        a.e(f"buffer_load_dword v248, v249, s[4:7], s{S_F} offen sc1")
        a.e(f"s_add_u32 s{S_CNT}, s{S_CNT}, 1\ns_cmp_gt_u32 s{S_CNT}, 200000\ns_cbranch_scc1 {lp}_x")
        a.e(f"s_waitcnt vmcnt(0)\nv_cmp_gt_u32 vcc, 16, v248\ns_cbranch_vccnz {lp}")
        a.label(f"{lp}_x")
        a.e("s_waitcnt vmcnt(0)")
        a.vmq, a.lgq, a.vm_total = vq, lq, vt
        a.label(ok)
        a.e("s_mov_b64 exec, -1")

    def p2a(self):
        a = self.a
        RA, RQ = self.RA, self.RQ
        SL, AC, KA, RB, TB = 80, 176, 188, 224, 240
        if not self.slab_items:
            if self.opt("async1", 1): self.apoll_check(10, 16, S_F)
            else: self.poll(S_FJ, F_S1, 16)
            self.mark("S1_poll")
            for it in self.seq_items(16, lambda i: vr(SL + 4*i), S_C, lambda i: f"sl{i}", True): self.emits(it)
        nwo = min(len(self.wo), self.opt("wo_2a", 16))
        bg2 = [self.wo.pop(0) for _ in range(nwo)] + [self.w3.pop(0) for _ in range(min(len(self.w3), self.opt("bg_2a", 0)))]
        for i in range(16):
            if i >= self.opt("bg_2a_first", 4) and bg2: self.emits(bg2.pop(0))
            a.wait_vm(f"sl{i}")
            for d in range(4):
                a.e(f"v_dot2_f32_bf16 v{AC+2*d}, v{SL+4*i+d}, s{S_SEL_LO}, {'v%d' % (AC+2*d) if i else 0}")
                a.e(f"v_dot2_f32_bf16 v{AC+2*d+1}, v{SL+4*i+d}, s{S_SEL_HI}, {'v%d' % (AC+2*d+1) if i else 0}")
        self.take(bg2, len(bg2))
        self.emits(self.sa(S_T0, [(S_W, KB)], L_KVA) + [f"v_add_u32 v{V_T0}, s{S_T0}, v{V_L16}"])
        self.emits(self.sa(S_A, [(S_XT, 32 * KB), (S_J, 2 * KB), (S_L, OSZ)], O))
        for d in range(4): a.e(f"v_cvt_pk_bf16_f32 v{AC+8+d}, v{AC+2*d}, v{AC+2*d+1}")
        a.e(f"ds_write_b128 v{V_T0}, {vr(AC+8)}")
        a.e("s_waitcnt lgkmcnt(0)\ns_barrier")
        for p in range(4):
            r, of = self.ldsaddr(L_KVA + p * KB)
            a.e(f"ds_read_b128 {vr(KA+4*p)}, v{r} offset:{of}", tag=f"ka{p}")
        Bs = [RA, RA + 4, RQ, RQ + 4]
        for p in range(4):
            a.wait_lg(f"ka{p}")
            a.e(f"{MF} {vr(RB,16)}, {vr(KA+4*p)}, {vr(Bs[p])}, {vr(RB,16) if p else 0}")
        a.e(f"v_mov_b32 v{V_T0}, v{RB+12}\nv_mov_b32 v{V_T1}, v{RB+12}")
        a.e(f"v_permlane32_swap_b32 v{V_T0}, v{V_T1}")
        a.e(f"v_add_f32 v{V_T1}, {hexf(1e-6)}, v{V_T1}\nv_rcp_f32 v{V_T1}, v{V_T1}")
        for r in range(0, 16, 2): a.e(self.pk_mul_bc(RB + r, RB + r, V_T1))
        for d in range(8): a.e(f"v_cvt_pk_bf16_f32 v{TB+d}, v{RB+2*d}, v{RB+2*d+1}")
        self.emit(self.st(vr(TB), S_A, 0, "ost")); self.emit(self.st(vr(TB+4), S_A, 1024, "ost"))
        self.mark("p2a_ost")
        self.arrive(S_FRB, F_S2, "ost")
        self.take(self.wo, len(self.wo))
        self.take(self.w3, self.opt("bg_s2", 0))
        self.mark("S2_arr")

    def red_addr(self):
        L = []
        for u in range(1, 4):
            L += [f"s_xor_b32 s{S_T0}, s{S_W}, {u}", f"s_mul_i32 s{S_T0}, s{S_T0}, 12288", f"s_add_u32 s{S_T0}, s{S_T0}, {L_RED+(u-1)*4096}",
                  f"v_add_u32 v{V_T0+u}, s{S_T0}, v{V_L16}"]
        L += self.sa(S_T0, [(S_W, 12288)], L_RED) + [f"v_add_u32 v{V_T0}, s{S_T0}, v{V_L16}"]
        return L
    def red_write(self, ACC, u):
        return [f"ds_write_b128 v{V_T0+u}, {vr(ACC+16*u+4*g)} offset:{g*1024}|rw" for g in range(4)]
    def res_unpack(self, TR):
        L = [f"v_accvgpr_read_b32 v{TR+16+d}, a{A_RES+d}" for d in range(8)]
        for d in range(8):
            L += [f"v_lshlrev_b32 v{TR+2*d}, 16, v{TR+16+d}", f"v_and_b32 v{TR+2*d+1}, 0xffff0000, v{TR+16+d}"]
        return L
    def red_finish(self, ACC, TR):
        a = self.a
        for r in range(0, 16, 2): a.e(self.pk_add(ACC + r, ACC + r, TR + r))
        a.e("s_waitcnt lgkmcnt(0)\ns_barrier")
        RD = ACC + 16
        for u in range(3):
            for g in range(4):
                a.e(f"ds_read_b128 {vr(RD+16*u+4*g)}, v{V_T0} offset:{u*4096+g*1024}", tag=f"rr{u}")
        for u in range(3):
            a.wait_lg(f"rr{u}")
            for r in range(0, 16, 2): a.e(self.pk_add(ACC + r, ACC + r, RD + 16*u + r))
        for d in range(8): a.e(f"v_cvt_pk_bf16_f32 v{TR+d}, v{ACC+2*d}, v{ACC+2*d+1}")
        self.PK, self.ACC = TR, ACC
    def x_store_addr(self, xsel):
        return (self.sa(S_E, [(S_TILE, 28 * KB), (S_N, 2 * KB), (S_L, 2 * XSZ)], X + xsel * XSZ) +
                self.sa(S_F, [(S_TILE, 3584)] + ([(S_CB, 512), (S_NT, 8)] if self.opt("st4", 0) else [(S_N, 256)]) + [(S_L, 2 * STSZ)], ST + xsel * STSZ))
    def store_x_and_stats(self):
        a = self.a
        PK, ACC = self.PK, self.ACC
        self.emit(self.st(vr(PK), S_E, 0, "xst")); self.emit(self.st(vr(PK+4), S_E, 1024, "xst"))
        t = PK + 8
        a.e(self.pk_add(t, ACC, ACC + 2))
        a.e(f"v_pk_mul_f32 v[{t+2}:{t+3}], v[{ACC}:{ACC+1}], v[{ACC}:{ACC+1}]")
        for r in range(2, 16, 2):
            if r > 2: a.e(self.pk_add(t, t, ACC + r))
            a.e(f"v_pk_fma_f32 v[{t+2}:{t+3}], v[{ACC+r}:{ACC+r+1}], v[{ACC+r}:{ACC+r+1}], v[{t+2}:{t+3}]")
        a.e(f"v_add_f32 v{t}, v{t}, v{t+1}\nv_add_f32 v{t+1}, v{t+2}, v{t+3}")
        a.e(f"v_mov_b32 v{t+2}, v{t}\nv_mov_b32 v{t+3}, v{t+1}")
        a.e(f"v_permlane32_swap_b32 v{t+2}, v{t}\nv_permlane32_swap_b32 v{t+3}, v{t+1}")
        a.e(self.pk_add(t, t, t + 2))
        a.e("s_mov_b32 exec_hi, 0")
        self.emit(self.st(f"v[{t}:{t+1}]", S_F, 0, "xst", n=2, vaddr=V_STL if self.opt("st4", 0) else V_I8))
        a.e("s_mov_b32 exec_hi, -1")
        for d in range(8): a.e(f"v_accvgpr_write_b32 a{A_RES+d}, v{PK+d}")

    def p2b(self):
        a = self.a
        OB, ACC, TR = 80, 144, 208
        pre = []
        for b, c in ((0, S_A), (1, S_B)):
            pre += [f"s_xor_b32 s{c}, s{S_TILE}, {b}", f"s_lshl_b32 s{c}, s{c}, 15"] + self.sa(S_T0, [(S_W, 8 * KB), (S_L, OSZ)], O) + [f"s_add_u32 s{c}, s{c}, s{S_T0}"]
        self.emits(pre)
        self.poll(S_FRB, F_S2, 16)
        self.mark("S2_poll")
        ob = [self.seq_items(8, lambda i: vr(OB + 32*b + 4*i), (S_A, S_B)[b], lambda i: f"o{b}_{i}", True) for b in range(2)]
        for it in ob[1] + ob[0]: self.emits(it)
        nb = self.opt("bg_2b", 14)
        self.emits(self.red_addr() + self.x_store_addr(1))
        a.wait_vm("wo")
        def mf(u, i):
            b, sl = u >> 1, u & 1
            a.e(f"{MF} {vr(ACC+16*u,16)}, {vr(16+32*sl+4*i)}, {vr(OB+32*b+4*i)}, {vr(ACC+16*u,16) if i else 0}")
        for i in range(8):
            a.wait_vm(f"o1_{i}")
            mf(2, i); mf(3, i)
            if i < nb: self.take(self.w3, 1)
        resu = self.res_unpack(TR)
        wr = self.red_write(ACC, 2) + self.red_write(ACC, 3)
        for i in range(8):
            a.wait_vm(f"o0_{i}")
            mf(1, i)
            if i >= 2 and wr: self.emit(wr.pop(0))
            self.emits(resu[3*i:3*i+3])
            mf(0, i)
            if i >= 2 and wr: self.emit(wr.pop(0))
            if 8 + i < nb: self.take(self.w3, 1)
        self.emits(wr)
        self.mark("p2b_mfma")
        self.emits(self.red_write(ACC, 1))
        self.red_finish(ACC, TR)
        self.store_x_and_stats()
        self.mark("p2b_st")
        self.arrive(S_FRB, F_S3, "xst")
        self.take(self.w3, self.opt("bg_s3", 0))
        self.mark("S3_arr")

    def p3(self):
        a = self.a
        ACC0, ACC1, RING, CC, TT, HP, STB = 16, 48, 80, 96, 100, 116, 100
        V_X1, V_CA, V_CB = V_T5, V_T4, V_T6
        xds = []
        for p in range(4):
            gc, gl = 56 + 2 * p, 57 + 2 * p
            self.emits([f"s_xor_b32 s{S_T0}, s{S_M}, {p}"] + self.sa(gc, [(S_T0, 28 * KB), (S_RB, 4 * 28 * KB), (S_W, 7 * KB), (S_L, 2 * XSZ)], X + XSZ))
            self.emits(self.sa(gl, [(S_W, 7 * KB)], L_XR + (p & 1) * XSLOT))
            xds.append(self.dma_items(7, gl, gc, f"xt{p}", True))
        def xd(p): return xds[p]
        x0, x1 = xd(0), xd(1)
        self.poll(S_FRB, F_S3, 14)
        self.mark("S3_poll")
        self.take(x0, 7)
        self.emits(self.sa(S_T0, [(S_XT, 3584), (S_L, 2 * STSZ)], ST + STSZ))
        self.emits(self.stats_loads(STB, S_T0))
        self.take(self.w3, len(self.w3))
        a.e(f"v_add_u32 v{V_X1}, {L_XR + XSLOT}, v{V_L16}")
        def hbase(p):
            return [f"s_xor_b32 s{S_T0}, s{S_M}, {p}"] + self.sa(S_C, [(S_T0, 112 * KB), (S_RB, 4 * 112 * KB), (S_JS, 8 * KB), (S_W, 2 * KB), (S_L, HSZ)], HB)
        c1 = -2.0 * 0.7978845608028654 * 1.4426950408889634
        c2 = c1 * 0.044715
        stf = ["@waitvm st"] + self.stats_reduce(STB, V_T0, V_T1, V_T2, V_T3)
        stf += [f"v_rsq_f32 v{V_T1}, v{V_T0}", f"v_lshrrev_b32 v{V_CA}, 1, v{V_I8}"] + self.sa(S_T0, [(S_W, 384)], L_SCR3)
        stf += [f"v_add_u32 v{V_CB}, s{S_T0}, v{V_CA}",
                f"v_mul_f32 v{V_T2}, v{V_T1}, v{V_T1}", f"v_mul_f32 v{V_T3}, {hexf(c1)}, v{V_T1}", f"v_mul_f32 v{V_T2}, v{V_T2}, v{V_T1}", f"v_mul_f32 v{V_T2}, {hexf(c2)}, v{V_T2}",
                f"ds_write_b32 v{V_CB}, v{V_T3}|cw", f"ds_write_b32 v{V_CB}, v{V_T2} offset:128|cw", f"ds_write_b32 v{V_CB}, v{V_T0} offset:256|cw"]
        stf += self.sa(S_T0, [(S_M, 384)], L_SCR3) + [f"s_mul_i32 s{S_T1}, s{S_M}, 384", f"s_sub_u32 s{S_T1}, {L_SCR3 + 768}, s{S_T1}",
                f"v_add_u32 v{V_CB}, s{S_T1}, v{V_CA}", f"v_add_u32 v{V_CA}, s{S_T0}, v{V_CA}"]

        def epi(p):
            A = ACC0 if p % 2 == 0 else ACC1
            G, U = A, A + 16
            va = V_CA if p < 2 else V_CB
            L = [f"ds_read_b32 v{CC+q}, v{va} offset:{(p&1)*384+q*128}|cc" for q in range(3)] + hbase(p)
            for g in range(4):
                rr = [4*g + k for k in range(4)]
                for k, r in enumerate(rr): L.append(f"v_mul_f32 v{TT+k}, v{G+r}, v{G+r}")
                for k, r in enumerate(rr): L.append(f"v_mul_f32 v{TT+4+k}, v{G+r}, v{U+r}")
                if g == 0: L.append("@waitlg cc")
                for k, r in enumerate(rr): L.append(f"v_fma_f32 v{TT+k}, v{TT+k}, v{CC+1}, v{CC}")
                for k, r in enumerate(rr): L.append(f"v_mul_f32 v{TT+k}, v{TT+k}, v{G+r}")
                for k, r in enumerate(rr): L.append(f"v_exp_f32 v{TT+k}, v{TT+k}")
                for k, r in enumerate(rr): L.append(f"v_fma_f32 v{TT+k}, v{TT+k}, v{CC+2}, v{CC+2}")
                for k, r in enumerate(rr): L.append(f"v_rcp_f32 v{TT+k}, v{TT+k}")
                for k in range(4): L.append(f"v_mul_f32 v{TT+4+k}, v{TT+4+k}, v{TT+k}")
                L.append(f"v_cvt_pk_bf16_f32 v{HP+2*g}, v{TT+4}, v{TT+5}")
                L.append(f"v_cvt_pk_bf16_f32 v{HP+2*g+1}, v{TT+6}, v{TT+7}")
                if g % 2 == 1 and not (self.opt("x_nost", 0) and p < 2): L.append(self.st(vr(HP + 4*(g//2)), S_C, 1024 * (g // 2), f"hst{p}"))
            if self.opt("x_noepi", 0) and p < 2: L = [t for t in L if t.startswith("buffer_") or t.startswith("s_")]
            return L

        w4 = None
        for p in range(4):
            A = ACC0 if p % 2 == 0 else ACC1
            a.wait_vm(f"xt{p}")
            a.e("s_waitcnt lgkmcnt(0)\ns_barrier")
            if p in (0, 1, 3): self.mark(f"p3_T{p}")
            def rd(s):
                if p & 1 == 0:
                    r, of = self.ldsaddr(L_XR + s * KB)
                else: r, of = V_X1, s * KB
                a.e(f"ds_read_b128 {vr(RING+4*(s%4))}, v{r} offset:{of}", tag=f"b{s}")
            for s in range(3): rd(s)
            def mg(s):
                def f():
                    if s + 3 < 28: rd(s + 3)
                    a.wait_both(f"w3_{s}" if p == 0 else None, f"b{s}")
                    a.e(f"{MF} {vr(A,16)}, {ar(8*s)}, {vr(RING+4*(s%4))}, {vr(A,16) if s else 0}")
                return f
            def mu(s):
                def f(): a.e(f"{MF} {vr(A+16,16)}, {ar(8*s+4)}, {vr(RING+4*(s%4))}, {vr(A+16,16) if s else 0}")
                return f
            mains = []
            for s in range(28): mains += [mg(s), mu(s)]
            if p == 0:
                w4 = self.w4_stream()
                bg = x1 + [w4.pop(0) for _ in range(self.opt("w4_p0", 12))]
                self.weave(mains, stf, bg=bg, bg_every=2, bg_phase=1, caps=(16, 8))
            elif p == 1:
                bg = xd(2) + [w4.pop(0) for _ in range(self.opt("w4_p1", 12))]
                if self.opt("x_nobg", 0): bg = xd(2)
                mains[0](); mains[1]()
                self.weave(mains[2:], epi(0), bg=bg, bg_every=2, bg_phase=1, caps=(self.opt('cap1', 24), self.opt('cap2', 8)))
            elif p == 2:
                na = 32 - self.opt("w4_p0", 12) - self.opt("w4_p1", 12)
                bg = xd(3) + [w4.pop(0) for _ in range(na)]
                if self.opt("x_nobg", 0): bg = xd(3)
                mains[0](); mains[1]()
                self.weave(mains[2:], epi(1), bg=bg, bg_every=2, bg_phase=1, caps=(self.opt('cap1', 24), self.opt('cap2', 8)))
            else:
                bg = w4
                mains[0](); mains[1]()
                a.e(f"s_xor_b32 s{S_E}, s{S_TH}, 1")
                AP = self.opt("ap4e", 46)
                orig = mains[AP]
                def with_poll():
                    self.apoll_issue(S_FRB, F_S4E, 8, S_E, S_F)
                    orig()
                mains[AP] = with_poll
                AE = self.opt("arr4e", 22)
                orig2 = mains[AE]
                def with_arr():
                    self.arrive(S_FRB, F_S4E, ("hst0", "hst1"), slot_sreg=S_TH)
                    orig2()
                mains[AE] = with_arr
                self.weave(mains[2:], epi(2), bg=bg, bg_every=2, bg_phase=1, caps=(self.opt('cap1', 24), self.opt('cap2', 8)))
            self.take(bg, len(bg))
        self.mark("p3_loop")
        self.p4_setup()
        self.apoll_check(8, 7, S_F)
        LA = self.opt("la4", 6)
        first = []
        for i in range(LA): first += [self.hi[(i, 0)], self.hi[(i, 1)]]
        self.emits_bg(epi(3), first, len(first), first=self.opt("e3first", 20), every=self.opt("e3every", 9))
        self.take(first, len(first))
        self.mark("p3_epi")

    def p4_setup(self):
        HR, NR = 96, 16
        cur = [S_G[4], S_G[5], S_G[6], S_G[7]]
        pre = []
        for late in (0, 1):
            for b in range(2):
                c = cur[2*late + b]
                pre += self.kseg(S_T0, late) + [f"s_xor_b32 s{c}, s{S_TILE}, {b}", f"s_mul_i32 s{c}, s{c}, 112", f"s_add_u32 s{c}, s{c}, s{S_T0}", f"s_lshl_b32 s{c}, s{c}, 10"]
                pre += self.sa(S_T0, [(S_L, HSZ)], HB) + [f"s_add_u32 s{c}, s{c}, s{S_T0}"]
        self.emits(pre)
        self.hi = {}
        for late in (0, 1):
            for b in range(2):
                x = self.seq_items(14, lambda i: ar(HR + 8*((14*late + i) % NR) + 4*b), cur[2*late + b], lambda i: f"h{14*late+i}_{b}", True)
                for i in range(14): self.hi[(14*late + i, b)] = x[i]

    def p4(self):
        a = self.a
        n = self.name
        ACC, HR, NR, TR = 16, 96, 16, 80
        LA = self.opt("la4", 6)
        hi = self.hi
        self.emits(self.red_addr())
        def mf(u, i):
            b, sl = u >> 1, u & 1
            a.e(f"{MF} {vr(ACC+16*u,16)}, {self.w4_reg(i, sl)}, {ar(HR+8*(i%NR)+4*b)}, {vr(ACC+16*u,16) if i else 0}")
        TAIL = self.opt("tail4", 6)
        PL = 14 - LA
        t0 = 28 - TAIL
        rest0 = [hi[(i, 0)] for i in range(t0, 28)]
        rest1 = [hi[(i, 1)] for i in range(t0, 28)]
        ARR4 = self.opt("arr4", 3)
        APL = self.opt("ap4l", PL - 2)
        for i in range(t0):
            if i == ARR4:
                self.arrive(S_FRB, F_S4L, ("hst2", "hst3"), slot_sreg=S_TH)
                self.mark("S4_arr")
            if i == APL: self.apoll_issue(S_FRB, F_S4L, 9, S_TH, S_F)
            if i == PL:
                self.apoll_check(9, 7, S_F)
                self.mark("S4L_poll")
            a.wait_vm((f"h{i}_0", f"h{i}_1", f"w4_{i}"))
            nxt = i + LA
            mf(0, i); mf(1, i)
            if nxt < t0: self.emits(hi[(nxt, 0)])
            elif rest1: self.emits(rest1.pop(0))
            mf(2, i); mf(3, i)
            if nxt < t0: self.emits(hi[(nxt, 1)])
            elif rest1: self.emits(rest1.pop(0))
            elif rest0: self.emits(rest0.pop(0))
        for it in rest1: self.emits(it)
        for i in range(t0, 28):
            a.wait_vm((f"h{i}_1", f"w4_{i}"))
            mf(2, i)
            if rest0: self.emits(rest0.pop(0))
            mf(3, i)
        resu = self.res_unpack(TR)
        wr = self.red_write(ACC, 2) + self.red_write(ACC, 3)
        k = 0
        for i in range(t0, 28):
            a.wait_vm(f"h{i}_0")
            mf(1, i)
            if i >= t0 + 1 and wr: self.emit(wr.pop(0))
            self.emits(resu[4*k:4*k+4]); k += 1
            mf(0, i)
            if i >= t0 + 1 and wr: self.emit(wr.pop(0))
        self.emits(resu[4*k:]); self.emits(wr)
        self.mark("p4_mfma")
        self.emits(self.red_write(ACC, 1))
        self.emits(self.x_store_addr(2))
        self.red_finish(ACC, TR)
        self.mark("p4_red")
        fin = a.newlabel("fin")
        a.e(f"s_cmp_lg_u32 s{S_L}, 0\ns_cbranch_scc1 {fin}")
        vq = list(a.vmq)
        self.store_x_and_stats()
        self.arrive(S_FRB, F_S5, "xst")
        a.e(f"s_branch {n}_next")
        a.vmq = vq
        a.label(fin)
        PK = self.PK
        self.emits(self.sa(S_T0, [(S_TILE, 32 * 896), (S_N, 64)]))
        a.e(f"v_mul_u32_u24 v{V_T0}, 112, v{V_I8}\nv_lshrrev_b32 v{V_T1}, 5, v{V_L16}\nv_and_b32 v{V_T1}, 16, v{V_T1}\nv_add_u32 v{V_T0}, v{V_T0}, v{V_T1}")
        a.e(f"v_permlane32_swap_b32 v{PK}, v{PK+2}\nv_permlane32_swap_b32 v{PK+1}, v{PK+3}")
        a.e(f"v_permlane32_swap_b32 v{PK+4}, v{PK+6}\nv_permlane32_swap_b32 v{PK+5}, v{PK+7}")
        osc = " sc1" if self.opt("out_sc1", 0) else ""
        a.e(f"buffer_store_dwordx4 {vr(PK)}, v{V_T0}, s[8:11], s{S_T0} offen" + osc)
        a.e(f"buffer_store_dwordx4 {vr(PK+4)}, v{V_T0}, s[8:11], s{S_T0} offen offset:32" + osc)
        a.e(f"s_branch {n}_done")

    def build(self):
        a, n = self.a, self.name
        self.prologue()
        head_q = list(a.vmq)
        a.label(f"{n}_layer")
        a.vmq = list(head_q); a.lgq = []
        self.layer_setup()
        if self.opt("y", 0):
            a.e(f"s_lshl_b32 s{S_T0}, s{S_RB}, 7\ns_add_u32 s{S_T0}, s{S_T0}, {PFLAG}\ns_add_u32 s{S_E}, s{S_FRB}, {F_S5*2048 - NSYNC*2048}")
            a.e(f"s_cmp_eq_u32 s{S_L}, 0\ns_cselect_b32 s{S_E}, s{S_T0}, s{S_E}")
            self.poll(S_E, 0, 14)
        else:
            lab = a.newlabel("nos5")
            a.e(f"s_cmp_eq_u32 s{S_L}, 0\ns_cbranch_scc1 {lab}")
            self.poll(S_FRB, F_S5, 14, extra=-NSYNC * 2048)
            a.label(lab)
        self.p1()
        self.p2a()
        a.e(f"s_cmp_lt_u32 s{S_Q}, 7\ns_cbranch_scc1 {n}_act")
        a.e(f"s_cmp_lg_u32 s{S_L}, 0\ns_cbranch_scc1 {n}_done")
        a.e("s_waitcnt vmcnt(0)")
        a.e(f"s_branch {n}_next")
        a.label(f"{n}_act")
        self.p2b()
        self.p3()
        self.p4()
        a.label(f"{n}_next")
        if not self.opt("nonextwait", 0): a.e("s_waitcnt vmcnt(0)")
        if self.o.get("prof"): a.e(f"v_lshrrev_b32 v{V_T0}, 2, v{V_L16}\nv_add_u32 v{V_T0}, {L_MARK}, v{V_T0}\ns_cmp_eq_u32 s{S_W}, 0\ns_cselect_b64 exec, -1, 0\nds_write_b32 v{V_T0}, v{V_MARK}\ns_mov_b64 exec, -1\ns_waitcnt lgkmcnt(0)\nv_mov_b32 v{V_MARK}, 0")
        a.e(f"s_add_u32 s{S_L}, s{S_L}, 1")
        a.e(f"s_branch {n}_layer")
        a.label(f"{n}_done")
        if self.o.get("prof"): self.dump_marks()
        a.e("s_endpgm")
        a.label(f"{n}_end")
        return a.finalize()
```

```python
from main3 import *
import main3
F_S4M = 8

class Gen(main3.Gen):
    def p3(self):
        a = self.a
        ACC0, ACC1, RING, CC, TT, HP, STB = 16, 48, 80, 96, 100, 116, 100
        V_X1, V_CA, V_CB = V_T5, V_T4, V_T6
        xds = []
        for p in range(4):
            gc, gl = 56 + 2 * p, 57 + 2 * p
            self.emits([f"s_xor_b32 s{S_T0}, s{S_M}, {p}"] + self.sa(gc, [(S_T0, 28 * KB), (S_RB, 4 * 28 * KB), (S_W, 7 * KB), (S_L, 2 * XSZ)], X + XSZ))
            if p == 0 and self.opt("chunk0", 0):
                self.emits(self.sa(gc, [(S_T0, 28 * KB), (S_RB, 4 * 28 * KB), (S_W, KB), (S_L, 2 * XSZ)], X + XSZ))
                self.emits(self.sa(gl, [(S_W, KB)], L_XR))
                its = []
                for i in range(7):
                    it = [f"s_mov_b32 m0, s{gl}", "s_nop 0", f"buffer_load_dwordx4 v{V_L16}, s[4:7], s{gc} offen sc1 lds|" + ("xt0a" if i < 2 else "xt0")]
                    if i != 6: it += [f"s_add_u32 s{gc}, s{gc}, 4096", f"s_add_u32 s{gl}, s{gl}, 4096"]
                    its.append(it)
                xds.append(its)
                continue
            self.emits(self.sa(gl, [(S_W, 7 * KB)], L_XR + (p & 1) * XSLOT))
            xds.append(self.dma_items(7, gl, gc, f"xt{p}", True))
        self.emits(self.sa(S_A, [(S_XT, 3584), (S_L, 2 * STSZ)], ST + STSZ))
        a.e(f"v_add_u32 v{V_X1}, {L_XR + XSLOT}, v{V_L16}")
        w4 = self.w4_stream()
        self.poll(S_FRB, F_S3, 14)
        self.mark("S3_poll")
        self.take(xds[0], 7)
        self.emits(self.stats_loads(STB, S_A))
        self.take(self.w3, len(self.w3))
        def hbase(p):
            return [f"s_xor_b32 s{S_T0}, s{S_M}, {p}"] + self.sa(S_C, [(S_T0, 112 * KB), (S_RB, 4 * 112 * KB), (S_JS, 8 * KB), (S_W, 2 * KB), (S_L, HSZ)], HB)
        c1 = -2.0 * 0.7978845608028654 * 1.4426950408889634
        c2 = c1 * 0.044715
        V_M = 99
        stf = ["@waitvm st"] + self.stats_reduce(STB, V_T0, V_M, V_T2, V_T3)
        stf += [f"v_rsq_f32 v{V_T1}, v{V_T0}", f"v_lshrrev_b32 v{V_CA}, 1, v{V_I8}"] + self.sa(S_T0, [(S_W, 384)], L_SCR3)
        stf += [f"v_add_u32 v{V_CB}, s{S_T0}, v{V_CA}",
                f"v_mul_f32 v{V_T2}, v{V_T1}, v{V_T1}", f"v_mul_f32 v{V_T3}, {hexf(c1)}, v{V_T1}", f"v_mul_f32 v{V_T2}, v{V_T2}, v{V_T1}", f"v_mul_f32 v{V_T2}, {hexf(c2)}, v{V_T2}",
                f"ds_write_b32 v{V_CB}, v{V_T3}|cw", f"ds_write_b32 v{V_CB}, v{V_T2} offset:128|cw", f"ds_write_b32 v{V_CB}, v{V_T0} offset:256|cw"]
        stf += self.sa(S_T0, [(S_M, 384)], L_SCR3) + [f"s_mul_i32 s{S_T1}, s{S_M}, 384", f"s_sub_u32 s{S_T1}, {L_SCR3 + 768}, s{S_T1}",
                f"v_add_u32 v{V_CB}, s{S_T1}, v{V_CA}", f"v_add_u32 v{V_CA}, s{S_T0}, v{V_CA}"]
        B29, V_B0, V_B1 = 124, 108, 109
        stf += self.x29(B29, V_M, V_T2) + self.sa(S_T0, [(S_W, KB)], L_B29) + [f"v_add_u32 v{V_T3}, s{S_T0}, v{V_L16}", f"ds_write_b128 v{V_T3}, {vr(B29)}|cw"]
        stf += self.sa(S_T0, [(S_M, KB)], L_B29) + [f"v_add_u32 v{V_B0}, s{S_T0}, v{V_L16}", f"s_lshl_b32 s{S_T1}, s{S_M}, 10", f"s_sub_u32 s{S_T1}, {L_B29 + 2*KB}, s{S_T1}",
                f"v_add_u32 v{V_B1}, s{S_T1}, v{V_L16}", "@flag cwdone"]

        def epi(p, packed=False):
            A = ACC0 if p % 2 == 0 else ACC1
            G, U = A, A + 16
            va = V_CA if p < 2 else V_CB
            L = [f"ds_read_b32 v{CC+q}, v{va} offset:{(p&1)*384+q*128}|cc" for q in range(3)] + hbase(p)
            for g in range(4):
                rr = [4*g + k for k in range(4)]
                if packed:
                    for k in (0, 2): L.append(f"v_pk_mul_f32 v[{TT+k}:{TT+k+1}], v[{G+4*g+k}:{G+4*g+k+1}], v[{G+4*g+k}:{G+4*g+k+1}]")
                    for k in (0, 2): L.append(f"v_pk_mul_f32 v[{TT+4+k}:{TT+5+k}], v[{G+4*g+k}:{G+4*g+k+1}], v[{U+4*g+k}:{U+4*g+k+1}]")
                    if g == 0: L.append("@waitlg cc")
                    for k in (0, 2): L.append(self.pk_fma_bc(TT + k, TT + k, CC + 1, CC))
                    for k in (0, 2): L.append(f"v_pk_mul_f32 v[{TT+k}:{TT+k+1}], v[{TT+k}:{TT+k+1}], v[{G+4*g+k}:{G+4*g+k+1}]")
                    for k in range(4): L.append(f"v_exp_f32 v{TT+k}, v{TT+k}")
                    for k in (0, 2): L.append(self.pk_fma_bc(TT + k, TT + k, CC + 2, CC + 2))
                    for k in range(4): L.append(f"v_rcp_f32 v{TT+k}, v{TT+k}")
                    for k in (0, 2): L.append(f"v_pk_mul_f32 v[{TT+4+k}:{TT+5+k}], v[{TT+4+k}:{TT+5+k}], v[{TT+k}:{TT+k+1}]")
                else:
                    for k, r in enumerate(rr): L.append(f"v_mul_f32 v{TT+k}, v{G+r}, v{G+r}")
                    for k, r in enumerate(rr): L.append(f"v_mul_f32 v{TT+4+k}, v{G+r}, v{U+r}")
                    if g == 0: L.append("@waitlg cc")
                    for k, r in enumerate(rr): L.append(f"v_fma_f32 v{TT+k}, v{TT+k}, v{CC+1}, v{CC}")
                    for k, r in enumerate(rr): L.append(f"v_mul_f32 v{TT+k}, v{TT+k}, v{G+r}")
                    for k, r in enumerate(rr): L.append(f"v_exp_f32 v{TT+k}, v{TT+k}")
                    for k, r in enumerate(rr): L.append(f"v_fma_f32 v{TT+k}, v{TT+k}, v{CC+2}, v{CC+2}")
                    for k, r in enumerate(rr): L.append(f"v_rcp_f32 v{TT+k}, v{TT+k}")
                    for k in range(4): L.append(f"v_mul_f32 v{TT+4+k}, v{TT+4+k}, v{TT+k}")
                L.append(f"v_cvt_pk_bf16_f32 v{HP+2*g}, v{TT+4}, v{TT+5}")
                L.append(f"v_cvt_pk_bf16_f32 v{HP+2*g+1}, v{TT+6}, v{TT+7}")
                if g % 2 == 1: L.append(self.st(vr(HP + 4*(g//2)), S_C, 1024 * (g // 2), f"hst{p}"))
            return L

        self.flags = set()
        def slot(p, s): return RING + 4 * ((KW * p + s) % 4)
        def rd(p, s):
            if s == 28:
                assert "cwdone" in self.flags
                r, of = (V_B0 if p < 2 else V_B1), (p & 1) * KB
            elif p & 1 == 0: r, of = self.ldsaddr(L_XR + s * KB)
            else: r, of = V_X1, s * KB
            a.e(f"ds_read_b128 {vr(slot(p, s))}, v{r} offset:{of}", tag=f"b{p}_{s}")
        CH = self.opt("chunk0", 0)
        a.wait_vm("xt0a" if CH else "xt0")
        a.e("s_barrier")
        self.mark("p3_T0")
        for s in range(3): rd(0, s)
        B2 = self.opt("b2step", 24)
        for p in range(4):
            A = ACC0 if p % 2 == 0 else ACC1
            def mg(s):
                def f():
                    if p == 0 and s == 5 and CH:
                        a.wait_vm("xt0")
                        a.e("s_barrier")
                    if p >= 1 and p <= 2 and s == 1: a.e("s_barrier")
                    if p <= 2 and s == B2:
                        if p == 0:
                            assert "cwdone" in self.flags
                            a.wait_lg("cw")
                        a.wait_vm(f"xt{p+1}")
                        a.e("s_barrier")
                    g = KW * p + s + 3
                    if g < 4 * KW: rd(g // KW, g % KW)
                    a.wait_both(f"w3_{s}" if p == 0 else None, f"b{p}_{s}")
                    a.e(f"{MF} {vr(A,16)}, {ar(8*s)}, {vr(slot(p, s))}, {vr(A,16) if s else 0}")
                return f
            def mu(s):
                def f(): a.e(f"{MF} {vr(A+16,16)}, {ar(8*s+4)}, {vr(slot(p, s))}, {vr(A+16,16) if s else 0}")
                return f
            mains = []
            for s in range(KW): mains += [mg(s), mu(s)]
            caps = (self.opt('cap1', 24), self.opt('cap2', 8))
            if p == 0:
                bg = xds[1] + [w4.pop(0) for _ in range(self.opt("w4_p0", 12))]
                self.weave(mains, stf, bg=bg, bg_every=2, bg_phase=1, caps=(16, 8))
            elif p == 1:
                bg = xds[2] + [w4.pop(0) for _ in range(self.opt("w4_p1", 12))]
                mains[0](); mains[1](); mains[2]()
                self.weave(mains[3:], epi(0), bg=bg, bg_every=2, bg_phase=0, caps=(caps[1], caps[0]))
            elif p == 2:
                na = 32 - self.opt("w4_p0", 12) - self.opt("w4_p1", 12)
                bg = xds[3] + [w4.pop(0) for _ in range(na)]
                mains[0](); mains[1](); mains[2]()
                self.weave(mains[3:], epi(1), bg=bg, bg_every=2, bg_phase=0, caps=(caps[1], caps[0]))
            else:
                bg = w4
                a.e(f"s_xor_b32 s{S_E}, s{S_TH}, 1")
                AP, AE = self.opt("ap4e", 46), self.opt("arr4e", 22)
                orig, orig2 = mains[AP], mains[AE]
                def with_poll():
                    self.apoll_issue(S_FRB, F_S4E, 8, S_E, S_F)
                    orig()
                def with_arr():
                    self.arrive(S_FRB, F_S4E, ("hst0", "hst1"), slot_sreg=S_TH)
                    orig2()
                mains[AP], mains[AE] = with_poll, with_arr
                mains[0](); mains[1]()
                self.weave(mains[2:], epi(2) + self.p4_setup_list(), bg=bg, bg_every=2, bg_phase=1, caps=caps)
            self.take(bg, len(bg))
            if p in (0, 2): self.mark(f"p3_e{p}")
        self.mark("p3_loop")
        self.p4_items()
        self.apoll_check(8, 7, S_F)
        LA = self.opt("la4", 12)
        first = [self.hq.pop(0) for _ in range(LA)]
        e3 = epi(3, packed=True)
        cut = self.opt("arr4m", 40)
        self.emits_bg(e3[:cut], first, len(first), first=self.opt("e3first", 4), every=self.opt("e3every", 8))
        self.arrive(S_FRB, F_S4M, "hst2", slot_sreg=S_TH)
        self.emits_bg(e3[cut:], first, len(first), first=0, every=self.opt("e3every", 8))
        self.take(first, len(first))
        self.mark("p3_epi")

    def emit(self, t):
        if t.startswith("@flag "): self.flags.add(t.split()[1])
        elif t.startswith("~"): super().emit(t[1:])
        else: super().emit(t)

    S_LIM, S_RT = 86, 87
    def rot_setup(self):
        return [f"s_lshl_b32 s{self.S_RT}, s{S_CB}, 1", f"s_sub_u32 s{self.S_LIM}, 14, s{self.S_RT}"]
    def rot_items(self, dstf, base, tagf, sc1):
        items = []
        t = self.S_RT
        for p in range(14):
            it = []
            if self.opt("rot4", 1):
                it += [f"s_cmp_gt_u32 s{self.S_LIM}, {p}", f"s_cselect_b32 s{t}, 0, {14*KB}", f"s_sub_u32 s{t}, s{base}, s{t}"]
                if p // 4: it.append(f"s_add_u32 s{t}, s{t}, {(p//4)*4096}")
                it.append(self.ld(dstf(p), t, (p % 4) * 1024, tagf(p), sc1))
            else:
                if p and p % 4 == 0: it.append(f"s_add_u32 s{base}, s{base}, 4096")
                it.append(self.ld(dstf(p), base, (p % 4) * 1024, tagf(p), sc1))
            items.append(it)
        return items
    def w4_stream(self):
        out = []
        if self.opt("rot4", 1): self.emits(self.rot_setup())
        for late in (0, 1):
            its = []
            for sl in range(2):
                c = 88 + 2 * late + sl
                pre = main3.Gen.kseg(self, S_T0, late) + [f"s_xor_b32 s{c}, s{S_NT}, {sl}", f"s_mul_i32 s{c}, s{c}, 112", f"s_add_u32 s{c}, s{c}, s{S_T0}"]
                pre += [f"s_mul_i32 s{S_T0}, s{S_CB}, 224", f"s_add_u32 s{c}, s{c}, s{S_T0}"]
                if self.opt("rot4", 1): pre += [f"s_lshl_b32 s{S_T0}, s{S_CB}, 1", f"s_add_u32 s{c}, s{c}, s{S_T0}"]
                pre += [f"s_lshl_b32 s{c}, s{c}, 10", f"s_add_u32 s{c}, s{c}, {WD}"]
                self.emits(pre)
                its.append(self.rot_items(lambda i: self.w4_reg(14 * late + i, sl), c, lambda i: f"w4_{14*late+i}", False))
            out += self.zip2(its[0], its[1])
        return out

    HCUR = [S_G[4], S_G[5], S_G[6], S_G[7]]
    def p4_setup_list(self):
        t, u = 53, 54
        pre = []
        for late in (0, 1):
            for b in range(2):
                c = self.HCUR[2*late + b]
                pre += [f"s_mul_i32 s{t}, s{S_TH}, 56"] + ([] if late else [f"s_sub_u32 s{t}, 56, s{t}"])
                pre += [f"s_mul_i32 s{u}, s{S_W}, 14", f"s_add_u32 s{t}, s{t}, s{u}"]
                pre += [f"s_andn2_b32 s{c}, s{S_TILE}, 1", f"s_add_u32 s{c}, s{c}, {b}", f"s_mul_i32 s{c}, s{c}, 112", f"s_add_u32 s{c}, s{c}, s{t}"]
                if self.opt("rot4", 1): pre += [f"s_lshl_b32 s{t}, s{S_CB}, 1", f"s_add_u32 s{c}, s{c}, s{t}"]
                pre += [f"s_lshl_b32 s{c}, s{c}, 10"]
                pre += [f"s_mul_i32 s{t}, s{S_L}, {HSZ}", f"s_add_u32 s{c}, s{c}, s{t}", f"s_add_u32 s{c}, s{c}, {HB}"]
        return ["~" + x for x in pre]
    def p4_items(self):
        HR = 96
        self.seq = [(i, b) for i in range(14) for b in range(2)] + [(i, 0) for i in range(14, 28)] + [(i, 1) for i in range(14, 28)]
        self.slot = {ib: HR + 4 * (n % 32) for n, ib in enumerate(self.seq)}
        it = {}
        for late in (0, 1):
            for b in range(2):
                x = self.rot_items(lambda i: ar(self.slot[(14*late + i, b)]), self.HCUR[2*late + b], lambda i: f"h{14*late+i}_{b}", True)
                for i in range(14): it[(14*late + i, b)] = x[i]
        self.hq = [it[ib] for ib in self.seq]

    def p4(self):
        a = self.a
        n = self.name
        ACC, TR, FIX = 16, 80, 104
        hq = self.hq
        LA = 56 - len(hq)
        issued = [LA]
        def mf(a_, b, i):
            u = 2*b + a_
            a.e(f"{MF} {vr(ACC+16*u,16)}, {self.w4_reg(i, a_)}, {ar(self.slot[(i, b)])}, {vr(ACC+16*u,16) if i else 0}")
        def more():
            if not hq: return
            nn = issued[0]
            X = self.opt("x_nochk", 0)
            if nn == 28:
                if not X: self.apoll_check(9, 7, S_F)
                self.mark("S4M_poll")
            if nn == 42:
                if not X: self.apoll_check(10, 7, S_F)
                self.mark("S4L_poll")
            self.emits(hq.pop(0)); issued[0] += 1
            if issued[0] == 28 - self.opt("apa", 3): self.apoll_issue(S_FRB, F_S4M, 9, S_TH, S_F)
            if issued[0] == 42 - self.opt("apa", 3): self.apoll_issue(S_FRB, F_S4L, 10, S_TH, S_F)
        self.emits(self.red_addr())
        ARR4 = self.opt("arr4", 4)
        for i in range(14):
            if i == ARR4:
                if self.opt("x_nochk", 0) < 2: self.arrive(S_FRB, F_S4L, "hst3", slot_sreg=S_TH)
                self.mark("S4_arr")
            a.wait_vm((f"h{i}_0", f"w4_{i}"))
            mf(0, 0, i); mf(1, 0, i); more()
            a.wait_vm(f"h{i}_1")
            mf(0, 1, i); mf(1, 1, i); more()
        for i in range(14, 28):
            a.wait_vm((f"h{i}_0", f"w4_{i}"))
            mf(0, 0, i); mf(1, 0, i); more()
        self.mark("p4_M")
        join, alt = a.newlabel("p4j"), a.newlabel("p4a")
        a.e(f"s_cmp_lg_u32 s{S_TT}, 0\ns_cbranch_scc1 {alt}")
        state = (list(a.vmq), list(a.lgq), a.vm_total, list(hq), issued[0])
        for tt in range(2):
            if tt:
                a.label(alt)
                a.vmq, a.lgq, a.vm_total = list(state[0]), list(state[1]), state[2]
                hq[:] = state[3]; issued[0] = state[4]
            reg = {0: ACC + 32*tt, 1: ACC + 32*tt + 16, 2: ACC + 32*(1-tt), 3: ACC + 32*(1-tt) + 16}
            def wr(d): return [f"ds_write_b128 v{V_T0+d}, {vr(reg[d]+4*g)} offset:{g*1024}|rw" for g in range(4)]
            early = wr(1) if tt == 0 else wr(2) + wr(3)
            late = wr(2) + wr(3) if tt == 0 else wr(1)
            resu = self.res_unpack(TR)
            k = 0
            for i in range(14, 28):
                a.wait_vm(f"h{i}_1")
                mf(0, 1, i)
                if i >= 15 and early: self.emit(early.pop(0))
                self.emits(resu[2*k:2*k+2]); k += 1
                mf(1, 1, i); more()
            self.emits(resu[2*k:]); self.emits(early)
            if tt == 0: self.mark("p4_mfma")
            elif self.o.get("prof") and self.opt("prof", 0) != 3:
                kk = self.marks.index("p4_mfma")
                a.e(("s_memtime" if self.opt("prof", 0) == 2 else "s_memrealtime") + f" s[36:37]\ns_waitcnt lgkmcnt(0)\nv_writelane_b32 v{V_MARK}, s36, {kk}")
                a.lgq = []
            self.emits(late)
            self.emits(self.x_store_addr(2))
            own = reg[0]
            for r in range(0, 16, 2): a.e(self.pk_add(own + r, own + r, TR + r))
            a.e("s_waitcnt lgkmcnt(0)\ns_barrier")
            for d in range(1, 4):
                for g in range(4):
                    a.e(f"ds_read_b128 {vr(reg[d]+4*g)}, v{V_T0} offset:{(d-1)*4096+g*1024}", tag=f"rr{d}")
            for d in range(1, 4):
                a.wait_lg(f"rr{d}")
                dst = own if d < 3 else FIX
                for r in range(0, 16, 2): a.e(self.pk_add(dst + r, own + r, reg[d] + r))
            if tt == 0: a.e(f"s_branch {join}")
        a.label(join)
        for d in range(8): a.e(f"v_cvt_pk_bf16_f32 v{TR+d}, v{FIX+2*d}, v{FIX+2*d+1}")
        self.PK, self.ACC = TR, FIX
        self.mark("p4_red")
        fin = a.newlabel("fin")
        a.e(f"s_cmp_lg_u32 s{S_L}, 0\ns_cbranch_scc1 {fin}")
        vq = list(a.vmq)
        self.store_x_and_stats()
        self.arrive(S_FRB, F_S5, "xst")
        a.e(f"s_branch {n}_next")
        a.vmq = vq
        a.label(fin)
        PK = self.PK
        self.emits(self.sa(S_T0, [(S_TILE, 32 * 896), (S_N, 64)]))
        a.e(f"v_mul_u32_u24 v{V_T0}, 112, v{V_I8}\nv_lshrrev_b32 v{V_T1}, 5, v{V_L16}\nv_and_b32 v{V_T1}, 16, v{V_T1}\nv_add_u32 v{V_T0}, v{V_T0}, v{V_T1}")
        a.e(f"v_permlane32_swap_b32 v{PK}, v{PK+2}\nv_permlane32_swap_b32 v{PK+1}, v{PK+3}")
        a.e(f"v_permlane32_swap_b32 v{PK+4}, v{PK+6}\nv_permlane32_swap_b32 v{PK+5}, v{PK+7}")
        a.e(f"buffer_store_dwordx4 {vr(PK)}, v{V_T0}, s[8:11], s{S_T0} offen")
        a.e(f"buffer_store_dwordx4 {vr(PK+4)}, v{V_T0}, s[8:11], s{S_T0} offen offset:32")
        a.e(f"s_branch {n}_done")
```

```python
from layout import *
import struct
def hexf(x): return "0x%08x" % struct.unpack("<I", struct.pack("<f", x))[0]
LOOB = 0x30000
NA, NB, ND, NC = 48, 112, 49, 14
B0 = NA; D0 = B0 + NB; C0 = D0 + ND + 7; E0 = C0 + 16; F0 = 255
NXB = 224
WREG = 8192
L_SUM = 4 * WREG
P_X, P_WQKV, P_WPHI, P_WO, P_WG, P_WU, P_WD, P_OUT, P_DBG = 64, 66, 68, 70, 74, 76, 78, 80, 82

def emit_prep(a, name, opts, standalone=False):
    SC = " sc1" if (not standalone or int(opts.get('prep_sc1', 0))) else ""
    mode = int(opts.get("prep_mode", 0))
    SC_AB = SC_CD = SC_X = SC
    if mode == 1: SC_AB = SC_CD = SC_X = " nt"
    if mode == 2: SC_CD = SC_X = " sc1"
    if mode == 3: SC_AB = " sc1"
    if mode == 4: SC_X = " sc1"
    def src(ptr, size): a.e(f"s_mov_b32 s8, s{ptr}\ns_mov_b32 s9, s{ptr+1}\ns_mov_b32 s10, {size}\ns_mov_b32 s11, 0x20000")
    a.e("v_and_b32 v7, 63, v0\nv_lshlrev_b32 v1, 4, v7")
    a.e("v_and_b32 v2, 31, v0\nv_bfe_u32 v3, v0, 5, 1")
    a.e("v_lshrrev_b32 v4, 6, v0\nv_readfirstlane_b32 s12, v4")
    a.e("v_bfe_u32 v8, v7, 2, 2\nv_and_b32 v9, 3, v7\nv_bfe_u32 v10, v7, 4, 1")
    a.e("v_lshl_add_u32 v8, v3, 2, v8\nv_lshlrev_b32 v8, 6, v8")
    a.e("v_lshlrev_b32 v11, 5, v10\nv_lshl_add_u32 v11, v9, 3, v11\nv_add_u32 v8, v8, v11")
    a.e(f"s_lshl_b32 s13, s12, 13\nv_add_u32 v8, s13, v8")
    a.e("v_lshrrev_b32 v12, 2, v7\nv_lshlrev_b32 v13, 4, v9")
    a.e("s_waitcnt lgkmcnt(0)")
    if int(opts.get("wsoff", 0)) and not opts.get("_wsdone"):
        a.e(f"s_add_u32 s4, s4, {int(opts.get('wsoff')) << 20}\ns_addc_u32 s5, s5, 0")
    a.e(f"s_mov_b32 s6, {WS_USED}\ns_mov_b32 s7, 0x20000")
    a.e(f"s_cmp_ge_u32 s2, {NXB}\ns_cbranch_scc1 {name}_nox")
    a.e(f"s_mov_b32 s8, s{P_X}\ns_mov_b32 s9, s{P_X+1}\ns_mov_b32 s10, {S*D*2}\ns_mov_b32 s11, 0x20000")
    a.e("s_mul_i32 s13, s2, 9363\ns_lshr_b32 s13, s13, 16")
    a.e("s_mul_i32 s14, s13, 7\ns_sub_u32 s14, s2, s14")
    a.e("s_lshr_b32 s15, s12, 1\ns_lshl_b32 s13, s13, 1\ns_add_u32 s30, s13, s15")
    a.e("s_and_b32 s15, s12, 1\ns_lshl_b32 s14, s14, 1\ns_add_u32 s31, s14, s15")
    a.e("v_mul_u32_u24 v4, 896, v2\nv_lshlrev_b32 v5, 3, v3\nv_add_u32 v4, v4, v5")
    a.e("s_mul_i32 s20, s30, 28672\ns_lshl_b32 s15, s31, 6\ns_add_u32 s20, s20, s15")
    for g in range(4):
        a.e(f"buffer_load_dwordx2 v[{64+2*g}:{65+2*g}], v4, s[8:11], s20 offen offset:{g*16}")
    a.label(f"{name}_nox")
    for lim, lab in ((B0, "A"), (D0, "B"), (D0 + ND, "Dn"), (C0, "pdone0"), (E0, "C"), (F0, "pdone0")):
        a.e(f"s_cmp_lt_u32 s2, {lim}\ns_cbranch_scc1 {name}_{lab}")
    a.vmq = []

    def stage(nins):
        a.e("s_lshl_b32 s22, s12, 13")
        for i in range(nins):
            a.e("s_mov_b32 m0, s22\ns_nop 0")
            a.e("buffer_load_dwordx4 v4, s[8:11], s20 offen lds", tag="raw")
            if i != nins - 1: a.e("s_add_u32 s20, s20, s21\ns_add_u32 s22, s22, 1024")
    def lanes(rb, col): a.e(f"v_mul_lo_u32 v4, s{rb}, v12\nv_add3_u32 v4, v4, v13, s{col}")
    def trread(dst, va, off): a.e(f"ds_read_b64_tr_b16 v[{dst}:{dst+1}], v{va} offset:{off}", tag="tr")
    def reset(): a.vmq = []; a.lgq = []
    def ts0(r):
        if opts.get("prof"): a.e(f"s_memrealtime s[{r}:{r+1}]\ns_waitcnt lgkmcnt(0)")
    FR = 16
    def ship(n):
        for fr in range(n):
            a.e(f"s_waitcnt lgkmcnt({min(15, 2*n - 2 - 2*fr)})")
            a.e(f"buffer_store_dwordx4 v[{FR+4*fr}:{FR+4*fr+3}], v1, s[4:7], s24 offen" + SC_CD)
            a.e("s_add_u32 s24, s24, 1024")

    a.e("v_mov_b32 v16, 0\nv_mov_b32 v17, 0\nv_mov_b32 v18, 0\nv_mov_b32 v19, 0")
    a.e(f"v_lshlrev_b32 v5, 4, v0\ns_mov_b32 s20, {FLAGS}")
    for i in range(FLAGZ // 4096):
        a.e("buffer_store_dwordx4 v[16:19], v5, s[4:7], s20 offen" + SC)
        a.e("s_add_u32 s20, s20, 4096")
    src(P_WPHI, H * DH * DH * 2)
    a.e(f"v_mov_b32 v4, v1\ns_mul_i32 s20, s12, {4*1568}\ns_mov_b32 s21, 1024")
    stage(7)
    if not standalone:
        a.e("s_waitcnt vmcnt(7)\ns_barrier")
        a.e(f"s_mov_b32 s16, s{P_DBG}\ns_mov_b32 s17, s{P_DBG+1}\ns_mov_b32 s18, 256\ns_mov_b32 s19, 0x20000")
        a.e("v_mov_b32 v5, 1\ns_cmp_eq_u32 s12, 0\ns_cselect_b64 exec, 1, 0")
        a.e("buffer_store_dword v5, off, s[16:19], 0 sc1")
        a.e("s_mov_b64 exec, -1")
    a.e("v_and_b32 v9, 3, v7\nv_bfe_u32 v10, v7, 4, 1\nv_bfe_u32 v11, v7, 2, 2")
    a.e("v_lshl_add_u32 v14, v10, 2, v9\nv_min_u32 v14, 6, v14\nv_lshlrev_b32 v14, 3, v14")
    a.e("v_lshl_add_u32 v11, v3, 2, v11\nv_mul_u32_u24 v11, 56, v11\nv_add_u32 v8, v11, v14")
    a.e("s_lshl_b32 s13, s12, 13\nv_add_u32 v8, s13, v8")
    a.e(f"v_mov_b32 v14, {LOOB}\nv_cmp_eq_u32 vcc, 0, v3\nv_cndmask_b32 v9, v14, v8, vcc")
    a.e(f"s_lshl_b32 s24, s12, 13\ns_add_u32 s24, s24, {PHI}")
    ts0(94)
    a.e("s_waitcnt vmcnt(0)")
    ts0(92)
    reset()
    for fr in range(8):
        q, e = fr // 2, fr % 2
        off = q * 1568 + 16 * e * 56
        trread(FR + 4*fr, 8, off); trread(FR + 4*fr + 2, 9 if e else 8, off + 8 * 56)
    ship(8)
    a.e(f"s_branch {name}_pdone")

    reset()
    a.label(f"{name}_A")
    src(P_WQKV, D * 3 * D * 2)
    a.e("s_and_b32 s13, s2, 7\ns_lshr_b32 s14, s2, 3\ns_lshl_b32 s13, s13, 1\ns_and_b32 s15, s14, 1\ns_add_u32 s13, s13, s15\ns_lshr_b32 s14, s14, 1")
    a.e(f"s_mul_i32 s18, s13, 3\ns_add_u32 s18, s18, s14\ns_mul_i32 s18, s18, {KW*KB}\ns_add_u32 s18, s18, {WQKV}")
    a.e("s_mul_i32 s14, s14, 896\ns_mul_i32 s13, s13, 56\ns_add_u32 s15, s13, s14")
    a.e("s_mov_b32 s16, 2688")
    a.e(f"v_and_b32 v11, v10, v9\nv_lshrrev_b32 v14, 1, v9\nv_and_b32 v11, v11, v14\nv_cmp_eq_u32 vcc, 1, v11\nv_mov_b32 v14, {LOOB}\nv_cndmask_b32 v8, v8, v14, vcc")
    a.e(f"s_branch {name}_AB")
    a.label(f"{name}_B")
    a.e(f"s_sub_u32 s13, s2, {B0}\ns_and_b32 s14, s13, 7\ns_lshr_b32 s13, s13, 3\ns_and_b32 s15, s13, 1\ns_lshr_b32 s13, s13, 1")
    a.e("s_lshl_b32 s13, s13, 3\ns_add_u32 s13, s13, s14")
    a.e("s_and_b32 s14, s13, 1\ns_lshr_b32 s13, s13, 1\ns_lshl_b32 s13, s13, 1\ns_add_u32 s13, s13, s15")
    a.e("s_lshl_b32 s13, s13, 1\ns_add_u32 s13, s13, s14")
    a.e("s_cmp_eq_u32 s14, 0")
    a.e(f"s_cselect_b32 s8, s{P_WG}, s{P_WU}\ns_cselect_b32 s9, s{P_WG+1}, s{P_WU+1}\ns_mov_b32 s10, {D*F*2}\ns_mov_b32 s11, 0x20000")
    a.e("s_lshr_b32 s15, s13, 1\ns_lshl_b32 s15, s15, 6")
    a.e("s_mov_b32 s16, 3584")
    a.e(f"s_mul_i32 s18, s13, {KW*KB}\ns_add_u32 s18, s18, {WGU}")
    a.label(f"{name}_AB")
    lanes(16, 15)
    a.e("s_mul_i32 s20, s12, 112\ns_mul_i32 s20, s20, s16\ns_lshl_b32 s21, s16, 4")
    stage(7)
    a.e("s_mov_b32 s23, 0x3f803f80")
    a.e(f"s_mul_i32 s24, s12, {7*KB}\ns_add_u32 s24, s24, s18")
    ts0(94)
    a.e("s_waitcnt vmcnt(0)")
    ts0(92)
    reset()
    for s in range(7):
        trread(FR + 4*s, 8, s * 1024); trread(FR + 4*s + 2, 8, s * 1024 + 512)
    a.e("v_mov_b32 v48, 0\nv_mov_b32 v49, 0")
    for s in range(7):
        a.e(f"s_waitcnt lgkmcnt({min(15, 12 - 2*s)})")
        a.e(f"buffer_store_dwordx4 v[{FR+4*s}:{FR+4*s+3}], v1, s[4:7], s24 offen" + SC_AB)
        a.e("s_add_u32 s24, s24, 1024")
        for d in range(4): a.e(f"v_dot2_f32_bf16 v{48 + d % 2}, v{FR+4*s+d}, s23, v{48 + d % 2}")
    a.lgq = []
    a.e(f"v_add_f32 v48, v48, v49\nv_lshlrev_b32 v9, 2, v0\nv_add_u32 v9, {L_SUM}, v9")
    a.e("ds_write_b32 v9, v48")
    a.e("s_waitcnt lgkmcnt(0)\ns_barrier")
    a.e(f"s_cmp_lg_u32 s12, 0\ns_cbranch_scc1 {name}_pdone")
    a.e(f"v_lshlrev_b32 v9, 2, v2\nv_add_u32 v9, {L_SUM}, v9")
    for q in range(8): a.e(f"ds_read_b32 v{50+q}, v9 offset:{q*128}")
    a.e("s_waitcnt lgkmcnt(0)")
    a.e("v_add_f32 v50, v50, v51\nv_add_f32 v52, v52, v53\nv_add_f32 v54, v54, v55\nv_add_f32 v56, v56, v57")
    a.e("v_add_f32 v50, v50, v52\nv_add_f32 v54, v54, v56\nv_add_f32 v50, v50, v54")
    a.e("v_cvt_pk_bf16_f32 v51, v50, v50\nv_lshlrev_b32 v51, 16, v51\nv_sub_f32 v52, v50, v51\nv_cvt_pk_bf16_f32 v52, v51, v52")
    a.e("v_cmp_eq_u32 vcc, 0, v3\nv_mov_b32 v54, 0\nv_mov_b32 v55, 0\nv_cndmask_b32 v52, v54, v52, vcc\nv_mov_b32 v53, v52")
    a.e(f"s_add_u32 s24, s18, {28*KB}")
    a.e("buffer_store_dwordx4 v[52:55], v1, s[4:7], s24 offen" + SC_AB)
    a.e(f"s_branch {name}_pdone")

    reset()
    a.label(f"{name}_C")
    src(P_WO, D * D * 2)
    a.e(f"s_sub_u32 s13, s2, {C0}\ns_and_b32 s14, s13, 7\ns_lshr_b32 s13, s13, 3")
    a.e(f"s_cmp_eq_u32 s14, 7\ns_cbranch_scc1 {name}_pdone0")
    a.e("s_lshl_b32 s14, s14, 1\ns_add_u32 s13, s13, s14\ns_lshl_b32 s15, s13, 6\ns_mov_b32 s16, 896")
    lanes(16, 15)
    a.e(f"s_mul_i32 s20, s12, {112*896}\ns_mov_b32 s21, {16*896}")
    stage(7)
    a.e(f"v_mov_b32 v14, {LOOB}\nv_cmp_eq_u32 vcc, 0, v3\nv_cndmask_b32 v9, v14, v8, vcc")
    a.e(f"s_lshl_b32 s24, s13, 5\ns_lshl_b32 s25, s12, 3\ns_add_u32 s24, s24, s25\ns_lshl_b32 s24, s24, 10\ns_add_u32 s24, s24, {WO}")
    ts0(94)
    a.e("s_waitcnt vmcnt(0)")
    ts0(92)
    reset()
    for fr in range(8):
        q, e = fr // 2, fr % 2
        off = (28 * q + 16 * e) * 64
        trread(FR + 4*fr, 8, off); trread(FR + 4*fr + 2, 9 if e else 8, off + 512)
    ship(8)
    a.e(f"s_branch {name}_pdone")

    reset()
    a.label(f"{name}_Dn")
    src(P_WD, F * D * 2)
    a.e(f"s_sub_u32 s13, s2, {D0}\ns_mul_i32 s14, s13, 9363\ns_lshr_b32 s14, s14, 16")
    a.e("s_mul_i32 s25, s14, 7\ns_sub_u32 s25, s13, s25\ns_lshl_b32 s25, s25, 2\ns_add_u32 s25, s25, s12")
    a.e("v_lshrrev_b32 v4, 3, v7\nv_mul_u32_u24 v4, 896, v4\nv_and_b32 v5, 7, v7\nv_lshlrev_b32 v5, 4, v5\ns_lshl_b32 s15, s14, 7\nv_add3_u32 v4, v4, v5, s15")
    a.e(f"s_mul_i32 s20, s25, {64*896}\ns_mov_b32 s21, {8*896}")
    stage(8)
    a.e("v_bfe_u32 v8, v7, 2, 2\nv_lshl_add_u32 v8, v3, 2, v8\nv_lshlrev_b32 v8, 7, v8\nv_add_u32 v8, v8, v11")
    a.e("s_lshl_b32 s13, s12, 13\nv_add_u32 v8, s13, v8")
    a.e(f"s_mul_i32 s24, s14, 224\ns_lshl_b32 s26, s25, 2\ns_add_u32 s24, s24, s26\ns_lshl_b32 s24, s24, 10\ns_add_u32 s24, s24, {WD}")
    ts0(94)
    a.e("s_waitcnt vmcnt(0)")
    ts0(92)
    reset()
    for e in range(2):
        for s in range(4):
            fr = 4 * e + s
            trread(FR + 4*fr, 8, s * 2048 + e * 64); trread(FR + 4*fr + 2, 8, s * 2048 + e * 64 + 1024)
    for fr in range(8):
        a.e(f"s_waitcnt lgkmcnt({min(15, 14 - 2*fr)})")
        a.e(f"buffer_store_dwordx4 v[{FR+4*fr}:{FR+4*fr+3}], v1, s[4:7], s24 offen" + SC_CD)
        a.e(f"s_add_u32 s24, s24, {1024 if fr != 3 else (112 - 3) * 1024}")
    a.e(f"s_branch {name}_pdone")

    reset()
    a.label(f"{name}_pdone0")
    a.e("s_waitcnt vmcnt(0)")
    if opts.get("prof"): a.e("s_memrealtime s[92:93]\ns_memrealtime s[94:95]\ns_waitcnt lgkmcnt(0)")
    a.label(f"{name}_pdone")
    a.e(f"s_cmp_ge_u32 s2, {NXB}\ns_cbranch_scc1 {name}_nox2")
    a.e(f"s_mul_i32 s21, s30, 28\ns_lshl_b32 s15, s31, 1\ns_add_u32 s21, s21, s15\ns_lshl_b32 s21, s21, 10\ns_add_u32 s21, s21, {X}")
    ST4 = int(opts.get("st4", 0))
    if ST4: a.e(f"s_mul_i32 s22, s30, 3584\ns_lshr_b32 s15, s31, 1\ns_lshl_b32 s15, s15, 9\ns_add_u32 s22, s22, s15\ns_and_b32 s15, s31, 1\ns_lshl_b32 s15, s15, 3\ns_add_u32 s22, s22, s15\ns_add_u32 s22, s22, {ST}")
    else: a.e(f"s_mul_i32 s22, s30, 3584\ns_lshl_b32 s15, s31, 8\ns_add_u32 s22, s22, s15\ns_add_u32 s22, s22, {ST}")
    a.e(f"s_mov_b32 s23, 0x3f803f80\nv_lshlrev_b32 v6, {4 if ST4 else 3}, v2\nv_mov_b32 v8, 0\nv_mov_b32 v9, 0")
    a.e("buffer_store_dwordx4 v[64:67], v1, s[4:7], s21 offen" + SC_X)
    a.e("buffer_store_dwordx4 v[68:71], v1, s[4:7], s21 offen offset:1024" + SC_X)
    for q in range(8):
        a.e(f"v_dot2_f32_bf16 v8, v{64+q}, s23, v8")
        a.e(f"v_dot2_f32_bf16 v9, v{64+q}, v{64+q}, v9")
    a.e("v_mov_b32 v10, v8\nv_mov_b32 v11, v9")
    a.e("v_permlane32_swap_b32 v10, v8\nv_permlane32_swap_b32 v11, v9")
    a.e("v_add_f32 v12, v8, v10\nv_add_f32 v13, v9, v11")
    a.e("s_mov_b32 exec_hi, 0")
    a.e("buffer_store_dwordx2 v[12:13], v6, s[4:7], s22 offen" + SC_X)
    a.e("s_mov_b32 exec_hi, -1")
    a.label(f"{name}_nox2")
    if standalone: return
    lab = f"{name}_pw"
    a.e(f"s_mov_b32 s16, s{P_DBG}\ns_mov_b32 s17, s{P_DBG+1}\ns_mov_b32 s18, 256\ns_mov_b32 s19, 0x20000")
    def ts(r):
        if opts.get("prof"): a.e(f"s_memrealtime s[{r}:{r+1}]\ns_waitcnt lgkmcnt(0)")
    ts(86)
    a.e("s_waitcnt vmcnt(0) lgkmcnt(0)\ns_barrier")
    ts(88)
    a.e(f"s_cmp_lg_u32 s12, 0\ns_cbranch_scc1 {lab}_skip")
    a.e("s_mov_b64 exec, 1\ns_mov_b32 s28, 0")
    a.label(f"{lab}_z")
    a.e("buffer_load_dword v5, off, s[16:19], 0 sc1")
    a.e(f"s_add_u32 s28, s28, 1\ns_cmp_gt_u32 s28, 200000\ns_cbranch_scc1 {lab}_zx")
    a.e(f"s_waitcnt vmcnt(0)\nv_readfirstlane_b32 s23, v5\ns_cmp_eq_u32 s23, 0\ns_cbranch_scc1 {lab}_z")
    a.label(f"{lab}_zx")
    ts(90)
    a.e(f"s_and_b32 s20, s2, 15\ns_lshl_b32 s20, s20, 7\ns_add_u32 s20, s20, {PFLAG}")
    a.e("v_mov_b32 v5, 1\ns_waitcnt vmcnt(0)")
    a.e("buffer_atomic_add v5, off, s[4:7], s20 sc1")
    a.e(f"s_mov_b64 exec, 0xffff\nv_and_b32 v6, 15, v0\nv_lshlrev_b32 v6, 7, v6\ns_mov_b32 s20, {PFLAG}\ns_mov_b32 s28, 0")
    a.label(f"{lab}_p")
    if int(opts.get("psl0", 0)): a.e(f"s_sleep {int(opts.get('psl0'))}")
    a.e("buffer_load_dword v5, v6, s[4:7], s20 offen sc1")
    a.e(f"s_add_u32 s28, s28, 1\ns_cmp_gt_u32 s28, 200000\ns_cbranch_scc1 {lab}_px")
    a.e(f"s_waitcnt vmcnt(0)\nv_cmp_gt_u32 vcc, 16, v5\ns_cbranch_vccnz {lab}_p")
    a.label(f"{lab}_px")
    a.e("s_waitcnt vmcnt(0)\ns_mov_b64 exec, -1")
    a.label(f"{lab}_skip")
    a.e("s_barrier")
    reset()


NPREP = 256
PREP_LDS = L_SUM + 1024
def gen_prep(name, opts=None):
    from asmlib import Asm
    opts = opts or {}
    a = Asm()
    a.label(name)
    if opts.get("prof"): a.e("s_memrealtime s[84:85]")
    a.e(f"s_cmp_lt_u32 s2, {NPREP}\ns_cbranch_scc1 {name}_go\ns_endpgm")
    a.label(f"{name}_go")
    a.e("s_load_dwordx16 s[64:79], s[0:1], 0\ns_load_dwordx2 s[4:5], s[0:1], 80")
    if str(opts.get("prof")) == "3":
        a.e("s_waitcnt lgkmcnt(0)")
        if int(opts.get("wsoff", 0)):
            a.e(f"s_add_u32 s4, s4, {int(opts.get('wsoff')) << 20}\ns_addc_u32 s5, s5, 0")
            opts = dict(opts, _wsdone=1)
        a.e(f"s_mov_b32 s6, {WS_USED}\ns_mov_b32 s7, 0x20000\ns_lshl_b32 s20, s2, 3\ns_add_u32 s20, s20, {DBG + 256*512}\nv_mov_b32 v16, s84\ns_mov_b64 exec, 1")
        a.e("buffer_store_dword v16, off, s[4:7], s20\ns_mov_b64 exec, -1")
        a.vmq = []
    emit_prep(a, name, dict(opts, prof=None), standalone=True)
    if opts.get("prof") and str(opts.get("prof")) != "3":
        a.e("s_waitcnt vmcnt(0)\ns_memrealtime s[86:87]\ns_waitcnt lgkmcnt(0)")
        a.e(f"s_lshl_b32 s20, s2, 3\ns_add_u32 s20, s20, {DBG + 256*512}\nv_mov_b32 v16, s84\nv_mov_b32 v17, s86\ns_mov_b64 exec, 1")
        a.e("buffer_store_dwordx2 v[16:17], off, s[4:7], s20")
    a.e("s_endpgm")
    return a.finalize()
```

```python
from asmlib import Asm
from layout import *
import struct
def hexf(x): return "0x%08x" % struct.unpack("<I", struct.pack("<f", x))[0]

L_W1   = 0
L_XR   = 89088
XSLOT  = 28672
L_KVR  = 89088
L_KVA  = 121856
L_RED  = 89088
L_SCR3 = 146432
L_B29  = 148480
L_SCR  = 152576
L_MARK = 163328
LDS_BYTES = 163840

S_RB, S_J, S_W, S_L, S_TH, S_CB, S_TT, S_NT = 12, 13, 14, 15, 16, 17, 18, 19
S_T0, S_T1, S_T2, S_T3 = 20, 21, 22, 23
S_SEL_LO, S_SEL_HI = 24, 25
S_UP = 26
S_CNT, S_JS, S_Q, S_M = 28, 29, 30, 31
S_A, S_B, S_C, S_D = 32, 33, 34, 35
S_E, S_F = 38, 39
S_G = [40, 41, 42, 43, 44, 45, 46, 47]
S_FRB, S_FJ = 48, 49
S_TILE, S_N = 50, 51
S_XT = 52
F_S1, F_S2, F_S3, F_S4E, F_S4L, F_S5 = 0, 1, 2, 3, 5, 7

V_POLL, V_L16, V_L16H, V_STL, V_I8, V_ONE, V_C, V_MARK = 0, 1, 2, 3, 4, 5, 6, 7
V_T0, V_T1, V_T2, V_T3, V_T4, V_T5, V_T6, V_T7 = 8, 9, 10, 11, 12, 13, 14, 15
A_PHI, A_ID, A_RES = 232, 240, 248

def vr(b, n=4): return f"v[{b}:{b+n-1}]"
def ar(b, n=4): return f"a[{b}:{b+n-1}]"
MF = "v_mfma_f32_32x32x16_bf16"
def cost_of(t):
    if t.startswith(("v_exp", "v_rcp", "v_rsq")): return 8
    if t.startswith("v_mfma"): return 32
    if t.startswith("@"): return 2
    return 4

class Gen:
    def __init__(self, name, stop=None, opts=None):
        self.a = Asm(); self.name = name; self.stop = stop; self.o = opts or {}
        self.marks = []
    def opt(self, k, d): return int(self.o.get(k, d))

    def emit(self, t):
        a = self.a
        if t.startswith("@flag "): self.flags.add(t.split()[1])
        elif t.startswith("@waitlg "): a.wait_lg(tuple(t.split()[1:]))
        elif t.startswith("@waitvm "): a.wait_vm(tuple(t.split()[1:]))
        elif "|" in t:
            txt, tag = t.split("|"); a.e(txt, tag=tag)
        else: a.e(t)
    def emits(self, L):
        for t in L: self.emit(t)
    def sa(self, dst, terms, const=0):
        L = []
        first = True
        for r, m in terms:
            tgt = dst if first else S_T3
            if m == 1:
                if first: L.append(f"s_mov_b32 s{dst}, s{r}")
                else: L.append(f"s_add_u32 s{dst}, s{dst}, s{r}")
                first = False
                continue
            if m & (m - 1) == 0: L.append(f"s_lshl_b32 s{tgt}, s{r}, {m.bit_length()-1}")
            else: L.append(f"s_mul_i32 s{tgt}, s{r}, {m}")
            if not first: L.append(f"s_add_u32 s{dst}, s{dst}, s{S_T3}")
            first = False
        if first: L.append(f"s_mov_b32 s{dst}, {const}")
        elif const: L.append(f"s_add_u32 s{dst}, s{dst}, {const}")
        return L
    def ld(self, dst, soff, imm, tag, sc1=True, n=4, vaddr=V_L16):
        op = {4: "buffer_load_dwordx4", 2: "buffer_load_dwordx2", 1: "buffer_load_dword"}[n]
        return f"{op} {dst}, v{vaddr}, s[4:7], s{soff} offen" + (f" offset:{imm}" if imm else "") + (" sc1" if sc1 else "") + f"|{tag}"
    def st(self, src, soff, imm, tag, n=4, vaddr=V_L16):
        op = {4: "buffer_store_dwordx4", 2: "buffer_store_dwordx2"}[n]
        loc = self.opt("x_local", 0) >= 1 and tag != "slab"
        return f"{op} {src}, v{vaddr}, s[4:7], s{soff} offen" + (f" offset:{imm}" if imm else "") + ("" if loc else " sc1") + f"|{tag}"
    def seq_items(self, n, dstf, cur, tagf, sc1):
        items = []
        for i in range(n):
            it = [self.ld(dstf(i), cur, (i % 4) * 1024, tagf(i), sc1)]
            if i % 4 == 3 and i != n - 1: it.append(f"s_add_u32 s{cur}, s{cur}, 4096")
            items.append(it)
        return items
    def dma_items(self, n, lds, cur, tag, sc1):
        items = []
        for i in range(n):
            it = []
            if i % 4 == 0: it += [f"s_mov_b32 m0, s{lds}", "s_nop 0"]
            it.append(f"buffer_load_dwordx4 v{V_L16}, s[4:7], s{cur} offen" + (f" offset:{(i%4)*1024}" if i % 4 else "") + (" sc1" if sc1 else "") + f" lds|{tag}")
            if i % 4 == 3 and i != n - 1: it += [f"s_add_u32 s{cur}, s{cur}, 4096", f"s_add_u32 s{lds}, s{lds}, 4096"]
            items.append(it)
        return items
    @staticmethod
    def zip2(x, y):
        out = []
        for i in range(max(len(x), len(y))):
            if i < len(x): out.append(x[i])
            if i < len(y): out.append(y[i])
        return out
    def take(self, bg, n):
        for _ in range(n):
            if bg: self.emits(bg.pop(0))
    def ldsaddr(self, off):
        if off < 65536: return V_L16, off
        assert off < 131072
        return V_L16H, off - 65536

    def weave(self, mains, fills, bg=None, bg_every=2, bg_start=0, caps=(24,), bg_phase=0):
        fi = 0
        nb = 0
        for k, m in enumerate(mains):
            m()
            cap = caps[k % len(caps)]
            c = 0
            if bg and k >= bg_start and (k - bg_start) % bg_every == bg_phase:
                it = bg.pop(0)
                self.emits(it); c += 12 if any(" lds" in t for t in it) else 8
            nv = 0
            while fi < len(fills):
                t = fills[fi]
                if t.startswith("s_") or t.startswith("@"):
                    self.emit(t); fi += 1; continue
                w = cost_of(t)
                if t.startswith("~"): w = 2
                if t.startswith("ds_read") or t.startswith("ds_write") or t.startswith("buffer_"): w = 8
                lim = cap if (w == 8 or nv * 4 != c) else min(cap, 20)
                if c + w > lim: break
                self.emit(t); fi += 1; c += w
                if w == 4: nv += 1
        while fi < len(fills):
            self.emit(fills[fi]); fi += 1
    def emits_bg(self, L, bg, n, first=0, every=10):
        k = 0
        for i, t in enumerate(L):
            if k < n and bg and i >= first and (i - first) % every == 0:
                self.emits(bg.pop(0)); k += 1
            self.emit(t)

    def mark(self, name):
        if not self.o.get("prof"): return
        if self.opt("prof", 0) == 3 and (name != "p1_start" or self.opt("single", 0) or self.opt("y", 0)): return
        a = self.a
        k = len(self.marks); self.marks.append(name)
        a.e(("s_memtime" if self.opt("prof", 0) == 2 else "s_memrealtime") + " s[36:37]\ns_waitcnt lgkmcnt(0)")
        a.lgq = []
        a.e(f"v_writelane_b32 v{V_MARK}, s36, {k}")
    def dump_marks(self):
        a = self.a
        lab = a.newlabel("dm")
        a.e("s_memrealtime s[36:37]\ns_waitcnt lgkmcnt(0)")
        a.e(f"v_writelane_b32 v{V_MARK}, s36, 63")
        a.e(f"s_cmp_lg_u32 s{S_W}, 0\ns_cbranch_scc1 {lab}")
        a.e(f"s_lshl_b32 s{S_T0}, s2, 9\ns_add_u32 s{S_T0}, s{S_T0}, {DBG}")
        a.e(f"v_lshrrev_b32 v{V_T0}, 2, v{V_L16}")
        a.e(f"v_add_u32 v{V_T1}, {L_MARK}, v{V_T0}\nds_read_b32 v{V_T1}, v{V_T1}\ns_waitcnt lgkmcnt(0)")
        a.e(f"buffer_store_dword v{V_T1}, v{V_T0}, s[4:7], s{S_T0} offen")
        a.e(f"buffer_store_dword v{V_MARK}, v{V_T0}, s[4:7], s{S_T0} offen offset:256")
        a.e("s_waitcnt vmcnt(0)")
        a.label(lab)

    def arrive(self, base, slot, tags, slot_sreg=None, barrier=True):
        a = self.a
        a.wait_vm(tags)
        if barrier: a.e("s_barrier")
        a.e(f"s_add_u32 s{S_T2}, s{base}, {slot*2048}")
        if slot_sreg is not None: a.e(f"s_lshl_b32 s{S_T3}, s{slot_sreg}, 11\ns_add_u32 s{S_T2}, s{S_T2}, s{S_T3}")
        a.e(f"v_mov_b32 v{V_T7}, 1\ns_cmp_eq_u32 s{S_W}, 0\ns_cselect_b64 exec, 1, 0")
        loc = self.opt("x_local", 0) >= 2 and base == S_FRB
        a.e_uncounted(f"buffer_atomic_add v{V_T7}, off, s[4:7], s{S_T2}" + ("" if loc else " sc1"))
        a.e("s_mov_b64 exec, -1")
    def poll(self, base, slot, target, slot_sreg=None, extra=0):
        a = self.a
        lab, lp, lx = a.newlabel("pol"), a.newlabel("plp"), a.newlabel("plx")
        a.e(f"s_add_u32 s{S_T2}, s{base}, {slot*2048 + extra}")
        if slot_sreg is not None: a.e(f"s_lshl_b32 s{S_T3}, s{slot_sreg}, 11\ns_add_u32 s{S_T2}, s{S_T2}, s{S_T3}")
        a.e(f"s_cmp_lg_u32 s{S_W}, 0\ns_cbranch_scc1 {lab}")
        vq, lq = list(a.vmq), list(a.lgq)
        dep = self.opt("pdepth", 2)
        a.e(f"s_mov_b32 s{S_CNT}, 0")
        for k in range(dep):
            a.e(f"s_mov_b64 exec, {1 << k}\nbuffer_load_dword v{V_POLL}, off, s[4:7], s{S_T2} sc1")
            if k != dep - 1: a.e(f"s_sleep {self.opt('psleep', 2)}")
        a.label(lp)
        for k in range(dep):
            a.e(f"s_waitcnt vmcnt({dep-1})\nv_readlane_b32 s{S_T3}, v{V_POLL}, {k}")
            a.e(f"s_cmp_ge_u32 s{S_T3}, {target}\ns_cbranch_scc1 {lx}")
            a.e(f"s_mov_b64 exec, {1 << k}\nbuffer_load_dword v{V_POLL}, off, s[4:7], s{S_T2} sc1")
        a.e(f"s_add_u32 s{S_CNT}, s{S_CNT}, 1\ns_cmp_lt_u32 s{S_CNT}, 1000000\ns_cbranch_scc1 {lp}")
        a.label(lx)
        a.e("s_mov_b64 exec, -1")
        a.vmq, a.lgq = vq, lq
        a.label(lab)
        a.e("s_barrier")

    def apoll_issue(self, base, slot, lane, slot_sreg, dst):
        a = self.a
        a.e(f"s_lshl_b32 s{dst}, s{slot_sreg}, 11\ns_add_u32 s{dst}, s{dst}, s{base}\ns_add_u32 s{dst}, s{dst}, {slot*2048}")
        a.e(f"s_mov_b64 exec, {1 << lane}")
        a.e(f"buffer_load_dword v{V_POLL}, off, s[4:7], s{dst} sc1", tag=f"ap{lane}")
        a.e("s_mov_b64 exec, -1")
    def apoll_check(self, lane, target, dst):
        a = self.a
        ok, lp = a.newlabel("apk"), a.newlabel("apl")
        a.wait_vm(f"ap{lane}")
        a.e(f"v_readlane_b32 s{S_T3}, v{V_POLL}, {lane}\ns_cmp_ge_u32 s{S_T3}, {target}\ns_cbranch_scc1 {ok}")
        vq, lq = list(a.vmq), list(a.lgq)
        a.e(f"s_mov_b32 s{S_CNT}, 0\ns_mov_b64 exec, {1 << lane}")
        a.label(lp)
        a.e(f"buffer_load_dword v{V_POLL}, off, s[4:7], s{dst} sc1")
        a.e(f"s_add_u32 s{S_CNT}, s{S_CNT}, 1\ns_cmp_gt_u32 s{S_CNT}, 1000000\ns_cbranch_scc1 {lp}_x")
        a.e(f"s_waitcnt vmcnt(0)\nv_readlane_b32 s{S_T3}, v{V_POLL}, {lane}\ns_cmp_lt_u32 s{S_T3}, {target}\ns_cbranch_scc1 {lp}")
        a.label(f"{lp}_x")
        a.e("s_waitcnt vmcnt(0)\ns_mov_b64 exec, -1")
        a.vmq, a.lgq = vq, lq
        a.label(ok)

    @staticmethod
    def bc(r): return f"v[{r & ~1}:{(r & ~1) + 1}]", r & 1
    def pk_fma_bc(self, dst, src, rb, rc, neg_a=0, neg_c=0):
        (tb, sb), (tc, sc) = self.bc(rb), self.bc(rc)
        return (f"v_pk_fma_f32 v[{dst}:{dst+1}], v[{src}:{src+1}], {tb}, {tc} op_sel:[0,{sb},{sc}] op_sel_hi:[1,{sb},{sc}]"
                f" neg_lo:[{neg_a},0,{neg_c}] neg_hi:[{neg_a},0,{neg_c}]")
    def pk_mul_bc(self, dst, src, rb):
        tb, sb = self.bc(rb)
        return f"v_pk_mul_f32 v[{dst}:{dst+1}], v[{src}:{src+1}], {tb} op_sel:[0,{sb}] op_sel_hi:[1,{sb}]"
    @staticmethod
    def pk_add(dst, x, y): return f"v_pk_add_f32 v[{dst}:{dst+1}], v[{x}:{x+1}], v[{y}:{y+1}]"

    def stats_loads(self, b, soff):
        if not self.opt("st4", 0):
            return [self.ld(vr(b + 2*k, 2), soff, k * 256, "st", n=2, vaddr=V_STL) for k in range(7)]
        L = [f"v_mov_b32 v{b+12+k}, 0" for k in range(4)]
        L += [self.ld(vr(b + 4*k), soff, k * 512, "st", vaddr=V_STL) for k in range(3)]
        L += ["s_mov_b32 exec_hi, 0", self.ld(vr(b + 12), soff, 3 * 512, "st", vaddr=V_STL), "s_mov_b32 exec_hi, -1"]
        return L
    def stats_reduce(self, b, vV, vM, t0, t1):
        L = []
        for k in (0, 1):
            L += [f"v_add_f32 v{b+k}, v{b+k}, v{b+2+k}", f"v_add_f32 v{b+4+k}, v{b+4+k}, v{b+6+k}",
                  f"v_add_f32 v{b+8+k}, v{b+8+k}, v{b+10+k}"]
            if self.opt("st4", 0): L += [f"v_add_f32 v{b+12+k}, v{b+12+k}, v{b+14+k}"]
        for k in (0, 1):
            L += [f"v_add_f32 v{b+k}, v{b+k}, v{b+4+k}", f"v_add_f32 v{b+8+k}, v{b+8+k}, v{b+12+k}"]
        for k in (0, 1): L += [f"v_add_f32 v{b+k}, v{b+k}, v{b+8+k}"]
        L += [f"v_mov_b32 v{t0}, v{b}", f"v_mov_b32 v{t1}, v{b+1}", "s_nop 0",
              f"v_permlane32_swap_b32 v{t0}, v{b}", f"v_permlane32_swap_b32 v{t1}, v{b+1}",
              f"v_add_f32 v{b}, v{b}, v{t0}", f"v_add_f32 v{b+1}, v{b+1}, v{t1}",
              f"v_mul_f32 v{vM}, {hexf(1.0/D)}, v{b}",
              f"v_mul_f32 v{t1}, {hexf(1.0/D)}, v{b+1}",
              f"v_mul_f32 v{t0}, v{vM}, v{vM}",
              f"v_sub_f32 v{vV}, v{t1}, v{t0}",
              f"v_max_f32 v{vV}, 0, v{vV}",
              f"v_add_f32 v{vV}, {hexf(1e-5)}, v{vV}"]
        return L

    def x29(self, dst, vM, t0):
        return [f"v_cvt_pk_bf16_f32 v{t0}, -v{vM}, -v{vM}",
                f"v_and_b32 v{dst+1}, 0xffff0000, v{t0}",
                f"v_add_f32 v{dst+1}, v{dst+1}, v{vM}",
                f"v_mov_b32 v{dst+2}, 0", f"v_mov_b32 v{dst+3}, 0",
                f"v_cvt_pk_bf16_f32 v{dst+1}, -v{dst+1}, -v{dst+1}",
                f"v_cndmask_b32 v{dst}, v{t0}, v{dst+2}, s[{S_UP}:{S_UP+1}]",
                f"v_cndmask_b32 v{dst+1}, v{dst+1}, v{dst+2}, s[{S_UP}:{S_UP+1}]"]

    def softmax(self, R, P, t):
        mx, mn, u, w, bp, bn, bpm, bnm = [t + k for k in range(8)]
        L = [f"v_max3_f32 v{mx}, v{R}, v{R+1}, v{R+2}", f"v_min3_f32 v{mn}, v{R}, v{R+1}, v{R+2}",
             f"v_max3_f32 v{u}, v{R+3}, v{R+4}, v{R+5}", f"v_min3_f32 v{w}, v{R+3}, v{R+4}, v{R+5}"]
        for k in (6, 10):
            L += [f"v_max3_f32 v{mx}, v{mx}, v{R+k}, v{R+k+1}", f"v_min3_f32 v{mn}, v{mn}, v{R+k}, v{R+k+1}",
                  f"v_max3_f32 v{u}, v{u}, v{R+k+2}, v{R+k+3}", f"v_min3_f32 v{w}, v{w}, v{R+k+2}, v{R+k+3}"]
        L += [f"v_max3_f32 v{mx}, v{mx}, v{R+14}, v{R+15}", f"v_min3_f32 v{mn}, v{mn}, v{R+14}, v{R+15}",
              f"v_max_f32 v{mx}, v{mx}, v{u}", f"v_min_f32 v{mn}, v{mn}, v{w}",
              f"v_mov_b32 v{u}, v{mx}", f"v_mov_b32 v{w}, v{mn}",
              f"v_mov_b32 v{bpm}, {hexf(1e30)}", f"v_mov_b32 v{bnm}, {hexf(-1e30)}",
              f"v_permlane32_swap_b32 v{u}, v{mx}", f"v_permlane32_swap_b32 v{w}, v{mn}",
              f"v_max_f32 v{mx}, v{mx}, v{u}", f"v_min_f32 v{mn}, v{mn}, v{w}",
              f"v_mul_f32 v{bp}, v{V_C}, v{mx}", f"v_mul_f32 v{bn}, v{V_C}, v{mn}",
              f"v_cndmask_b32 v{bpm}, v{bp}, v{bpm}, s[{S_UP}:{S_UP+1}]",
              f"v_cndmask_b32 v{bnm}, v{bn}, v{bnm}, s[{S_UP}:{S_UP+1}]"]
        for g in range(4):
            for k in (0, 2): L.append(self.pk_fma_bc(P + 4*g + k, R + 4*g + k, V_C, bpm if g == 3 else bp, 0, 1))
            for k in (0, 2): L.append(self.pk_fma_bc(R + 4*g + k, R + 4*g + k, V_C, bnm if g == 3 else bn, 1, 0))
        for g in range(4):
            for k in range(4): L.append(f"v_exp_f32 v{P+4*g+k}, v{P+4*g+k}")
            for k in range(4): L.append(f"v_exp_f32 v{R+4*g+k}, v{R+4*g+k}")
            if g == 1: L += [self.pk_add(mx, P, P + 2), self.pk_add(u, R, R + 2)]
            elif g >= 2:
                for k in (0, 2): L += [self.pk_add(mx, mx, P + 4*(g-1) + k), self.pk_add(u, u, R + 4*(g-1) + k)]
        for k in (0, 2): L += [self.pk_add(mx, mx, P + 12 + k), self.pk_add(u, u, R + 12 + k)]
        L += [f"v_add_f32 v{mx}, v{mx}, v{mn}", f"v_add_f32 v{u}, v{u}, v{w}",
              f"v_mov_b32 v{mn}, v{mx}", f"v_mov_b32 v{w}, v{u}", "s_nop 0",
              f"v_permlane32_swap_b32 v{mn}, v{mx}", f"v_permlane32_swap_b32 v{w}, v{u}",
              f"v_add_f32 v{mx}, v{mx}, v{mn}", f"v_add_f32 v{u}, v{u}, v{w}",
              f"v_rcp_f32 v{mx}, v{mx}", f"v_rcp_f32 v{u}, v{u}"]
        for k in range(0, 16, 2): L.append(self.pk_mul_bc(P + k, P + k, mx))
        for k in range(0, 16, 2): L.append(self.pk_mul_bc(R + k, R + k, u))
        for d in range(8): L.append(f"v_cvt_pk_bf16_f32 v{P+d}, v{P+2*d}, v{P+2*d+1}")
        for d in range(8): L.append(f"v_cvt_pk_bf16_f32 v{R+d}, v{R+2*d}, v{R+2*d+1}")
        return L

    def phi_apply(self, R, tb):
        L = [f"v_cvt_pk_bf16_f32 v{tb+d}, v{R+2*d}, v{R+2*d+1}" for d in range(8)]
        L.append(f"{MF} {vr(R,16)}, {ar(A_PHI)}, {vr(tb)}, 0")
        L.append(f"{MF} {vr(R,16)}, {ar(A_PHI+4)}, {vr(tb+4)}, {vr(R,16)}")
        return L

    def w3_stream(self):
        g0, g1 = S_G[0], S_G[1]
        pre = self.sa(g0, [(S_JS, 4 * 2 * KW * KB), (S_W, 2 * KW * KB)], WGU) + [f"s_add_u32 s{g1}, s{g0}, {KW*KB}"]
        its = self.zip2(self.seq_items(KW, lambda s: ar(8*s), g0, lambda s: f"w3_{s}", False),
                        self.seq_items(KW, lambda s: ar(8*s+4), g1, lambda s: f"w3_{s}", False))
        self.emits(pre)
        return its
    def wo_stream(self):
        its = []
        for sl in range(2):
            c = S_G[2 + sl]
            pre = [f"s_xor_b32 s{c}, s{S_NT}, {sl}"] + [f"s_lshl_b32 s{c}, s{c}, 15"] + self.sa(S_T0, [(S_CB, 2 * 32 * KB), (S_W, 8 * KB)], WO) + [f"s_add_u32 s{c}, s{c}, s{S_T0}"]
            x = self.seq_items(8, lambda i: vr(16 + 32 * sl + 4 * i), c, lambda i: "wo", False)
            self.emits(pre)
            its.append(x)
        return self.zip2(its[0], its[1])
    W4A = 128
    def w4_reg(self, i, sl):
        return vr(self.W4A + 8*i + 4*sl) if i < 16 else ar(8*(i - 16) + 4*sl)
    def kseg(self, dst, late):
        if late: return self.sa(dst, [(S_TH, 56), (S_W, 14)], 0)
        return self.sa(dst, [(S_W, 14)], 56) + [f"s_mul_i32 s{S_T3}, s{S_TH}, 56", f"s_sub_u32 s{dst}, s{dst}, s{S_T3}"]
    def w4_stream(self):
        out = []
        for late in (0, 1):
            its = []
            for sl in range(2):
                c = S_G[2 * late + sl]
                pre = self.kseg(S_T0, late) + [f"s_xor_b32 s{c}, s{S_NT}, {sl}", f"s_mul_i32 s{c}, s{c}, 112", f"s_add_u32 s{c}, s{c}, s{S_T0}"]
                pre += [f"s_mul_i32 s{S_T0}, s{S_CB}, 224", f"s_add_u32 s{c}, s{c}, s{S_T0}", f"s_lshl_b32 s{c}, s{c}, 10", f"s_add_u32 s{c}, s{c}, {WD}"]
                x = self.seq_items(14, lambda i: self.w4_reg(14 * late + i, sl), c, lambda i: f"w4_{14*late+i}", False)
                self.emits(pre)
                its.append(x)
            out += self.zip2(its[0], its[1])
        return out
    def p1w_items(self, part):
        c, l = S_G[4], S_G[5]
        its = self.dma_items(8, l, c, "w1" + "qkv"[part], False)
        pre = self.sa(l, [(S_W, 7 * KB)], L_W1 + part * KW * KB) + self.sa(c, [(S_J, 3 * KW * KB), (S_W, 7 * KB)], WQKV + part * KW * KB)
        its[0] = pre + its[0]
        return its

    def prologue(self):
        a, n = self.a, self.name
        a.label(n)
        a.e(f"s_cmp_lt_u32 s2, 256\ns_cbranch_scc1 {n}_go\ns_endpgm")
        a.label(f"{n}_go")
        Y = self.opt("y", 0)
        if Y:
            import start4
            self.st4 = start4.Start(self)
            a.e("s_load_dwordx16 s[64:79], s[0:1], 0\ns_load_dwordx4 s[80:83], s[0:1], 64\ns_load_dwordx2 s[4:5], s[0:1], 80")
            if self.o.get("prof"): a.e("s_memrealtime s[84:85]")
        elif self.opt("single", 0):
            import prep3
            a.e("s_load_dwordx16 s[64:79], s[0:1], 0\ns_load_dwordx4 s[80:83], s[0:1], 64\ns_load_dwordx2 s[4:5], s[0:1], 80")
            if self.o.get("prof"): a.e("s_memrealtime s[84:85]")
            prep3.emit_prep(a, n, self.o)
            a.e("s_mov_b32 s8, s80\ns_mov_b32 s9, s81")
        else:
            a.e("s_load_dwordx2 s[4:5], s[0:1], 80\ns_load_dwordx2 s[8:9], s[0:1], 64")
        if self.opt("pf_main", 0) == 1: self.code_prefetch()
        if self.opt("wsoff", 0):
            a.e(f"s_waitcnt lgkmcnt(0)\ns_add_u32 s4, s4, {self.opt('wsoff', 0) << 20}\ns_addc_u32 s5, s5, 0")
        a.e(f"s_mov_b32 s6, {WS_USED}\ns_mov_b32 s7, 0x20000\ns_mov_b32 s10, {S*D*2}\ns_mov_b32 s11, 0x20000")
        if self.opt("rbmap", 0):
            a.e(f"s_and_b32 s{S_T2}, s2, 15\ns_lshr_b32 s{S_T3}, s2, 4")
            a.e(f"s_lshr_b32 s{S_T0}, s{S_T2}, 2\ns_lshl_b32 s{S_T0}, s{S_T0}, 1\ns_lshr_b32 s{S_T1}, s{S_T3}, 3\ns_add_u32 s{S_T0}, s{S_T0}, s{S_T1}")
            a.e(f"s_and_b32 s{S_T1}, s{S_T3}, 7\ns_lshl_b32 s{S_T1}, s{S_T1}, 2\ns_and_b32 s{S_T2}, s{S_T2}, 3\ns_add_u32 s{S_T1}, s{S_T1}, s{S_T2}")
        elif self.opt("antimap", 0): a.e(f"s_lshr_b32 s{S_T0}, s2, 5\ns_and_b32 s{S_T1}, s2, 31")
        else: a.e(f"s_and_b32 s{S_T0}, s2, 7\ns_lshr_b32 s{S_T1}, s2, 3")
        if self.opt("map8", 0):
            a.e(f"s_and_b32 s{S_RB}, s{S_T1}, 15\ns_lshr_b32 s{S_T1}, s{S_T1}, 4\ns_lshl_b32 s{S_J}, s{S_T0}, 1\ns_add_u32 s{S_J}, s{S_J}, s{S_T1}")
            a.e(f"s_lshr_b32 s{S_TH}, s{S_J}, 3\ns_and_b32 s{S_Q}, s{S_J}, 7")
        elif self.opt("map4", 0):
            a.e(f"s_and_b32 s{S_T2}, s{S_T0}, 3\ns_lshr_b32 s{S_T0}, s{S_T0}, 2\ns_lshl_b32 s{S_T0}, s{S_T0}, 3")
            a.e(f"s_and_b32 s{S_RB}, s{S_T1}, 7\ns_add_u32 s{S_RB}, s{S_RB}, s{S_T0}\ns_lshr_b32 s{S_T1}, s{S_T1}, 3")
            a.e(f"s_lshr_b32 s{S_TH}, s{S_T2}, 1\ns_and_b32 s{S_T3}, s{S_T2}, 1\ns_lshl_b32 s{S_T3}, s{S_T3}, 2\ns_add_u32 s{S_Q}, s{S_T3}, s{S_T1}")
            a.e(f"s_lshl_b32 s{S_J}, s{S_TH}, 3\ns_add_u32 s{S_J}, s{S_J}, s{S_Q}")
        else:
            a.e(f"s_and_b32 s{S_TH}, s{S_T0}, 1\ns_lshr_b32 s{S_T0}, s{S_T0}, 1\ns_lshl_b32 s{S_T0}, s{S_T0}, 2")
            a.e(f"s_and_b32 s{S_RB}, s{S_T1}, 3\ns_add_u32 s{S_RB}, s{S_RB}, s{S_T0}")
            a.e(f"s_lshr_b32 s{S_Q}, s{S_T1}, 2\ns_lshl_b32 s{S_J}, s{S_TH}, 3\ns_add_u32 s{S_J}, s{S_J}, s{S_Q}")
        a.e(f"s_min_u32 s{S_CB}, s{S_Q}, 6\ns_mul_i32 s{S_JS}, s{S_TH}, 7\ns_add_u32 s{S_JS}, s{S_JS}, s{S_CB}")
        a.e(f"s_lshl_b32 s{S_M}, s{S_TH}, 1\ns_sub_u32 s{S_M}, 2, s{S_M}")
        a.e(f"v_lshrrev_b32 v{V_T0}, 6, v0\nv_and_b32 v{V_T1}, 63, v0\nv_lshlrev_b32 v{V_L16}, 4, v{V_T1}")
        a.e(f"v_readfirstlane_b32 s{S_W}, v{V_T0}")
        a.e(f"v_add_u32 v{V_L16H}, 0x10000, v{V_L16}")
        a.e(f"v_and_b32 v{V_T2}, 31, v0\nv_bfe_u32 v{V_T3}, v0, 5, 1")
        a.e(f"v_lshlrev_b32 v{V_I8}, 3, v{V_T2}")
        if self.opt("st4", 0): a.e(f"v_lshlrev_b32 v{V_STL}, 11, v{V_T3}\nv_lshl_add_u32 v{V_STL}, v{V_I8}, 1, v{V_STL}")
        else: a.e(f"v_mul_u32_u24 v{V_STL}, 1792, v{V_T3}\nv_add_u32 v{V_STL}, v{V_STL}, v{V_I8}")
        a.e(f"s_lshr_b32 s{S_TT}, s{S_W}, 1\ns_and_b32 s{S_NT}, s{S_W}, 1")
        a.e(f"s_mov_b32 s{S_SEL_LO}, 0x3f80\ns_mov_b32 s{S_SEL_HI}, 0x3f800000")
        a.e(f"s_mov_b32 s{S_UP}, 0\ns_mov_b32 s{S_UP+1}, -1")
        a.e(f"s_mov_b32 s{S_L}, 0")
        self.emits(self.sa(S_TILE, [(S_RB, 4), (S_TH, 2), (S_TT, 1)]))
        self.emits(self.sa(S_N, [(S_CB, 2), (S_NT, 1)]))
        self.emits(self.sa(S_XT, [(S_RB, 4), (S_W, 1)]))
        if self.o.get("prof"):
            a.e(f"v_mov_b32 v{V_MARK}, 0")
            if self.opt("single", 0) and not Y:
                k = len(self.marks); self.marks.append("start")
                a.e(f"v_writelane_b32 v{V_MARK}, s84, {k}")
                for nm, r in (("t_ldiss", 94), ("t_landed", 92), ("t_issued", 86), ("t_drained", 88), ("t_zeroseen", 90)):
                    k = len(self.marks); self.marks.append(nm)
                    a.e(f"v_writelane_b32 v{V_MARK}, s{r}, {k}")
                self.mark("prepdone")
        a.e("s_waitcnt lgkmcnt(0)")
        if self.opt("pf_main", 0) == 2: self.code_prefetch()
        if Y:
            R = dict(W=S_W, J=S_J, L16=V_L16, I8=V_I8, A_PHI=A_PHI, SEL_LO=S_SEL_LO, SEL_HI=S_SEL_HI)
            self.R4 = R
            self.st4.lane_consts(S_W)
            self.st4.front(R)
        else:
            for it in self.p1w_items(1) + self.p1w_items(2): self.emits(it)
            self.emits(self.sa(S_T0, [(S_J, 2 * KB)], PHI))
            for it in self.seq_items(2, lambda i: ar(A_PHI + 4*i), S_T0, lambda i: "phi", False): self.emits(it)
            if self.opt("lateq", 0) != 1:
                self.emits(self.sa(S_T0, [(S_TILE, 28 * KB), (S_N, 2 * KB)], X))
                for it in self.seq_items(2, lambda i: ar(A_RES + 4*i), S_T0, lambda i: "res", False): self.emits(it)
            if not self.opt("lateq", 0):
                for it in self.p1w_items(0): self.emits(it)
        a.e(f"v_cmp_eq_u32 vcc, 28, v{V_T2}\nv_mov_b32 v{V_T4}, 1.0\nv_mov_b32 v{V_ONE}, 0\nv_cndmask_b32 v{V_ONE}, v{V_ONE}, v{V_T4}, vcc")
        a.e(f"v_lshlrev_b32 v{V_T3}, 2, v{V_T3}\nv_sub_u32 v{V_T2}, v{V_T2}, v{V_T3}")
        a.e(f"v_mov_b32 v{V_T4}, 0x3f80\nv_mov_b32 v{V_T5}, 0x3f800000")
        for s in range(2):
            for d in range(4):
                j = 2 * d
                c = 16 * s + 8 * (j // 4) + (j % 4)
                a.e(f"v_mov_b32 v{V_T6}, 0")
                a.e(f"v_cmp_eq_u32 vcc, {c}, v{V_T2}\nv_cndmask_b32 v{V_T6}, v{V_T6}, v{V_T4}, vcc")
                a.e(f"v_cmp_eq_u32 vcc, {c+1}, v{V_T2}\nv_cndmask_b32 v{V_T6}, v{V_T6}, v{V_T5}, vcc")
                a.e(f"v_accvgpr_write_b32 a{A_ID+4*s+d}, v{V_T6}")
        if Y:
            self.st4.xblock(self.R4)
            self.st4.bg_issue(self.R4)
            a.e(f"s_mov_b32 s8, s80\ns_mov_b32 s9, s81\ns_mov_b32 s10, {S*D*2}\ns_mov_b32 s11, 0x20000")
            self.st4.self_center(self.R4)
            self.st4.ts(86)
            if self.o.get("prof"):
                for nm, r in (("start", 84), ("t_ldiss", 94), ("t_landed", 92), ("t_arr", 90), ("t_center", 86)):
                    k = len(self.marks); self.marks.append(nm)
                    a.e(f"v_writelane_b32 v{V_MARK}, s{r}, {k}")
            a.vmq = []; a.lgq = []

    def code_prefetch(self):
        a, n = self.a, self.name
        nl = self.opt("pf_lines", 14)
        a.e("s_getpc_b64 s[60:61]")
        a.label(f"{n}_pc")
        a.e(f"s_sub_u32 s60, s60, {n}_pc-{n}\ns_subb_u32 s61, s61, 0")
        a.e(f"s_lshr_b32 s62, s2, 3\ns_and_b32 s62, s62, 31\ns_mul_i32 s62, s62, {nl*64}\ns_min_u32 s62, s62, {n}_end-{n}-{nl*64}\ns_add_u32 s60, s60, s62\ns_addc_u32 s61, s61, 0")
        for i in range(nl): a.e(f"s_load_dwordx16 s[64:79], s[60:61], {i*64}")

    def layer_setup(self):
        self.emits(self.sa(S_FRB, [(S_L, NSYNC * 2048), (S_RB, 128)], FLAGS))
        self.emits(self.sa(S_FJ, [(S_L, NSYNC * 2048), (S_J, 128)], FLAGS))

    def p1(self):
        a = self.a
        XF, RK, RV, RQ, RING, RA, RB, TB = 16, 128, 144, 160, 176, 208, 224, 240
        RS, KR, QRING = 160, 176, 192
        LA = self.opt("la1", 6)
        self.mark("p1_start")
        self.emits(self.sa(S_A, [(S_XT, 28 * KB), (S_L, 2 * XSZ)], X))
        xi = self.seq_items(28, lambda s: vr(XF + 4*s), S_A, lambda s: f"x{s}", True)
        self.take(xi, 2)
        self.emits(self.sa(S_B, [(S_XT, 3584), (S_L, 2 * STSZ)], ST))
        self.emits(self.stats_loads(RA, S_B))
        self.take(xi, LA - 2)
        Y = self.opt("y", 0)
        assert not Y
        if Y:
            lab = a.newlabel("l0only")
            a.e(f"s_cmp_lg_u32 s{S_L}, 0\ns_cbranch_scc1 {lab}")
            vq, lq, vt = list(a.vmq), list(a.lgq), a.vm_total
            self.st4.bg_finish(self.R4, len(a.vmq))
            self.emits(self.sa(S_T0, [(S_TILE, 28 * KB), (S_N, 2 * KB)], X))
            for it in self.seq_items(2, lambda i: ar(A_RES + 4*i), S_T0, lambda i: "res", True): self.emits(it)
            a.vmq, a.lgq, a.vm_total = vq, lq, vt
            a.label(lab)
            self.vm_mark = a.vm_total
            a.e("s_waitcnt lgkmcnt(0)")
        a.wait_vm(("w1k", "w1v", "phi", "res"))
        if self.opt("pf_main", 0) == 2: a.e("s_waitcnt lgkmcnt(0)")
        a.e("s_barrier")
        self.mark("p1_wready")
        wq = []
        if self.opt("lateq", 0) == 2:
            wq = self.p1w_items(0)
            self.emits(wq[0][:-3] if False else [])
        X29 = 248
        self.flags = set()
        def xreg(s):
            if s == 28:
                assert "x29" in self.flags
                return X29
            return XF + 4 * s
        def rdA(s):
            sl = RING + 8 * (s % 4)
            r, of = self.ldsaddr(L_W1 + (KW + s) * KB); a.e(f"ds_read_b128 {vr(sl)}, v{r} offset:{of}", tag=f"a{s}")
            r, of = self.ldsaddr(L_W1 + (2 * KW + s) * KB); a.e(f"ds_read_b128 {vr(sl+4)}, v{r} offset:{of}", tag=f"a{s}")
        for s in range(3): rdA(s)
        def mk(s):
            def f():
                if s + 3 < KW: rdA(s + 3)
                if xi: self.take(xi, 1)
                else: self.take(wq, 1)
                if Y and s == self.opt("bgarr", 14):
                    a.e(f"s_waitcnt vmcnt({min(63, a.vm_total - self.vm_mark)})\ns_barrier")
                    a.e(f"s_and_b32 s{S_T2}, s2, 15\ns_lshl_b32 s{S_T2}, s{S_T2}, 7\ns_add_u32 s{S_T2}, s{S_T2}, {PFLAG + 2048}")
                    a.e(f"v_mov_b32 v{V_T7}, 1\ns_cmp_eq_u32 s{S_W}, 0\ns_cselect_b64 exec, 1, 0")
                    a.e_uncounted(f"buffer_atomic_add v{V_T7}, off, s[4:7], s{S_T2} sc1")
                    a.e("s_mov_b64 exec, -1")
                a.wait_both(f"x{s}", f"a{s}")
                sl = RING + 8 * (s % 4)
                a.e(f"{MF} {vr(RK,16)}, {vr(sl)}, {vr(xreg(s))}, {vr(RK,16) if s else 0}")
            return f
        def mv(s):
            def f():
                sl = RING + 8 * (s % 4)
                a.e(f"{MF} {vr(RV,16)}, {vr(xreg(s))}, {vr(sl+4)}, {vr(RV,16) if s else 0}")
            return f
        mains = []
        for s in range(KW): mains += [mk(s), mv(s)]
        fills = ["@waitvm st"] + self.stats_reduce(RA, V_T0, V_T1, V_T2, V_T3) + self.x29(X29, V_T1, V_T2) + ["@flag x29"]
        fills += [f"v_rsq_f32 v{V_T0}, v{V_T0}", f"v_lshrrev_b32 v{V_T1}, 1, v{V_I8}"]
        fills += self.sa(S_T0, [(S_W, 128)], L_SCR)
        fills += [f"v_add_u32 v{V_T1}, s{S_T0}, v{V_T1}", f"ds_write_b32 v{V_T1}, v{V_T0}|scw",
                  f"v_mul_f32 v{V_C}, {hexf(1.4426950408889634)}, v{V_T0}",
                  f"v_lshrrev_b32 v{V_T1}, 5, v{V_L16}", f"v_and_b32 v{V_T1}, 16, v{V_T1}",
                  f"v_add_u32 v{V_T1}, s{S_T0}, v{V_T1}", "@waitlg scw"]
        fills += [f"ds_read_b128 {vr(RS+4*g)}, v{V_T1} offset:{g*32}|rs" for g in range(4)]
        self.weave(mains, fills, caps=(20, 0))
        self.take(wq, len(wq))
        self.mark("p1_loopA")
        if self.opt("lateq", 0) == 1:
            lab = a.newlabel("lq")
            a.e(f"s_cmp_lg_u32 s{S_L}, 0\ns_cbranch_scc1 {lab}")
            vq, lq, vt = list(a.vmq), list(a.lgq), a.vm_total
            for it in self.p1w_items(0): self.emits(it)
            self.emits(self.sa(S_T0, [(S_TILE, 28 * KB), (S_N, 2 * KB)], X))
            for it in self.seq_items(2, lambda i: ar(A_RES + 4*i), S_T0, lambda i: "res", False): self.emits(it)
            a.vmq, a.lgq, a.vm_total = vq, lq, vt
            a.label(lab)
            self.lq_mark = a.vm_total
        w3 = self.w3_stream()
        vch = ["@waitlg rs"] + [f"v_pk_fma_f32 v[{RV+r}:{RV+r+1}], v[{RV+r}:{RV+r+1}], v[{RS+r}:{RS+r+1}], v[4:5] op_sel:[0,0,1] op_sel_hi:[1,1,1]" for r in range(0, 16, 2)]
        vch += [f"v_cvt_pk_bf16_f32 v{RV+d}, v{RV+2*d}, v{RV+2*d+1}" for d in range(8)]
        nk = self.opt("bg_k", 8) if not Y else 0
        if Y:
            a.e(f"v_lshlrev_b32 v249, 3, v{V_L16}\ns_mov_b32 s{S_F}, {PFLAG + 2048}\ns_mov_b64 exec, 0xffff")
            a.e(f"buffer_load_dword v248, v249, s[4:7], s{S_F} offen sc1", tag="dq")
            a.e("s_mov_b64 exec, -1")
        self.take(w3, min(nk, self.opt("bg_k0", 4)))
        self.emits(self.phi_apply(RK, TB))
        self.emits(vch)
        self.emits_bg(self.softmax(RK, RA, V_T0), w3, nk - min(nk, self.opt("bg_k0", 4)), first=0, every=self.opt("bg_k_every", 6))
        self.mark("p1_kepi")
        a.e(f"{MF} {vr(RB,16)}, {vr(RA)}, {ar(A_ID)}, 0")
        a.e(f"{MF} {vr(RB,16)}, {vr(RA+4)}, {ar(A_ID+4)}, {vr(RB,16)}")
        a.e(f"{MF} {vr(RA,16)}, {vr(RK)}, {ar(A_ID)}, 0")
        a.e(f"{MF} {vr(RA,16)}, {vr(RK+4)}, {ar(A_ID+4)}, {vr(RA,16)}")
        self.emits(self.sa(S_T0, [(S_W, 2048)], L_KVR) + [f"v_add_u32 v{V_T0}, s{S_T0}, v{V_L16}"])
        self.emits(self.sa(S_T0, [(S_W, 8192)], L_KVR) + [f"v_add_u32 v{V_T1}, s{S_T0}, v{V_L16}"])
        self.emits(self.sa(S_C, [(S_J, 4 * 16 * KB), (S_W, 16 * KB), (S_L, SLABSZ)], SLAB))
        for d in range(8): a.e(f"v_cvt_pk_bf16_f32 v{RB+d}, v{RB+2*d}, v{RB+2*d+1}")
        a.e(f"{MF} {vr(RK,16)}, {vr(RB)}, {vr(RV)}, 0")
        a.e(f"{MF} {vr(RK,16)}, {vr(RB+4)}, {vr(RV+4)}, {vr(RK,16)}")
        for d in range(8): a.e(f"v_cvt_pk_bf16_f32 v{RA+d}, v{RA+2*d}, v{RA+2*d+1}")
        a.e(f"{MF} {vr(RB,16)}, {vr(RA)}, {vr(RV)}, 0")
        a.e(f"{MF} {vr(RB,16)}, {vr(RA+4)}, {vr(RV+4)}, {vr(RB,16)}")
        self.emits(self.sa(S_D, [(S_RB, KB), (S_C, 1)]))
        for t, R in ((0, RK), (1, RB)):
            for s in range(2):
                for g in range(2):
                    a.e(f"ds_write_b128 v{V_T0}, {vr(R+8*s+4*g)} offset:{(2*t+s)*8192+g*1024}", tag="kw")
        a.wait_vm("w1q")
        if self.opt("lateq", 0) == 1: a.e(f"s_waitcnt vmcnt({min(63, a.vm_total - self.lq_mark)})")
        a.e("s_waitcnt lgkmcnt(0)\ns_barrier")
        for ws in range(4):
            for g in range(2):
                a.e(f"ds_read_b128 {vr(KR+8*ws+4*g)}, v{V_T1} offset:{(ws*2+g)*1024}", tag=f"kr{ws}")
        def rdB(s):
            sl = QRING + 4 * (s % 4) + 16
            r, of = self.ldsaddr(L_W1 + s * KB); a.e(f"ds_read_b128 {vr(sl)}, v{r} offset:{of}", tag=f"b{s}")
        a.wait_lg("kr1")
        for r in range(0, 8, 2): a.e(self.pk_add(KR + r, KR + r, KR + 8 + r))
        a.wait_lg("kr3")
        for r in range(0, 8, 2): a.e(self.pk_add(KR + 16 + r, KR + 16 + r, KR + 24 + r))
        for r in range(0, 8, 2): a.e(self.pk_add(KR + r, KR + r, KR + 16 + r))
        for d in range(4): a.e(f"v_cvt_pk_bf16_f32 v{KR+d}, v{KR+2*d}, v{KR+2*d+1}")
        self.emit(self.st(vr(KR), S_D, 0, "slab"))
        self.mark("p1_slab")
        if Y: self.done_check()
        for s in range(3): rdB(s)
        ARR = self.opt("arr1", 20)
        def mq(s):
            def f():
                if s == ARR: self.arrive(S_FJ, F_S1, "slab")
                if s + 3 < KW: rdB(s + 3)
                a.wait_lg(f"b{s}")
                sl = QRING + 4 * (s % 4) + 16
                a.e(f"{MF} {vr(RQ,16)}, {vr(sl)}, {vr(xreg(s))}, {vr(RQ,16) if s else 0}")
            return f
        self.weave([mq(s) for s in range(KW)], [], bg=w3, bg_every=self.opt("bg_q_every", 2))
        self.mark("p1_qpass")
        wo = self.wo_stream()
        qe = self.phi_apply(RQ, TB) + self.softmax(RQ, RA, V_T0)
        self.slab_items = None
        if self.opt("early_slab", 0):
            c1 = self.opt("es_cut", 40)
            a.e(f"s_mov_b32 s{S_E}, 0")
            self.apoll_issue(S_FJ, F_S1, 10, S_E, S_F)
            self.emits_bg(qe[:c1], wo, self.opt("es_wo0", 3), first=2, every=12)
            self.apoll_check(10, 16, S_F)
            self.mark("S1_poll")
            sl = self.seq_items(16, lambda i: vr(80 + 4*i), S_C, lambda i: f"sl{i}", True)
            self.emits_bg(qe[c1:], sl, 16, first=0, every=self.opt("es_every", 5))
            self.take(sl, len(sl))
            self.slab_items = True
        else:
            cut = self.opt("ap1", 70)
            self.emits_bg(qe[:cut], wo, self.opt("bg_qe", 6), first=0, every=11)
            if self.opt("async1", 1):
                a.e(f"s_mov_b32 s{S_E}, 0")
                self.apoll_issue(S_FJ, F_S1, 10, S_E, S_F)
            self.emits(qe[cut:])
        self.mark("p1_qepi")
        self.RA, self.RQ, self.w3, self.wo = RA, RQ, w3, wo

    def done_check(self):
        a = self.a
        ok, lp = a.newlabel("dok"), a.newlabel("dlp")
        a.wait_vm("dq")
        a.e(f"s_mov_b64 exec, 0xffff\nv_cmp_gt_u32 vcc, 16, v248\ns_cbranch_vccz {ok}")
        vq, lq, vt = list(a.vmq), list(a.lgq), a.vm_total
        a.e(f"s_mov_b32 s{S_CNT}, 0\ns_mov_b32 s{S_F}, {PFLAG + 2048}")
        a.label(lp)
        a.e(f"buffer_load_dword v248, v249, s[4:7], s{S_F} offen sc1")
        a.e(f"s_add_u32 s{S_CNT}, s{S_CNT}, 1\ns_cmp_gt_u32 s{S_CNT}, 1000000\ns_cbranch_scc1 {lp}_x")
        a.e(f"s_waitcnt vmcnt(0)\nv_cmp_gt_u32 vcc, 16, v248\ns_cbranch_vccnz {lp}")
        a.label(f"{lp}_x")
        a.e("s_waitcnt vmcnt(0)")
        a.vmq, a.lgq, a.vm_total = vq, lq, vt
        a.label(ok)
        a.e("s_mov_b64 exec, -1")

    def p2a(self):
        a = self.a
        RA, RQ = self.RA, self.RQ
        SL, AC, KA, RB, TB = 80, 176, 188, 224, 240
        if not self.slab_items:
            if self.opt("async1", 1): self.apoll_check(10, 16, S_F)
            else: self.poll(S_FJ, F_S1, 16)
            self.mark("S1_poll")
            for it in self.seq_items(16, lambda i: vr(SL + 4*i), S_C, lambda i: f"sl{i}", True): self.emits(it)
        nwo = min(len(self.wo), self.opt("wo_2a", 16))
        bg2 = [self.wo.pop(0) for _ in range(nwo)] + [self.w3.pop(0) for _ in range(min(len(self.w3), self.opt("bg_2a", 0)))]
        for i in range(16):
            if i >= self.opt("bg_2a_first", 4) and bg2: self.emits(bg2.pop(0))
            a.wait_vm(f"sl{i}")
            for d in range(4):
                a.e(f"v_dot2_f32_bf16 v{AC+2*d}, v{SL+4*i+d}, s{S_SEL_LO}, {'v%d' % (AC+2*d) if i else 0}")
                a.e(f"v_dot2_f32_bf16 v{AC+2*d+1}, v{SL+4*i+d}, s{S_SEL_HI}, {'v%d' % (AC+2*d+1) if i else 0}")
        self.take(bg2, len(bg2))
        self.emits(self.sa(S_T0, [(S_W, KB)], L_KVA) + [f"v_add_u32 v{V_T0}, s{S_T0}, v{V_L16}"])
        self.emits(self.sa(S_A, [(S_XT, 32 * KB), (S_J, 2 * KB), (S_L, OSZ)], O))
        for d in range(4): a.e(f"v_cvt_pk_bf16_f32 v{AC+8+d}, v{AC+2*d}, v{AC+2*d+1}")
        a.e(f"ds_write_b128 v{V_T0}, {vr(AC+8)}")
        a.e("s_waitcnt lgkmcnt(0)\ns_barrier")
        for p in range(4):
            r, of = self.ldsaddr(L_KVA + p * KB)
            a.e(f"ds_read_b128 {vr(KA+4*p)}, v{r} offset:{of}", tag=f"ka{p}")
        Bs = [RA, RA + 4, RQ, RQ + 4]
        for p in range(4):
            a.wait_lg(f"ka{p}")
            a.e(f"{MF} {vr(RB,16)}, {vr(KA+4*p)}, {vr(Bs[p])}, {vr(RB,16) if p else 0}")
        a.e(f"v_mov_b32 v{V_T0}, v{RB+12}\nv_mov_b32 v{V_T1}, v{RB+12}")
        a.e(f"v_permlane32_swap_b32 v{V_T0}, v{V_T1}")
        a.e(f"v_add_f32 v{V_T1}, {hexf(1e-6)}, v{V_T1}\nv_rcp_f32 v{V_T1}, v{V_T1}")
        for r in range(0, 16, 2): a.e(self.pk_mul_bc(RB + r, RB + r, V_T1))
        for d in range(8): a.e(f"v_cvt_pk_bf16_f32 v{TB+d}, v{RB+2*d}, v{RB+2*d+1}")
        self.emit(self.st(vr(TB), S_A, 0, "ost")); self.emit(self.st(vr(TB+4), S_A, 1024, "ost"))
        self.mark("p2a_ost")
        self.arrive(S_FRB, F_S2, "ost")
        self.take(self.wo, len(self.wo))
        self.take(self.w3, self.opt("bg_s2", 0))
        self.mark("S2_arr")

    def red_addr(self):
        L = []
        for u in range(1, 4):
            L += [f"s_xor_b32 s{S_T0}, s{S_W}, {u}", f"s_mul_i32 s{S_T0}, s{S_T0}, 12288", f"s_add_u32 s{S_T0}, s{S_T0}, {L_RED+(u-1)*4096}",
                  f"v_add_u32 v{V_T0+u}, s{S_T0}, v{V_L16}"]
        L += self.sa(S_T0, [(S_W, 12288)], L_RED) + [f"v_add_u32 v{V_T0}, s{S_T0}, v{V_L16}"]
        return L
    def red_write(self, ACC, u):
        return [f"ds_write_b128 v{V_T0+u}, {vr(ACC+16*u+4*g)} offset:{g*1024}|rw" for g in range(4)]
    def res_unpack(self, TR):
        L = [f"v_accvgpr_read_b32 v{TR+16+d}, a{A_RES+d}" for d in range(8)]
        for d in range(8):
            L += [f"v_lshlrev_b32 v{TR+2*d}, 16, v{TR+16+d}", f"v_and_b32 v{TR+2*d+1}, 0xffff0000, v{TR+16+d}"]
        return L
    def red_finish(self, ACC, TR):
        a = self.a
        for r in range(0, 16, 2): a.e(self.pk_add(ACC + r, ACC + r, TR + r))
        a.e("s_waitcnt lgkmcnt(0)\ns_barrier")
        RD = ACC + 16
        for u in range(3):
            for g in range(4):
                a.e(f"ds_read_b128 {vr(RD+16*u+4*g)}, v{V_T0} offset:{u*4096+g*1024}", tag=f"rr{u}")
        for u in range(3):
            a.wait_lg(f"rr{u}")
            for r in range(0, 16, 2): a.e(self.pk_add(ACC + r, ACC + r, RD + 16*u + r))
        for d in range(8): a.e(f"v_cvt_pk_bf16_f32 v{TR+d}, v{ACC+2*d}, v{ACC+2*d+1}")
        self.PK, self.ACC = TR, ACC
    def x_store_addr(self, xsel):
        return (self.sa(S_E, [(S_TILE, 28 * KB), (S_N, 2 * KB), (S_L, 2 * XSZ)], X + xsel * XSZ) +
                self.sa(S_F, [(S_TILE, 3584)] + ([(S_CB, 512), (S_NT, 8)] if self.opt("st4", 0) else [(S_N, 256)]) + [(S_L, 2 * STSZ)], ST + xsel * STSZ))
    def store_x_and_stats(self):
        a = self.a
        PK, ACC = self.PK, self.ACC
        self.emit(self.st(vr(PK), S_E, 0, "xst")); self.emit(self.st(vr(PK+4), S_E, 1024, "xst"))
        t = PK + 8
        a.e(self.pk_add(t, ACC, ACC + 2))
        a.e(f"v_pk_mul_f32 v[{t+2}:{t+3}], v[{ACC}:{ACC+1}], v[{ACC}:{ACC+1}]")
        for r in range(2, 16, 2):
            if r > 2: a.e(self.pk_add(t, t, ACC + r))
            a.e(f"v_pk_fma_f32 v[{t+2}:{t+3}], v[{ACC+r}:{ACC+r+1}], v[{ACC+r}:{ACC+r+1}], v[{t+2}:{t+3}]")
        a.e(f"v_add_f32 v{t}, v{t}, v{t+1}\nv_add_f32 v{t+1}, v{t+2}, v{t+3}")
        a.e(f"v_mov_b32 v{t+2}, v{t}\nv_mov_b32 v{t+3}, v{t+1}")
        a.e(f"v_permlane32_swap_b32 v{t+2}, v{t}\nv_permlane32_swap_b32 v{t+3}, v{t+1}")
        a.e(self.pk_add(t, t, t + 2))
        a.e("s_mov_b32 exec_hi, 0")
        self.emit(self.st(f"v[{t}:{t+1}]", S_F, 0, "xst", n=2, vaddr=V_STL if self.opt("st4", 0) else V_I8))
        a.e("s_mov_b32 exec_hi, -1")
        for d in range(8): a.e(f"v_accvgpr_write_b32 a{A_RES+d}, v{PK+d}")

    def p2b(self):
        a = self.a
        OB, ACC, TR = 80, 144, 208
        pre = []
        for b, c in ((0, S_A), (1, S_B)):
            pre += [f"s_xor_b32 s{c}, s{S_TILE}, {b}", f"s_lshl_b32 s{c}, s{c}, 15"] + self.sa(S_T0, [(S_W, 8 * KB), (S_L, OSZ)], O) + [f"s_add_u32 s{c}, s{c}, s{S_T0}"]
        self.emits(pre)
        self.poll(S_FRB, F_S2, 16)
        self.mark("S2_poll")
        ob = [self.seq_items(8, lambda i: vr(OB + 32*b + 4*i), (S_A, S_B)[b], lambda i: f"o{b}_{i}", True) for b in range(2)]
        for it in ob[1] + ob[0]: self.emits(it)
        nb = self.opt("bg_2b", 14)
        self.emits(self.red_addr() + self.x_store_addr(1))
        a.wait_vm("wo")
        def mf(u, i):
            b, sl = u >> 1, u & 1
            a.e(f"{MF} {vr(ACC+16*u,16)}, {vr(16+32*sl+4*i)}, {vr(OB+32*b+4*i)}, {vr(ACC+16*u,16) if i else 0}")
        for i in range(8):
            a.wait_vm(f"o1_{i}")
            mf(2, i); mf(3, i)
            if i < nb: self.take(self.w3, 1)
        resu = self.res_unpack(TR)
        wr = self.red_write(ACC, 2) + self.red_write(ACC, 3)
        for i in range(8):
            a.wait_vm(f"o0_{i}")
            mf(1, i)
            if i >= 2 and wr: self.emit(wr.pop(0))
            self.emits(resu[3*i:3*i+3])
            mf(0, i)
            if i >= 2 and wr: self.emit(wr.pop(0))
            if 8 + i < nb: self.take(self.w3, 1)
        self.emits(wr)
        self.mark("p2b_mfma")
        self.emits(self.red_write(ACC, 1))
        self.red_finish(ACC, TR)
        self.store_x_and_stats()
        self.mark("p2b_st")
        self.arrive(S_FRB, F_S3, "xst")
        self.take(self.w3, self.opt("bg_s3", 0))
        self.mark("S3_arr")

    def p3(self):
        a = self.a
        ACC0, ACC1, RING, CC, TT, HP, STB = 16, 48, 80, 96, 100, 116, 100
        V_X1, V_CA, V_CB = V_T5, V_T4, V_T6
        xds = []
        for p in range(4):
            gc, gl = 56 + 2 * p, 57 + 2 * p
            self.emits([f"s_xor_b32 s{S_T0}, s{S_M}, {p}"] + self.sa(gc, [(S_T0, 28 * KB), (S_RB, 4 * 28 * KB), (S_W, 7 * KB), (S_L, 2 * XSZ)], X + XSZ))
            self.emits(self.sa(gl, [(S_W, 7 * KB)], L_XR + (p & 1) * XSLOT))
            xds.append(self.dma_items(7, gl, gc, f"xt{p}", True))
        def xd(p): return xds[p]
        x0, x1 = xd(0), xd(1)
        self.poll(S_FRB, F_S3, 14)
        self.mark("S3_poll")
        self.take(x0, 7)
        self.emits(self.sa(S_T0, [(S_XT, 3584), (S_L, 2 * STSZ)], ST + STSZ))
        self.emits(self.stats_loads(STB, S_T0))
        self.take(self.w3, len(self.w3))
        a.e(f"v_add_u32 v{V_X1}, {L_XR + XSLOT}, v{V_L16}")
        def hbase(p):
            return [f"s_xor_b32 s{S_T0}, s{S_M}, {p}"] + self.sa(S_C, [(S_T0, 112 * KB), (S_RB, 4 * 112 * KB), (S_JS, 8 * KB), (S_W, 2 * KB), (S_L, HSZ)], HB)
        c1 = -2.0 * 0.7978845608028654 * 1.4426950408889634
        c2 = c1 * 0.044715
        stf = ["@waitvm st"] + self.stats_reduce(STB, V_T0, V_T1, V_T2, V_T3)
        stf += [f"v_rsq_f32 v{V_T1}, v{V_T0}", f"v_lshrrev_b32 v{V_CA}, 1, v{V_I8}"] + self.sa(S_T0, [(S_W, 384)], L_SCR3)
        stf += [f"v_add_u32 v{V_CB}, s{S_T0}, v{V_CA}",
                f"v_mul_f32 v{V_T2}, v{V_T1}, v{V_T1}", f"v_mul_f32 v{V_T3}, {hexf(c1)}, v{V_T1}", f"v_mul_f32 v{V_T2}, v{V_T2}, v{V_T1}", f"v_mul_f32 v{V_T2}, {hexf(c2)}, v{V_T2}",
                f"ds_write_b32 v{V_CB}, v{V_T3}|cw", f"ds_write_b32 v{V_CB}, v{V_T2} offset:128|cw", f"ds_write_b32 v{V_CB}, v{V_T0} offset:256|cw"]
        stf += self.sa(S_T0, [(S_M, 384)], L_SCR3) + [f"s_mul_i32 s{S_T1}, s{S_M}, 384", f"s_sub_u32 s{S_T1}, {L_SCR3 + 768}, s{S_T1}",
                f"v_add_u32 v{V_CB}, s{S_T1}, v{V_CA}", f"v_add_u32 v{V_CA}, s{S_T0}, v{V_CA}"]

        def epi(p):
            A = ACC0 if p % 2 == 0 else ACC1
            G, U = A, A + 16
            va = V_CA if p < 2 else V_CB
            L = [f"ds_read_b32 v{CC+q}, v{va} offset:{(p&1)*384+q*128}|cc" for q in range(3)] + hbase(p)
            for g in range(4):
                rr = [4*g + k for k in range(4)]
                for k, r in enumerate(rr): L.append(f"v_mul_f32 v{TT+k}, v{G+r}, v{G+r}")
                for k, r in enumerate(rr): L.append(f"v_mul_f32 v{TT+4+k}, v{G+r}, v{U+r}")
                if g == 0: L.append("@waitlg cc")
                for k, r in enumerate(rr): L.append(f"v_fma_f32 v{TT+k}, v{TT+k}, v{CC+1}, v{CC}")
                for k, r in enumerate(rr): L.append(f"v_mul_f32 v{TT+k}, v{TT+k}, v{G+r}")
                for k, r in enumerate(rr): L.append(f"v_exp_f32 v{TT+k}, v{TT+k}")
                for k, r in enumerate(rr): L.append(f"v_fma_f32 v{TT+k}, v{TT+k}, v{CC+2}, v{CC+2}")
                for k, r in enumerate(rr): L.append(f"v_rcp_f32 v{TT+k}, v{TT+k}")
                for k in range(4): L.append(f"v_mul_f32 v{TT+4+k}, v{TT+4+k}, v{TT+k}")
                L.append(f"v_cvt_pk_bf16_f32 v{HP+2*g}, v{TT+4}, v{TT+5}")
                L.append(f"v_cvt_pk_bf16_f32 v{HP+2*g+1}, v{TT+6}, v{TT+7}")
                if g % 2 == 1 and not (self.opt("x_nost", 0) and p < 2): L.append(self.st(vr(HP + 4*(g//2)), S_C, 1024 * (g // 2), f"hst{p}"))
            if self.opt("x_noepi", 0) and p < 2: L = [t for t in L if t.startswith("buffer_") or t.startswith("s_")]
            return L

        w4 = None
        for p in range(4):
            A = ACC0 if p % 2 == 0 else ACC1
            a.wait_vm(f"xt{p}")
            a.e("s_waitcnt lgkmcnt(0)\ns_barrier")
            if p in (0, 1, 3): self.mark(f"p3_T{p}")
            def rd(s):
                if p & 1 == 0:
                    r, of = self.ldsaddr(L_XR + s * KB)
                else: r, of = V_X1, s * KB
                a.e(f"ds_read_b128 {vr(RING+4*(s%4))}, v{r} offset:{of}", tag=f"b{s}")
            for s in range(3): rd(s)
            def mg(s):
                def f():
                    if s + 3 < 28: rd(s + 3)
                    a.wait_both(f"w3_{s}" if p == 0 else None, f"b{s}")
                    a.e(f"{MF} {vr(A,16)}, {ar(8*s)}, {vr(RING+4*(s%4))}, {vr(A,16) if s else 0}")
                return f
            def mu(s):
                def f(): a.e(f"{MF} {vr(A+16,16)}, {ar(8*s+4)}, {vr(RING+4*(s%4))}, {vr(A+16,16) if s else 0}")
                return f
            mains = []
            for s in range(28): mains += [mg(s), mu(s)]
            if p == 0:
                w4 = self.w4_stream()
                bg = x1 + [w4.pop(0) for _ in range(self.opt("w4_p0", 12))]
                self.weave(mains, stf, bg=bg, bg_every=2, bg_phase=1, caps=(16, 8))
            elif p == 1:
                bg = xd(2) + [w4.pop(0) for _ in range(self.opt("w4_p1", 12))]
                if self.opt("x_nobg", 0): bg = xd(2)
                mains[0](); mains[1]()
                self.weave(mains[2:], epi(0), bg=bg, bg_every=2, bg_phase=1, caps=(self.opt('cap1', 24), self.opt('cap2', 8)))
            elif p == 2:
                na = 32 - self.opt("w4_p0", 12) - self.opt("w4_p1", 12)
                bg = xd(3) + [w4.pop(0) for _ in range(na)]
                if self.opt("x_nobg", 0): bg = xd(3)
                mains[0](); mains[1]()
                self.weave(mains[2:], epi(1), bg=bg, bg_every=2, bg_phase=1, caps=(self.opt('cap1', 24), self.opt('cap2', 8)))
            else:
                bg = w4
                mains[0](); mains[1]()
                a.e(f"s_xor_b32 s{S_E}, s{S_TH}, 1")
                AP = self.opt("ap4e", 46)
                orig = mains[AP]
                def with_poll():
                    self.apoll_issue(S_FRB, F_S4E, 8, S_E, S_F)
                    orig()
                mains[AP] = with_poll
                AE = self.opt("arr4e", 22)
                orig2 = mains[AE]
                def with_arr():
                    self.arrive(S_FRB, F_S4E, ("hst0", "hst1"), slot_sreg=S_TH)
                    orig2()
                mains[AE] = with_arr
                self.weave(mains[2:], epi(2), bg=bg, bg_every=2, bg_phase=1, caps=(self.opt('cap1', 24), self.opt('cap2', 8)))
            self.take(bg, len(bg))
        self.mark("p3_loop")
        self.p4_setup()
        self.apoll_check(8, 7, S_F)
        LA = self.opt("la4", 6)
        first = []
        for i in range(LA): first += [self.hi[(i, 0)], self.hi[(i, 1)]]
        self.emits_bg(epi(3), first, len(first), first=self.opt("e3first", 20), every=self.opt("e3every", 9))
        self.take(first, len(first))
        self.mark("p3_epi")

    def p4_setup(self):
        HR, NR = 96, 16
        cur = [S_G[4], S_G[5], S_G[6], S_G[7]]
        pre = []
        for late in (0, 1):
            for b in range(2):
                c = cur[2*late + b]
                pre += self.kseg(S_T0, late) + [f"s_xor_b32 s{c}, s{S_TILE}, {b}", f"s_mul_i32 s{c}, s{c}, 112", f"s_add_u32 s{c}, s{c}, s{S_T0}", f"s_lshl_b32 s{c}, s{c}, 10"]
                pre += self.sa(S_T0, [(S_L, HSZ)], HB) + [f"s_add_u32 s{c}, s{c}, s{S_T0}"]
        self.emits(pre)
        self.hi = {}
        for late in (0, 1):
            for b in range(2):
                x = self.seq_items(14, lambda i: ar(HR + 8*((14*late + i) % NR) + 4*b), cur[2*late + b], lambda i: f"h{14*late+i}_{b}", True)
                for i in range(14): self.hi[(14*late + i, b)] = x[i]

    def p4(self):
        a = self.a
        n = self.name
        ACC, HR, NR, TR = 16, 96, 16, 80
        LA = self.opt("la4", 6)
        hi = self.hi
        self.emits(self.red_addr())
        def mf(u, i):
            b, sl = u >> 1, u & 1
            a.e(f"{MF} {vr(ACC+16*u,16)}, {self.w4_reg(i, sl)}, {ar(HR+8*(i%NR)+4*b)}, {vr(ACC+16*u,16) if i else 0}")
        TAIL = self.opt("tail4", 6)
        PL = 14 - LA
        t0 = 28 - TAIL
        rest0 = [hi[(i, 0)] for i in range(t0, 28)]
        rest1 = [hi[(i, 1)] for i in range(t0, 28)]
        ARR4 = self.opt("arr4", 3)
        APL = self.opt("ap4l", PL - 2)
        for i in range(t0):
            if i == ARR4:
                self.arrive(S_FRB, F_S4L, ("hst2", "hst3"), slot_sreg=S_TH)
                self.mark("S4_arr")
            if i == APL: self.apoll_issue(S_FRB, F_S4L, 9, S_TH, S_F)
            if i == PL:
                self.apoll_check(9, 7, S_F)
                self.mark("S4L_poll")
            a.wait_vm((f"h{i}_0", f"h{i}_1", f"w4_{i}"))
            nxt = i + LA
            mf(0, i); mf(1, i)
            if nxt < t0: self.emits(hi[(nxt, 0)])
            elif rest1: self.emits(rest1.pop(0))
            mf(2, i); mf(3, i)
            if nxt < t0: self.emits(hi[(nxt, 1)])
            elif rest1: self.emits(rest1.pop(0))
            elif rest0: self.emits(rest0.pop(0))
        for it in rest1: self.emits(it)
        for i in range(t0, 28):
            a.wait_vm((f"h{i}_1", f"w4_{i}"))
            mf(2, i)
            if rest0: self.emits(rest0.pop(0))
            mf(3, i)
        resu = self.res_unpack(TR)
        wr = self.red_write(ACC, 2) + self.red_write(ACC, 3)
        k = 0
        for i in range(t0, 28):
            a.wait_vm(f"h{i}_0")
            mf(1, i)
            if i >= t0 + 1 and wr: self.emit(wr.pop(0))
            self.emits(resu[4*k:4*k+4]); k += 1
            mf(0, i)
            if i >= t0 + 1 and wr: self.emit(wr.pop(0))
        self.emits(resu[4*k:]); self.emits(wr)
        self.mark("p4_mfma")
        self.emits(self.red_write(ACC, 1))
        self.emits(self.x_store_addr(2))
        self.red_finish(ACC, TR)
        self.mark("p4_red")
        fin = a.newlabel("fin")
        a.e(f"s_cmp_lg_u32 s{S_L}, 0\ns_cbranch_scc1 {fin}")
        vq = list(a.vmq)
        self.store_x_and_stats()
        self.arrive(S_FRB, F_S5, "xst")
        a.e(f"s_branch {n}_next")
        a.vmq = vq
        a.label(fin)
        PK = self.PK
        self.emits(self.sa(S_T0, [(S_TILE, 32 * 896), (S_N, 64)]))
        a.e(f"v_mul_u32_u24 v{V_T0}, 112, v{V_I8}\nv_lshrrev_b32 v{V_T1}, 5, v{V_L16}\nv_and_b32 v{V_T1}, 16, v{V_T1}\nv_add_u32 v{V_T0}, v{V_T0}, v{V_T1}")
        a.e(f"v_permlane32_swap_b32 v{PK}, v{PK+2}\nv_permlane32_swap_b32 v{PK+1}, v{PK+3}")
        a.e(f"v_permlane32_swap_b32 v{PK+4}, v{PK+6}\nv_permlane32_swap_b32 v{PK+5}, v{PK+7}")
        osc = " sc1" if self.opt("out_sc1", 0) else ""
        a.e(f"buffer_store_dwordx4 {vr(PK)}, v{V_T0}, s[8:11], s{S_T0} offen" + osc)
        a.e(f"buffer_store_dwordx4 {vr(PK+4)}, v{V_T0}, s[8:11], s{S_T0} offen offset:32" + osc)
        a.e(f"s_branch {n}_done")

    def build(self):
        a, n = self.a, self.name
        self.prologue()
        head_q = list(a.vmq)
        a.label(f"{n}_layer")
        a.vmq = list(head_q); a.lgq = []
        self.layer_setup()
        if self.opt("y", 0):
            a.e(f"s_lshl_b32 s{S_T0}, s{S_RB}, 7\ns_add_u32 s{S_T0}, s{S_T0}, {PFLAG}\ns_add_u32 s{S_E}, s{S_FRB}, {F_S5*2048 - NSYNC*2048}")
            a.e(f"s_cmp_eq_u32 s{S_L}, 0\ns_cselect_b32 s{S_E}, s{S_T0}, s{S_E}")
            self.poll(S_E, 0, 14)
        else:
            lab = a.newlabel("nos5")
            a.e(f"s_cmp_eq_u32 s{S_L}, 0\ns_cbranch_scc1 {lab}")
            self.poll(S_FRB, F_S5, 14, extra=-NSYNC * 2048)
            a.label(lab)
        self.p1()
        self.p2a()
        a.e(f"s_cmp_lt_u32 s{S_Q}, 7\ns_cbranch_scc1 {n}_act")
        a.e(f"s_cmp_lg_u32 s{S_L}, 0\ns_cbranch_scc1 {n}_done")
        a.e("s_waitcnt vmcnt(0)")
        a.e(f"s_branch {n}_next")
        a.label(f"{n}_act")
        self.p2b()
        self.p3()
        self.p4()
        a.label(f"{n}_next")
        if not self.opt("nonextwait", 0): a.e("s_waitcnt vmcnt(0)")
        if self.o.get("prof"): a.e(f"v_lshrrev_b32 v{V_T0}, 2, v{V_L16}\nv_add_u32 v{V_T0}, {L_MARK}, v{V_T0}\ns_cmp_eq_u32 s{S_W}, 0\ns_cselect_b64 exec, -1, 0\nds_write_b32 v{V_T0}, v{V_MARK}\ns_mov_b64 exec, -1\ns_waitcnt lgkmcnt(0)\nv_mov_b32 v{V_MARK}, 0")
        a.e(f"s_add_u32 s{S_L}, s{S_L}, 1")
        a.e(f"s_branch {n}_layer")
        a.label(f"{n}_done")
        if self.o.get("prof"): self.dump_marks()
        a.e("s_endpgm")
        a.label(f"{n}_end")
        return a.finalize()
```

```python
from layout import *
import struct
def hexf(x): return "0x%08x" % struct.unpack("<I", struct.pack("<f", x))[0]
LOOB = 0x30000
NA, NB, ND, NC = 48, 112, 49, 14
B0 = NA; D0 = B0 + NB; C0 = D0 + ND + 7; E0 = C0 + 16; F0 = 255
NXB = 224
WREG = 8192
L_SUM = 4 * WREG
P_X, P_WQKV, P_WPHI, P_WO, P_WG, P_WU, P_WD, P_OUT, P_DBG = 64, 66, 68, 70, 74, 76, 78, 80, 82

def emit_prep(a, name, opts, standalone=False):
    SC = " sc1" if (not standalone or int(opts.get('prep_sc1', 0))) else ""
    mode = int(opts.get("prep_mode", 0))
    SC_AB = SC_CD = SC_X = SC
    if mode == 1: SC_AB = SC_CD = SC_X = " nt"
    if mode == 2: SC_CD = SC_X = " sc1"
    if mode == 3: SC_AB = " sc1"
    if mode == 4: SC_X = " sc1"
    def src(ptr, size): a.e(f"s_mov_b32 s8, s{ptr}\ns_mov_b32 s9, s{ptr+1}\ns_mov_b32 s10, {size}\ns_mov_b32 s11, 0x20000")
    a.e("v_and_b32 v7, 63, v0\nv_lshlrev_b32 v1, 4, v7")
    a.e("v_and_b32 v2, 31, v0\nv_bfe_u32 v3, v0, 5, 1")
    a.e("v_lshrrev_b32 v4, 6, v0\nv_readfirstlane_b32 s12, v4")
    a.e("v_bfe_u32 v8, v7, 2, 2\nv_and_b32 v9, 3, v7\nv_bfe_u32 v10, v7, 4, 1")
    a.e("v_lshl_add_u32 v8, v3, 2, v8\nv_lshlrev_b32 v8, 6, v8")
    a.e("v_lshlrev_b32 v11, 5, v10\nv_lshl_add_u32 v11, v9, 3, v11\nv_add_u32 v8, v8, v11")
    a.e(f"s_lshl_b32 s13, s12, 13\nv_add_u32 v8, s13, v8")
    a.e("v_lshrrev_b32 v12, 2, v7\nv_lshlrev_b32 v13, 4, v9")
    a.e("s_waitcnt lgkmcnt(0)")
    if int(opts.get("wsoff", 0)) and not opts.get("_wsdone"):
        a.e(f"s_add_u32 s4, s4, {int(opts.get('wsoff')) << 20}\ns_addc_u32 s5, s5, 0")
    a.e(f"s_mov_b32 s6, {WS_USED}\ns_mov_b32 s7, 0x20000")
    a.e(f"s_cmp_ge_u32 s2, {NXB}\ns_cbranch_scc1 {name}_nox")
    a.e(f"s_mov_b32 s8, s{P_X}\ns_mov_b32 s9, s{P_X+1}\ns_mov_b32 s10, {S*D*2}\ns_mov_b32 s11, 0x20000")
    a.e("s_mul_i32 s13, s2, 9363\ns_lshr_b32 s13, s13, 16")
    a.e("s_mul_i32 s14, s13, 7\ns_sub_u32 s14, s2, s14")
    a.e("s_lshr_b32 s15, s12, 1\ns_lshl_b32 s13, s13, 1\ns_add_u32 s30, s13, s15")
    a.e("s_and_b32 s15, s12, 1\ns_lshl_b32 s14, s14, 1\ns_add_u32 s31, s14, s15")
    a.e("v_mul_u32_u24 v4, 896, v2\nv_lshlrev_b32 v5, 3, v3\nv_add_u32 v4, v4, v5")
    a.e("s_mul_i32 s20, s30, 28672\ns_lshl_b32 s15, s31, 6\ns_add_u32 s20, s20, s15")
    for g in range(4):
        a.e(f"buffer_load_dwordx2 v[{64+2*g}:{65+2*g}], v4, s[8:11], s20 offen offset:{g*16}")
    a.label(f"{name}_nox")
    for lim, lab in ((B0, "A"), (D0, "B"), (D0 + ND, "Dn"), (C0, "pdone0"), (E0, "C"), (F0, "pdone0")):
        a.e(f"s_cmp_lt_u32 s2, {lim}\ns_cbranch_scc1 {name}_{lab}")
    a.vmq = []

    def stage(nins):
        a.e("s_lshl_b32 s22, s12, 13")
        for i in range(nins):
            a.e("s_mov_b32 m0, s22\ns_nop 0")
            a.e("buffer_load_dwordx4 v4, s[8:11], s20 offen lds", tag="raw")
            if i != nins - 1: a.e("s_add_u32 s20, s20, s21\ns_add_u32 s22, s22, 1024")
    def lanes(rb, col): a.e(f"v_mul_lo_u32 v4, s{rb}, v12\nv_add3_u32 v4, v4, v13, s{col}")
    def trread(dst, va, off): a.e(f"ds_read_b64_tr_b16 v[{dst}:{dst+1}], v{va} offset:{off}", tag="tr")
    def reset(): a.vmq = []; a.lgq = []
    def ts0(r):
        if opts.get("prof"): a.e(f"s_memrealtime s[{r}:{r+1}]\ns_waitcnt lgkmcnt(0)")
    FR = 16
    def ship(n):
        for fr in range(n):
            a.e(f"s_waitcnt lgkmcnt({min(15, 2*n - 2 - 2*fr)})")
            a.e(f"buffer_store_dwordx4 v[{FR+4*fr}:{FR+4*fr+3}], v1, s[4:7], s24 offen" + SC_CD)
            a.e("s_add_u32 s24, s24, 1024")

    a.e("v_mov_b32 v16, 0\nv_mov_b32 v17, 0\nv_mov_b32 v18, 0\nv_mov_b32 v19, 0")
    a.e(f"v_lshlrev_b32 v5, 4, v0\ns_mov_b32 s20, {FLAGS}")
    for i in range(FLAGZ // 4096):
        a.e("buffer_store_dwordx4 v[16:19], v5, s[4:7], s20 offen" + SC)
        a.e("s_add_u32 s20, s20, 4096")
    src(P_WPHI, H * DH * DH * 2)
    a.e(f"v_mov_b32 v4, v1\ns_mul_i32 s20, s12, {4*1568}\ns_mov_b32 s21, 1024")
    stage(7)
    if not standalone:
        a.e("s_waitcnt vmcnt(7)\ns_barrier")
        a.e(f"s_mov_b32 s16, s{P_DBG}\ns_mov_b32 s17, s{P_DBG+1}\ns_mov_b32 s18, 256\ns_mov_b32 s19, 0x20000")
        a.e("v_mov_b32 v5, 1\ns_cmp_eq_u32 s12, 0\ns_cselect_b64 exec, 1, 0")
        a.e("buffer_store_dword v5, off, s[16:19], 0 sc1")
        a.e("s_mov_b64 exec, -1")
    a.e("v_and_b32 v9, 3, v7\nv_bfe_u32 v10, v7, 4, 1\nv_bfe_u32 v11, v7, 2, 2")
    a.e("v_lshl_add_u32 v14, v10, 2, v9\nv_min_u32 v14, 6, v14\nv_lshlrev_b32 v14, 3, v14")
    a.e("v_lshl_add_u32 v11, v3, 2, v11\nv_mul_u32_u24 v11, 56, v11\nv_add_u32 v8, v11, v14")
    a.e("s_lshl_b32 s13, s12, 13\nv_add_u32 v8, s13, v8")
    a.e(f"v_mov_b32 v14, {LOOB}\nv_cmp_eq_u32 vcc, 0, v3\nv_cndmask_b32 v9, v14, v8, vcc")
    a.e(f"s_lshl_b32 s24, s12, 13\ns_add_u32 s24, s24, {PHI}")
    ts0(94)
    a.e("s_waitcnt vmcnt(0)")
    ts0(92)
    reset()
    for fr in range(8):
        q, e = fr // 2, fr % 2
        off = q * 1568 + 16 * e * 56
        trread(FR + 4*fr, 8, off); trread(FR + 4*fr + 2, 9 if e else 8, off + 8 * 56)
    ship(8)
    a.e(f"s_branch {name}_pdone")

    reset()
    a.label(f"{name}_A")
    src(P_WQKV, D * 3 * D * 2)
    a.e("s_and_b32 s13, s2, 7\ns_lshr_b32 s14, s2, 3\ns_lshl_b32 s13, s13, 1\ns_and_b32 s15, s14, 1\ns_add_u32 s13, s13, s15\ns_lshr_b32 s14, s14, 1")
    a.e(f"s_mul_i32 s18, s13, 3\ns_add_u32 s18, s18, s14\ns_mul_i32 s18, s18, {KW*KB}\ns_add_u32 s18, s18, {WQKV}")
    a.e("s_mul_i32 s14, s14, 896\ns_mul_i32 s13, s13, 56\ns_add_u32 s15, s13, s14")
    a.e("s_mov_b32 s16, 2688")
    a.e(f"v_and_b32 v11, v10, v9\nv_lshrrev_b32 v14, 1, v9\nv_and_b32 v11, v11, v14\nv_cmp_eq_u32 vcc, 1, v11\nv_mov_b32 v14, {LOOB}\nv_cndmask_b32 v8, v8, v14, vcc")
    a.e(f"s_branch {name}_AB")
    a.label(f"{name}_B")
    a.e(f"s_sub_u32 s13, s2, {B0}\ns_and_b32 s14, s13, 7\ns_lshr_b32 s13, s13, 3\ns_and_b32 s15, s13, 1\ns_lshr_b32 s13, s13, 1")
    a.e("s_lshl_b32 s13, s13, 3\ns_add_u32 s13, s13, s14")
    a.e("s_and_b32 s14, s13, 1\ns_lshr_b32 s13, s13, 1\ns_lshl_b32 s13, s13, 1\ns_add_u32 s13, s13, s15")
    a.e("s_lshl_b32 s13, s13, 1\ns_add_u32 s13, s13, s14")
    a.e("s_cmp_eq_u32 s14, 0")
    a.e(f"s_cselect_b32 s8, s{P_WG}, s{P_WU}\ns_cselect_b32 s9, s{P_WG+1}, s{P_WU+1}\ns_mov_b32 s10, {D*F*2}\ns_mov_b32 s11, 0x20000")
    a.e("s_lshr_b32 s15, s13, 1\ns_lshl_b32 s15, s15, 6")
    a.e("s_mov_b32 s16, 3584")
    a.e(f"s_mul_i32 s18, s13, {KW*KB}\ns_add_u32 s18, s18, {WGU}")
    a.label(f"{name}_AB")
    lanes(16, 15)
    a.e("s_mul_i32 s20, s12, 112\ns_mul_i32 s20, s20, s16\ns_lshl_b32 s21, s16, 4")
    stage(7)
    a.e("s_mov_b32 s23, 0x3f803f80")
    a.e(f"s_mul_i32 s24, s12, {7*KB}\ns_add_u32 s24, s24, s18")
    ts0(94)
    a.e("s_waitcnt vmcnt(0)")
    ts0(92)
    reset()
    for s in range(7):
        trread(FR + 4*s, 8, s * 1024); trread(FR + 4*s + 2, 8, s * 1024 + 512)
    a.e("v_mov_b32 v48, 0\nv_mov_b32 v49, 0")
    for s in range(7):
        a.e(f"s_waitcnt lgkmcnt({min(15, 12 - 2*s)})")
        a.e(f"buffer_store_dwordx4 v[{FR+4*s}:{FR+4*s+3}], v1, s[4:7], s24 offen" + SC_AB)
        a.e("s_add_u32 s24, s24, 1024")
        for d in range(4): a.e(f"v_dot2_f32_bf16 v{48 + d % 2}, v{FR+4*s+d}, s23, v{48 + d % 2}")
    a.lgq = []
    a.e(f"v_add_f32 v48, v48, v49\nv_lshlrev_b32 v9, 2, v0\nv_add_u32 v9, {L_SUM}, v9")
    a.e("ds_write_b32 v9, v48")
    a.e("s_waitcnt lgkmcnt(0)\ns_barrier")
    a.e(f"s_cmp_lg_u32 s12, 0\ns_cbranch_scc1 {name}_pdone")
    a.e(f"v_lshlrev_b32 v9, 2, v2\nv_add_u32 v9, {L_SUM}, v9")
    for q in range(8): a.e(f"ds_read_b32 v{50+q}, v9 offset:{q*128}")
    a.e("s_waitcnt lgkmcnt(0)")
    a.e("v_add_f32 v50, v50, v51\nv_add_f32 v52, v52, v53\nv_add_f32 v54, v54, v55\nv_add_f32 v56, v56, v57")
    a.e("v_add_f32 v50, v50, v52\nv_add_f32 v54, v54, v56\nv_add_f32 v50, v50, v54")
    a.e("v_cvt_pk_bf16_f32 v51, v50, v50\nv_lshlrev_b32 v51, 16, v51\nv_sub_f32 v52, v50, v51\nv_cvt_pk_bf16_f32 v52, v51, v52")
    a.e("v_cmp_eq_u32 vcc, 0, v3\nv_mov_b32 v54, 0\nv_mov_b32 v55, 0\nv_cndmask_b32 v52, v54, v52, vcc\nv_mov_b32 v53, v52")
    a.e(f"s_add_u32 s24, s18, {28*KB}")
    a.e("buffer_store_dwordx4 v[52:55], v1, s[4:7], s24 offen" + SC_AB)
    a.e(f"s_branch {name}_pdone")

    reset()
    a.label(f"{name}_C")
    src(P_WO, D * D * 2)
    a.e(f"s_sub_u32 s13, s2, {C0}\ns_and_b32 s14, s13, 7\ns_lshr_b32 s13, s13, 3")
    a.e(f"s_cmp_eq_u32 s14, 7\ns_cbranch_scc1 {name}_pdone0")
    a.e("s_lshl_b32 s14, s14, 1\ns_add_u32 s13, s13, s14\ns_lshl_b32 s15, s13, 6\ns_mov_b32 s16, 896")
    lanes(16, 15)
    a.e(f"s_mul_i32 s20, s12, {112*896}\ns_mov_b32 s21, {16*896}")
    stage(7)
    a.e(f"v_mov_b32 v14, {LOOB}\nv_cmp_eq_u32 vcc, 0, v3\nv_cndmask_b32 v9, v14, v8, vcc")
    a.e(f"s_lshl_b32 s24, s13, 5\ns_lshl_b32 s25, s12, 3\ns_add_u32 s24, s24, s25\ns_lshl_b32 s24, s24, 10\ns_add_u32 s24, s24, {WO}")
    ts0(94)
    a.e("s_waitcnt vmcnt(0)")
    ts0(92)
    reset()
    for fr in range(8):
        q, e = fr // 2, fr % 2
        off = (28 * q + 16 * e) * 64
        trread(FR + 4*fr, 8, off); trread(FR + 4*fr + 2, 9 if e else 8, off + 512)
    ship(8)
    a.e(f"s_branch {name}_pdone")

    reset()
    a.label(f"{name}_Dn")
    src(P_WD, F * D * 2)
    a.e(f"s_sub_u32 s13, s2, {D0}\ns_mul_i32 s14, s13, 9363\ns_lshr_b32 s14, s14, 16")
    a.e("s_mul_i32 s25, s14, 7\ns_sub_u32 s25, s13, s25\ns_lshl_b32 s25, s25, 2\ns_add_u32 s25, s25, s12")
    a.e("v_lshrrev_b32 v4, 3, v7\nv_mul_u32_u24 v4, 896, v4\nv_and_b32 v5, 7, v7\nv_lshlrev_b32 v5, 4, v5\ns_lshl_b32 s15, s14, 7\nv_add3_u32 v4, v4, v5, s15")
    a.e(f"s_mul_i32 s20, s25, {64*896}\ns_mov_b32 s21, {8*896}")
    stage(8)
    a.e("v_bfe_u32 v8, v7, 2, 2\nv_lshl_add_u32 v8, v3, 2, v8\nv_lshlrev_b32 v8, 7, v8\nv_add_u32 v8, v8, v11")
    a.e("s_lshl_b32 s13, s12, 13\nv_add_u32 v8, s13, v8")
    a.e(f"s_mul_i32 s24, s14, 224\ns_lshl_b32 s26, s25, 2\ns_add_u32 s24, s24, s26\ns_lshl_b32 s24, s24, 10\ns_add_u32 s24, s24, {WD}")
    ts0(94)
    a.e("s_waitcnt vmcnt(0)")
    ts0(92)
    reset()
    for e in range(2):
        for s in range(4):
            fr = 4 * e + s
            trread(FR + 4*fr, 8, s * 2048 + e * 64); trread(FR + 4*fr + 2, 8, s * 2048 + e * 64 + 1024)
    for fr in range(8):
        a.e(f"s_waitcnt lgkmcnt({min(15, 14 - 2*fr)})")
        a.e(f"buffer_store_dwordx4 v[{FR+4*fr}:{FR+4*fr+3}], v1, s[4:7], s24 offen" + SC_CD)
        a.e(f"s_add_u32 s24, s24, {1024 if fr != 3 else (112 - 3) * 1024}")
    a.e(f"s_branch {name}_pdone")

    reset()
    a.label(f"{name}_pdone0")
    a.e("s_waitcnt vmcnt(0)")
    if opts.get("prof"): a.e("s_memrealtime s[92:93]\ns_memrealtime s[94:95]\ns_waitcnt lgkmcnt(0)")
    a.label(f"{name}_pdone")
    a.e(f"s_cmp_ge_u32 s2, {NXB}\ns_cbranch_scc1 {name}_nox2")
    a.e(f"s_mul_i32 s21, s30, 28\ns_lshl_b32 s15, s31, 1\ns_add_u32 s21, s21, s15\ns_lshl_b32 s21, s21, 10\ns_add_u32 s21, s21, {X}")
    ST4 = int(opts.get("st4", 0))
    if ST4: a.e(f"s_mul_i32 s22, s30, 3584\ns_lshr_b32 s15, s31, 1\ns_lshl_b32 s15, s15, 9\ns_add_u32 s22, s22, s15\ns_and_b32 s15, s31, 1\ns_lshl_b32 s15, s15, 3\ns_add_u32 s22, s22, s15\ns_add_u32 s22, s22, {ST}")
    else: a.e(f"s_mul_i32 s22, s30, 3584\ns_lshl_b32 s15, s31, 8\ns_add_u32 s22, s22, s15\ns_add_u32 s22, s22, {ST}")
    a.e(f"s_mov_b32 s23, 0x3f803f80\nv_lshlrev_b32 v6, {4 if ST4 else 3}, v2\nv_mov_b32 v8, 0\nv_mov_b32 v9, 0")
    a.e("buffer_store_dwordx4 v[64:67], v1, s[4:7], s21 offen" + SC_X)
    a.e("buffer_store_dwordx4 v[68:71], v1, s[4:7], s21 offen offset:1024" + SC_X)
    for q in range(8):
        a.e(f"v_dot2_f32_bf16 v8, v{64+q}, s23, v8")
        a.e(f"v_dot2_f32_bf16 v9, v{64+q}, v{64+q}, v9")
    a.e("v_mov_b32 v10, v8\nv_mov_b32 v11, v9")
    a.e("v_permlane32_swap_b32 v10, v8\nv_permlane32_swap_b32 v11, v9")
    a.e("v_add_f32 v12, v8, v10\nv_add_f32 v13, v9, v11")
    a.e("s_mov_b32 exec_hi, 0")
    a.e("buffer_store_dwordx2 v[12:13], v6, s[4:7], s22 offen" + SC_X)
    a.e("s_mov_b32 exec_hi, -1")
    a.label(f"{name}_nox2")
    if standalone: return
    lab = f"{name}_pw"
    a.e(f"s_mov_b32 s16, s{P_DBG}\ns_mov_b32 s17, s{P_DBG+1}\ns_mov_b32 s18, 256\ns_mov_b32 s19, 0x20000")
    def ts(r):
        if opts.get("prof"): a.e(f"s_memrealtime s[{r}:{r+1}]\ns_waitcnt lgkmcnt(0)")
    ts(86)
    a.e("s_waitcnt vmcnt(0) lgkmcnt(0)\ns_barrier")
    ts(88)
    a.e(f"s_cmp_lg_u32 s12, 0\ns_cbranch_scc1 {lab}_skip")
    a.e("s_mov_b64 exec, 1\ns_mov_b32 s28, 0")
    a.label(f"{lab}_z")
    a.e("buffer_load_dword v5, off, s[16:19], 0 sc1")
    a.e(f"s_add_u32 s28, s28, 1\ns_cmp_gt_u32 s28, 200000\ns_cbranch_scc1 {lab}_zx")
    a.e(f"s_waitcnt vmcnt(0)\nv_readfirstlane_b32 s23, v5\ns_cmp_eq_u32 s23, 0\ns_cbranch_scc1 {lab}_z")
    a.label(f"{lab}_zx")
    ts(90)
    a.e(f"s_and_b32 s20, s2, 15\ns_lshl_b32 s20, s20, 7\ns_add_u32 s20, s20, {PFLAG}")
    a.e("v_mov_b32 v5, 1\ns_waitcnt vmcnt(0)")
    a.e("buffer_atomic_add v5, off, s[4:7], s20 sc1")
    a.e(f"s_mov_b64 exec, 0xffff\nv_and_b32 v6, 15, v0\nv_lshlrev_b32 v6, 7, v6\ns_mov_b32 s20, {PFLAG}\ns_mov_b32 s28, 0")
    a.label(f"{lab}_p")
    if int(opts.get("psl0", 0)): a.e(f"s_sleep {int(opts.get('psl0'))}")
    a.e("buffer_load_dword v5, v6, s[4:7], s20 offen sc1")
    a.e(f"s_add_u32 s28, s28, 1\ns_cmp_gt_u32 s28, 200000\ns_cbranch_scc1 {lab}_px")
    a.e(f"s_waitcnt vmcnt(0)\nv_cmp_gt_u32 vcc, 16, v5\ns_cbranch_vccnz {lab}_p")
    a.label(f"{lab}_px")
    a.e("s_waitcnt vmcnt(0)\ns_mov_b64 exec, -1")
    a.label(f"{lab}_skip")
    a.e("s_barrier")
    reset()


NPREP = 256
PREP_LDS = L_SUM + 1024
def gen_prep(name, opts=None):
    from asmlib import Asm
    opts = opts or {}
    a = Asm()
    a.label(name)
    if opts.get("prof"): a.e("s_memrealtime s[84:85]")
    a.e(f"s_cmp_lt_u32 s2, {NPREP}\ns_cbranch_scc1 {name}_go\ns_endpgm")
    a.label(f"{name}_go")
    a.e("s_load_dwordx16 s[64:79], s[0:1], 0\ns_load_dwordx2 s[4:5], s[0:1], 80")
    if int(opts.get("pf_code", 0)):
        n = int(opts.get("pf_lines", 14))
        a.e("s_getpc_b64 s[28:29]")
        a.label(f"{name}_pc")
        a.e(f"s_add_u32 s28, s28, main_kernel-{name}_pc\ns_addc_u32 s29, s29, 0")
        a.e(f"s_lshr_b32 s30, s2, 3\ns_and_b32 s30, s30, 31\ns_mul_i32 s30, s30, {n*64}\ns_min_u32 s30, s30, main_kernel_end-main_kernel-{n*64}\ns_add_u32 s28, s28, s30\ns_addc_u32 s29, s29, 0")
        for i in range(n): a.e(f"s_load_dwordx16 s[32:47], s[28:29], {i*64}")
    if str(opts.get("prof")) == "3":
        a.e("s_waitcnt lgkmcnt(0)")
        if int(opts.get("wsoff", 0)):
            a.e(f"s_add_u32 s4, s4, {int(opts.get('wsoff')) << 20}\ns_addc_u32 s5, s5, 0")
            opts = dict(opts, _wsdone=1)
        a.e(f"s_mov_b32 s6, {WS_USED}\ns_mov_b32 s7, 0x20000\ns_lshl_b32 s20, s2, 3\ns_add_u32 s20, s20, {DBG + 256*512}\nv_mov_b32 v16, s84\ns_mov_b64 exec, 1")
        a.e("buffer_store_dword v16, off, s[4:7], s20\ns_mov_b64 exec, -1")
        a.vmq = []
    emit_prep(a, name, dict(opts, prof=None), standalone=True)
    if opts.get("prof") and str(opts.get("prof")) != "3":
        a.e("s_waitcnt vmcnt(0)\ns_memrealtime s[86:87]\ns_waitcnt lgkmcnt(0)")
        a.e(f"s_lshl_b32 s20, s2, 3\ns_add_u32 s20, s20, {DBG + 256*512}\nv_mov_b32 v16, s84\nv_mov_b32 v17, s86\ns_mov_b64 exec, 1")
        a.e("buffer_store_dwordx2 v[16:17], off, s[4:7], s20")
    a.e("s_endpgm")
    return a.finalize()
```

```python
import sys, kd
import prep2, prep3
prep = prep2
import main3 as mainvk
import main6
from layout import *
KNAME = "interleave_layers__linear_kernel_hedgehog__geglu_ffn__prompt_kernel"
def build_single(opts):
    g = (main6.Gen if int(opts.get('v6', 0)) else mainvk.Gen)(KNAME, opts=opts)
    m = g.build()
    ref = open("interleave_layers__linear_kernel_hedgehog__geglu_ffn__prompt.s.ref").read().split("\n")
    keep = [l for l in ref if l.startswith(";") and "@launch" not in l and "Override launch" not in l and "grid=ceil" not in l]
    src = "\n".join(keep) + "\n" + f"; @launch grid=(256,1,1) block=(256,1,1) lds={mainvk.LDS_BYTES}\n"
    src += '.amdgcn_target "amdgcn-amd-amdhsa--gfx950"\n.text\n' + kd.head(KNAME) + m.text()
    src += '.section .rodata,"a"\n' + kd.kd(KNAME, 512, 256, 100)
    build.marks = getattr(g, "marks", [])
    return src, (0, 0, len(m.ins), m.nops_added)
DESIGN_NOTE = """; ---------------------------------------------------------------------------------------------------------------
; ---------------------------------------------------------------------------------------------------------------
"""
def build(stop=None, opts=None, with_header=True):
    if opts and (int(opts.get("single", 0)) or int(opts.get("y", 0))): return build_single(opts)
    global prep
    prep = prep3 if (opts and int(opts.get("prep3", 0))) else prep2
    p = prep.gen_prep("prep_kernel", opts)
    g = (main6.Gen if (opts and int(opts.get("v6", 0))) else mainvk.Gen)("main_kernel", stop=stop, opts=opts)
    m = g.build()
    hdr = ""
    if with_header:
        ref = open("interleave_layers__linear_kernel_hedgehog__geglu_ffn__prompt.s.ref").read().split("\n")
        keep = [l for l in ref if l.startswith(";") and "@launch" not in l and "Override launch" not in l and "grid=ceil" not in l]
        hdr = "\n".join(keep) + "\n"
        hdr += f"; @launch kernel=prep_kernel grid=({prep.NPREP},1,1) block=(256,1,1) lds={prep.PREP_LDS}\n"
        hdr += f"; @launch kernel=main_kernel grid=(256,1,1) block=(256,1,1) lds={mainvk.LDS_BYTES}\n"
    src = hdr + DESIGN_NOTE + '.amdgcn_target "amdgcn-amd-amdhsa--gfx950"\n.text\n'
    src += kd.head("prep_kernel") + p.text() + kd.head("main_kernel") + m.text()
    src += '.section .rodata,"a"\n' + kd.kd("prep_kernel", 128, 128) + kd.kd("main_kernel", 512, 256, 100)
    build.marks = getattr(g, "marks", [])
    return src, (len(p.ins), p.nops_added, len(m.ins), m.nops_added)
if __name__ == "__main__":
    stop = sys.argv[2] if len(sys.argv) > 2 and sys.argv[2] != "none" else None
    opts = dict(kv.split("=") for kv in sys.argv[3:])
    src, info = build(stop, opts)
    open(sys.argv[1], "w").write(src)
    if build.marks: open(sys.argv[1] + ".marks", "w").write("\n".join(build.marks))
    print("prep instrs/nops, main instrs/nops:", info, "bytes", len(src))
```

```python
from layout import *
import struct
def hexf(x): return "0x%08x" % struct.unpack("<I", struct.pack("<f", x))[0]
LOOB = 0x30000
NA, NB, ND, NC = 48, 112, 49, 14
B0 = NA; D0 = B0 + NB; C0 = D0 + ND + 7; E0 = C0 + 16; F0 = 255
NXB = 224
WREG = 8192
L_SUM = 4 * WREG
P_X, P_WQKV, P_WPHI, P_WO, P_WG, P_WU, P_WD, P_OUT, P_DBG = 64, 66, 68, 70, 74, 76, 78, 80, 82

def emit_prep(a, name, opts, standalone=False):
    SC = " sc1" if (not standalone or int(opts.get('prep_sc1', 0))) else ""
    mode = int(opts.get("prep_mode", 0))
    SC_AB = SC_CD = SC_X = SC
    if mode == 1: SC_AB = SC_CD = SC_X = " nt"
    if mode == 2: SC_CD = SC_X = " sc1"
    if mode == 3: SC_AB = " sc1"
    if mode == 4: SC_X = " sc1"
    def src(ptr, size): a.e(f"s_mov_b32 s8, s{ptr}\ns_mov_b32 s9, s{ptr+1}\ns_mov_b32 s10, {size}\ns_mov_b32 s11, 0x20000")
    a.e("v_and_b32 v7, 63, v0\nv_lshlrev_b32 v1, 4, v7")
    a.e("v_and_b32 v2, 31, v0\nv_bfe_u32 v3, v0, 5, 1")
    a.e("v_lshrrev_b32 v4, 6, v0\nv_readfirstlane_b32 s12, v4")
    a.e("v_bfe_u32 v8, v7, 2, 2\nv_and_b32 v9, 3, v7\nv_bfe_u32 v10, v7, 4, 1")
    a.e("v_lshl_add_u32 v8, v3, 2, v8\nv_lshlrev_b32 v8, 6, v8")
    a.e("v_lshlrev_b32 v11, 5, v10\nv_lshl_add_u32 v11, v9, 3, v11\nv_add_u32 v8, v8, v11")
    a.e(f"s_lshl_b32 s13, s12, 13\nv_add_u32 v8, s13, v8")
    a.e("v_lshrrev_b32 v12, 2, v7\nv_lshlrev_b32 v13, 4, v9")
    a.e("s_waitcnt lgkmcnt(0)")
    if int(opts.get("wsoff", 0)) and not opts.get("_wsdone"):
        a.e(f"s_add_u32 s4, s4, {int(opts.get('wsoff')) << 20}\ns_addc_u32 s5, s5, 0")
    a.e(f"s_mov_b32 s6, {WS_USED}\ns_mov_b32 s7, 0x20000")
    a.e(f"s_cmp_ge_u32 s2, {NXB}\ns_cbranch_scc1 {name}_nox")
    a.e(f"s_mov_b32 s8, s{P_X}\ns_mov_b32 s9, s{P_X+1}\ns_mov_b32 s10, {S*D*2}\ns_mov_b32 s11, 0x20000")
    a.e("s_mul_i32 s13, s2, 9363\ns_lshr_b32 s13, s13, 16")
    a.e("s_mul_i32 s14, s13, 7\ns_sub_u32 s14, s2, s14")
    a.e("s_lshr_b32 s15, s12, 1\ns_lshl_b32 s13, s13, 1\ns_add_u32 s30, s13, s15")
    a.e("s_and_b32 s15, s12, 1\ns_lshl_b32 s14, s14, 1\ns_add_u32 s31, s14, s15")
    a.e("v_mul_u32_u24 v4, 896, v2\nv_lshlrev_b32 v5, 3, v3\nv_add_u32 v4, v4, v5")
    a.e("s_mul_i32 s20, s30, 28672\ns_lshl_b32 s15, s31, 6\ns_add_u32 s20, s20, s15")
    for g in range(4):
        a.e(f"buffer_load_dwordx2 v[{64+2*g}:{65+2*g}], v4, s[8:11], s20 offen offset:{g*16}")
    a.label(f"{name}_nox")
    for lim, lab in ((B0, "A"), (D0, "B"), (D0 + ND, "Dn"), (C0, "pdone0"), (E0, "C"), (F0, "pdone0")):
        a.e(f"s_cmp_lt_u32 s2, {lim}\ns_cbranch_scc1 {name}_{lab}")
    a.vmq = []

    T2 = int(opts.get("touch2", 0)) if standalone else 0
    lo2 = X + XSZ
    hi2 = HB if T2 == 1 else HB + 2 * HSZ
    NT = -(-(hi2 - lo2) // (224 * 4 * 8192)) if T2 else 0
    def stage(nins):
        a.e("s_lshl_b32 s22, s12, 13")
        for i in range(nins):
            a.e("s_mov_b32 m0, s22\ns_nop 0")
            a.e("buffer_load_dwordx4 v4, s[8:11], s20 offen lds", tag="raw")
            if i != nins - 1: a.e("s_add_u32 s20, s20, s21\ns_add_u32 s22, s22, 1024")
        if NT:
            a.e(f"s_lshl_b32 s26, s2, 2\ns_add_u32 s26, s26, s12\ns_mul_i32 s26, s26, {NT*8192}\ns_add_u32 s26, s26, {lo2}\nv_lshlrev_b32 v58, 7, v7")
            for i in range(NT):
                a.e("buffer_load_dword v59, v58, s[4:7], s26 offen")
                if i != NT - 1: a.e("s_add_u32 s26, s26, 8192")
    def lanes(rb, col): a.e(f"v_mul_lo_u32 v4, s{rb}, v12\nv_add3_u32 v4, v4, v13, s{col}")
    def trread(dst, va, off): a.e(f"ds_read_b64_tr_b16 v[{dst}:{dst+1}], v{va} offset:{off}", tag="tr")
    def reset(): a.vmq = []; a.lgq = []
    def ts0(r):
        if opts.get("prof"): a.e(f"s_memrealtime s[{r}:{r+1}]\ns_waitcnt lgkmcnt(0)")
    FR = 16
    def ship(n):
        for fr in range(n):
            a.e(f"s_waitcnt lgkmcnt({min(15, 2*n - 2 - 2*fr)})")
            a.e(f"buffer_store_dwordx4 v[{FR+4*fr}:{FR+4*fr+3}], v1, s[4:7], s24 offen" + SC_CD)
            a.e("s_add_u32 s24, s24, 1024")

    a.e("v_mov_b32 v16, 0\nv_mov_b32 v17, 0\nv_mov_b32 v18, 0\nv_mov_b32 v19, 0")
    a.e(f"v_lshlrev_b32 v5, 4, v0\ns_mov_b32 s20, {FLAGS}")
    for i in range(FLAGZ // 4096):
        a.e("buffer_store_dwordx4 v[16:19], v5, s[4:7], s20 offen" + SC)
        a.e("s_add_u32 s20, s20, 4096")
    src(P_WPHI, H * DH * DH * 2)
    a.e(f"v_mov_b32 v4, v1\ns_mul_i32 s20, s12, {4*1568}\ns_mov_b32 s21, 1024")
    stage(7)
    if not standalone:
        a.e("s_waitcnt vmcnt(7)\ns_barrier")
        a.e(f"s_mov_b32 s16, s{P_DBG}\ns_mov_b32 s17, s{P_DBG+1}\ns_mov_b32 s18, 256\ns_mov_b32 s19, 0x20000")
        a.e("v_mov_b32 v5, 1\ns_cmp_eq_u32 s12, 0\ns_cselect_b64 exec, 1, 0")
        a.e("buffer_store_dword v5, off, s[16:19], 0 sc1")
        a.e("s_mov_b64 exec, -1")
    a.e("v_and_b32 v9, 3, v7\nv_bfe_u32 v10, v7, 4, 1\nv_bfe_u32 v11, v7, 2, 2")
    a.e("v_lshl_add_u32 v14, v10, 2, v9\nv_min_u32 v14, 6, v14\nv_lshlrev_b32 v14, 3, v14")
    a.e("v_lshl_add_u32 v11, v3, 2, v11\nv_mul_u32_u24 v11, 56, v11\nv_add_u32 v8, v11, v14")
    a.e("s_lshl_b32 s13, s12, 13\nv_add_u32 v8, s13, v8")
    a.e(f"v_mov_b32 v14, {LOOB}\nv_cmp_eq_u32 vcc, 0, v3\nv_cndmask_b32 v9, v14, v8, vcc")
    a.e(f"s_lshl_b32 s24, s12, 13\ns_add_u32 s24, s24, {PHI}")
    ts0(94)
    a.e(f"s_waitcnt vmcnt({NT})")
    ts0(92)
    reset()
    for fr in range(8):
        q, e = fr // 2, fr % 2
        off = q * 1568 + 16 * e * 56
        trread(FR + 4*fr, 8, off); trread(FR + 4*fr + 2, 9 if e else 8, off + 8 * 56)
    ship(8)
    a.e(f"s_branch {name}_pdone")

    reset()
    a.label(f"{name}_A")
    src(P_WQKV, D * 3 * D * 2)
    a.e("s_and_b32 s13, s2, 7\ns_lshr_b32 s14, s2, 3\ns_lshl_b32 s13, s13, 1\ns_and_b32 s15, s14, 1\ns_add_u32 s13, s13, s15\ns_lshr_b32 s14, s14, 1")
    a.e(f"s_mul_i32 s18, s13, 3\ns_add_u32 s18, s18, s14\ns_mul_i32 s18, s18, {KW*KB}\ns_add_u32 s18, s18, {WQKV}")
    a.e("s_mul_i32 s14, s14, 896\ns_mul_i32 s13, s13, 56\ns_add_u32 s15, s13, s14")
    a.e("s_mov_b32 s16, 2688")
    a.e(f"v_and_b32 v11, v10, v9\nv_lshrrev_b32 v14, 1, v9\nv_and_b32 v11, v11, v14\nv_cmp_eq_u32 vcc, 1, v11\nv_mov_b32 v14, {LOOB}\nv_cndmask_b32 v8, v8, v14, vcc")
    a.e(f"s_branch {name}_AB")
    a.label(f"{name}_B")
    a.e(f"s_sub_u32 s13, s2, {B0}\ns_and_b32 s14, s13, 7\ns_lshr_b32 s13, s13, 3\ns_and_b32 s15, s13, 1\ns_lshr_b32 s13, s13, 1")
    a.e("s_lshl_b32 s13, s13, 3\ns_add_u32 s13, s13, s14")
    a.e("s_and_b32 s14, s13, 1\ns_lshr_b32 s13, s13, 1\ns_lshl_b32 s13, s13, 1\ns_add_u32 s13, s13, s15")
    a.e("s_lshl_b32 s13, s13, 1\ns_add_u32 s13, s13, s14")
    a.e("s_cmp_eq_u32 s14, 0")
    a.e(f"s_cselect_b32 s8, s{P_WG}, s{P_WU}\ns_cselect_b32 s9, s{P_WG+1}, s{P_WU+1}\ns_mov_b32 s10, {D*F*2}\ns_mov_b32 s11, 0x20000")
    a.e("s_lshr_b32 s15, s13, 1\ns_lshl_b32 s15, s15, 6")
    a.e("s_mov_b32 s16, 3584")
    a.e(f"s_mul_i32 s18, s13, {KW*KB}\ns_add_u32 s18, s18, {WGU}")
    a.label(f"{name}_AB")
    lanes(16, 15)
    a.e("s_mul_i32 s20, s12, 112\ns_mul_i32 s20, s20, s16\ns_lshl_b32 s21, s16, 4")
    stage(7)
    a.e("s_mov_b32 s23, 0x3f803f80")
    a.e(f"s_mul_i32 s24, s12, {7*KB}\ns_add_u32 s24, s24, s18")
    ts0(94)
    a.e(f"s_waitcnt vmcnt({NT})")
    ts0(92)
    reset()
    for s in range(7):
        trread(FR + 4*s, 8, s * 1024); trread(FR + 4*s + 2, 8, s * 1024 + 512)
    a.e("v_mov_b32 v48, 0\nv_mov_b32 v49, 0")
    for s in range(7):
        a.e(f"s_waitcnt lgkmcnt({min(15, 12 - 2*s)})")
        a.e(f"buffer_store_dwordx4 v[{FR+4*s}:{FR+4*s+3}], v1, s[4:7], s24 offen" + SC_AB)
        a.e("s_add_u32 s24, s24, 1024")
        for d in range(4): a.e(f"v_dot2_f32_bf16 v{48 + d % 2}, v{FR+4*s+d}, s23, v{48 + d % 2}")
    a.lgq = []
    a.e(f"v_add_f32 v48, v48, v49\nv_lshlrev_b32 v9, 2, v0\nv_add_u32 v9, {L_SUM}, v9")
    a.e("ds_write_b32 v9, v48")
    a.e("s_waitcnt lgkmcnt(0)\ns_barrier")
    a.e(f"s_cmp_lg_u32 s12, 0\ns_cbranch_scc1 {name}_pdone")
    a.e(f"v_lshlrev_b32 v9, 2, v2\nv_add_u32 v9, {L_SUM}, v9")
    for q in range(8): a.e(f"ds_read_b32 v{50+q}, v9 offset:{q*128}")
    a.e("s_waitcnt lgkmcnt(0)")
    a.e("v_add_f32 v50, v50, v51\nv_add_f32 v52, v52, v53\nv_add_f32 v54, v54, v55\nv_add_f32 v56, v56, v57")
    a.e("v_add_f32 v50, v50, v52\nv_add_f32 v54, v54, v56\nv_add_f32 v50, v50, v54")
    a.e("v_cvt_pk_bf16_f32 v51, v50, v50\nv_lshlrev_b32 v51, 16, v51\nv_sub_f32 v52, v50, v51\nv_cvt_pk_bf16_f32 v52, v51, v52")
    a.e("v_cmp_eq_u32 vcc, 0, v3\nv_mov_b32 v54, 0\nv_mov_b32 v55, 0\nv_cndmask_b32 v52, v54, v52, vcc\nv_mov_b32 v53, v52")
    a.e(f"s_add_u32 s24, s18, {28*KB}")
    a.e("buffer_store_dwordx4 v[52:55], v1, s[4:7], s24 offen" + SC_AB)
    a.e(f"s_branch {name}_pdone")

    reset()
    a.label(f"{name}_C")
    src(P_WO, D * D * 2)
    a.e(f"s_sub_u32 s13, s2, {C0}\ns_and_b32 s14, s13, 7\ns_lshr_b32 s13, s13, 3")
    a.e(f"s_cmp_eq_u32 s14, 7\ns_cbranch_scc1 {name}_pdone0")
    a.e("s_lshl_b32 s14, s14, 1\ns_add_u32 s13, s13, s14\ns_lshl_b32 s15, s13, 6\ns_mov_b32 s16, 896")
    lanes(16, 15)
    a.e(f"s_mul_i32 s20, s12, {112*896}\ns_mov_b32 s21, {16*896}")
    stage(7)
    a.e(f"v_mov_b32 v14, {LOOB}\nv_cmp_eq_u32 vcc, 0, v3\nv_cndmask_b32 v9, v14, v8, vcc")
    a.e(f"s_lshl_b32 s24, s13, 5\ns_lshl_b32 s25, s12, 3\ns_add_u32 s24, s24, s25\ns_lshl_b32 s24, s24, 10\ns_add_u32 s24, s24, {WO}")
    ts0(94)
    a.e(f"s_waitcnt vmcnt({NT})")
    ts0(92)
    reset()
    for fr in range(8):
        q, e = fr // 2, fr % 2
        off = (28 * q + 16 * e) * 64
        trread(FR + 4*fr, 8, off); trread(FR + 4*fr + 2, 9 if e else 8, off + 512)
    ship(8)
    a.e(f"s_branch {name}_pdone")

    reset()
    a.label(f"{name}_Dn")
    src(P_WD, F * D * 2)
    a.e(f"s_sub_u32 s13, s2, {D0}\ns_mul_i32 s14, s13, 9363\ns_lshr_b32 s14, s14, 16")
    a.e("s_mul_i32 s25, s14, 7\ns_sub_u32 s25, s13, s25\ns_lshl_b32 s25, s25, 2\ns_add_u32 s25, s25, s12")
    a.e("v_lshrrev_b32 v4, 3, v7\nv_mul_u32_u24 v4, 896, v4\nv_and_b32 v5, 7, v7\nv_lshlrev_b32 v5, 4, v5\ns_lshl_b32 s15, s14, 7\nv_add3_u32 v4, v4, v5, s15")
    a.e(f"s_mul_i32 s20, s25, {64*896}\ns_mov_b32 s21, {8*896}")
    stage(8)
    a.e("v_bfe_u32 v8, v7, 2, 2\nv_lshl_add_u32 v8, v3, 2, v8\nv_lshlrev_b32 v8, 7, v8\nv_add_u32 v8, v8, v11")
    a.e("s_lshl_b32 s13, s12, 13\nv_add_u32 v8, s13, v8")
    a.e(f"s_mul_i32 s24, s14, 224\ns_lshl_b32 s26, s25, 2\ns_add_u32 s24, s24, s26\ns_lshl_b32 s24, s24, 10\ns_add_u32 s24, s24, {WD}")
    ts0(94)
    a.e(f"s_waitcnt vmcnt({NT})")
    ts0(92)
    reset()
    for e in range(2):
        for s in range(4):
            fr = 4 * e + s
            trread(FR + 4*fr, 8, s * 2048 + e * 64); trread(FR + 4*fr + 2, 8, s * 2048 + e * 64 + 1024)
    for fr in range(8):
        a.e(f"s_waitcnt lgkmcnt({min(15, 14 - 2*fr)})")
        a.e(f"buffer_store_dwordx4 v[{FR+4*fr}:{FR+4*fr+3}], v1, s[4:7], s24 offen" + SC_CD)
        a.e(f"s_add_u32 s24, s24, {1024 if fr != 3 else (112 - 3) * 1024}")
    a.e(f"s_branch {name}_pdone")

    reset()
    a.label(f"{name}_pdone0")
    T = int(opts.get("touch", 0))
    if T and standalone:
        lo = X + XSZ
        hi = HB if T == 1 else HB + 2 * HSZ
        per = -(-(hi - lo) // (23 * 4 * 8192)) * 8192
        a.e(f"s_cmp_lt_u32 s2, 232\ns_cbranch_scc1 {name}_notouch\ns_cmp_ge_u32 s2, 255\ns_cbranch_scc1 {name}_notouch")
        a.e(f"s_sub_u32 s20, s2, 232\ns_lshl_b32 s20, s20, 2\ns_add_u32 s20, s20, s12\ns_mul_i32 s20, s20, {per}\ns_add_u32 s20, s20, {lo}")
        a.e(f"v_lshlrev_b32 v16, 7, v7\ns_mov_b32 s21, 0")
        a.label(f"{name}_tl")
        a.e("buffer_load_dword v17, v16, s[4:7], s20 offen")
        a.e(f"s_add_u32 s20, s20, 8192\ns_add_u32 s21, s21, 1\ns_cmp_lt_u32 s21, {per // 8192}\ns_cbranch_scc1 {name}_tl")
        a.label(f"{name}_notouch")
        a.vmq = []
    a.e("s_waitcnt vmcnt(0)")
    if opts.get("prof"): a.e("s_memrealtime s[92:93]\ns_memrealtime s[94:95]\ns_waitcnt lgkmcnt(0)")
    a.label(f"{name}_pdone")
    a.e(f"s_cmp_ge_u32 s2, {NXB}\ns_cbranch_scc1 {name}_nox2")
    a.e(f"s_mul_i32 s21, s30, 28\ns_lshl_b32 s15, s31, 1\ns_add_u32 s21, s21, s15\ns_lshl_b32 s21, s21, 10\ns_add_u32 s21, s21, {X}")
    ST4 = int(opts.get("st4", 0))
    if ST4: a.e(f"s_mul_i32 s22, s30, 3584\ns_lshr_b32 s15, s31, 1\ns_lshl_b32 s15, s15, 9\ns_add_u32 s22, s22, s15\ns_and_b32 s15, s31, 1\ns_lshl_b32 s15, s15, 3\ns_add_u32 s22, s22, s15\ns_add_u32 s22, s22, {ST}")
    else: a.e(f"s_mul_i32 s22, s30, 3584\ns_lshl_b32 s15, s31, 8\ns_add_u32 s22, s22, s15\ns_add_u32 s22, s22, {ST}")
    a.e(f"s_mov_b32 s23, 0x3f803f80\nv_lshlrev_b32 v6, {4 if ST4 else 3}, v2\nv_mov_b32 v8, 0\nv_mov_b32 v9, 0")
    a.e("buffer_store_dwordx4 v[64:67], v1, s[4:7], s21 offen" + SC_X)
    a.e("buffer_store_dwordx4 v[68:71], v1, s[4:7], s21 offen offset:1024" + SC_X)
    for q in range(8):
        a.e(f"v_dot2_f32_bf16 v8, v{64+q}, s23, v8")
        a.e(f"v_dot2_f32_bf16 v9, v{64+q}, v{64+q}, v9")
    a.e("v_mov_b32 v10, v8\nv_mov_b32 v11, v9")
    a.e("v_permlane32_swap_b32 v10, v8\nv_permlane32_swap_b32 v11, v9")
    a.e("v_add_f32 v12, v8, v10\nv_add_f32 v13, v9, v11")
    a.e("s_mov_b32 exec_hi, 0")
    a.e("buffer_store_dwordx2 v[12:13], v6, s[4:7], s22 offen" + SC_X)
    a.e("s_mov_b32 exec_hi, -1")
    a.label(f"{name}_nox2")
    if standalone: return
    lab = f"{name}_pw"
    a.e(f"s_mov_b32 s16, s{P_DBG}\ns_mov_b32 s17, s{P_DBG+1}\ns_mov_b32 s18, 256\ns_mov_b32 s19, 0x20000")
    def ts(r):
        if opts.get("prof"): a.e(f"s_memrealtime s[{r}:{r+1}]\ns_waitcnt lgkmcnt(0)")
    ts(86)
    a.e("s_waitcnt vmcnt(0) lgkmcnt(0)\ns_barrier")
    ts(88)
    a.e(f"s_cmp_lg_u32 s12, 0\ns_cbranch_scc1 {lab}_skip")
    a.e("s_mov_b64 exec, 1\ns_mov_b32 s28, 0")
    a.label(f"{lab}_z")
    a.e("buffer_load_dword v5, off, s[16:19], 0 sc1")
    a.e(f"s_add_u32 s28, s28, 1\ns_cmp_gt_u32 s28, 1000000\ns_cbranch_scc1 {lab}_zx")
    a.e(f"s_waitcnt vmcnt(0)\nv_readfirstlane_b32 s23, v5\ns_cmp_eq_u32 s23, 0\ns_cbranch_scc1 {lab}_z")
    a.label(f"{lab}_zx")
    ts(90)
    a.e(f"s_and_b32 s20, s2, 15\ns_lshl_b32 s20, s20, 7\ns_add_u32 s20, s20, {PFLAG}")
    a.e("v_mov_b32 v5, 1\ns_waitcnt vmcnt(0)")
    a.e("buffer_atomic_add v5, off, s[4:7], s20 sc1")
    a.e(f"s_mov_b64 exec, 0xffff\nv_and_b32 v6, 15, v0\nv_lshlrev_b32 v6, 7, v6\ns_mov_b32 s20, {PFLAG}\ns_mov_b32 s28, 0")
    a.label(f"{lab}_p")
    if int(opts.get("psl0", 0)): a.e(f"s_sleep {int(opts.get('psl0'))}")
    a.e("buffer_load_dword v5, v6, s[4:7], s20 offen sc1")
    a.e(f"s_add_u32 s28, s28, 1\ns_cmp_gt_u32 s28, 1000000\ns_cbranch_scc1 {lab}_px")
    a.e(f"s_waitcnt vmcnt(0)\nv_cmp_gt_u32 vcc, 16, v5\ns_cbranch_vccnz {lab}_p")
    a.label(f"{lab}_px")
    a.e("s_waitcnt vmcnt(0)\ns_mov_b64 exec, -1")
    a.label(f"{lab}_skip")
    a.e("s_barrier")
    reset()


NPREP = 256
PREP_LDS = L_SUM + 1024
def gen_prep(name, opts=None):
    from asmlib import Asm
    opts = opts or {}
    a = Asm()
    a.label(name)
    if opts.get("prof"): a.e("s_memrealtime s[84:85]")
    a.e(f"s_cmp_lt_u32 s2, {NPREP}\ns_cbranch_scc1 {name}_go\ns_endpgm")
    a.label(f"{name}_go")
    a.e("s_load_dwordx16 s[64:79], s[0:1], 0\ns_load_dwordx2 s[4:5], s[0:1], 80")
    if int(opts.get("pf_code", 0)):
        n = int(opts.get("pf_lines", 14))
        a.e("s_getpc_b64 s[28:29]")
        a.label(f"{name}_pc")
        a.e(f"s_add_u32 s28, s28, main_kernel-{name}_pc\ns_addc_u32 s29, s29, 0")
        a.e(f"s_lshr_b32 s30, s2, 3\ns_and_b32 s30, s30, 31\ns_mul_i32 s30, s30, {n*64}\ns_min_u32 s30, s30, main_kernel_end-main_kernel-{n*64}\ns_add_u32 s28, s28, s30\ns_addc_u32 s29, s29, 0")
        for i in range(n): a.e(f"s_load_dwordx16 s[32:47], s[28:29], {i*64}")
    if str(opts.get("prof")) == "3":
        a.e("s_waitcnt lgkmcnt(0)")
        if int(opts.get("wsoff", 0)):
            a.e(f"s_add_u32 s4, s4, {int(opts.get('wsoff')) << 20}\ns_addc_u32 s5, s5, 0")
            opts = dict(opts, _wsdone=1)
        a.e(f"s_mov_b32 s6, {WS_USED}\ns_mov_b32 s7, 0x20000\ns_lshl_b32 s20, s2, 3\ns_add_u32 s20, s20, {DBG + 256*512}\nv_mov_b32 v16, s84\ns_mov_b64 exec, 1")
        a.e("buffer_store_dword v16, off, s[4:7], s20\ns_mov_b64 exec, -1")
        a.vmq = []
    emit_prep(a, name, dict(opts, prof=None), standalone=True)
    if opts.get("prof") and str(opts.get("prof")) != "3":
        a.e("s_waitcnt vmcnt(0)\ns_memrealtime s[86:87]\ns_waitcnt lgkmcnt(0)")
        a.e(f"s_lshl_b32 s20, s2, 3\ns_add_u32 s20, s20, {DBG + 256*512}\nv_mov_b32 v16, s84\nv_mov_b32 v17, s86\ns_mov_b64 exec, 1")
        a.e("buffer_store_dwordx2 v[16:17], off, s[4:7], s20")
    a.e("s_endpgm")
    return a.finalize()
```
